```python
import torch

def _softmax(x, axis=-1):
    return torch.softmax(x, dim=axis)
def _gelu(x):
    return torch.nn.functional.gelu(x, approximate="tanh")
def _silu(x):
    return torch.nn.functional.silu(x)
def _sigmoid(x):
    return torch.sigmoid(x)
def _layernorm(x, axis=-1, eps=1e-5):
    m = x.mean(dim=axis, keepdim=True)
    v = x.var(dim=axis, keepdim=True, unbiased=False)
    return (x - m) / torch.sqrt(v + eps)
def _scatter_add(tgt, idx, src, axis=0):
    return tgt.clone().index_add_(axis, idx, src)
def _segment_sum(src, seg, n):
    out = torch.zeros((n,) + src.shape[1:], dtype=src.dtype)
    return out.index_add_(0, seg, src)
def _pad(x, pw):
    flat = tuple(v for pair in reversed(pw) for v in pair)
    return torch.nn.functional.pad(x, flat)

kernel_name = 'concat_heads__gqa_block_cached__gqa_block_cached__near_ridge'

def setup_inputs():

    _w = (lambda a: (lambda t: t.to(torch.bfloat16) if t.is_floating_point() else t)(torch.as_tensor(a)))
    def _A_setup():
        B, Sq, D = 8, 160, 512
        Hq, Hkv, Sk, Dh = 32, 32, 1024, 128
        assert Hq % Hkv == 0, (Hq, Hkv)
        return {
            "x": _w((lambda *s: torch.randn(*s, dtype=torch.bfloat16) * 0.8)(B, Sq, D)),
            "k_cache": _w((lambda *s: torch.randn(*s, dtype=torch.bfloat16) * 0.8)(B, Hkv, Sk, Dh)),
            "v_cache": _w((lambda *s: torch.randn(*s, dtype=torch.bfloat16) * 0.05)(B, Hkv, Sk, Dh)),
            "wq": _w((lambda *s: torch.randn(*s, dtype=torch.bfloat16) * 0.8)(D, Hq * Dh) * (D ** -0.5)),
            "wo": _w((lambda *s: torch.randn(*s, dtype=torch.bfloat16) * 0.05)(Hq * Dh, D) * ((Hq * Dh) ** -0.5)),
        }
    _A_in = _A_setup()

    def _B_setup():
        B, Sq, D = 8, 160, 512
        Hq, Hkv, Sk, Dh = 32, 32, 1024, 128
        assert Hq % Hkv == 0, (Hq, Hkv)
        return {
            "x": _w((lambda *s: torch.randn(*s, dtype=torch.bfloat16) * 0.8)(B, Sq, D)),
            "k_cache": _w((lambda *s: torch.randn(*s, dtype=torch.bfloat16) * 0.8)(B, Hkv, Sk, Dh)),
            "v_cache": _w((lambda *s: torch.randn(*s, dtype=torch.bfloat16) * 0.05)(B, Hkv, Sk, Dh)),
            "wq": _w((lambda *s: torch.randn(*s, dtype=torch.bfloat16) * 0.8)(D, Hq * Dh) * (D ** -0.5)),
            "wo": _w((lambda *s: torch.randn(*s, dtype=torch.bfloat16) * 0.05)(Hq * Dh, D) * ((Hq * Dh) ** -0.5)),
        }
    _B_in = _B_setup()

    return {
        "A_x": _A_in["x"],
        "A_k_cache": _A_in["k_cache"],
        "A_v_cache": _A_in["v_cache"],
        "A_wq": _A_in["wq"],
        "A_wo": _A_in["wo"],
        "B_x": _B_in["x"],
        "B_k_cache": _B_in["k_cache"],
        "B_v_cache": _B_in["v_cache"],
        "B_wq": _B_in["wq"],
        "B_wo": _B_in["wo"],
    }

def reference(A_x, A_k_cache, A_v_cache, A_wq, A_wo, B_x, B_k_cache, B_v_cache, B_wq, B_wo):
    def _A_ref(x, k_cache, v_cache, wq, wo):
        B, Sq, D = x.shape
        Hq, Dh = 32, 128
        Hkv = k_cache.shape[1]
        rep = Hq // Hkv
        q = (lambda x, *d: x.permute(*d))((x @ wq).reshape(B, Sq, Hq, Dh), 0, 2, 1, 3)
        k = (lambda x, n, axis: torch.repeat_interleave(x, n, dim=axis))(k_cache, rep, axis=1)
        v = (lambda x, n, axis: torch.repeat_interleave(x, n, dim=axis))(v_cache, rep, axis=1)
        scores = torch.einsum("bhqd,bhkd->bhqk", q, k) * (Dh ** -0.5)
        p = _softmax(scores, axis=-1)
        o = torch.einsum("bhqk,bhkd->bhqd", p, v)
        return (lambda x, *d: x.permute(*d))(o, 0, 2, 1, 3).reshape(B, Sq, Hq * Dh) @ wo

    def _B_ref(x, k_cache, v_cache, wq, wo):
        B, Sq, D = x.shape
        Hq, Dh = 32, 128
        Hkv = k_cache.shape[1]
        rep = Hq // Hkv
        q = (lambda x, *d: x.permute(*d))((x @ wq).reshape(B, Sq, Hq, Dh), 0, 2, 1, 3)
        k = (lambda x, n, axis: torch.repeat_interleave(x, n, dim=axis))(k_cache, rep, axis=1)
        v = (lambda x, n, axis: torch.repeat_interleave(x, n, dim=axis))(v_cache, rep, axis=1)
        scores = torch.einsum("bhqd,bhkd->bhqk", q, k) * (Dh ** -0.5)
        p = _softmax(scores, axis=-1)
        o = torch.einsum("bhqk,bhkd->bhqd", p, v)
        return (lambda x, *d: x.permute(*d))(o, 0, 2, 1, 3).reshape(B, Sq, Hq * Dh) @ wo

    a = _A_ref(A_x, A_k_cache, A_v_cache, A_wq, A_wo)
    b = _B_ref(B_x, B_k_cache, B_v_cache, B_wq, B_wo)
    return torch.concatenate([a, b], axis=-1)
```

```python
import re

REG_RE = re.compile(r'^(-|abs\()?([vas])(?:(\d+)|\[(\d+):(\d+)\])\)?$')

def regs_of(tok):
    tok = tok.strip()
    if tok in ('vcc', 'vcc_lo', 'vcc_hi'): return {'vcc'}
    if tok in ('exec', 'exec_lo', 'exec_hi'): return {'exec'}
    if tok == 'm0': return {'m0'}
    m = REG_RE.match(tok)
    if not m: return set()
    k = m.group(2)
    if m.group(3) is not None: return {k + m.group(3)}
    return {k + str(i) for i in range(int(m.group(4)), int(m.group(5)) + 1)}

TRANS = ('v_exp_f32', 'v_log_f32', 'v_rcp_f32', 'v_rsq_f32', 'v_sqrt_f32', 'v_sin_f32', 'v_cos_f32')

class Ins:
    __slots__ = ('text', 'op', 'cls', 'w', 'r', 'rc', 'tag', 'passes', 'wait', 'label', 'wide', 'data', 'd_exact')
    def __init__(self, text, tag=None):
        self.text = text; self.tag = tag; self.wait = None; self.label = None
        self.w = set(); self.r = set(); self.rc = set(); self.passes = 0; self.wide = False; self.data = set()
        t = text.split(';')[0].strip()
        if t.endswith(':'):
            self.op = 'label'; self.cls = 'label'; self.label = t[:-1]; return
        if t.startswith('@'):
            p = t[1:].split(None, 1); self.op = '@' + p[0]; self.cls = 'pseudo'; self.wait = p[1].split(',') if len(p) > 1 else []
            return
        if t.startswith('.') or t == '':
            self.op = 'dir'; self.cls = 'dir'; return
        p = t.split(None, 1); op = p[0]; self.op = op
        rest = p[1] if len(p) > 1 else ''
        ops = [x.strip() for x in rest.split(',')] if rest else []
        mods = []
        if ops:
            last = ops[-1].split()
            ops[-1] = last[0]; mods = last[1:]
        R = [regs_of(o) for o in ops]
        def allr(lst):
            s = set()
            for x in lst: s |= x
            return s
        if op.startswith('v_mfma'):
            self.cls = 'mfma'; self.w = R[0]; self.r = R[1] | R[2]; self.rc = R[3]
            self.passes = 8 if '32x32' in op else 4
        elif op.startswith('ds_read') or op.startswith('ds_bpermute') or op.startswith('ds_swizzle'):
            self.cls = 'dsr'; self.w = R[0]; self.r = allr(R[1:])
        elif op.startswith('ds_'):
            self.cls = 'dsw'; self.r = allr(R)
        elif op.startswith('buffer_load') or op.startswith('global_load'):
            if 'lds' in mods:
                self.cls = 'dma'; self.r = allr(R) | {'m0'}
            else:
                self.cls = 'vld'; self.w = R[0]; self.r = allr(R[1:])
        elif op.startswith('buffer_store') or op.startswith('global_store') or op.startswith('buffer_atomic') or op.startswith('global_atomic'):
            self.cls = 'vst'; self.r = allr(R)
            if op.startswith('buffer_'): self.data = R[0]
            else: self.data = R[1]
            self.wide = ('x4' in op or 'x3' in op)
            if 'atomic' in op and 'sc0' in mods: self.w = R[0]; self.cls = 'vld'
        elif op.startswith('buffer_wbl2') or op.startswith('buffer_inv'):
            self.cls = 'vst'
        elif op.startswith('s_load') or op.startswith('s_memtime') or op.startswith('s_memrealtime') or op.startswith('s_buffer_load'):
            self.cls = 'smem'; self.w = R[0]; self.r = allr(R[1:])
        elif op == 's_waitcnt':
            self.cls = 'wait'
        elif op == 's_nop':
            self.cls = 'nop'; self.passes = int(ops[0], 0) + 1
        elif op in ('s_barrier', 's_endpgm', 's_setprio', 's_sleep') or op.startswith('s_cbranch') or op == 's_branch':
            self.cls = 'ctl'
            if 'vcc' in op: self.r = {'vcc'}
        elif op.startswith('s_cmp') or op.startswith('s_bitcmp'):
            self.cls = 'salu'; self.r = allr(R); self.w = {'scc'}
        elif op.startswith('s_'):
            self.cls = 'salu'; self.w = R[0]; self.r = allr(R[1:])
            if op.startswith('s_addk') or op.startswith('s_mulk'): self.r |= R[0]
            if 'saveexec' in op: self.w |= {'exec'}
        elif op.startswith('v_'):
            self.cls = 'trans' if op.replace('_e32', '').replace('_e64', '') in TRANS else 'valu'
            if op.startswith('v_permlane') and 'swap' in op:
                self.w = R[0] | R[1]; self.r = R[0] | R[1]
            elif op.startswith('v_add_co') or op.startswith('v_addc_co') or op.startswith('v_sub_co'):
                self.w = R[0] | R[1]; self.r = allr(R[2:])
            else:
                self.w = R[0]; self.r = allr(R[1:])
                if op.startswith('v_fmac') or op.startswith('v_pk_fmac') or op.startswith('v_writelane') or op.startswith('v_dot2c'): self.r |= R[0]
                if op.startswith('v_cmpx'): self.w |= {'exec'}
        else:
            raise ValueError('unknown instruction: ' + text)
    def cost(self):
        return {'trans': 8, 'mfma': 8, 'label': 0, 'pseudo': 4, 'dir': 0}.get(self.cls, 4)

def I(text, tag=None): return Ins(text, tag)

class Block:
    def __init__(self, name): self.name = name; self.ins = []
    def __call__(self, text, tag=None):
        for line in text.split('\n'):
            line = line.strip()
            if line: self.ins.append(Ins(line, tag))
        return self
    def extend(self, lst):
        for x in lst: self.ins.append(x if isinstance(x, Ins) else Ins(x))

VM = ('dma', 'vld', 'vst')
def place_waits(blocks, traces):
    need = {}
    for tr in traces:
        vq = []; lq = []
        for name in tr:
            for idx, x in enumerate(blocks[name].ins):
                nv = nl = None
                if x.cls in ('label', 'dir'): continue
                if x.cls == 'pseudo':
                    if x.op == '@waitvm':
                        for k in range(len(vq) - 1, -1, -1):
                            if vq[k][1] in x.wait or x.wait == ['*']:
                                nv = len(vq) - 1 - k; break
                    elif x.op == '@waitlgkm':
                        for k in range(len(lq) - 1, -1, -1):
                            if lq[k][1] in x.wait or x.wait == ['*']:
                                nl = len(lq) - 1 - k; break
                elif x.cls == 'wait':
                    m = re.search(r'vmcnt\((\d+)\)', x.text)
                    if m: vq = vq[len(vq) - int(m.group(1)):] if int(m.group(1)) < len(vq) else vq
                    if m and int(m.group(1)) == 0: vq = []
                    m = re.search(r'lgkmcnt\((\d+)\)', x.text)
                    if m:
                        n = int(m.group(1))
                        if n == 0: lq = []
                        elif n < len(lq) and not any(e[2] for e in lq): lq = lq[len(lq) - n:]
                    continue
                else:
                    touched = x.r | x.rc | x.w
                    for k in range(len(vq) - 1, -1, -1):
                        if vq[k][0] & touched: nv = len(vq) - 1 - k; break
                    for k in range(len(lq) - 1, -1, -1):
                        if lq[k][0] & touched: nl = len(lq) - 1 - k; break
                if nl is not None and any(e[2] for e in lq): nl = 0
                if nv is not None: nv = min(nv, 62)
                if nl is not None: nl = min(nl, 14)
                if nv is not None or nl is not None:
                    cur = need.setdefault((name, idx), [None, None])
                    if nv is not None: cur[0] = nv if cur[0] is None else min(cur[0], nv)
                    if nl is not None: cur[1] = nl if cur[1] is None else min(cur[1], nl)
                    if nv is not None: vq = vq[len(vq) - nv:] if nv else []
                    if nl is not None: lq = lq[len(lq) - nl:] if nl else []
                if x.cls in VM: vq.append((x.w, x.tag))
                elif x.cls in ('dsr', 'dsw'): lq.append((x.w, x.tag, False))
                elif x.cls == 'smem': lq.append((x.w, x.tag, True))
    for name, b in blocks.items():
        out = []
        for idx, x in enumerate(b.ins):
            n = need.get((name, idx))
            if n:
                s = 's_waitcnt' + (' vmcnt(%d)' % n[0] if n[0] is not None else '') + (' lgkmcnt(%d)' % n[1] if n[1] is not None else '')
                out.append(Ins(s))
            if x.cls != 'pseudo': out.append(x)
        b.ins = out

def hazard_need(p, c):
    n = 0
    pv = p.cls in ('valu', 'trans')
    cv = c.cls in ('valu', 'trans')
    if p.cls == 'mfma':
        x8 = p.passes == 8
        if c.cls == 'mfma':
            if p.w & c.r: n = max(n, 12 if x8 else 8)
            if p.w & c.rc and not (p.w == c.rc and p.passes == c.passes): n = max(n, 10 if x8 else 6)
            if p.w & c.w and not (p.w == c.rc and p.passes == c.passes): n = max(n, 10 if x8 else 6)
        elif cv:
            if p.w & (c.r | c.w): n = max(n, 12 if x8 else 8)
            if p.rc & c.w: n = max(n, 7 if x8 else 3)
        elif c.cls in ('dsr', 'dsw', 'vld', 'vst', 'dma'):
            if p.w & (c.r | c.w): n = max(n, 12 if x8 else 8)
            if p.rc & c.w: n = max(n, 7 if x8 else 3)
    if pv:
        vw = {r for r in p.w if r[0] in 'va' and r != 'vcc'}
        sw = p.w - vw
        if c.cls == 'mfma' and vw & (c.r | c.rc): n = max(n, 2)
        if c.cls == 'mfma' and 'exec' in p.w: n = max(n, 4)
        if cv:
            if p.cls == 'trans' and c.cls != 'trans' and vw & c.r: n = max(n, 1)
            if p.cls == 'trans' and c.cls == 'trans' and vw & c.r: n = max(n, 1)
            if c.op.startswith('v_permlane') and vw & c.r: n = max(n, 2)
            if (c.op.startswith('v_readfirstlane') or c.op.startswith('v_readlane')) and vw & c.r: n = max(n, 1)
            if 'dpp' in c.text or 'row_' in c.text or 'quad_perm' in c.text:
                if vw & c.r: n = max(n, 2)
            if sw & c.r: n = max(n, 2)
            if c.op.startswith('v_cndmask') and 'vcc' in sw and 'vcc' in c.text: n = max(n, 2)
            if (c.op.startswith('v_readlane') or c.op.startswith('v_writelane')) and sw & c.r: n = max(n, 4)
        if c.cls in ('vld', 'vst', 'dma') and sw & c.r: n = max(n, 5)
        if c.cls in ('salu', 'smem') and sw & c.r: n = max(n, 2)
        if c.cls == 'ctl' and sw & c.r: n = max(n, 1)
    if p.cls == 'salu' and 'm0' in p.w and c.cls == 'dma': n = max(n, 1)
    if p.cls == 'vst' and p.wide and p.data & c.w: n = max(n, 2 if cv else 1)
    if p.cls == 'dsw' and False: pass
    return n

def place_nops(blocks, traces, window=24):
    need = {}
    for tr in traces:
        hist = []
        for name in tr:
            for idx, x in enumerate(blocks[name].ins):
                if x.cls in ('label', 'dir', 'pseudo'): continue
                d = 0; req = 0
                for p, st in reversed(hist):
                    h = hazard_need(p, x)
                    if h - d > req: req = h - d
                    d += st
                    if d >= 20: break
                pre = need.get((name, idx), 0)
                if req > pre: need[(name, idx)] = req; pre = req
                if pre: hist.append((Ins('s_nop 0'), pre))
                hist.append((x, x.passes if x.cls == 'nop' else 1))
                if len(hist) > window + 8: hist = hist[-window:]
    total = 0
    for name, b in blocks.items():
        out = []
        for idx, x in enumerate(b.ins):
            n = need.get((name, idx), 0)
            total += n
            while n > 0:
                k = min(n, 16); out.append(Ins('s_nop %d' % (k - 1))); n -= k
            out.append(x)
        b.ins = out
    return total

class Gaps:
    def __init__(self, backbone, budget):
        self.bb = backbone; self.budget = budget
        self.g = {i: [] for i in range(-1, len(backbone))}
    def used(self, i): return sum(x.cost() for x in self.g[i])
    def put(self, i, *ins, front=False):
        lst = [x if isinstance(x, Ins) else Ins(x) for x in ins]
        if front: self.g[i] = lst + self.g[i]
        else: self.g[i].extend(lst)
    def spread(self, chain, lo, hi):
        chain = [x if isinstance(x, Ins) else Ins(x) for x in chain]
        for level in range(4, 2000, 2):
            pos = []; i = lo; u = self.used(i)
            ok = True
            for x in chain:
                while u + x.cost() > level:
                    i += 1
                    if i > hi: ok = False; break
                    u = self.used(i)
                if not ok: break
                pos.append(i); u += x.cost()
            if ok:
                for x, i in zip(chain, pos): self.g[i].append(x)
                return level
        raise RuntimeError('cannot spread')
    def emit(self, lo=-1, hi=None, with_mfma=True):
        out = []
        hi = len(self.bb) - 1 if hi is None else hi
        for i in range(lo, hi + 1):
            if i >= 0 and with_mfma: out.append(self.bb[i])
            out.extend(self.g[i])
        return out
    def est_cycles(self, mf=32):
        return sum(max(mf, 8 + self.used(i)) for i in range(len(self.bb))) + self.used(-1)

def render(blocks_in_order):
    L = []
    for b in blocks_in_order:
        for x in b.ins:
            L.append(x.text if x.cls in ('label', 'dir') else '    ' + x.text)
    return '\n'.join(L) + '\n'
```

```python
import sys, math, struct
from asmlib import *

NAME = "concat_heads__gqa_block_cached__gqa_block_cached__near_ridge"
def f32bits(x): return struct.unpack('<I', struct.pack('<f', x))[0]
MF32 = 'v_mfma_f32_32x32x16_bf16'
MF16 = 'v_mfma_f32_16x16x32_bf16'
def vr(b, n=1, k='v'): return '%s%d' % (k, b) if n == 1 else '%s[%d:%d]' % (k, b, b + n - 1)
def ar(b, n=1): return vr(b, n, 'a')
def sr(b, n=1): return vr(b, n, 's')

class Opt:
    kv_pol = ' nt'
    w_pol = ''
    o_st_pol = ''
    o_ld_pol = ''
    wo_pol = ''
    stamps = False
    fallback = True
opt = Opt()

S_K, S_V, S_X, S_WQ, S_O = 4, 8, 12, 16, 20
sW, sW8, sKS, sVS, sKN, sKV, sKV2, sDK, sDV, sCNT, sHH, sSC = 24, 25, 26, 27, 28, 29, 30, 31, 32, 33, 34, 36
sT0, sT1, sT2, sT3, sC0, sEX, sOOF, sB, sBR, sH1, sTH = 38, 39, 40, 41, 42, 43, 44, 45, 46, 47, 48
sM0A, sM0B = 49, 50
S_TS = 52
sTSA = 56
vKA, vVA, vKD, vVD, vLO, vL4 = 8, 16, 20, 24, 25, 26
vLANE = 27
vNO, vN4, vS, vF = 32, 48, 64, 144
NB = 10
vOA = 184
vEW, vER = 190, 194
vT = 200
aO, aO4, aQ, aQ4, aQN, aQN4 = 0, 64, 128, 160, 192, 224
vWA, vXA, vX4, vWD, vXD = 32, 36, 40, 44, 48
vQX = 54
vACC = 64
aFA, aFB = 0, 40
SLOT = 32768
XB0, WB0 = 65536, 65536 + 40960
QXB = WB0 + 16384
EB = 98304

stamp_n = [0]
def stamp(b):
    if not opt.stamps: return
    n = stamp_n[0]; stamp_n[0] += 1
    b('s_memrealtime s[%d:%d]\ns_waitcnt lgkmcnt(0)\nv_mov_b32 v250, s%d\nv_mov_b32 v251, %d' % (sTSA, sTSA + 1, sTSA, 4 * n))
    b('buffer_store_dword v250, v251, s[%d:%d], 0 offen' % (S_TS, S_TS + 3), 'stamp')

def k1_setup():
    b = Block('k1_setup')
    b('s_cmp_ge_u32 s2, 256\ns_cbranch_scc1 L_k1_end')
    b('''s_and_b32 s38, s2, 7
         s_lshr_b32 s%d, s38, 2
         s_and_b32 s38, s38, 3
         s_lshr_b32 s39, s2, 3
         s_and_b32 s%d, s39, 7
         s_lshr_b32 s39, s39, 3
         s_lshl_b32 s38, s38, 3
         s_lshl_b32 s40, s39, 1
         s_add_u32 s%d, s38, s40
         s_add_u32 s%d, s%d, s40
         s_and_b32 s%d, s%d, 7''' % (sBR, sB, sH1, sC0, sB, sC0, sC0))
    b('''s_mul_i32 s38, s%d, 40
         s_add_u32 s60, s0, s38
         s_addc_u32 s61, s1, 0
         s_load_dwordx8 s[64:71], s[60:61], 0
         s_load_dwordx2 s[72:73], s[0:1], 96''' % sBR)
    b('''v_lshrrev_b32 v1, 6, v0
         v_and_b32 v%d, 63, v0
         v_readfirstlane_b32 s%d, v1''' % (vLANE, sW))
    L = vLANE
    b('s_lshl_b32 s%d, s%d, 13' % (sW8, sW))
    b('''v_and_b32 v1, 31, v{L}
         v_lshrrev_b32 v2, 5, v{L}
         v_lshrrev_b32 v3, 4, v{L}
         v_and_b32 v4, 15, v{L}
         v_bfe_u32 v5, v{L}, 2, 2
         v_and_b32 v6, 3, v{L}'''.format(L=L))
    T = vT
    b('s_lshl_b32 s38, s%d, 2' % sW)
    b('v_xor_b32 v%d, s38, v4\nv_xor_b32 v%d, v%d, v2' % (T, T, T))
    for ks in range(8):
        b('v_xor_b32 v%d, %d, v%d\nv_lshlrev_b32 v%d, 4, v%d\nv_lshl_add_u32 v%d, v1, 8, v%d' % (T + 1, 2 * ks, T, T + 1, T + 1, vKA + ks, T + 1))
    b('''v_and_b32 v{a}, 1, v3
         v_lshlrev_b32 v{a}, 1, v{a}
         v_lshrrev_b32 v{c}, 1, v6
         v_add_u32 v{a}, v{a}, v{c}
         v_lshlrev_b32 v{c}, 2, v5
         v_xor_b32 v{a}, v{a}, v{c}
         v_xor_b32 v{a}, s38, v{a}
         v_lshl_add_u32 v{c}, v2, 2, v5
         v_lshlrev_b32 v{c}, 8, v{c}
         v_and_b32 v{d}, 1, v6
         v_lshl_add_u32 v{c}, v{d}, 3, v{c}
         v_add_u32 v{c}, {slot}, v{c}'''.format(a=T, c=T + 1, d=T + 2, slot=SLOT))
    for j in range(4):
        b('v_xor_b32 v%d, %d, v%d\nv_lshl_add_u32 v%d, v%d, 4, v%d' % (T + 2, 4 * j, T, vVA + j, T + 2, T + 1))
    for m4 in range(4):
        b('v_add_u32 v%d, %d, v3\nv_xor_b32 v%d, v%d, v4\nv_lshlrev_b32 v%d, 4, v%d\nv_lshl_add_u32 v%d, v3, 8, v%d' % (T, 4 * m4, T, T, T, T, vKD + m4, T))
    b('v_lshlrev_b32 v%d, 2, v3\nv_xor_b32 v%d, v%d, v4\nv_lshlrev_b32 v%d, 4, v%d\nv_lshl_add_u32 v%d, v3, 8, v%d' % (T, T, T, T, T, vVD, T))
    b('''v_and_b32 v{a}, 1, v3
         v_lshlrev_b32 v{a}, 1, v{a}
         v_and_b32 v{c}, 1, v6
         v_add_u32 v{a}, v{a}, v{c}
         v_lshlrev_b32 v{c}, 2, v5
         v_xor_b32 v{a}, v{a}, v{c}
         v_xor_b32 v{a}, s38, v{a}
         v_lshl_add_u32 v{c}, v2, 3, v5
         v_lshlrev_b32 v{c}, 9, v{c}
         v_lshrrev_b32 v{d}, 1, v6
         v_lshl_add_u32 v{c}, v{d}, 3, v{c}
         v_add_u32 v{c}, {base}, v{c}'''.format(a=T, c=T + 1, d=T + 2, base=WB0))
    for j in range(4):
        b('v_xor_b32 v%d, %d, v%d\nv_lshl_add_u32 v%d, v%d, 4, v%d' % (T + 2, 4 * j, T, vWA + j, T + 2, T + 1))
    b('''v_bfe_u32 v{a}, v1, 1, 3
         v_xor_b32 v{a}, v{a}, v2
         v_lshlrev_b32 v{c}, 7, v1
         v_add_u32 v{c}, {base}, v{c}
         s_lshl_b32 s39, s{w}, 12'''.format(a=T, c=T + 1, base=XB0, w=sW))
    for k in range(4):
        b('v_xor_b32 v%d, %d, v%d\nv_lshl_add_u32 v%d, v%d, 4, v%d' % (T + 2, 2 * k, T, T + 2, T + 2, T + 1))
        b('v_add_u32 v%d, s39, v%d\nv_add_u32 v%d, 16384, v%d' % (vXA + k, T + 2, vX4 + k, T + 2))
    b('s_lshl_b32 s39, s%d, 16' % sW)
    for n in range(4):
        b('''v_add_u32 v{a}, {n2}, v2
             v_and_b32 v{c}, 3, v{a}
             v_lshlrev_b32 v{c}, 2, v{c}
             v_xor_b32 v{c}, v{c}, v1
             v_lshlrev_b32 v{c}, 4, v{c}
             v_lshl_add_u32 v{c}, v{a}, 13, v{c}
             v_add_u32 v{c}, s39, v{c}
             v_subrev_u32 v{d}, {sub}, v{c}'''.format(a=T, c=T + 1, n2=2 * n, d=vWD + n, sub=1024 * n))
    b('s_lshl_b32 s39, s%d, 15\nv_lshrrev_b32 v%d, 3, v%d\nv_and_b32 v%d, 7, v%d' % (sW, T + 3, L, T + 4, L))
    for n in range(4):
        b('''v_add_u32 v{a}, {n4}, v3
             v_and_b32 v{a}, 7, v{a}
             v_xor_b32 v{a}, v{a}, v{p}
             v_lshlrev_b32 v{a}, 4, v{a}
             v_lshl_add_u32 v{a}, v{r}, 10, v{a}
             v_add_u32 v{a}, {add}, v{a}
             v_add_u32 v{d}, s39, v{a}'''.format(a=T, n4=4 * n, p=T + 4, r=T + 3, add=7 * 1024 * n, d=vXD + n))
    b('''s_lshl_b32 s39, s{w}, 13
         s_add_u32 s39, s39, 131072
         v_add_u32 v{a}, s38, v3
         v_and_b32 v{a}, 7, v{a}
         v_xor_b32 v{a}, v{a}, v{p}
         v_lshlrev_b32 v{a}, 4, v{a}
         v_lshl_add_u32 v{a}, v{r}, 10, v{a}
         v_add_u32 v{d}, s39, v{a}'''.format(w=sW, a=T, p=T + 4, r=T + 3, d=vXD + 4))
    for j in range(4):
        b('s_xor_b32 s39, s%d, %d\ns_lshl_b32 s39, s39, 11\ns_add_u32 s39, s39, %d\nv_lshl_add_u32 v%d, v%d, 4, s39' % (sW, j, QXB, vQX + j, L))
    b('s_waitcnt lgkmcnt(0)')
    b('''s_lshl_b32 s38, s{B}, 5
         s_add_u32 s38, s38, s{H}
         s_lshl_b32 s39, s38, 18
         s_add_u32 s{K}, s66, s39
         s_addc_u32 s{K1}, s67, 0
         s_mov_b32 s{K2}, 524288
         s_mov_b32 s{K3}, 0x20000
         s_add_u32 s{V}, s68, s39
         s_addc_u32 s{V1}, s69, 0
         s_mov_b32 s{V2}, 524288
         s_mov_b32 s{V3}, 0x20000
         s_mul_i32 s39, s{B}, 163840
         s_add_u32 s{X}, s64, s39
         s_addc_u32 s{X1}, s65, 0
         s_mov_b32 s{X2}, 163840
         s_mov_b32 s{X3}, 0x20000
         s_lshl_b32 s39, s{H}, 8
         s_add_u32 s{W}, s70, s39
         s_addc_u32 s{W1}, s71, 0
         s_sub_u32 s{W2}, 4194304, s39
         s_mov_b32 s{W3}, 0x20000
         s_lshl_b32 s39, s{BR}, 8
         s_add_u32 s38, s38, s39
         s_mul_i32 s39, s38, 40960
         s_add_u32 s{O}, s72, s39
         s_addc_u32 s{O1}, s73, 0
         s_mov_b32 s{O2}, 81920
         s_mov_b32 s{O3}, 0x20000'''.format(B=sB, H=sH1, BR=sBR, K=S_K, K1=S_K + 1, K2=S_K + 2, K3=S_K + 3, V=S_V, V1=S_V + 1, V2=S_V + 2, V3=S_V + 3,
             X=S_X, X1=S_X + 1, X2=S_X + 2, X3=S_X + 3, W=S_WQ, W1=S_WQ + 1, W2=S_WQ + 2, W3=S_WQ + 3, O=S_O, O1=S_O + 1, O2=S_O + 2, O3=S_O + 3))
    if opt.stamps:
        b('''s_lshl_b32 s39, s2, 8
             s_add_u32 s39, s39, 0x2000000
             s_add_u32 s{T}, s72, s39
             s_addc_u32 s{T1}, s73, 0
             s_cmp_eq_u32 s{w}, 0
             s_cselect_b32 s{T2}, 256, 0
             s_mov_b32 s{T3}, 0x20000'''.format(T=S_TS, T1=S_TS + 1, T2=S_TS + 2, T3=S_TS + 3, w=sW))
    c = math.log2(math.e) / math.sqrt(128.0)
    b('s_mov_b32 s%d, 0x%08x\ns_mov_b32 s%d, 0x%08x' % (sSC, f32bits(c), sSC + 1, f32bits(c)))
    b('s_mov_b32 s%d, 0x%08x' % (sTH, f32bits(2.0 ** 30)))
    b('s_mov_b32 s%d, 0\ns_mov_b32 s%d, %d\ns_mov_b32 s%d, 0\ns_mov_b32 s%d, 0\ns_mov_b32 s%d, 0' % (sKS, sVS, SLOT, sHH, sEX, sOOF))
    stamp(b)
    return b

def dma_wq(c):
    L = ['s_add_u32 s38, s%d, %d' % (sC0, c // 2), 's_and_b32 s38, s38, 7', 's_lshl_b32 s38, s38, 19']
    if c & 1: L.append('s_add_u32 s38, s38, 262144')
    L.append('s_add_u32 m0, s%d, %d' % (sM0A, WB0 + (c % 3) * 16384))
    G = [[I(x) for x in L]]
    for n in range(4):
        G.append([I('buffer_load_dwordx4 v%d, s[%d:%d], s38 offen offset:%d%s lds' % (vWD + n, S_WQ, S_WQ + 3, 1024 * n, opt.w_pol), 'wq%d' % c)])
    G[0] += G[1]; del G[1]
    return G
def dma_x(X):
    L = ['s_add_u32 s39, s%d, %d' % (sC0, X), 's_and_b32 s39, s39, 7', 's_lshl_b32 s39, s39, 7',
         's_add_u32 m0, s%d, %d' % (sM0A, XB0 + (X % 2) * 20480)]
    G = [[I(x) for x in L]]
    for n in range(4):
        G.append([I('buffer_load_dwordx4 v%d, s[%d:%d], s39 offen offset:%d%s lds' % (vXD + n, S_X, S_X + 3, 1024 * n, opt.w_pol), 'x%d' % X)])
    G.append([I('s_add_u32 m0, s%d, %d' % (sM0B, XB0 + (X % 2) * 20480 + 16384)),
              I('buffer_load_dwordx4 v%d, s[%d:%d], s39 offen%s lds' % (vXD + 4, S_X, S_X + 3, opt.w_pol), 'x%d' % X)])
    G[0] += G[1]; del G[1]
    return G
def dma_kv(which, m0src, tag, m0each=False):
    G = []
    for m in range(8):
        g = []
        if m % 4 == 0 or m0each:
            g.append(I('s_add_u32 m0, s%d, s%d' % (m0src, sW8)))
            if m >= 4: g.append(I('s_add_u32 m0, m0, 4096'))
        srd = S_K if which == 'K' else S_V
        va = vKD + m % 4 if which == 'K' else vVD
        g.append(I('buffer_load_dwordx4 v%d, s[%d:%d], s%d offen offset:%d%s lds' % (va, srd, srd + 3, sKV if m < 4 else sKV2, 1024 * (m % 4), opt.kv_pol), tag))
        G.append(g)
    return G

def k1_qproj():
    b = Block('k1_qproj')
    b('s_lshl_b32 s%d, s%d, 12\ns_lshl_b32 s%d, s%d, 10' % (sM0A, sW, sM0B, sW))
    b('s_mov_b32 s%d, s%d\ns_add_u32 s%d, s%d, 4096' % (sKV, sW8, sKV2, sW8))
    for g in dma_wq(0) + dma_x(0) + dma_wq(1): b.extend(g)
    bb = []; useA = []; useB = []
    NA = 10
    fa = 0
    for ks in range(32):
        for hh in range(2):
            for j in range(4):
                c = vACC + 16 * (4 * hh + j)
                bo = aFB + 8 * (ks % 2)
                bb.append(I('%s %s, %s, %s, %s' % (MF32, vr(c, 16), ar(aFA + 4 * (fa % NA), 4), ar(bo, 4), '0' if ks == 0 else vr(c, 16))))
                useA.append((fa, ks, hh, j, len(bb) - 1))
                if j == 0:
                    c = vACC + 128 + 16 * hh
                    bb.append(I('%s %s, %s, %s, %s' % (MF32, vr(c, 16), ar(aFA + 4 * (fa % NA), 4), ar(bo + 4, 4), '0' if ks == 0 else vr(c, 16))))
                fa += 1
    G = Gaps(bb, 24)
    def ybar(c): return -1 if c == 0 else 20 * c - 7
    lastuse = {}
    for (f, ks, hh, j, mi) in useA: lastuse[f] = mi + (1 if j == 0 else 0)
    for c in range(16):
        y = ybar(c)
        tags = 'wq%d' % c + (',x%d' % (c // 2) if c % 2 == 0 else '')
        G.put(y, I('@waitlgkm *'), I('@waitvm ' + tags), I('s_barrier'))
        hi_gap = (ybar(c + 1) - 3) if c < 15 else 20 * c + 12
        reads = []
        for ks in (2 * c, 2 * c + 1):
            kk = ks % 4
            xo = (c // 2 % 2) * 20480
            bo = aFB + 8 * (ks % 2)
            first = [u for u in useA if u[1] == ks][0][4]
            prevB = first - 11 if ks >= 2 else -1
            reads.append((first, prevB, [I('ds_read_b128 %s, v%d offset:%d' % (ar(bo, 4), vXA + kk, xo))]))
            for (f, k2, hh, j, mi) in useA:
                if k2 != ks: continue
                off = (c % 3) * 16384 + (16 * (ks % 2)) * 512 + hh * 256
                r = aFA + 4 * (f % NA)
                ins = [I('ds_read_b64_tr_b16 %s, v%d offset:%d' % (ar(r, 2), vWA + j, off)),
                       I('ds_read_b64_tr_b16 %s, v%d offset:%d' % (ar(r + 2, 2), vWA + j, off + 2048))]
                reads.append((mi, lastuse.get(f - NA, -1), ins))
                if hh == 0 and j == 0:
                    reads.append((mi + 1, prevB, [I('ds_read_b128 %s, v%d offset:%d' % (ar(bo + 4, 4), vX4 + kk, xo))]))
        n = len(reads)
        for t, (mi, after, ins) in enumerate(reads):
            g = y + (t * (hi_gap - y)) // (n - 1)
            g = max(g, after, y)
            assert g < mi, (c, t, g, mi)
            assert c == 15 or g <= ybar(c + 1) - 1, (c, t, g)
            G.put(g, *ins)
        d = []
        if c + 2 < 16: d += dma_wq(c + 2)
        if c % 2 == 0 and c // 2 + 1 < 8: d += dma_x(c // 2 + 1)
        kv = dma_kv('K', sKS, 'K', True) + dma_kv('V', sVS, 'V', True)
        d.append(kv[c])
        for t, g in enumerate(d):
            G.put(y + 1 + (t * 16) // len(d), *g)
    b.extend(G.emit())
    print('qproj est cycles', G.est_cycles(), file=sys.stderr)
    stamp(b)
    T = 224
    b('s_lshl_b32 s38, s%d, 11\ns_add_u32 s38, s38, %d\nv_lshl_add_u32 v%d, v%d, 4, s38' % (sW, QXB, T + 16, vLANE))
    def conv(src, dst):
        for i in range(4):
            b('v_pk_mul_f32 %s, %s, s[%d:%d]' % (vr(src + 2 * i, 2), vr(src + 2 * i, 2), sSC, sSC + 1))
        for i in range(4):
            b('v_cvt_pk_bf16_f32 v%d, v%d, v%d' % (dst + i, src + 2 * i, src + 2 * i + 1))
    for hh in range(2):
        for u in range(2):
            d = T + 4 * (2 * hh + u)
            conv(vACC + 128 + 16 * hh + 8 * u, d)
            b('ds_write_b128 v%d, %s offset:%d' % (T + 16, vr(d, 4), hh * 8192 + u * 1024))
    for hh in range(2):
        for j in range(4):
            for u in range(2):
                d = T + 20 + 4 * (u % 2)
                conv(vACC + 16 * (4 * hh + j) + 8 * u, d)
                for i in range(4):
                    b('v_accvgpr_write_b32 a%d, v%d' % ((aQ if hh == 0 else aQN) + 8 * j + 4 * u + i, d + i))
            if hh == 0 and j == 1:
                b('s_waitcnt lgkmcnt(0)\ns_barrier')
                for h2 in range(2):
                    for ks in range(8):
                        b('ds_read_b128 %s, v%d offset:%d' % (ar((aQ4 if h2 == 0 else aQN4) + 4 * ks, 4), vQX + ks // 2, h2 * 8192 + (ks % 2) * 1024))
    T = vT; L = vLANE
    b('v_and_b32 v%d, 15, v%d\nv_lshrrev_b32 v%d, 5, v%d' % (T + 1, L, T + 2, L))
    b('''v_bfe_u32 v{a}, v{L}, 4, 1
         v_lshlrev_b32 v{a}, 10, v{a}
         v_lshl_add_u32 v{a}, v{q}, 4, v{a}
         v_lshl_add_u32 v{a}, v{h}, 8, v{a}
         s_lshl_b32 s40, s{w}, 11'''.format(a=T, L=L, w=sW, q=T + 1, h=T + 2))
    for j in range(4):
        b('s_xor_b32 s39, s%d, %d\ns_mul_i32 s39, s39, 10240\ns_add_u32 s39, s39, s40\nv_add_u32 v%d, s39, v%d' % (sW, j, vOA + j, T))
    b('s_mul_i32 s39, s%d, 10240\ns_add_u32 s39, s39, 8192\nv_add_u32 v%d, s39, v%d' % (sW, vOA + 4, T))
    for j in range(4):
        b('s_xor_b32 s39, s%d, %d\ns_lshl_b32 s40, s39, 2\ns_add_u32 s40, s40, s%d\ns_lshl_b32 s40, s40, 12\ns_add_u32 s40, s40, %d\nv_lshl_add_u32 v%d, v%d, 4, s40' % (sW, j, sW, EB, vEW + j, L))
        b('s_lshl_b32 s40, s%d, 2\ns_add_u32 s40, s40, s39\ns_lshl_b32 s40, s40, 12\ns_add_u32 s40, s40, %d\nv_lshl_add_u32 v%d, v%d, 4, s40' % (sW, EB, vER + j, L))
    for i in range(128): b('v_accvgpr_write_b32 a%d, 0' % i)
    b('v_mov_b32 v%d, 0\nv_mov_b32 v%d, 0' % (vLO, vL4))
    b('s_add_u32 s%d, s%d, %d\ns_add_u32 s%d, s%d, %d' % (sKV, sKV, SLOT, sKV2, sKV2, SLOT))
    return b

XA, XB = 73, 33
def kread(i):
    p, ks = divmod(i, 8)
    return [I('ds_read_b128 %s, v%d offset:%d' % (vr(vF + 4 * (i % NB), 4), vKA + ks, (p % 4) * 8192 if p < 4 else 0))]
def vread(i):
    p, x = divmod(i - 40, 8); t, j = divmod(x, 4)
    off = (p * 8192 if p < 4 else 0) + 16 * t * 256
    r = vF + 4 * (i % NB)
    return [I('ds_read_b64_tr_b16 %s, v%d offset:%d' % (vr(r, 2), vVA + j, off)),
            I('ds_read_b64_tr_b16 %s, v%d offset:%d' % (vr(r + 2, 2), vVA + j, off + 2048))]
def softmax_chain(p):
    s = vS + 16 * p; l = vLO if p < 4 else vL4
    C = []
    for i in range(16):
        C.append('v_exp_f32 v%d, v%d' % (s + i, s + i))
        if i >= 1: C.append('v_add_f32 v%d, v%d, v%d' % (l, l, s + i - 1))
        if i >= 2 and i % 2 == 0: C.append('v_cvt_pk_bf16_f32 v%d, v%d, v%d' % (s + i // 2 - 1, s + i - 2, s + i - 1))
    C.append('s_nop 0')
    C.append('v_add_f32 v%d, v%d, v%d' % (l, l, s + 15))
    C.append('v_cvt_pk_bf16_f32 v%d, v%d, v%d' % (s + 7, s + 14, s + 15))
    return C
def step_backbone():
    bb = []
    for i in range(40):
        p, ks = divmod(i, 8)
        s = vS + 16 * p
        q = (aQ if p < 4 else aQ4) + 4 * ks
        c = vr(vNO if p < 4 else vN4, 16) if ks == 0 else vr(s, 16)
        bb.append(I('%s %s, %s, %s, %s' % (MF32, vr(s, 16), vr(vF + 4 * (i % NB), 4), ar(q, 4), c)))
    for i in range(40, 80):
        p, x = divmod(i - 40, 8); t, j = divmod(x, 4)
        o = (aO if p < 4 else aO4) + 16 * j
        bb.append(I('%s %s, %s, %s, %s' % (MF32, ar(o, 16), vr(vF + 4 * (i % NB), 4), vr(vS + 16 * p + 4 * t, 4), ar(o, 16))))
    return bb
def slot_calc():
    return ['s_add_u32 s38, s%d, s%d' % (sKS, sVS), 's_sub_u32 s%d, 98304, s38' % sKN,
            's_sub_u32 s%d, s%d, s%d' % (sDK, sKN, sKS), 's_sub_u32 s%d, s%d, s%d' % (sDK, sDK, sW8),
            's_sub_u32 s%d, s%d, s%d' % (sDV, sKS, sVS), 's_sub_u32 s%d, s%d, s%d' % (sDV, sDV, sW8)]
def build_step():
    G = Gaps(step_backbone(), 24)
    N = {g: [] for g in range(XA, 80)}
    def put(g, ins):
        if g < 0: N[80 + g].extend(ins); G.put(80 + g, *ins)
        else: G.put(g, *ins)
    put(XA - 80, [I('@waitlgkm *'), I('@waitvm K'), I('s_barrier')])
    for i in range(40):
        g = (XA - 80) + (i * 37) // 39
        assert g >= i - NB and g < i - 3, (i, g)
        put(g, kread(i))
        if 24 <= i < 32: put(g, [I('v_add_u32 v%d, s%d, v%d' % (vKA + i % 8, sW8, vKA + i % 8))])
        if i >= 32: put(g + 1, [I('v_add_u32 v%d, s%d, v%d' % (vKA + i % 8, sDK, vKA + i % 8))])
    put(XA - 80 + 1, [I(x) for x in slot_calc()])
    for m, g in zip(range(8), dma_kv('K', sKN, 'K')): put(XA - 80 + 2 + 3 * m, g)
    G.put(XB, I('@waitlgkm *'), I('@waitvm V'), I('s_barrier'))
    for i in range(40, 80):
        g = XB + ((i - 40) * 37) // 39
        assert g >= i - NB and g < i - 3, (i, g)
        G.put(g, *vread(i))
        x = (i - 40) % 8
        if 64 <= i < 72 and x >= 4: G.put(g, I('v_add_u32 v%d, s%d, v%d' % (vVA + x - 4, sW8, vVA + x - 4)))
        if i >= 76: G.put(g + 1, I('v_add_u32 v%d, s%d, v%d' % (vVA + x - 4, sDV, vVA + x - 4)))
    for m, g in zip(range(8), dma_kv('V', sKS, 'V')): G.put(XB + 1 + 3 * m, *g)
    G.put(XB + 24, I('s_add_u32 s%d, s%d, %d' % (sKV, sKV, SLOT)), I('s_add_u32 s%d, s%d, %d' % (sKV2, sKV2, SLOT)),
          I('s_mov_b32 s%d, s%d' % (sVS, sKS)), I('s_mov_b32 s%d, s%d' % (sKS, sKN)))
    G.put(XA - 1, I('s_sub_u32 s%d, s%d, 1' % (sCNT, sCNT)), I('s_cmp_lg_u32 s%d, 0' % sCNT))
    rng = {0: (10, 21), 1: (19, 31), 2: (29, 44), 3: (42, 58), 4: (56, 69)}
    for p in range(5):
        lv = G.spread(softmax_chain(p), *rng[p])
    print('step est cycles', G.est_cycles(), [G.used(i) for i in range(80)], file=sys.stderr)
    return G, N

def k1_head_blocks():
    G, N = build_step()
    top = Block('top'); mid = Block('mid'); tail = Block('tail'); pro = Block('pro')
    top('L_top:')
    top.extend(G.g[XA])
    top.extend(G.emit(XA + 1, 79))
    mid('L_mid:')
    mid.extend(G.emit(0, XA - 1))
    mid.extend([G.bb[XA]])
    mid('s_cbranch_scc1 L_top')
    for i in range(XA + 1, 80): tail.extend([Ins(G.bb[i].text)])
    pro('L_head:')
    pro('s_mov_b32 s%d, 8' % sCNT)
    nxt = [x for g in range(XA, 80) for x in N[g]]
    sync = nxt[:3]; rest = nxt[3:]
    pro.extend([Ins(x.text, x.tag) for x in sync])
    pro.extend([Ins(x.text, x.tag) for x in rest if x.cls != 'dsr'])
    stamp(pro)
    if opt.fallback: pro('s_cmp_lg_u32 s%d, 0\ns_cbranch_scc1 L_nomax' % sEX)
    mx = Block('pro_max')
    T = vT
    for ks in range(8): mx('ds_read_b128 %s, v%d' % (vr(vS + 32 + 4 * ks, 4), vKA + ks))
    for ks in range(8): mx('v_add_u32 v%d, s%d, v%d' % (T + ks, sW8, vKA + ks))
    for ks in range(8): mx('ds_read_b128 %s, v%d' % (vr(vF + 4 * ks, 4), T + ks))
    for ks in range(8): mx('%s %s, %s, %s, %s' % (MF32, vr(vS, 16), vr(vS + 32 + 4 * ks, 4), ar(aQ + 4 * ks, 4), '0' if ks == 0 else vr(vS, 16)))
    for ks in range(8): mx('%s %s, %s, %s, %s' % (MF32, vr(vS + 16, 16), vr(vF + 4 * ks, 4), ar(aQ4 + 4 * ks, 4), '0' if ks == 0 else vr(vS + 16, 16)))
    for (s, n, t) in ((vS, vNO, T), (vS + 16, vN4, T + 2)):
        mx('v_max3_f32 v%d, v%d, v%d, v%d' % (t, s, s + 1, s + 2))
        for i in range(3, 15, 2): mx('v_max3_f32 v%d, v%d, v%d, v%d' % (t, t, s + i, s + i + 1))
        mx('v_max_f32 v%d, v%d, v%d' % (t, t, s + 15))
        mx('v_mov_b32 v%d, v%d\nv_permlane32_swap_b32 v%d, v%d\nv_max_f32 v%d, v%d, v%d' % (t + 1, t, t, t + 1, t, t, t + 1))
        for i in range(16): mx('v_sub_f32 v%d, 0, v%d' % (n + i, t))
    pro2 = Block('pro2')
    pro2('L_nomax:')
    pro2.extend([Ins(x.text, x.tag) for x in rest if x.cls == 'dsr'])
    pro2('s_branch L_mid')
    return pro, mx, pro2, top, mid, tail

def k1_epilogue():
    b = Block('epi'); T = vT
    for (l, t) in ((vLO, T), (vL4, T + 2)):
        b('v_mov_b32 v%d, v%d\nv_mov_b32 v%d, v%d\nv_permlane32_swap_b32 v%d, v%d\nv_add_f32 v%d, v%d, v%d' % (t, l, t + 1, l, t, t + 1, t, t, t + 1))
    b('v_max_f32 v%d, v%d, v%d' % (T + 1, T, T + 2))
    b('v_cmp_ngt_f32 vcc, s%d, v%d' % (sTH, T))
    b('v_cmp_ngt_f32 s[38:39], s%d, v%d' % (sTH, T + 2))
    b('s_or_b64 vcc, vcc, s[38:39]\ns_cmp_lg_u64 vcc, 0\ns_cselect_b32 s38, 1, 0')
    b('v_mov_b32 v%d, v%d\nv_mov_b32 v%d, v%d\nv_mov_b32 v%d, s38\nv_mov_b32 v%d, 0' % (T + 4, vN4, T + 5, T + 2, T + 6, T + 7))
    b('ds_write_b128 v%d, %s' % (vEW, vr(T + 4, 4)))
    b('v_rcp_f32 v%d, v%d' % (T, T))
    b('v_lshlrev_b32 v%d, 4, v%d\nv_add_u32 v%d, %d, v%d' % (T + 3, vLANE, T + 3, EB, T + 3))
    b('s_waitcnt lgkmcnt(0)\ns_barrier')
    R = T + 8
    for s in range(4): b('ds_read_b128 %s, v%d offset:%d' % (vr(R + 4 * s, 4), T + 3, s * 5 * 4096))
    if opt.fallback:
        b('v_or_b32 v%d, v%d, v%d\nv_or3_b32 v%d, v%d, v%d, v%d' % (T + 3, R + 2, R + 6, T + 3, T + 3, R + 10, R + 14))
        b('v_readfirstlane_b32 s38, v%d' % (T + 3))
        b('s_cmp_lg_u32 s%d, 0\ns_cselect_b32 s38, 0, s38\ns_cmp_lg_u32 s38, 0\ns_cbranch_scc1 L_fallback' % sEX)
    b2 = Block('epi2'); b = b2
    b('v_min_f32 v%d, v%d, v%d\nv_min3_f32 v%d, v%d, v%d, v%d' % (T + 3, R, R + 4, T + 3, T + 3, R + 8, R + 12))
    for s in range(4): b('v_sub_f32 v%d, v%d, v%d' % (R + 4 * s, T + 3, R + 4 * s))
    b('v_sub_f32 v%d, v%d, v%d' % (T + 3, T + 3, vN4))
    for s in range(4): b('v_exp_f32 v%d, v%d' % (R + 4 * s, R + 4 * s))
    b('v_exp_f32 v%d, v%d' % (T + 3, T + 3))
    b('v_mul_f32 v%d, v%d, v%d' % (T + 4, R, R + 1))
    for s in range(1, 4): b('v_fmac_f32 v%d, v%d, v%d' % (T + 4, R + 4 * s, R + 4 * s + 1))
    b('v_rcp_f32 v%d, v%d\nv_mul_f32 v%d, v%d, v%d' % (T + 4, T + 4, T + 2, T + 4, T + 3))
    W = vS + 16
    for j in (1, 2, 3, 0):
        d = vS if j == 0 else W + 16 * (j - 1)
        for i in range(16): b('v_accvgpr_read_b32 v%d, a%d' % (d + i, aO4 + 16 * j + i))
        for i in range(16): b('v_mul_f32 v%d, v%d, v%d' % (d + i, T + 2, d + i))
        if j:
            for c in range(4): b('ds_write_b128 v%d, %s offset:%d' % (vEW + j, vr(d + 4 * c, 4), 1024 * c))
    b('s_waitcnt lgkmcnt(0)\ns_barrier')
    for j in (1, 2, 3):
        for c in range(4): b('ds_read_b128 %s, v%d offset:%d' % (vr(W + 16 * (j - 1) + 4 * c, 4), vER + j, 1024 * c))
    for j in range(4):
        for u in range(2):
            d = vF + 8 * ((2 * j + u) % 4); pk = R + 4 * ((2 * j + u) % 4)
            for i in range(8): b('v_accvgpr_read_b32 v%d, a%d' % (d + i, aO + 16 * j + 8 * u + i))
            for i in range(8): b('v_mul_f32 v%d, v%d, v%d' % (d + i, T, d + i))
            for i in range(4): b('v_cvt_pk_bf16_f32 v%d, v%d, v%d' % (pk + i, d + 2 * i, d + 2 * i + 1))
            b('buffer_store_dwordx4 %s, v%d, s[%d:%d], s%d offen offset:%d%s' % (vr(pk, 4), vOA + j, S_O, S_O + 3, sOOF, 512 * u, opt.o_st_pol), 'O')
    for i in range(16):
        b('v_add_f32 v%d, v%d, v%d\nv_add_f32 v%d, v%d, v%d' % (vS + i, vS + i, W + i, W + 16 + i, W + 16 + i, W + 32 + i))
    for i in range(16): b('v_add_f32 v%d, v%d, v%d' % (vS + i, vS + i, W + 16 + i))
    for u in range(2):
        pk = W + 4 * u
        for i in range(4): b('v_cvt_pk_bf16_f32 v%d, v%d, v%d' % (pk + i, vS + 8 * u + 2 * i, vS + 8 * u + 2 * i + 1))
        b('buffer_store_dwordx4 %s, v%d, s[%d:%d], s%d offen offset:%d%s' % (vr(pk, 4), vOA + 4, S_O, S_O + 3, sOOF, 512 * u, opt.o_st_pol), 'O')
    stamp(b)
    b('s_cmp_lg_u32 s%d, 0\ns_cbranch_scc1 L_k1_end' % sHH)
    nx = Block('next')
    for i in range(128): nx('v_accvgpr_write_b32 a%d, 0' % i)
    for i in range(64): nx('v_accvgpr_mov_b32 a%d, a%d' % (aQ + i, aQN + i))
    nx('v_mov_b32 v%d, 0\nv_mov_b32 v%d, 0' % (vLO, vL4))
    nx('s_mov_b32 s%d, 1\ns_mov_b32 s%d, 0\ns_mov_b32 s%d, 40960\ns_branch L_head' % (sHH, sEX, sOOF))
    return Block('epi') if False else None, b2, nx

def k1_fallback():
    b = Block('fb'); T = vT
    b('L_fallback:')
    b('s_waitcnt vmcnt(0) lgkmcnt(0)\ns_nop 15\ns_barrier')
    b('v_and_b32 v1, 31, v%d\nv_lshrrev_b32 v2, 5, v%d\ns_lshl_b32 s38, s%d, 2' % (vLANE, vLANE, sW))
    b('v_xor_b32 v2, s38, v2')
    for ks in range(8):
        b('v_xor_b32 v3, %d, v2\nv_lshlrev_b32 v3, 4, v3\nv_lshl_add_u32 v%d, v1, 8, v3' % (2 * ks, T + 8 + ks))
    b('v_mov_b32 v%d, 0xff800000\nv_mov_b32 v%d, 0xff800000' % (T, T + 2))
    b('s_lshl_b32 s39, s%d, 18\ns_add_u32 s40, s39, 262144' % sHH)
    lp = Block('fbl')
    lp('L_fb_loop:')
    for ks in range(8): lp('buffer_load_dwordx4 %s, v%d, s[%d:%d], s39 offen' % (vr(vF + 4 * ks, 4), T + 8 + ks, S_K, S_K + 3))
    lp('s_waitcnt vmcnt(0)')
    for ks in range(8): lp('%s %s, %s, %s, %s' % (MF32, vr(vS, 16), vr(vF + 4 * ks, 4), ar(aQ + 4 * ks, 4), '0' if ks == 0 else vr(vS, 16)))
    for ks in range(8): lp('%s %s, %s, %s, %s' % (MF32, vr(vS + 16, 16), vr(vF + 4 * ks, 4), ar(aQ4 + 4 * ks, 4), '0' if ks == 0 else vr(vS + 16, 16)))
    lp('s_nop 15')
    for (s, t) in ((vS, T), (vS + 16, T + 2)):
        for i in range(0, 16, 2): lp('v_max3_f32 v%d, v%d, v%d, v%d' % (t, t, s + i, s + i + 1))
    lp('s_add_u32 s39, s39, 8192\ns_cmp_lt_u32 s39, s40\ns_cbranch_scc1 L_fb_loop')
    e = Block('fbe')
    for (n, t) in ((vNO, T), (vN4, T + 2)):
        e('v_mov_b32 v%d, v%d\nv_permlane32_swap_b32 v%d, v%d\nv_max_f32 v%d, v%d, v%d' % (t + 1, t, t, t + 1, t, t, t + 1))
        for i in range(16): e('v_sub_f32 v%d, 0, v%d' % (n + i, t))
    for i in range(128): e('v_accvgpr_write_b32 a%d, 0' % i)
    e('v_mov_b32 v%d, 0\nv_mov_b32 v%d, 0' % (vLO, vL4))
    e('s_lshl_b32 s%d, s%d, 18\ns_add_u32 s%d, s%d, s%d\ns_add_u32 s%d, s%d, 4096' % (sKV, sHH, sKV, sKV, sW8, sKV2, sKV))
    for g in dma_kv('K', sKS, 'K') + dma_kv('V', sVS, 'V'): e.extend(g)
    e('s_add_u32 s%d, s%d, %d\ns_add_u32 s%d, s%d, %d' % (sKV, sKV, SLOT, sKV2, sKV2, SLOT))
    e('s_mov_b32 s%d, 1\ns_waitcnt vmcnt(0)\ns_nop 7\ns_branch L_head' % sEX)
    return b, lp, e

def kernel_text(kname, blocks, traces, vgpr, accum, sgpr=102):
    d = {b.name: b for b in blocks}
    assert len(d) == len(blocks)
    place_waits(d, traces)
    n = place_nops(d, traces)
    print(kname, 'nop states inserted', n, 'instructions', sum(len(b.ins) for b in blocks), file=sys.stderr)
    t = '.text\n.globl %s\n.p2align 8\n.type %s,@function\n%s:\n' % (kname, kname, kname) + render(blocks)
    t += '.section .rodata,"a"\n.p2align 6\n.amdhsa_kernel %s\n' % kname
    t += '  .amdhsa_next_free_vgpr %d\n  .amdhsa_next_free_sgpr %d\n  .amdhsa_accum_offset %d\n' % (vgpr, sgpr, accum)
    t += '  .amdhsa_group_segment_fixed_size 0\n  .amdhsa_kernarg_size 104\n  .amdhsa_user_sgpr_count 2\n'
    t += '  .amdhsa_user_sgpr_kernarg_segment_ptr 1\n  .amdhsa_system_sgpr_workgroup_id_x 1\n.end_amdhsa_kernel\n'
    return t

def gen_k1(kname):
    stamp_n[0] = 0
    setup = k1_setup(); qp = k1_qproj()
    pro, mx, pro2, top, mid, tail = k1_head_blocks()
    epi, epi2, nx = k1_epilogue_blocks()
    end = Block('end'); end('L_k1_end:\ns_endpgm')
    blocks = [setup, qp, pro, mx, pro2, top, mid, tail, epi, epi2, nx]
    head = ['pro', 'pro_max', 'pro2', 'mid', 'top', 'mid', 'top', 'mid', 'tail', 'epi', 'epi2']
    traces = [['k1_setup', 'k1_qproj'] + head + ['next'] + head + ['end']]
    if opt.fallback:
        fb, fbl, fbe = k1_fallback(); blocks += [fb, fbl, fbe]
        traces.append(['k1_setup', 'k1_qproj'] + head[:-1] + ['fb', 'fbl', 'fbl', 'fbe', 'pro', 'pro2'] + head[3:] + ['next'] + head[:-1]
                      + ['fb', 'fbl', 'fbl', 'fbe', 'pro', 'pro2'] + head[3:] + ['end'])
    blocks.append(end)
    return kernel_text(kname, blocks, traces, 512, 256)

def k1_epilogue_blocks():
    global _epi
    import types
    src_blocks = []
    orig = Block.__init__
    def rec(self, name): orig(self, name); src_blocks.append(self)
    Block.__init__ = rec
    try: k1_epilogue()
    finally: Block.__init__ = orig
    d = {}
    for x in src_blocks:
        if x.ins: d[x.name] = x
    return d['epi'], d['epi2'], d['next']

def gen_k2(kname):
    S_O2, S_WO, S_OUT = 4, 8, 12
    sW, sC0 = 24, 25
    vL, vRA, vDA, vOL, vXW, vXR, vST = 1, 8, 12, 16, 20, 24, 28
    vFO, vFW = 32, 112
    aA = 0
    XB_ = 65536
    s = Block('k2_setup')
    s('s_cmp_ge_u32 s2, 256\ns_cbranch_scc1 L_k2_end')
    s('''s_and_b32 s38, s2, 7
         s_lshr_b32 s46, s38, 2
         s_and_b32 s38, s38, 3
         s_lshr_b32 s39, s2, 3
         s_lshr_b32 s40, s39, 4
         s_lshl_b32 s38, s38, 1
         s_add_u32 s45, s38, s40
         s_lshr_b32 s40, s39, 3
         s_and_b32 s44, s40, 1
         s_and_b32 s43, s39, 7
         s_lshl_b32 s40, s40, 1
         s_add_u32 s25, s43, s40
         s_mul_i32 s38, s46, 40
         s_add_u32 s60, s0, s38
         s_addc_u32 s61, s1, 0
         s_load_dwordx2 s[64:65], s[60:61], 32
         s_load_dwordx2 s[66:67], s[0:1], 80
         s_load_dwordx2 s[68:69], s[0:1], 96
         v_lshrrev_b32 v2, 6, v0
         v_and_b32 v1, 63, v0
         v_readfirstlane_b32 s24, v2
         v_lshrrev_b32 v3, 4, v1
         v_bfe_u32 v4, v1, 2, 2
         v_and_b32 v5, 3, v1''')
    s('''v_lshrrev_b32 v6, 1, v3
         v_and_b32 v7, 1, v3
         v_lshlrev_b32 v6, 4, v6
         v_lshl_add_u32 v6, v7, 2, v6
         v_add_u32 v6, v6, v4
         v_lshlrev_b32 v6, 7, v6
         v_lshl_add_u32 v6, v5, 3, v6
         s_lshl_b32 s26, s24, 14
         v_add_u32 v6, s26, v6
         v_lshrrev_b32 v2, 1, v4
         v_lshl_add_u32 v2, v7, 1, v2
         v_xor_b32 v2, s24, v2''')
    for nl in range(4): s('v_xor_b32 v7, %d, v2\nv_lshl_add_u32 v%d, v7, 5, v6' % (nl, vRA + nl))
    s('v_lshlrev_b32 v2, 1, v3\nv_and_b32 v6, 7, v1\nv_xor_b32 v2, v2, v6\nv_lshlrev_b32 v2, 4, v2\nv_lshrrev_b32 v6, 3, v1\nv_lshl_add_u32 v2, v6, 10, v2')
    for n in range(4): s('v_add_u32 v%d, %d, v2' % (vDA + n, 7168 * n))
    s('v_lshlrev_b32 v%d, 4, v1\nv_add_u32 v%d, 4096, v%d' % (vOL, vOL + 1, vOL))
    for j in range(1, 4):
        s('s_xor_b32 s39, s24, %d\ns_lshl_b32 s40, s39, 2\ns_add_u32 s40, s40, s24\ns_mul_i32 s40, s40, 5120\ns_add_u32 s40, s40, %d\nv_add_u32 v%d, s40, v%d' % (j, XB_, vXW + j, vOL))
        s('s_lshl_b32 s40, s24, 2\ns_add_u32 s40, s40, s39\ns_mul_i32 s40, s40, 5120\ns_add_u32 s40, s40, %d\nv_add_u32 v%d, s40, v%d' % (XB_, vXR + j, vOL))
    s('v_and_b32 v2, 15, v1\nv_lshlrev_b32 v2, 11, v2\nv_lshl_add_u32 v2, v3, 3, v2\ns_lshl_b32 s39, s24, 5\nv_add_u32 v%d, s39, v2' % vST)
    s('s_waitcnt lgkmcnt(0)')
    s('''s_lshl_b32 s38, s46, 3
         s_add_u32 s38, s38, s45
         s_mul_i32 s38, s38, 1310720
         s_mul_i32 s39, s24, 10240
         s_mul_i32 s40, s44, 5120
         s_add_u32 s39, s39, s40
         s_add_u32 s38, s38, s39
         s_add_u32 s4, s68, s38
         s_addc_u32 s5, s69, 0
         s_sub_u32 s6, 1310720, s39
         s_mov_b32 s7, 0x20000
         s_lshl_b32 s38, s43, 7
         s_lshl_b32 s39, s24, 15
         s_add_u32 s38, s38, s39
         s_add_u32 s8, s64, s38
         s_addc_u32 s9, s65, 0
         s_sub_u32 s10, 4194304, s38
         s_mov_b32 s11, 0x20000
         s_mul_i32 s38, s45, 160
         s_mul_i32 s39, s44, 80
         s_add_u32 s38, s38, s39
         s_lshl_b32 s38, s38, 11
         s_lshl_b32 s39, s46, 10
         s_add_u32 s38, s38, s39
         s_lshl_b32 s39, s43, 7
         s_add_u32 s38, s38, s39
         s_add_u32 s12, s66, s38
         s_addc_u32 s13, s67, 0
         s_sub_u32 s14, 2621440, s38
         s_mov_b32 s15, 0x20000''')
    def loads(t):
        G = [[I('s_add_u32 s38, s%d, %d' % (sC0, t)), I('s_and_b32 s38, s38, 7'), I('s_add_u32 s38, s38, %d' % (t // 8 * 8)),
              I('s_mul_i32 s39, s38, 40960'), I('s_lshl_b32 s38, s38, 17'), I('s_add_u32 m0, s26, %d' % ((t % 4) * 4096))]]
        for n in range(4):
            G.append([I('buffer_load_dwordx4 v%d, s[8:11], s38 offen offset:%d%s lds' % (vDA + n, 1024 * n, opt.wo_pol), 'wo%d' % t)])
        for f in range(5):
            G.append([I('buffer_load_dwordx4 %s, v%d, s[4:7], s39 offen offset:%d%s' % (vr(vFO + 20 * (t % 4) + 4 * f, 4), vOL + f // 4, 1024 * (f % 4), opt.o_ld_pol))])
        return G
    def reads(t):
        G = []
        for nl in range(4):
            r = vFW + 16 * (t % 2) + 4 * nl
            G.append([I('ds_read_b64_tr_b16 %s, v%d offset:%d' % (vr(r, 2), vRA + nl, (t % 4) * 4096)),
                      I('ds_read_b64_tr_b16 %s, v%d offset:%d' % (vr(r + 2, 2), vRA + nl, (t % 4) * 4096 + 1024))])
        return G
    m = Block('k2_main')
    for t in range(3):
        for g in loads(t): m.extend(g)
    m('@waitvm wo0')
    for g in reads(0): m.extend(g)
    bb = []
    for t in range(32):
        for nl in range(4):
            for f in range(5):
                c = aA + 4 * (5 * nl + f)
                bb.append(I('%s %s, %s, %s, %s' % (MF16, ar(c, 4), vr(vFW + 16 * (t % 2) + 4 * nl, 4), vr(vFO + 20 * (t % 4) + 4 * f, 4), '0' if t == 0 else ar(c, 4))))
    G = Gaps(bb, 8)
    for t in range(32):
        base = 20 * t
        if t + 3 < 32:
            for k, g in enumerate(loads(t + 3)): G.put(base + k, *g)
        if t + 1 < 32:
            G.put(base + 10, I('@waitvm wo%d' % (t + 1)))
            for k, g in enumerate(reads(t + 1)): G.put(base + 10 + 2 * k, *g)
    m.extend(G.emit())
    T = 32
    for j in (1, 2, 3):
        for f in range(5): m('ds_write_b128 v%d, %s offset:%d' % (vXW + j, ar(aA + 4 * (5 * j + f), 4), 1024 * f))
    for i in range(20): m('v_accvgpr_read_b32 v%d, a%d' % (T + i, aA + i))
    m('s_waitcnt lgkmcnt(0)\ns_barrier')
    for j in (1, 2, 3):
        for f in range(5): m('ds_read_b128 %s, v%d offset:%d' % (vr(T + 20 * j + 4 * f, 4), vXR + j, 1024 * f))
    for f in range(5):
        for i in range(4 * f, 4 * f + 4):
            m('v_add_f32 v%d, v%d, v%d\nv_add_f32 v%d, v%d, v%d' % (T + i, T + i, T + 20 + i, T + 40 + i, T + 40 + i, T + 60 + i))
        for i in range(4 * f, 4 * f + 4): m('v_add_f32 v%d, v%d, v%d' % (T + i, T + i, T + 40 + i))
        m('v_cvt_pk_bf16_f32 v%d, v%d, v%d\nv_cvt_pk_bf16_f32 v%d, v%d, v%d' % (T + 4 * f, T + 4 * f, T + 4 * f + 1, T + 4 * f + 1, T + 4 * f + 2, T + 4 * f + 3))
        m('s_mov_b32 s38, %d' % (f * 32768))
        m('buffer_store_dwordx2 %s, v%d, s[12:15], s38 offen' % (vr(T + 4 * f, 2), vST))
    end = Block('k2_end'); end('L_k2_end:\ns_endpgm')
    return kernel_text(kname, [s, m, end], [['k2_setup', 'k2_main', 'k2_end']], 256, 160)

def main(out, only=None):
    hdr = open('cdna_kernels/%s.s.ref' % NAME).read().split('; Override launch')[0]
    t = hdr
    k1, k2 = NAME + '_kernel', 'oproj_kernel'
    if only != 2: t += '; @launch kernel=%s grid=(256,1,1) block=(256,1,1) lds=163840\n' % k1
    if only != 1: t += '; @launch kernel=%s grid=(256,1,1) block=(256,1,1) lds=147456\n' % k2
    t += '.amdgcn_target "amdgcn-amd-amdhsa--gfx950"\n'
    t += gen_k1(k1) + gen_k2(k2)
    open(out, 'w').write(t)

if __name__ == '__main__':
    out = sys.argv[1]; only = None
    for a in sys.argv[2:]:
        k, v = a.split('=')
        if k == 'only': only = int(v)
        elif v in ('0', '1') and isinstance(getattr(opt, k), bool): setattr(opt, k, v == '1')
        else: setattr(opt, k, (' ' + v.replace('+', ' ')) if v else '')
    main(out, only)
```

```python
import re

REG_RE = re.compile(r'^(-|abs\()?([vas])(?:(\d+)|\[(\d+):(\d+)\])\)?$')

def regs_of(tok):
    tok = tok.strip()
    if tok in ('vcc', 'vcc_lo', 'vcc_hi'): return {'vcc'}
    if tok in ('exec', 'exec_lo', 'exec_hi'): return {'exec'}
    if tok == 'm0': return {'m0'}
    m = REG_RE.match(tok)
    if not m: return set()
    k = m.group(2)
    if m.group(3) is not None: return {k + m.group(3)}
    return {k + str(i) for i in range(int(m.group(4)), int(m.group(5)) + 1)}

TRANS = ('v_exp_f32', 'v_log_f32', 'v_rcp_f32', 'v_rsq_f32', 'v_sqrt_f32', 'v_sin_f32', 'v_cos_f32')

class Ins:
    __slots__ = ('text', 'op', 'cls', 'w', 'r', 'rc', 'tag', 'passes', 'wait', 'label', 'wide', 'data', 'd_exact')
    def __init__(self, text, tag=None):
        self.text = text; self.tag = tag; self.wait = None; self.label = None
        self.w = set(); self.r = set(); self.rc = set(); self.passes = 0; self.wide = False; self.data = set()
        t = text.split(';')[0].strip()
        if t.endswith(':'):
            self.op = 'label'; self.cls = 'label'; self.label = t[:-1]; return
        if t.startswith('@raw '):
            self.text = t[5:]; self.op = 'raw'; self.cls = 'ctl'; return
        if t.startswith('@'):
            p = t[1:].split(None, 1); self.op = '@' + p[0]; self.cls = 'pseudo'; self.wait = p[1].split(',') if len(p) > 1 else []
            return
        if t.startswith('.') or t == '':
            self.op = 'dir'; self.cls = 'dir'; return
        p = t.split(None, 1); op = p[0]; self.op = op
        rest = p[1] if len(p) > 1 else ''
        ops = [x.strip() for x in rest.split(',')] if rest else []
        mods = []
        if ops:
            last = ops[-1].split()
            ops[-1] = last[0]; mods = last[1:]
        R = [regs_of(o) for o in ops]
        def allr(lst):
            s = set()
            for x in lst: s |= x
            return s
        if op.startswith('v_mfma'):
            self.cls = 'mfma'; self.w = R[0]; self.r = R[1] | R[2]; self.rc = R[3]
            self.passes = 8 if '32x32' in op else 4
        elif op.startswith('ds_read') or op.startswith('ds_bpermute') or op.startswith('ds_swizzle'):
            self.cls = 'dsr'; self.w = R[0]; self.r = allr(R[1:])
        elif op.startswith('ds_'):
            self.cls = 'dsw'; self.r = allr(R)
        elif op.startswith('buffer_load') or op.startswith('global_load'):
            if 'lds' in mods:
                self.cls = 'dma'; self.r = allr(R) | {'m0'}
            else:
                self.cls = 'vld'; self.w = R[0]; self.r = allr(R[1:])
        elif op.startswith('buffer_store') or op.startswith('global_store') or op.startswith('buffer_atomic') or op.startswith('global_atomic'):
            self.cls = 'vst'; self.r = allr(R)
            if op.startswith('buffer_'): self.data = R[0]
            else: self.data = R[1]
            self.wide = ('x4' in op or 'x3' in op)
            if 'atomic' in op and 'sc0' in mods: self.w = R[0]; self.cls = 'vld'
        elif op.startswith('buffer_wbl2') or op.startswith('buffer_inv'):
            self.cls = 'vst'
        elif op.startswith('s_load') or op.startswith('s_memtime') or op.startswith('s_memrealtime') or op.startswith('s_buffer_load'):
            self.cls = 'smem'; self.w = R[0]; self.r = allr(R[1:])
        elif op == 's_waitcnt':
            self.cls = 'wait'
        elif op == 's_nop':
            self.cls = 'nop'; self.passes = int(ops[0], 0) + 1
        elif op in ('s_barrier', 's_endpgm', 's_setprio', 's_sleep') or op.startswith('s_cbranch') or op == 's_branch':
            self.cls = 'ctl'
            if 'vcc' in op: self.r = {'vcc'}
        elif op == 's_getpc_b64':
            self.cls = 'salu'; self.w = R[0]
        elif op.startswith('s_cmp') or op.startswith('s_bitcmp'):
            self.cls = 'salu'; self.r = allr(R); self.w = {'scc'}
        elif op.startswith('s_'):
            self.cls = 'salu'; self.w = R[0]; self.r = allr(R[1:])
            if op.startswith('s_addk') or op.startswith('s_mulk'): self.r |= R[0]
            if 'saveexec' in op: self.w |= {'exec'}
        elif op.startswith('v_'):
            self.cls = 'trans' if op.replace('_e32', '').replace('_e64', '') in TRANS else 'valu'
            if op.startswith('v_permlane') and 'swap' in op:
                self.w = R[0] | R[1]; self.r = R[0] | R[1]
            elif op.startswith('v_add_co') or op.startswith('v_addc_co') or op.startswith('v_sub_co'):
                self.w = R[0] | R[1]; self.r = allr(R[2:])
            else:
                self.w = R[0]; self.r = allr(R[1:])
                if op.startswith('v_fmac') or op.startswith('v_pk_fmac') or op.startswith('v_writelane') or op.startswith('v_dot2c'): self.r |= R[0]
                if op.startswith('v_cmpx'): self.w |= {'exec'}
        else:
            raise ValueError('unknown instruction: ' + text)
    def cost(self):
        return {'trans': 8, 'mfma': 8, 'label': 0, 'pseudo': 4, 'dir': 0}.get(self.cls, 4)

def I(text, tag=None): return Ins(text, tag)

class Block:
    def __init__(self, name): self.name = name; self.ins = []
    def __call__(self, text, tag=None):
        for line in text.split('\n'):
            line = line.strip()
            if line: self.ins.append(Ins(line, tag))
        return self
    def extend(self, lst):
        for x in lst: self.ins.append(x if isinstance(x, Ins) else Ins(x))

VM = ('dma', 'vld', 'vst')
def place_waits(blocks, traces):
    need = {}
    for tr in traces:
        vq = []; lq = []
        for name in tr:
            for idx, x in enumerate(blocks[name].ins):
                nv = nl = None
                if x.cls in ('label', 'dir'): continue
                if x.cls == 'pseudo':
                    if x.op == '@waitvm':
                        for k in range(len(vq) - 1, -1, -1):
                            if vq[k][1] in x.wait or x.wait == ['*']:
                                nv = len(vq) - 1 - k; break
                    elif x.op == '@waitlgkm':
                        for k in range(len(lq) - 1, -1, -1):
                            if lq[k][1] in x.wait or x.wait == ['*']:
                                nl = len(lq) - 1 - k; break
                elif x.cls == 'wait':
                    m = re.search(r'vmcnt\((\d+)\)', x.text)
                    if m: vq = vq[len(vq) - int(m.group(1)):] if int(m.group(1)) < len(vq) else vq
                    if m and int(m.group(1)) == 0: vq = []
                    m = re.search(r'lgkmcnt\((\d+)\)', x.text)
                    if m:
                        n = int(m.group(1))
                        if n == 0: lq = []
                        elif n < len(lq) and not any(e[2] for e in lq): lq = lq[len(lq) - n:]
                    continue
                else:
                    touched = x.r | x.rc | x.w
                    for k in range(len(vq) - 1, -1, -1):
                        if vq[k][0] & touched: nv = len(vq) - 1 - k; break
                    for k in range(len(lq) - 1, -1, -1):
                        if lq[k][0] & touched: nl = len(lq) - 1 - k; break
                if nl is not None and any(e[2] for e in lq): nl = 0
                if nv is not None: nv = min(nv, 62)
                if nl is not None: nl = min(nl, 14)
                if nv is not None or nl is not None:
                    cur = need.setdefault((name, idx), [None, None])
                    if nv is not None: cur[0] = nv if cur[0] is None else min(cur[0], nv)
                    if nl is not None: cur[1] = nl if cur[1] is None else min(cur[1], nl)
                    if nv is not None: vq = vq[len(vq) - nv:] if nv else []
                    if nl is not None: lq = lq[len(lq) - nl:] if nl else []
                if x.cls in VM: vq.append((x.w, x.tag))
                elif x.cls in ('dsr', 'dsw'): lq.append((x.w, x.tag, False))
                elif x.cls == 'smem': lq.append((x.w, x.tag, True))
    for name, b in blocks.items():
        out = []
        for idx, x in enumerate(b.ins):
            n = need.get((name, idx))
            if n:
                s = 's_waitcnt' + (' vmcnt(%d)' % n[0] if n[0] is not None else '') + (' lgkmcnt(%d)' % n[1] if n[1] is not None else '')
                out.append(Ins(s))
            if x.cls != 'pseudo': out.append(x)
        b.ins = out

def hazard_need(p, c):
    n = 0
    pv = p.cls in ('valu', 'trans')
    cv = c.cls in ('valu', 'trans')
    if p.cls == 'mfma':
        x8 = p.passes == 8
        if c.cls == 'mfma':
            if p.w & c.r: n = max(n, 12 if x8 else 8)
            if p.w & c.rc and not (p.w == c.rc and p.passes == c.passes): n = max(n, 10 if x8 else 6)
            if p.w & c.w and not (p.w == c.rc and p.passes == c.passes): n = max(n, 10 if x8 else 6)
        elif cv:
            if p.w & (c.r | c.w): n = max(n, 12 if x8 else 8)
            if p.rc & c.w: n = max(n, 7 if x8 else 3)
        elif c.cls in ('dsr', 'dsw', 'vld', 'vst', 'dma'):
            if p.w & (c.r | c.w): n = max(n, 12 if x8 else 8)
            if p.rc & c.w: n = max(n, 7 if x8 else 3)
    if pv:
        vw = {r for r in p.w if r[0] in 'va' and r != 'vcc'}
        sw = p.w - vw
        if c.cls == 'mfma' and vw & (c.r | c.rc): n = max(n, 2)
        if c.cls == 'mfma' and 'exec' in p.w: n = max(n, 4)
        if cv:
            if p.cls == 'trans' and c.cls != 'trans' and vw & c.r: n = max(n, 1)
            if p.cls == 'trans' and c.cls == 'trans' and vw & c.r: n = max(n, 1)
            if c.op.startswith('v_permlane') and vw & c.r: n = max(n, 2)
            if (c.op.startswith('v_readfirstlane') or c.op.startswith('v_readlane')) and vw & c.r: n = max(n, 1)
            if 'dpp' in c.text or 'row_' in c.text or 'quad_perm' in c.text:
                if vw & c.r: n = max(n, 2)
            if sw & c.r: n = max(n, 2)
            if c.op.startswith('v_cndmask') and 'vcc' in sw and 'vcc' in c.text: n = max(n, 2)
            if (c.op.startswith('v_readlane') or c.op.startswith('v_writelane')) and sw & c.r: n = max(n, 4)
        if c.cls in ('vld', 'vst', 'dma') and sw & c.r: n = max(n, 5)
        if c.cls in ('salu', 'smem') and sw & c.r: n = max(n, 2)
        if c.cls == 'ctl' and sw & c.r: n = max(n, 1)
    if p.cls == 'salu' and 'm0' in p.w and c.cls == 'dma': n = max(n, 1)
    if p.cls == 'vst' and p.wide and p.data & c.w: n = max(n, 2 if cv else 1)
    if p.cls == 'dsw' and False: pass
    return n

def place_nops(blocks, traces, window=24):
    need = {}
    for tr in traces:
        hist = []
        for name in tr:
            for idx, x in enumerate(blocks[name].ins):
                if x.cls in ('label', 'dir', 'pseudo'): continue
                d = 0; req = 0
                for p, st in reversed(hist):
                    h = hazard_need(p, x)
                    if h - d > req: req = h - d
                    d += st
                    if d >= 20: break
                pre = need.get((name, idx), 0)
                if req > pre: need[(name, idx)] = req; pre = req
                if pre: hist.append((Ins('s_nop 0'), pre))
                hist.append((x, x.passes if x.cls == 'nop' else 1))
                if len(hist) > window + 8: hist = hist[-window:]
    total = 0
    for name, b in blocks.items():
        out = []
        for idx, x in enumerate(b.ins):
            n = need.get((name, idx), 0)
            total += n
            while n > 0:
                k = min(n, 16); out.append(Ins('s_nop %d' % (k - 1))); n -= k
            out.append(x)
        b.ins = out
    return total

class Gaps:
    def __init__(self, backbone, budget):
        self.bb = backbone; self.budget = budget
        self.g = {i: [] for i in range(-1, len(backbone))}
    def used(self, i): return sum(x.cost() for x in self.g[i])
    def put(self, i, *ins, front=False):
        lst = [x if isinstance(x, Ins) else Ins(x) for x in ins]
        if front: self.g[i] = lst + self.g[i]
        else: self.g[i].extend(lst)
    def spread(self, chain, lo, hi):
        chain = [x if isinstance(x, Ins) else Ins(x) for x in chain]
        for level in range(4, 2000, 2):
            pos = []; i = lo; u = self.used(i)
            ok = True
            for x in chain:
                while u + x.cost() > level:
                    i += 1
                    if i > hi: ok = False; break
                    u = self.used(i)
                if not ok: break
                pos.append(i); u += x.cost()
            if ok:
                for x, i in zip(chain, pos): self.g[i].append(x)
                return level
        raise RuntimeError('cannot spread')
    def dp(self, chain, gaps, lo=None, hi=None):
        chain = [x if isinstance(x, Ins) else Ins(x) for x in chain]
        n, m = len(chain), len(gaps)
        lo = lo or [0] * n; hi = hi or [m - 1] * n
        base = [self.used(g) for g in gaps]
        pre = [0]
        for x in chain: pre.append(pre[-1] + x.cost())
        def pen(u): return max(0, u - self.budget) * 100 + u * u * 0.01
        INF = 1e18
        best = [[INF] * (n + 1) for _ in range(m + 1)]; arg = [[0] * (n + 1) for _ in range(m + 1)]
        best[0][0] = 0
        for k in range(m):
            for i in range(n + 1):
                if best[k][i] >= INF: continue
                j = i
                while True:
                    c = best[k][i] + pen(base[k] + pre[j] - pre[i])
                    if c < best[k + 1][j]: best[k + 1][j] = c; arg[k + 1][j] = i
                    if j == n or not (lo[j] <= k <= hi[j]) or j - i > 40: break
                    j += 1
        assert best[m][n] < INF, 'dp infeasible'
        pos = [0] * n; j = n
        for k in range(m, 0, -1):
            i = arg[k][j]
            for t in range(i, j): pos[t] = k - 1
            j = i
        return chain, pos
    def spread2(self, chain, lo, hi):
        ch, pos = self.dp(chain, list(range(lo, hi + 1)))
        for x, p in zip(ch, pos): self.g[lo + p].append(x)
    def emit(self, lo=-1, hi=None, with_mfma=True):
        out = []
        hi = len(self.bb) - 1 if hi is None else hi
        for i in range(lo, hi + 1):
            if i >= 0 and with_mfma: out.append(self.bb[i])
            out.extend(self.g[i])
        return out
    def est_cycles(self, mf=32):
        return sum(max(mf, 8 + self.used(i)) for i in range(len(self.bb))) + self.used(-1)

def render(blocks_in_order):
    L = []
    for b in blocks_in_order:
        for x in b.ins:
            L.append(x.text if x.cls in ('label', 'dir') else '    ' + x.text)
    return '\n'.join(L) + '\n'
```

```python
import sys, math, struct
from asmlib import *

NAME = "concat_heads__gqa_block_cached__gqa_block_cached__near_ridge"
def f32bits(x): return struct.unpack('<I', struct.pack('<f', x))[0]
MF = 'v_mfma_f32_16x16x32_bf16'
def vr(b, n=1, k='v'): return '%s%d' % (k, b) if n == 1 else '%s[%d:%d]' % (k, b, b + n - 1)
def ar(b, n=1): return vr(b, n, 'a')

class Opt:
    kv_pol = ' nt'; w_pol = ' nt'; x_pol = ' nt'; o_st_pol = ''; o_ld_pol = ''; wo_pol = ''; out_pol = ''
    stamps = False; fallback = True; ones = True; nokv = False; nox = False; noxq = False; qstamps = False
    dsp = 7; kvend = 13; burst = ' '; k2stag = 1; qevery = 4; warm = 200; qf = ' '; pk = True; upfront = 1
opt = Opt()

S_K, S_V, S_X, S_WQ, S_O = 4, 8, 12, 16, 20
sW, sW4, sKO, sVO, sCNT, sEX, sC0, sB, sBR, sH1, sTH, sM0B = 24, 25, 26, 27, 28, 29, 30, 31, 32, 33, 34, 35
sSC = 36
S_TS, sTSA, sTSN = 52, 56, 58
sWO, sXO = 76, 92
STASH = {'K2': 32, 'V2': 224, 'K3': 240}
vSW = 27
vKA, vVA, vKD, vVD, vLANE, vL = 8, 12, 20, 24, 26, 59
vF = 32; NB = 4
vWA, vXA, vWD, vXD = 48, 52, 54, 58
vACC = 64
def rQ(k, qs): return vACC + 8 * (5 * k + qs)
def hole(i): return vACC + 8 * i + 4
def rS(kt, qs): return hole(5 * kt + qs)
def rP(par, qs): return hole(10 + 5 * par + qs)
vN = 224
vT = 48; vT2 = 244
def aO(dt, qs): return 4 * (5 * dt + qs)
aL, aONE, aFA, aFB = 160, 180, 184, 200
KS0, VS0 = 0, 65536
WBUF = [139264, 32768, 49152]
XBUF = [98304, 118784]
FLAGB = 131072 + 28672

def stamp_ins():
    if not opt.stamps: return []
    return [I('s_memrealtime s[%d:%d]' % (sTSA, sTSA + 1)), I('s_memtime s[62:63]'), I('s_waitcnt lgkmcnt(0)'), I('v_mov_b32 v5, s%d' % sTSA), I('v_mov_b32 v6, s%d' % sTSN), I('v_mov_b32 v7, s62'),
            I('buffer_store_dword v5, v6, s[%d:%d], 0 offen' % (S_TS, S_TS + 3), 'stamp'), I('buffer_store_dword v7, v6, s[%d:%d], 0 offen offset:128' % (S_TS, S_TS + 3), 'stamp'), I('s_add_u32 s%d, s%d, 4' % (sTSN, sTSN))]
def stamp(b): b.extend(stamp_ins())
def stamp_setup(b, ws, w, off=0x2000000, first=False):
    if not opt.stamps: return
    b('''s_lshl_b32 s39, s2, 8
         s_add_u32 s39, s39, {off}
         s_add_u32 s{T}, s{ws}, s39
         s_addc_u32 s{T1}, s{ws1}, 0
         s_cmp_eq_u32 s{w}, 0
         s_cselect_b32 s{T2}, 256, 0
         s_mov_b32 s{T3}, 0x20000
         s_mov_b32 s{N}, 0'''.format(T=S_TS, T1=S_TS + 1, T2=S_TS + 2, T3=S_TS + 3, w=w, ws=ws, ws1=ws + 1, N=sTSN, off=off))
    if first:
        b('v_mov_b32 v5, s100\nv_mov_b32 v6, 0\nv_mov_b32 v7, s74')
        b('buffer_store_dword v5, v6, s[%d:%d], 0 offen\nbuffer_store_dword v7, v6, s[%d:%d], 0 offen offset:128\ns_mov_b32 s%d, 4' % (S_TS, S_TS + 3, S_TS, S_TS + 3, sTSN))
    stamp(b)

def srd(b, d, lo, off, num):
    b('s_add_u32 s%d, s%d, %s\ns_addc_u32 s%d, s%d, 0\n%s\ns_mov_b32 s%d, 0x20000' % (d, lo, off, d + 1, lo + 1,
      ('s_mov_b32 s%d, %d' % (d + 2, num)) if isinstance(num, int) else num % (d + 2), d + 3))

def off_calc(X):
    return ['s_add_u32 s38, s%d, %d' % (sC0, X), 's_and_b32 s38, s38, 7', 's_lshl_b32 s%d, s38, 7' % (sXO + X), 's_lshl_b32 s%d, s38, 19' % (sWO + 2 * X),
            's_add_u32 s%d, s%d, 262144' % (sWO + 2 * X + 1, sWO + 2 * X)]
def dma_wq(c):
    G = [[I('s_add_u32 m0, s%d, %d' % (sW4, WBUF[c % 3]))]]
    for n in range(4):
        G.append([I('buffer_load_dwordx4 v%d, s[%d:%d], s%d offen offset:%d%s lds' % (vWD + n, S_WQ, S_WQ + 3, sWO + c, 1024 * n, opt.w_pol), 'wq%d' % c)])
    return G
def dma_x(X):
    G = [[I('s_add_u32 m0, s%d, %d' % (sW4, XBUF[X % 2]))]]
    for n in range(4):
        G.append([I('buffer_load_dwordx4 v%d, s[%d:%d], s%d offen offset:%d%s lds' % (vXD + n, S_X, S_X + 3, sXO + X, 1024 * n, opt.x_pol), 'x%d' % X)])
    G.append([I('s_add_u32 m0, s%d, %d' % (sM0B, XBUF[X % 2] + 16384))])
    G.append([I('buffer_load_dwordx4 v%d, s[%d:%d], s%d offen%s lds' % (vXD + 4, S_X, S_X + 3, sXO + X, opt.x_pol), 'x%d' % X)])
    return G
def stash_load(which, slot):
    K = which == 'K'; srd_, so = (S_K, sKO) if K else (S_V, sVO); r = STASH['%s%d' % (which, slot)]
    G = [[I('buffer_load_dwordx4 %s, v%d, s[%d:%d], s%d offen offset:%d%s' % (vr(r + 4 * m, 4), vKD + m if K else vVD + m % 2, srd_, srd_ + 3, so, 1024 * m, opt.kv_pol), 'st')] for m in range(4)]
    G[3].append(I('s_add_u32 s%d, s%d, 8192' % (so, so)))
    return G
def stash_flush(which, slot):
    r = STASH['%s%d' % (which, slot)]; base = (KS0 if which == 'K' else VS0) + 16384 * slot
    return [I('ds_write_b128 v%d, %s offset:%d' % (vSW + base // 65536, vr(r + 4 * m, 4), base % 65536 + 1024 * m)) for m in range(4)]
def dma_kv(which, slot, m0each=False):
    G = []; K = which == 'K'
    srd_, so = (S_K, sKO) if K else (S_V, sVO)
    for m in range(4):
        g = []
        if m == 0 or m0each: g.append(I('s_add_u32 m0, s%d, %d' % (sW4, (KS0 if K else VS0) + 16384 * slot)))
        g.append(I('buffer_load_dwordx4 v%d, s[%d:%d], s%d offen offset:%d%s lds' % (vKD + m if K else vVD + m % 2, srd_, srd_ + 3, so, 1024 * m, opt.kv_pol), '%s%d' % (which, slot)))
        if m == 3: g.append(I('s_add_u32 s%d, s%d, 8192' % (so, so)))
        G.append(g)
    return G

def k1_setup():
    b = Block('setup'); L = vLANE; T = vT2
    b('s_cmp_ge_u32 s2, 256\ns_cbranch_scc1 L_k1_end')
    if opt.stamps: b('s_memrealtime s[100:101]\ns_memtime s[74:75]')
    if opt.warm:
        b('s_getpc_b64 s[40:41]\nv_lshlrev_b32 v2, 7, v0\nv_mov_b32 v3, s41\nv_add_co_u32 v2, vcc, s40, v2\nv_addc_co_u32 v3, vcc, 0, v3, vcc')
        b('v_cmp_gt_u32 vcc, %d, v0\ns_and_saveexec_b64 s[42:43], vcc\nglobal_load_dword v63, v[2:3], off\ns_mov_b64 exec, s[42:43]' % opt.warm)
    b('''s_and_b32 s38, s2, 7
         s_lshr_b32 s{BR}, s38, 2
         s_and_b32 s38, s38, 3
         s_lshr_b32 s39, s2, 3
         s_and_b32 s{B}, s39, 7
         s_lshr_b32 s39, s39, 3
         s_lshl_b32 s38, s38, 3
         s_lshl_b32 s40, s39, 1
         s_add_u32 s{H}, s38, s40
         s_add_u32 s{C}, s{B}, s40
         s_and_b32 s{C}, s{C}, 7
         s_mul_i32 s38, s{BR}, 40
         s_add_u32 s60, s0, s38
         s_addc_u32 s61, s1, 0
         s_load_dwordx8 s[64:71], s[60:61], 0
         s_load_dwordx2 s[72:73], s[0:1], 96
         v_lshrrev_b32 v1, 6, v0
         v_and_b32 v{L}, 63, v0
         v_readfirstlane_b32 s{W}, v1
         v_and_b32 v1, 31, v{L}
         v_lshrrev_b32 v2, 5, v{L}
         v_lshrrev_b32 v3, 4, v{L}
         v_and_b32 v4, 15, v{L}
         s_lshl_b32 s{W4}, s{W}, 12
         s_lshl_b32 s{M}, s{W}, 10'''.format(BR=sBR, B=sB, H=sH1, C=sC0, L=L, W=sW, W4=sW4, M=sM0B))
    b('s_lshl_b32 s39, s%d, 16' % sW)
    for n in range(4):
        b('''v_add_u32 v{a}, {n2}, v2
             v_and_b32 v{c}, 3, v{a}
             v_lshlrev_b32 v{c}, 2, v{c}
             v_xor_b32 v{c}, v{c}, v1
             v_lshlrev_b32 v{c}, 4, v{c}
             v_lshl_add_u32 v{c}, v{a}, 13, v{c}
             v_add_u32 v{c}, s39, v{c}
             v_subrev_u32 v{d}, {sub}, v{c}'''.format(a=T, c=T + 1, n2=2 * n, d=vWD + n, sub=1024 * n))
    b('s_lshl_b32 s39, s%d, 15\nv_lshrrev_b32 v%d, 3, v%d\nv_and_b32 v%d, 7, v%d\ns_lshl_b32 s38, s%d, 2' % (sW, T + 3, L, T + 4, L, sW))
    for n in range(4):
        b('''v_add_u32 v{a}, {n4}, v3
             v_and_b32 v{a}, 7, v{a}
             v_xor_b32 v{a}, v{a}, v{p}
             v_lshlrev_b32 v{a}, 4, v{a}
             v_lshl_add_u32 v{a}, v{r}, 10, v{a}
             v_add_u32 v{a}, {add}, v{a}
             v_add_u32 v{d}, s39, v{a}'''.format(a=T, n4=4 * n, p=T + 4, r=T + 3, add=7 * 1024 * n, d=vXD + n))
    b('''s_lshl_b32 s39, s{w}, 13
         s_add_u32 s39, s39, 131072
         v_add_u32 v{a}, s38, v3
         v_and_b32 v{a}, 7, v{a}
         v_xor_b32 v{a}, v{a}, v{p}
         v_lshlrev_b32 v{a}, 4, v{a}
         v_lshl_add_u32 v{a}, v{r}, 10, v{a}
         v_add_u32 v{d}, s39, v{a}'''.format(w=sW, a=T, p=T + 4, r=T + 3, d=vXD + 4))
    b('s_waitcnt lgkmcnt(0)')
    b('s_mul_i32 s39, s%d, 163840' % sB); srd(b, S_X, 64, 's39', 163840)
    b('s_lshl_b32 s39, s%d, 8' % sH1); srd(b, S_WQ, 70, 's39', 's_sub_u32 s%d, 4194304, s39')
    if opt.nox: b('s_mov_b32 s%d, 0' % (S_X + 2))
    if opt.noxq: b('s_mov_b32 s%d, 0' % (S_WQ + 2))
    b.extend(off_calc(0) + off_calc(1))
    for g in dma_wq(0) + dma_x(0) + (dma_wq(1) + dma_x(1) + dma_wq(2) if opt.upfront == 2 else []): b.extend(g)
    for X in range(2, 8): b.extend(off_calc(X))
    b('s_lshr_b32 s41, s%d, 1\ns_lshl_b32 s38, s%d, 5\ns_add_u32 s38, s38, s%d\ns_add_u32 s38, s38, s41\ns_lshl_b32 s39, s38, 18' % (sW, sB, sH1))
    srd(b, S_K, 66, 's39', 0 if opt.nokv else 262144); srd(b, S_V, 68, 's39', 0 if opt.nokv else 262144)
    b('s_lshl_b32 s39, s%d, 8\ns_add_u32 s38, s38, s39\ns_mul_i32 s39, s38, 40960\ns_and_b32 s40, s%d, 1\ns_mul_i32 s38, s40, 5120\ns_add_u32 s39, s39, s38' % (sBR, sW))
    srd(b, S_O, 72, 's39', 's_sub_u32 s%d, 40960, s38')
    b('s_lshl_b32 s%d, s40, 12\ns_mov_b32 s%d, s%d' % (sKO, sVO, sKO))
    stamp_setup(b, 72, sW, first=True)
    b('v_bfe_u32 v5, v%d, 2, 2\nv_and_b32 v6, 3, v%d' % (L, L))
    for m in range(4):
        b('v_add_u32 v%d, %d, v3\nv_xor_b32 v%d, v%d, v4\nv_lshlrev_b32 v%d, 4, v%d\nv_lshl_add_u32 v%d, v3, 8, v%d' % (T, 4 * m, T, T, T, T, vKD + m, T))
    for m in range(2):
        b('v_add_u32 v%d, %d, v3\nv_lshlrev_b32 v%d, 1, v%d\nv_xor_b32 v%d, v%d, v4\nv_lshlrev_b32 v%d, 4, v%d\nv_lshl_add_u32 v%d, v3, 8, v%d' % (T, 4 * m, T, T, T, T, T, T, vVD + m, T))
    b('s_lshl_b32 s41, s41, 13\nv_xor_b32 v%d, v3, v4\nv_lshlrev_b32 v%d, 8, v4\nv_add_u32 v%d, s41, v%d' % (T, T + 1, T + 1, T + 1))
    for k in range(4): b('v_xor_b32 v%d, %d, v%d\nv_lshl_add_u32 v%d, v%d, 4, v%d' % (T + 2, 4 * k, T, vKA + k, T + 2, T + 1))
    b('''v_lshl_add_u32 v{a}, v3, 2, v5
         v_lshlrev_b32 v{c}, 8, v{a}
         v_lshl_add_u32 v{c}, v6, 3, v{c}
         s_add_u32 s41, s41, {vs}
         v_add_u32 v{c}, s41, v{c}
         v_and_b32 v{a}, 7, v{a}'''.format(a=T, c=T + 1, vs=VS0))
    for dt in range(8): b('v_xor_b32 v%d, %d, v%d\nv_lshl_add_u32 v%d, v%d, 5, v%d' % (T + 2, dt, T, vVA + dt, T + 2, T + 1))
    b('''v_lshl_add_u32 v{c}, v3, 3, v5
         v_lshlrev_b32 v{c}, 9, v{c}
         s_lshr_b32 s41, s{w}, 1
         s_lshl_b32 s41, s41, 8
         v_add_u32 v{c}, s41, v{c}
         v_lshl_add_u32 v{a}, v5, 2, v6'''.format(a=T, c=T + 1, w=sW))
    for k in range(4): b('v_xor_b32 v%d, %d, v%d\nv_lshl_add_u32 v%d, v%d, 4, v%d' % (T + 2, 4 * k, T, vWA + k, T + 2, T + 1))
    b('''v_lshrrev_b32 v{a}, 1, v4
         v_xor_b32 v{a}, v{a}, v3
         s_mul_i32 s41, s40, 10240
         s_add_u32 s41, s41, {xb}
         v_lshlrev_b32 v{c}, 7, v4
         v_add_u32 v{c}, s41, v{c}'''.format(a=T, c=T + 1, xb=XBUF[0]))
    for k in range(2): b('v_xor_b32 v%d, %d, v%d\nv_lshl_add_u32 v%d, v%d, 4, v%d' % (T + 2, 4 * k, T, vXA + k, T + 2, T + 1))
    c = math.log2(math.e) / math.sqrt(128.0)
    b('s_mov_b32 s%d, 0x%08x\ns_mov_b32 s%d, 0x%08x\ns_mov_b32 s%d, 0x%08x\ns_mov_b32 s%d, 0' % (sSC, f32bits(c), sSC + 1, f32bits(c), sTH, f32bits(2.0 ** 30), sEX))
    b('v_lshl_add_u32 v%d, v%d, 4, s%d\nv_add_u32 v%d, 0x10000, v%d' % (vSW, L, sW4, vSW + 1, vSW))
    b('v_mov_b32 v%d, 0x3f803f80' % T)
    for i in range(4): b('v_accvgpr_write_b32 a%d, v%d' % (aONE + i, T))
    if opt.upfront == 1:
        for g in dma_wq(1): b.extend(g)
    return b

def zero_acc():
    return ['v_accvgpr_write_b32 a%d, 0' % i for i in range(180 if opt.ones else 160)] + ([] if opt.ones else ['v_mov_b32 v%d, 0' % (vL + i) for i in range(5)])

def conv(k):
    L = []
    for qs in range(5):
        d = rQ(k, qs)
        if opt.pk: L += ['v_pk_mul_f32 %s, %s, s[%d:%d]' % (vr(d + 2 * i, 2), vr(d + 2 * i, 2), sSC, sSC + 1) for i in range(4)]
        else: L += ['v_mul_f32 v%d, s%d, v%d' % (d + i, sSC, d + i) for i in range(8)]
        L += ['v_cvt_pk_bf16_f32 v%d, v%d, v%d' % (d + i, d + 2 * i, d + 2 * i + 1) for i in range(4)]
    return L
def qk0_mfmas():
    bb = []
    for f in range(8):
        k, kt = divmod(f, 2)
        for qs in range(5):
            s = rS(kt, qs)
            bb.append(I('%s %s, %s, %s, %s' % (MF, vr(s, 4), vr(vF + 4 * (f % NB), 4), vr(rQ(k, qs), 4), '0' if k == 0 else vr(s, 4))))
    return bb
def kread0(f):
    k, kt = divmod(f, 2)
    return [I('ds_read_b128 %s, v%d offset:%d' % (vr(vF + 4 * (f % NB), 4), vKA + k, kt * 4096), 'g%d' % f)]

def k1_qproj():
    b = Block('qproj')
    bb = []
    for c in range(16):
        for t in range(8):
            for qs in range(5):
                d = rQ(t // 2, qs) + 4 * (t % 2)
                bb.append(I('%s %s, %s, %s, %s' % (MF, vr(d, 4), ar(aFA + 4 * (t % 4), 4), ar(aFB + 20 * (c % 2) + 4 * qs, 4), '0' if c == 0 else vr(d, 4))))
    G = Gaps(bb, 8)
    def ybar(c): return -1 if c == 0 else 40 * c - 14
    cur = [0] * 4
    def wq_read(c, t):
        k, bsel = divmod(t, 2)
        want = 0 if WBUF[c % 3] < 65536 else 131072
        off = WBUF[c % 3] - want + 8 * bsel
        r = aFA + 4 * (t % 4)
        L = []
        if bsel == 0 and want != cur[k]:
            L.append(I('v_add_u32 v%d, 0x%x, v%d' % (vWA + k, (want - cur[k]) & 0xffffffff, vWA + k))); cur[k] = want
        return L, [I('ds_read_b64_tr_b16 %s, v%d offset:%d' % (ar(r, 2), vWA + k, off), 'fa'), I('ds_read_b64_tr_b16 %s, v%d offset:%d' % (ar(r + 2, 2), vWA + k, off + 2048), 'fa%d_%d' % (c, t))]
    kvq = dma_kv('K', 0, True) + dma_kv('K', 1, True) + dma_kv('V', 0, True) + dma_kv('V', 1, True) + stash_load('K', 2) + stash_load('V', 2) + stash_load('K', 3)
    nkv = opt.kvend
    bursts = dict(tuple(int(v) for v in x.split(':')) for x in opt.burst.split())
    assert not bursts or sum(bursts.values()) == 7
    if bursts: kvq = dma_kv('K', 0) + dma_kv('K', 1) + dma_kv('V', 0) + dma_kv('V', 1) + kvq[16:]
    for c in range(16):
        y = ybar(c); base = 40 * c
        G.put(y, I('@waitlgkm *'), I('@waitvm wq%d' % c + (',x%d' % (c // 2) if c % 2 == 0 else '') + (',K0' if c == 15 else '')), I('s_barrier'))
        if opt.qstamps and c % opt.qevery == 0: G.put(y, *stamp_ins())
        xr = [I('ds_read_b128 %s, v%d offset:%d' % (ar(aFB + 20 * (c % 2) + 4 * qs, 4), vXA + c % 2, (c // 2 % 2) * 20480 + 2048 * qs), 'xr%d_%d' % (c, qs)) for qs in range(5)]
        for t in range(8):
            g = max(base + 5 * (t - 3) - 1, y + 1 if c else y)
            pre, rd = wq_read(c, t)
            G.put(max(g - 1, -1), *pre); G.put(g, *rd)
            if t == 0:
                for qs in range(5): G.put(y + ((2, 4, 5, 6, 7)[qs] if c else 0), xr[qs])
                G.put(base - 1, I('@waitlgkm fa%d_1,xr%d_4' % (c, c)))
            if t % 2 == 0 and t: G.put(base + 5 * t - 1, I('@waitlgkm fa%d_%d' % (c, t + 1)))
        d = []
        if c == 0 and opt.upfront == 1: d += dma_x(1) + dma_wq(2)
        if 1 <= c < 14: d += dma_wq(c + 2)
        if c % 2 == 0 and 2 <= c < 14: d += dma_x(c // 2 + 1)
        if not bursts and c < nkv: d += kvq[(c * len(kvq)) // nkv:((c + 1) * len(kvq)) // nkv]
        flat = [x for g in d for x in g]
        if c in bursts:
            if flat: G.spread2(flat, y + 1 if c else 0, y + 14)
            flat = [x for g in kvq[:4 * bursts[c]] for x in g]; kvq = kvq[4 * bursts[c]:]
            G.spread2(flat, y + 15, y + 15 + len(flat) // 2); flat = []
        if c == 14: flat += stash_flush('K', 2) + stash_flush('V', 2)
        if c == 15: flat += stash_flush('K', 3)
        if flat: G.spread2(flat, y + 1 if c else 0, y + (39 if c < 15 else 20))
    G.spread2(zero_acc(), 20, 580)
    for f in range(3): G.put(624 + 5 * f, *kread0(f))
    G.spread2(conv(0), 613, 626); G.spread2(conv(1), 627, 639)
    em = G.emit()
    if 'd' in opt.qf: em = [x for x in em if x.cls not in ('dma', 'vld') and 'm0' not in x.w]
    if 'b' in opt.qf: em = [x for x in em if x.op != 's_barrier']
    if 'r' in opt.qf: em = [x for x in em if x.cls != 'dsr']
    if 'z' in opt.qf: em = [x for x in em if x.op != 'v_accvgpr_write_b32']
    if 'x' in opt.qf: em = [x for x in em if x.op != 'ds_read_b128']
    if 't' in opt.qf: em = [x for x in em if x.op != 'ds_read_b64_tr_b16']
    b.extend(em)
    print('qproj est cycles', G.est_cycles(16), file=sys.stderr)
    G = Gaps(qk0_mfmas(), 8)
    for f in range(3, 8): G.put(5 * (f - 3) - 1, *kread0(f))
    G.spread2(conv(2), -1, 17); G.spread2(conv(3), 18, 27)
    b.extend(G.emit())
    stamp(b)
    return b

XBAR = 66
def kread(f, slot):
    kt, k = divmod(f, 4)
    return [I('ds_read_b128 %s, v%d offset:%d' % (vr(vF + 4 * (f % NB), 4), vKA + k, slot * 16384 + kt * 4096), 'f%d' % f)]
def vread(f, slot):
    dt = f - 8; r = vF + 4 * (f % NB)
    return [I('ds_read_b64_tr_b16 %s, v%d offset:%d' % (vr(r, 2), vVA + dt, slot * 16384), 'fx'),
            I('ds_read_b64_tr_b16 %s, v%d offset:%d' % (vr(r + 2, 2), vVA + dt, slot * 16384 + 4096), 'f%d' % f)]
def neg_adds(kt): return ['v_add_f32 v%d, v%d, v%d' % (rS(kt, qs) + i, rS(kt, qs) + i, vN + 4 * qs) for qs in range(5) for i in range(4)]
def sm_chain(par):
    C = []; pend = []
    for kt in range(2):
        for qs in range(5):
            s = rS(kt, qs); p = rP(par, qs) + 2 * kt
            e = ['v_exp_f32 v%d, v%d' % (s + i, s + i) for i in range(4)]
            a = ['v_add_f32 v%d, v%d, v%d' % (vL + qs, vL + qs, s + i) for i in range(4)]
            cv = ['v_cvt_pk_bf16_f32 v%d, v%d, v%d' % (p + i, s + 2 * i, s + 2 * i + 1) for i in range(2)]
            C.append((e[0], kt, qs)); C += pend
            if opt.ones: C += [(x, kt, qs) for x in (e[1], e[2], cv[0], e[3])]; pend = [(cv[1], kt, qs)]
            else: C += [(x, kt, qs) for x in (e[1], a[0], e[2], a[1], cv[0], e[3], a[2])]; pend = [(a[3], kt, qs), (cv[1], kt, qs)]
    return C + pend
def qk_mfmas(first):
    bb = []
    for f in range(8):
        kt, k = divmod(f, 4)
        for qs in range(5):
            s = rS(kt, qs)
            c = ('0' if first else vr(vN + 4 * qs, 4)) if k == 0 else vr(s, 4)
            bb.append(I('%s %s, %s, %s, %s' % (MF, vr(s, 4), vr(vF + 4 * (f % NB), 4), vr(rQ(k, qs), 4), c)))
    return bb
def pv_mfmas(par):
    bb = []
    for f in range(8, 16):
        for qs in range(5):
            bb.append(I('%s %s, %s, %s, %s' % (MF, ar(aO(f - 8, qs), 4), vr(vF + 4 * (f % NB), 4), vr(rP(par, qs), 4), ar(aO(f - 8, qs), 4))))
    return bb
def ones_mfmas(par): return [I('%s %s, %s, %s, %s' % (MF, ar(aL + 4 * qs, 4), ar(aONE, 4), vr(rP(par, qs), 4), ar(aL + 4 * qs, 4))) for qs in range(5)]
SPLIT = [None]; SMPOS = [None]
def period(j):
    pu, pn = j % 2, (j + 1) % 2
    ks, vs = (j + 1) % 4, j
    lg = qk_mfmas(False) + pv_mfmas(pu)
    bb = []; ix = {-1: -1}
    on = ones_mfmas(pu) if opt.ones else []
    for i, x in enumerate(lg):
        bb.append(x); ix[i] = len(bb) - 1
        if on and i in (44, 49, 54, 59, 64): bb.append(on.pop(0))
    G = Gaps(bb, 8); N = len(bb)
    for f in range(3, 16):
        G.put(ix[5 * (f - 3) - 1] if f > 3 else 0, *(kread(f, ks) if f < 8 else vread(f, vs)))
        if f % 2 == 0 and f < 15: G.put(ix[5 * f] - 1, I('@waitlgkm f%d' % (f + 1)))
    G.put(ix[XBAR], I('@waitlgkm *'), I('@waitvm K%d,V%d' % ((j + 2) % 4, (j + 1) % 4)), I('s_barrier'))
    for f, g in ((0, XBAR + 1), (1, 69), (2, 74)): G.put(ix[g], *kread(f, (j + 2) % 4))
    G.put(N - 1, I('@waitlgkm f1')); G.put(9, I('@waitlgkm f3'))
    slots = [2, 7, 12, 17, 22, 27, 32, 37, 42, 47, 52, 57, 62] if opt.dsp == 5 else [1 + opt.dsp * m for m in range(8)]
    for m, g in enumerate(dma_kv('K', j) + dma_kv('V', (j + 3) % 4)):
        p = ix[slots[m]]
        if len(g) == 2 and g[0].cls == 'salu': G.put(p - 1, g[0]); G.put(p, g[1])
        elif len(g) == 2: G.put(p, g[0]); G.put(p + 1, g[1])
        else: G.put(p, *g)
    if j == 2:
        G.put(ix[71], I('s_sub_u32 s%d, s%d, 1' % (sCNT, sCNT))); G.put(ix[77], I('s_cmp_eq_u32 s%d, 0' % sCNT))
    chn, chu = sm_chain(pn), sm_chain(pu)
    if SMPOS[0] is None:
        s0 = 18; gaps = list(range(s0, N)) + list(range(0, s0))
        gaps += list(range(s0, 24))
        lo = [ix[15 + 20 * kt + qs] + 4 - s0 for (_, kt, qs) in chn]
        hi = [(N - s0 + qs - 1) if kt == 0 else (N - s0 + 19 + qs) for (_, kt, qs) in chn]
        hi = [min(h, N - 1) for h in hi]
        _, pos = G.dp([x for x, _, _ in chn], gaps, lo, hi)
        SMPOS[0] = [gaps[p] for p in pos]; SPLIT[0] = sum(p < N - s0 for p in pos)
    for k, (x, _, _) in enumerate(chu):
        if k >= SPLIT[0]: G.put(SMPOS[0][k], I(x))
    for k, (x, _, _) in enumerate(chn):
        if k < SPLIT[0]: G.put(SMPOS[0][k], I(x))
    if j == 3: G.put(ix[XBAR], *stamp_ins())
    return G

def k1_attention():
    P = [period(j) for j in range(4)]
    print('period est cycles', [g.est_cycles(16) for g in P], [P[0].used(i) for i in range(len(P[0].bb))], file=sys.stderr)
    pro = Block('pro'); T = vT
    pro('L_start:')
    pro('@waitlgkm *\n@waitvm K1,V0\ns_barrier')
    for f in range(3): pro.extend(kread(f, 1))
    if opt.fallback: pro('s_cmp_lg_u32 s%d, 0\ns_cbranch_scc1 L_nomax' % sEX)
    mx = Block('pro_max')
    for qs in range(5):
        a, c = rS(0, qs), rS(1, qs); t = T + 2 * qs
        mx('v_max3_f32 v%d, v%d, v%d, v%d\nv_max3_f32 v%d, v%d, v%d, v%d' % (t, a, a + 1, a + 2, t + 1, c, c + 1, c + 2))
        mx('v_max3_f32 v%d, v%d, v%d, v%d\nv_max_f32 v%d, v%d, v%d' % (t, t, a + 3, c + 3, t, t, t + 1))
    max_finish(mx, T)
    p2 = Block('pro2'); p2('L_nomax:')
    p2.extend(neg_adds(0) + neg_adds(1) + [x for x, _, _ in sm_chain(0)[:SPLIT[0]]])
    p2('@waitlgkm f1\ns_mov_b32 s%d, 8' % sCNT)
    stamp(p2)
    lp = [Block('per%d' % j) for j in range(4)]
    lp[0]('L_loop:')
    for j in range(4): lp[j].extend(P[j].emit())
    lp[2]('s_cbranch_scc1 L_tail')
    lp[3]('s_branch L_loop')
    return pro, mx, p2, lp

def max_finish(b, T):
    for qs in range(5): b('v_mov_b32 v%d, v%d' % (T + 2 * qs + 1, T + 2 * qs))
    for qs in range(5): b('v_permlane16_swap_b32 v%d, v%d' % (T + 2 * qs, T + 2 * qs + 1))
    for qs in range(5): b('v_max_f32 v%d, v%d, v%d' % (T + 2 * qs, T + 2 * qs, T + 2 * qs + 1))
    for qs in range(5): b('v_mov_b32 v%d, v%d' % (T + 2 * qs + 1, T + 2 * qs))
    for qs in range(5): b('v_permlane32_swap_b32 v%d, v%d' % (T + 2 * qs, T + 2 * qs + 1))
    for qs in range(5): b('v_max_f32 v%d, v%d, v%d' % (T + 2 * qs, T + 2 * qs, T + 2 * qs + 1))
    for qs in range(5):
        for i in range(4): b('v_sub_f32 v%d, 0, v%d' % (vN + 4 * qs + i, T + 2 * qs))

def k1_tail():
    b = Block('tail'); T = vT
    b('L_tail:')
    for f in range(8, 11): b.extend(vread(f, 3))
    b.extend([x for x, _, _ in sm_chain(1)[SPLIT[0]:]])
    R = T
    if opt.ones:
        b.extend(ones_mfmas(1))
    G = Gaps(pv_mfmas(1), 8)
    for f in range(11, 16): G.put(5 * (f - 11) + 4, *vread(f, 3))
    rc = []
    if opt.ones:
        rc += ['v_accvgpr_read_b32 v%d, a%d' % (R + qs, aL + 4 * qs) for qs in range(5)]
    else:
        for sw in ('v_permlane16_swap_b32', 'v_permlane32_swap_b32'):
            rc += ['v_mov_b32 v%d, v%d' % (R + 5 + qs, vL + qs) for qs in range(5)]
            rc += ['%s v%d, v%d' % (sw, vL + qs, R + 5 + qs) for qs in range(5)]
            rc += ['v_add_f32 v%d, v%d, v%d' % (vL + qs, vL + qs, R + 5 + qs) for qs in range(5)]
        rc += ['v_mov_b32 v%d, v%d' % (R + qs, vL + qs) for qs in range(5)]
    rc += ['v_add_f32 v%d, v%d, v%d' % (R + 6, R, R + 1),
           'v_add_f32 v%d, v%d, v%d' % (R + 6, R + 6, R + 2), 'v_add_f32 v%d, v%d, v%d' % (R + 7, R + 3, R + 4), 'v_add_f32 v%d, v%d, v%d' % (R + 6, R + 6, R + 7)]
    rc += ['v_rcp_f32 v%d, v%d' % (vN + i, R + i // 2) for i in range(10)]
    rc += ['v_cmp_ngt_f32 vcc, s%d, v%d' % (sTH, R + 6), 'v_lshlrev_b32 v%d, 4, v%d' % (R + 8, vLANE), 'v_add_u32 v%d, 4096, v%d' % (R + 9, R + 8)]
    G.spread2(rc, 3, 12)
    def out(k):
        L = []
        for qs in range(5):
            d = rS(0, qs) if (k * 5 + qs) % 2 == 0 else rS(1, qs); e = rP(0, qs)
            src = [aO(2 * k, qs) + i for i in range(4)] + [aO(2 * k + 1, qs) + i for i in range(4)]
            tmp = [d + i for i in range(4)] + [e + i for i in range(4)]
            L += ['v_accvgpr_read_b32 v%d, a%d' % (tmp[i], src[i]) for i in range(8)]
            if opt.pk: L += ['v_pk_mul_f32 %s, %s, %s' % (vr(tmp[i], 2), vr(tmp[i], 2), vr(vN + 2 * qs, 2)) for i in range(0, 8, 2)]
            else: L += ['v_mul_f32 v%d, v%d, v%d' % (tmp[i], vN + 2 * qs, tmp[i]) for i in range(8)]
            L += ['v_cvt_pk_bf16_f32 v%d, v%d, v%d' % (d + i, tmp[2 * i], tmp[2 * i + 1]) for i in range(4)]
            L += [I('buffer_store_dwordx4 %s, v%d, s[%d:%d], s38 offen offset:%d%s' % (vr(d, 4), R + 8 + qs // 4, S_O, S_O + 3, 1024 * (qs % 4), opt.o_st_pol), 'O')]
        return ['s_mov_b32 s38, %d' % (10240 * k)] + L
    G.spread2(out(0), 14, 39)
    b.extend(G.emit())
    for k in range(1, 4): b.extend(out(k))
    stamp(b)
    if opt.fallback:
        b('s_cmp_lg_u64 vcc, 0\ns_cselect_b32 s38, 1, 0\nv_mov_b32 v%d, s38\ns_lshl_b32 s39, s%d, 2\ns_add_u32 s39, s39, %d\nv_mov_b32 v%d, s39' % (R + 10, sW, FLAGB, R + 11))
        b('ds_write_b32 v%d, v%d\nv_mov_b32 v%d, %d\ns_waitcnt lgkmcnt(0)\ns_barrier\nds_read_b128 %s, v%d' % (R + 11, R + 10, R + 11, FLAGB, vr(R + 12, 4), R + 11))
        b('v_or_b32 v%d, v%d, v%d\nv_or3_b32 v%d, v%d, v%d, v%d\nv_readfirstlane_b32 s38, v%d' % (R + 10, R + 12, R + 13, R + 10, R + 10, R + 14, R + 15, R + 10))
        b('s_cmp_lg_u32 s%d, 0\ns_cselect_b32 s38, 0, s38\ns_cmp_eq_u32 s38, 0\ns_cbranch_scc1 L_k1_end' % sEX)
    else: b('s_branch L_k1_end')
    return b

def k1_fallback():
    b = Block('fb'); T = vT
    b('s_waitcnt vmcnt(0) lgkmcnt(0)\ns_nop 15\ns_barrier')
    b('v_and_b32 v1, 15, v%d\nv_lshrrev_b32 v2, 4, v%d\nv_lshlrev_b32 v2, 4, v2\nv_lshl_add_u32 v%d, v1, 8, v2' % (vLANE, vLANE, T + 10))
    for qs in range(5): b('v_mov_b32 v%d, 0xff800000' % (T + 2 * qs))
    b('s_mov_b32 s39, 0')
    lp = Block('fbl'); lp('L_fb_loop:')
    for k in range(4): lp('buffer_load_dwordx4 %s, v%d, s[%d:%d], s39 offen offset:%d' % (vr(vF + 4 * k, 4), T + 10, S_K, S_K + 3, 64 * k))
    lp('s_waitcnt vmcnt(0)')
    lp.extend(qk_mfmas(True)[:20])
    lp('s_nop 15')
    for qs in range(5):
        s = rS(0, qs); t = T + 2 * qs
        lp('v_max3_f32 v%d, v%d, v%d, v%d\nv_max3_f32 v%d, v%d, v%d, v%d' % (t, t, s, s + 1, t, t, s + 2, s + 3))
    lp('s_add_u32 s39, s39, 4096\ns_cmp_lt_u32 s39, 262144\ns_cbranch_scc1 L_fb_loop')
    e = Block('fbe')
    max_finish(e, T)
    e.extend(zero_acc())
    e('s_and_b32 s40, s%d, 1\ns_lshl_b32 s%d, s40, 12\ns_mov_b32 s%d, s%d' % (sW, sKO, sVO, sKO))
    for g in dma_kv('K', 0) + dma_kv('K', 1) + dma_kv('K', 2) + dma_kv('K', 3) + dma_kv('V', 0) + dma_kv('V', 1) + dma_kv('V', 2): e.extend(g)
    e('s_mov_b32 s%d, 1\ns_waitcnt vmcnt(0)\ns_barrier' % sEX)
    G = Gaps(qk0_mfmas(), 8)
    for f in range(8): G.put(max(5 * (f - 3) - 1, -1), *kread0(f))
    e.extend(G.emit())
    e('s_nop 7\ns_branch L_start')
    return b, lp, e

def kernel_text(kname, blocks, traces, vgpr, accum, sgpr=102):
    d = {b.name: b for b in blocks}
    assert len(d) == len(blocks)
    place_waits(d, traces)
    n = place_nops(d, traces)
    print(kname[:12], 'nop states inserted', n, 'instructions', {b.name: len(b.ins) for b in blocks}, file=sys.stderr)
    t = '.text\n.globl %s\n.p2align 8\n.type %s,@function\n%s:\n' % (kname, kname, kname) + render(blocks)
    t += '.section .rodata,"a"\n.p2align 6\n.amdhsa_kernel %s\n' % kname
    t += '  .amdhsa_next_free_vgpr %d\n  .amdhsa_next_free_sgpr %d\n  .amdhsa_accum_offset %d\n' % (vgpr, sgpr, accum)
    t += '  .amdhsa_group_segment_fixed_size 0\n  .amdhsa_kernarg_size 104\n  .amdhsa_user_sgpr_count 2\n'
    t += '  .amdhsa_user_sgpr_kernarg_segment_ptr 1\n  .amdhsa_system_sgpr_workgroup_id_x 1\n.end_amdhsa_kernel\n'
    return t

def gen_k1(kname):
    setup = k1_setup(); qp = k1_qproj()
    pro, mx, p2, lp = k1_attention(); tail = k1_tail()
    end = Block('end'); end('L_k1_end:\ns_endpgm')
    blocks = [setup, qp, pro, mx, p2] + lp + [tail]
    loop = ['per0', 'per1', 'per2', 'per3'] * 2 + ['per0', 'per1', 'per2', 'tail']
    traces = [['setup', 'qproj', 'pro', 'pro_max', 'pro2'] + loop + ['end']]
    if opt.fallback:
        fb, fbl, fbe = k1_fallback(); blocks += [fb, fbl, fbe]
        traces.append(traces[0][:-1] + ['fb', 'fbl', 'fbl', 'fbe', 'pro', 'pro2'] + loop + ['end'])
    blocks.append(end)
    return kernel_text(kname, blocks, traces, 512, 256)

def gen_k2(kname):
    sW, sC0 = 24, 25
    vRA, vDA, vOL, vXW, vXR, vST = 8, 12, 16, 20, 24, 28
    vFO, vFW = 32, 112
    aA = 0; XB_ = 65536
    s = Block('k2_setup')
    s('s_cmp_ge_u32 s2, 256\ns_cbranch_scc1 L_k2_end')
    s('''s_and_b32 s38, s2, 7
         s_lshr_b32 s46, s38, 2
         s_and_b32 s38, s38, 3
         s_lshr_b32 s39, s2, 3
         s_lshr_b32 s40, s39, 4
         s_lshl_b32 s38, s38, 1
         s_add_u32 s45, s38, s40
         s_lshr_b32 s40, s39, 3
         s_and_b32 s44, s40, 1
         s_and_b32 s43, s39, 7
         s_lshl_b32 s40, s40, 1
         s_add_u32 s25, s43, s40
         s_mul_i32 s38, s46, 40
         s_add_u32 s60, s0, s38
         s_addc_u32 s61, s1, 0
         s_load_dwordx2 s[64:65], s[60:61], 32
         s_load_dwordx2 s[66:67], s[0:1], 80
         s_load_dwordx2 s[68:69], s[0:1], 96
         v_lshrrev_b32 v2, 6, v0
         v_and_b32 v1, 63, v0
         v_readfirstlane_b32 s24, v2
         v_lshrrev_b32 v3, 4, v1''')
    s('v_lshlrev_b32 v2, 1, v3\nv_and_b32 v6, 7, v1\nv_xor_b32 v2, v2, v6\nv_lshlrev_b32 v2, 4, v2\nv_lshrrev_b32 v6, 3, v1\nv_lshl_add_u32 v2, v6, 10, v2')
    for n in range(4): s('v_add_u32 v%d, %d, v2' % (vDA + n, 7168 * n))
    s('v_lshlrev_b32 v%d, 4, v1\nv_add_u32 v%d, 4096, v%d\ns_lshl_b32 s26, s24, 14' % (vOL, vOL + 1, vOL))
    s('s_and_b32 s27, s2, 7\ns_mul_i32 s27, s27, %d\ns_add_u32 s25, s25, s27' % opt.k2stag)
    s('s_waitcnt lgkmcnt(0)')
    s('''s_lshl_b32 s38, s46, 3
         s_add_u32 s38, s38, s45
         s_mul_i32 s38, s38, 1310720
         s_mul_i32 s39, s24, 10240
         s_mul_i32 s40, s44, 5120
         s_add_u32 s39, s39, s40
         s_add_u32 s38, s38, s39''')
    srd(s, 4, 68, 's38', 's_sub_u32 s%d, 1310720, s39')
    s('s_lshl_b32 s38, s43, 7\ns_lshl_b32 s39, s24, 15\ns_add_u32 s38, s38, s39')
    srd(s, 8, 64, 's38', 's_sub_u32 s%d, 4194304, s38')
    def loads(t):
        G = [[I('s_add_u32 s38, s%d, %d' % (sC0, t)), I('s_and_b32 s38, s38, 7'), I('s_add_u32 s39, s27, %d' % t), I('s_and_b32 s39, s39, 24'), I('s_add_u32 s38, s38, s39'),
              I('s_mul_i32 s39, s38, 40960'), I('s_lshl_b32 s38, s38, 17'), I('s_add_u32 m0, s26, %d' % ((t % 4) * 4096))]]
        for n in range(4):
            G.append([I('buffer_load_dwordx4 v%d, s[8:11], s38 offen offset:%d%s lds' % (vDA + n, 1024 * n, opt.wo_pol), 'wo%d' % t)])
        for f in range(5):
            G.append([I('buffer_load_dwordx4 %s, v%d, s[4:7], s39 offen offset:%d%s' % (vr(vFO + 20 * (t % 4) + 4 * f, 4), vOL + f // 4, 1024 * (f % 4), opt.o_ld_pol))])
        return G
    for t in range(3):
        for g in loads(t): s.extend(g)
    s('''s_mul_i32 s38, s45, 160
         s_mul_i32 s39, s44, 80
         s_add_u32 s38, s38, s39
         s_lshl_b32 s38, s38, 11
         s_lshl_b32 s39, s46, 10
         s_add_u32 s38, s38, s39
         s_lshl_b32 s39, s43, 7
         s_add_u32 s38, s38, s39''')
    srd(s, 12, 66, 's38', 's_sub_u32 s%d, 2621440, s38')
    s('''v_bfe_u32 v4, v1, 2, 2
         v_and_b32 v5, 3, v1
         v_lshl_add_u32 v6, v3, 2, v4
         v_bfe_u32 v2, v6, 1, 2
         v_xor_b32 v2, s24, v2
         v_lshlrev_b32 v6, 7, v6
         v_lshl_add_u32 v6, v5, 3, v6
         v_add_u32 v6, s26, v6''')
    for nl in range(4): s('v_xor_b32 v7, %d, v2\nv_lshl_add_u32 v%d, v7, 5, v6' % (nl, vRA + nl))
    for j in range(1, 4):
        s('s_xor_b32 s39, s24, %d\ns_lshl_b32 s40, s39, 2\ns_add_u32 s40, s40, s24\ns_mul_i32 s40, s40, 5120\ns_add_u32 s40, s40, %d\nv_add_u32 v%d, s40, v%d' % (j, XB_, vXW + j, vOL))
        s('s_lshl_b32 s40, s24, 2\ns_add_u32 s40, s40, s39\ns_mul_i32 s40, s40, 5120\ns_add_u32 s40, s40, %d\nv_add_u32 v%d, s40, v%d' % (XB_, vXR + j, vOL))
    s('v_and_b32 v2, 15, v1\nv_lshlrev_b32 v2, 11, v2\nv_lshl_add_u32 v2, v3, 3, v2\ns_lshl_b32 s39, s24, 5\nv_add_u32 v%d, s39, v2' % vST)
    stamp_setup(s, 68, 24, 0x2010000)
    def reads(t):
        G = []
        for nl in range(4):
            r = vFW + 16 * (t % 2) + 4 * nl
            G.append([I('ds_read_b64_tr_b16 %s, v%d offset:%d' % (vr(r, 2), vRA + nl, (t % 4) * 4096)),
                      I('ds_read_b64_tr_b16 %s, v%d offset:%d' % (vr(r + 2, 2), vRA + nl, (t % 4) * 4096 + 2048))])
        return G
    m = Block('k2_main')
    m('@waitvm wo0')
    for g in reads(0): m.extend(g)
    bb = []
    for t in range(32):
        for nl in range(4):
            for f in range(5):
                c = aA + 4 * (5 * nl + f)
                bb.append(I('%s %s, %s, %s, %s' % (MF, ar(c, 4), vr(vFW + 16 * (t % 2) + 4 * nl, 4), vr(vFO + 20 * (t % 4) + 4 * f, 4), '0' if t == 0 else ar(c, 4))))
    G = Gaps(bb, 8)
    for t in range(32):
        base = 20 * t
        if t + 3 < 32:
            for k, g in enumerate(loads(t + 3)): G.put(base + k, *g)
        if t + 1 < 32:
            G.put(base + 10, I('@waitvm wo%d' % (t + 1)))
            if t % 4 == 0: G.put(base + 10, *stamp_ins())
            for k, g in enumerate(reads(t + 1)): G.put(base + 10 + 2 * k, *g)
    m.extend(G.emit())
    stamp(m)
    T = 32
    for j in (1, 2, 3):
        for f in range(5): m('ds_write_b128 v%d, %s offset:%d' % (vXW + j, ar(aA + 4 * (5 * j + f), 4), 1024 * f))
    for i in range(20): m('v_accvgpr_read_b32 v%d, a%d' % (T + i, aA + i))
    m('s_waitcnt lgkmcnt(0)\ns_barrier')
    for f in range(5):
        for j in (1, 2, 3): m('ds_read_b128 %s, v%d offset:%d' % (vr(T + 20 * j + 4 * f, 4), vXR + j, 1024 * f))
    for f in range(5):
        for i in range(4 * f, 4 * f + 4):
            m('v_add_f32 v%d, v%d, v%d\nv_add_f32 v%d, v%d, v%d' % (T + i, T + i, T + 20 + i, T + 40 + i, T + 40 + i, T + 60 + i))
        for i in range(4 * f, 4 * f + 4): m('v_add_f32 v%d, v%d, v%d' % (T + i, T + i, T + 40 + i))
        m('v_cvt_pk_bf16_f32 v%d, v%d, v%d\nv_cvt_pk_bf16_f32 v%d, v%d, v%d' % (T + 4 * f, T + 4 * f, T + 4 * f + 1, T + 4 * f + 1, T + 4 * f + 2, T + 4 * f + 3))
        m('s_mov_b32 s38, %d' % (f * 32768))
        m('buffer_store_dwordx2 %s, v%d, s[12:15], s38 offen%s' % (vr(T + 4 * f, 2), vST, opt.out_pol))
    if opt.stamps: m('s_waitcnt vmcnt(0)')
    stamp(m)
    end = Block('k2_end'); end('L_k2_end:\ns_endpgm')
    return kernel_text(kname, [s, m, end], [['k2_setup', 'k2_main', 'k2_end']], 256, 160)

def main(out, only=None):
    t = open('cdna_kernels/%s.s.ref' % NAME).read().split('; Override launch')[0]
    k1, k2 = NAME + '_kernel', 'oproj_kernel'
    if only != 2: t += '; @launch kernel=%s grid=(256,1,1) block=(256,1,1) lds=163840\n' % k1
    if only != 1: t += '; @launch kernel=%s grid=(256,1,1) block=(256,1,1) lds=147456\n' % k2
    t += '.amdgcn_target "amdgcn-amd-amdhsa--gfx950"\n'
    t += gen_k1(k1) + gen_k2(k2)
    open(out, 'w').write(t)

if __name__ == '__main__':
    out = sys.argv[1]; only = None
    for a in sys.argv[2:]:
        k, v = a.split('=')
        if k == 'only': only = int(v)
        elif isinstance(getattr(opt, k), bool): setattr(opt, k, v == '1')
        elif isinstance(getattr(opt, k), int): setattr(opt, k, int(v))
        else: setattr(opt, k, (' ' + v.replace('+', ' ')) if v else '')
    main(out, only)
```

```python
import sys, math, struct
from asmlib import *

NAME = "concat_heads__gqa_block_cached__gqa_block_cached__near_ridge"
def f32bits(x): return struct.unpack('<I', struct.pack('<f', x))[0]
MF = 'v_mfma_f32_16x16x32_bf16'
def vr(b, n=1, k='v'): return '%s%d' % (k, b) if n == 1 else '%s[%d:%d]' % (k, b, b + n - 1)
def ar(b, n=1): return vr(b, n, 'a')

class Opt:
    kv_pol = ' nt'; w_pol = ''; x_pol = ''; o_st_pol = ' nt'; o_ld_pol = ''; wo_pol = ''; out_pol = ''
    stamps = False; fallback = True; ones = True; nokv = False; nox = False; noxq = False; qstamps = False
    dsp = 7; kvend = 13; burst = ' '; k2stag = 1; qevery = 4; warm = 200; qf = ' '; pk = False; upfront = 1; diag = ' '
opt = Opt()

S_K, S_V, S_X, S_WQ, S_O = 4, 8, 12, 16, 20
sW, sW4, sKO, sVO, sCNT, sEX, sC0, sB, sBR, sH1, sTH, sM0B = 24, 25, 26, 27, 28, 29, 30, 31, 32, 33, 34, 35
sSC = 36
S_TS, sTSA, sTSN = 52, 56, 58
sWO, sXO = 76, 92
STASH = {'K2': 32, 'V2': 224, 'K3': 240}
vSW = 27
vKA, vVA, vKD, vVD, vLANE, vL = 8, 12, 20, 24, 26, 59
vF = 32; NB = 4
vWA, vXA, vWD, vXD = 48, 52, 54, 58
vACC = 64
def rQ(k, qs): return vACC + 8 * (5 * k + qs)
def hole(i): return vACC + 8 * i + 4
def rS(kt, qs): return hole(5 * kt + qs)
def rP(par, qs): return hole(10 + 5 * par + qs)
vN = 224
vT = 48; vT2 = 244
def aO(dt, qs): return 4 * (5 * dt + qs)
aL, aONE, aFA, aFB = 160, 180, 184, 200
KS0, VS0 = 0, 65536
WBUF = [139264, 32768, 49152]
XBUF = [98304, 118784]
FLAGB = 131072 + 28672

def stamp_ins():
    if not opt.stamps: return []
    return [I('s_memrealtime s[%d:%d]' % (sTSA, sTSA + 1)), I('s_memtime s[62:63]'), I('s_waitcnt lgkmcnt(0)'), I('v_mov_b32 v5, s%d' % sTSA), I('v_mov_b32 v6, s%d' % sTSN), I('v_mov_b32 v7, s62'),
            I('buffer_store_dword v5, v6, s[%d:%d], 0 offen' % (S_TS, S_TS + 3), 'stamp'), I('buffer_store_dword v7, v6, s[%d:%d], 0 offen offset:128' % (S_TS, S_TS + 3), 'stamp'), I('s_add_u32 s%d, s%d, 4' % (sTSN, sTSN))]
def stamp(b): b.extend(stamp_ins())
def stamp_setup(b, ws, w, off=0x2000000, first=False):
    if not opt.stamps: return
    b('''s_lshl_b32 s39, s2, 8
         s_add_u32 s39, s39, {off}
         s_add_u32 s{T}, s{ws}, s39
         s_addc_u32 s{T1}, s{ws1}, 0
         s_cmp_eq_u32 s{w}, 0
         s_cselect_b32 s{T2}, 256, 0
         s_mov_b32 s{T3}, 0x20000
         s_mov_b32 s{N}, 0'''.format(T=S_TS, T1=S_TS + 1, T2=S_TS + 2, T3=S_TS + 3, w=w, ws=ws, ws1=ws + 1, N=sTSN, off=off))
    if first:
        b('v_mov_b32 v5, s100\nv_mov_b32 v6, 0\nv_mov_b32 v7, s74')
        b('buffer_store_dword v5, v6, s[%d:%d], 0 offen\nbuffer_store_dword v7, v6, s[%d:%d], 0 offen offset:128\ns_mov_b32 s%d, 4' % (S_TS, S_TS + 3, S_TS, S_TS + 3, sTSN))
    stamp(b)

def srd(b, d, lo, off, num):
    b('s_add_u32 s%d, s%d, %s\ns_addc_u32 s%d, s%d, 0\n%s\ns_mov_b32 s%d, 0x20000' % (d, lo, off, d + 1, lo + 1,
      ('s_mov_b32 s%d, %d' % (d + 2, num)) if isinstance(num, int) else num % (d + 2), d + 3))

def off_calc(X):
    return ['s_add_u32 s38, s%d, %d' % (sC0, X), 's_and_b32 s38, s38, 7', 's_lshl_b32 s%d, s38, 7' % (sXO + X), 's_lshl_b32 s%d, s38, 19' % (sWO + 2 * X),
            's_add_u32 s%d, s%d, 262144' % (sWO + 2 * X + 1, sWO + 2 * X)]
def dma_wq(c):
    G = [[I('s_add_u32 m0, s%d, %d' % (sW4, WBUF[c % 3]))]]
    for n in range(4):
        G.append([I('buffer_load_dwordx4 v%d, s[%d:%d], s%d offen offset:%d%s lds' % (vWD + n, S_WQ, S_WQ + 3, sWO + c, 1024 * n, opt.w_pol), 'wq%d' % c)])
    return G
def dma_x(X):
    G = [[I('s_add_u32 m0, s%d, %d' % (sW4, XBUF[X % 2]))]]
    for n in range(4):
        G.append([I('buffer_load_dwordx4 v%d, s[%d:%d], s%d offen offset:%d%s lds' % (vXD + n, S_X, S_X + 3, sXO + X, 1024 * n, opt.x_pol), 'x%d' % X)])
    G.append([I('s_add_u32 m0, s%d, %d' % (sM0B, XBUF[X % 2] + 16384))])
    G.append([I('buffer_load_dwordx4 v%d, s[%d:%d], s%d offen%s lds' % (vXD + 4, S_X, S_X + 3, sXO + X, opt.x_pol), 'x%d' % X)])
    return G
def stash_load(which, slot):
    K = which == 'K'; srd_, so = (S_K, sKO) if K else (S_V, sVO); r = STASH['%s%d' % (which, slot)]
    G = [[I('buffer_load_dwordx4 %s, v%d, s[%d:%d], s%d offen offset:%d%s' % (vr(r + 4 * m, 4), vKD + m if K else vVD + m % 2, srd_, srd_ + 3, so, 1024 * m, opt.kv_pol), 'st')] for m in range(4)]
    G[3].append(I('s_add_u32 s%d, s%d, 8192' % (so, so)))
    return G
def stash_flush(which, slot):
    r = STASH['%s%d' % (which, slot)]; base = (KS0 if which == 'K' else VS0) + 16384 * slot
    return [I('ds_write_b128 v%d, %s offset:%d' % (vSW + base // 65536, vr(r + 4 * m, 4), base % 65536 + 1024 * m)) for m in range(4)]
def dma_kv(which, slot, m0each=False):
    G = []; K = which == 'K'
    srd_, so = (S_K, sKO) if K else (S_V, sVO)
    for m in range(4):
        g = []
        if m == 0 or m0each: g.append(I('s_add_u32 m0, s%d, %d' % (sW4, (KS0 if K else VS0) + 16384 * slot)))
        g.append(I('buffer_load_dwordx4 v%d, s[%d:%d], s%d offen offset:%d%s lds' % (vKD + m if K else vVD + m % 2, srd_, srd_ + 3, so, 1024 * m, opt.kv_pol), '%s%d' % (which, slot)))
        if m == 3: g.append(I('s_add_u32 s%d, s%d, 8192' % (so, so)))
        G.append(g)
    return G

def k1_setup():
    b = Block('setup'); L = vLANE; T = vT2
    b('s_cmp_ge_u32 s2, 256\ns_cbranch_scc1 L_k1_end')
    if opt.stamps: b('s_memrealtime s[100:101]\ns_memtime s[74:75]')
    if opt.warm:
        b('s_getpc_b64 s[40:41]\nv_lshlrev_b32 v2, 7, v0\nv_mov_b32 v3, s41\nv_add_co_u32 v2, vcc, s40, v2\nv_addc_co_u32 v3, vcc, 0, v3, vcc')
        b('v_cmp_gt_u32 vcc, %d, v0\ns_and_saveexec_b64 s[42:43], vcc\nglobal_load_dword v63, v[2:3], off\ns_mov_b64 exec, s[42:43]' % opt.warm)
    b('''s_and_b32 s38, s2, 7
         s_lshr_b32 s{BR}, s38, 2
         s_and_b32 s38, s38, 3
         s_lshr_b32 s39, s2, 3
         s_and_b32 s{B}, s39, 7
         s_lshr_b32 s39, s39, 3
         s_lshl_b32 s38, s38, 3
         s_lshl_b32 s40, s39, 1
         s_add_u32 s{H}, s38, s40
         s_add_u32 s{C}, s{B}, s40
         s_and_b32 s{C}, s{C}, 7
         s_mul_i32 s38, s{BR}, 40
         s_add_u32 s60, s0, s38
         s_addc_u32 s61, s1, 0
         s_load_dwordx8 s[64:71], s[60:61], 0
         s_load_dwordx2 s[72:73], s[0:1], 96
         v_lshrrev_b32 v1, 6, v0
         v_and_b32 v{L}, 63, v0
         v_readfirstlane_b32 s{W}, v1
         v_and_b32 v1, 31, v{L}
         v_lshrrev_b32 v2, 5, v{L}
         v_lshrrev_b32 v3, 4, v{L}
         v_and_b32 v4, 15, v{L}
         s_lshl_b32 s{W4}, s{W}, 12
         s_lshl_b32 s{M}, s{W}, 10'''.format(BR=sBR, B=sB, H=sH1, C=sC0, L=L, W=sW, W4=sW4, M=sM0B))
    b('s_lshl_b32 s39, s%d, 16' % sW)
    for n in range(4):
        b('''v_add_u32 v{a}, {n2}, v2
             v_and_b32 v{c}, 3, v{a}
             v_lshlrev_b32 v{c}, 2, v{c}
             v_xor_b32 v{c}, v{c}, v1
             v_lshlrev_b32 v{c}, 4, v{c}
             v_lshl_add_u32 v{c}, v{a}, 13, v{c}
             v_add_u32 v{c}, s39, v{c}
             v_subrev_u32 v{d}, {sub}, v{c}'''.format(a=T, c=T + 1, n2=2 * n, d=vWD + n, sub=1024 * n))
    b('s_lshl_b32 s39, s%d, 15\nv_lshrrev_b32 v%d, 3, v%d\nv_and_b32 v%d, 7, v%d\ns_lshl_b32 s38, s%d, 2' % (sW, T + 3, L, T + 4, L, sW))
    for n in range(4):
        b('''v_add_u32 v{a}, {n4}, v3
             v_and_b32 v{a}, 7, v{a}
             v_xor_b32 v{a}, v{a}, v{p}
             v_lshlrev_b32 v{a}, 4, v{a}
             v_lshl_add_u32 v{a}, v{r}, 10, v{a}
             v_add_u32 v{a}, {add}, v{a}
             v_add_u32 v{d}, s39, v{a}'''.format(a=T, n4=4 * n, p=T + 4, r=T + 3, add=7 * 1024 * n, d=vXD + n))
    b('''s_lshl_b32 s39, s{w}, 13
         s_add_u32 s39, s39, 131072
         v_add_u32 v{a}, s38, v3
         v_and_b32 v{a}, 7, v{a}
         v_xor_b32 v{a}, v{a}, v{p}
         v_lshlrev_b32 v{a}, 4, v{a}
         v_lshl_add_u32 v{a}, v{r}, 10, v{a}
         v_add_u32 v{d}, s39, v{a}'''.format(w=sW, a=T, p=T + 4, r=T + 3, d=vXD + 4))
    b('s_waitcnt lgkmcnt(0)')
    b('s_mul_i32 s39, s%d, 163840' % sB); srd(b, S_X, 64, 's39', 163840)
    b('s_lshl_b32 s39, s%d, 8' % sH1); srd(b, S_WQ, 70, 's39', 's_sub_u32 s%d, 4194304, s39')
    if opt.nox: b('s_mov_b32 s%d, 0' % (S_X + 2))
    if opt.noxq: b('s_mov_b32 s%d, 0' % (S_WQ + 2))
    b.extend(off_calc(0) + off_calc(1))
    for g in dma_wq(0) + dma_x(0) + (dma_wq(1) + dma_x(1) + dma_wq(2) if opt.upfront == 2 else []): b.extend(g)
    for X in range(2, 8): b.extend(off_calc(X))
    b('s_lshr_b32 s41, s%d, 1\ns_lshl_b32 s38, s%d, 5\ns_add_u32 s38, s38, s%d\ns_add_u32 s38, s38, s41\ns_lshl_b32 s39, s38, 18' % (sW, sB, sH1))
    srd(b, S_K, 66, 's39', 0 if opt.nokv else 262144); srd(b, S_V, 68, 's39', 0 if opt.nokv else 262144)
    b('s_lshl_b32 s39, s%d, 8\ns_add_u32 s38, s38, s39\ns_mul_i32 s39, s38, 40960\ns_and_b32 s40, s%d, 1\ns_mul_i32 s38, s40, 5120\ns_add_u32 s39, s39, s38' % (sBR, sW))
    srd(b, S_O, 72, 's39', 's_sub_u32 s%d, 40960, s38')
    b('s_lshl_b32 s%d, s40, 12\ns_mov_b32 s%d, s%d' % (sKO, sVO, sKO))
    stamp_setup(b, 72, sW, first=True)
    b('v_bfe_u32 v5, v%d, 2, 2\nv_and_b32 v6, 3, v%d' % (L, L))
    for m in range(4):
        b('v_add_u32 v%d, %d, v3\nv_xor_b32 v%d, v%d, v4\nv_lshlrev_b32 v%d, 4, v%d\nv_lshl_add_u32 v%d, v3, 8, v%d' % (T, 4 * m, T, T, T, T, vKD + m, T))
    for m in range(2):
        b('v_add_u32 v%d, %d, v3\nv_lshlrev_b32 v%d, 1, v%d\nv_xor_b32 v%d, v%d, v4\nv_lshlrev_b32 v%d, 4, v%d\nv_lshl_add_u32 v%d, v3, 8, v%d' % (T, 4 * m, T, T, T, T, T, T, vVD + m, T))
    b('s_lshl_b32 s41, s41, 13\nv_xor_b32 v%d, v3, v4\nv_lshlrev_b32 v%d, 8, v4\nv_add_u32 v%d, s41, v%d' % (T, T + 1, T + 1, T + 1))
    for k in range(4): b('v_xor_b32 v%d, %d, v%d\nv_lshl_add_u32 v%d, v%d, 4, v%d' % (T + 2, 4 * k, T, vKA + k, T + 2, T + 1))
    b('''v_lshl_add_u32 v{a}, v3, 2, v5
         v_lshlrev_b32 v{c}, 8, v{a}
         v_lshl_add_u32 v{c}, v6, 3, v{c}
         s_add_u32 s41, s41, {vs}
         v_add_u32 v{c}, s41, v{c}
         v_and_b32 v{a}, 7, v{a}'''.format(a=T, c=T + 1, vs=VS0))
    for dt in range(8): b('v_xor_b32 v%d, %d, v%d\nv_lshl_add_u32 v%d, v%d, 5, v%d' % (T + 2, dt, T, vVA + dt, T + 2, T + 1))
    b('''v_lshl_add_u32 v{c}, v3, 3, v5
         v_lshlrev_b32 v{c}, 9, v{c}
         s_lshr_b32 s41, s{w}, 1
         s_lshl_b32 s41, s41, 8
         v_add_u32 v{c}, s41, v{c}
         v_lshl_add_u32 v{a}, v5, 2, v6'''.format(a=T, c=T + 1, w=sW))
    for k in range(4): b('v_xor_b32 v%d, %d, v%d\nv_lshl_add_u32 v%d, v%d, 4, v%d' % (T + 2, 4 * k, T, vWA + k, T + 2, T + 1))
    b('''v_lshrrev_b32 v{a}, 1, v4
         v_xor_b32 v{a}, v{a}, v3
         s_mul_i32 s41, s40, 10240
         s_add_u32 s41, s41, {xb}
         v_lshlrev_b32 v{c}, 7, v4
         v_add_u32 v{c}, s41, v{c}'''.format(a=T, c=T + 1, xb=XBUF[0]))
    for k in range(2): b('v_xor_b32 v%d, %d, v%d\nv_lshl_add_u32 v%d, v%d, 4, v%d' % (T + 2, 4 * k, T, vXA + k, T + 2, T + 1))
    c = math.log2(math.e) / math.sqrt(128.0)
    b('s_mov_b32 s%d, 0x%08x\ns_mov_b32 s%d, 0x%08x\ns_mov_b32 s%d, 0x%08x\ns_mov_b32 s%d, 0' % (sSC, f32bits(c), sSC + 1, f32bits(c), sTH, f32bits(2.0 ** 30), sEX))
    b('v_lshl_add_u32 v%d, v%d, 4, s%d\nv_add_u32 v%d, 0x10000, v%d' % (vSW, L, sW4, vSW + 1, vSW))
    b('v_mov_b32 v%d, 0x3f803f80' % T)
    for i in range(4): b('v_accvgpr_write_b32 a%d, v%d' % (aONE + i, T))
    if opt.upfront == 1:
        for g in dma_wq(1): b.extend(g)
    return b

def zero_acc():
    return ['v_accvgpr_write_b32 a%d, 0' % i for i in range(180 if opt.ones else 160)] + ([] if opt.ones else ['v_mov_b32 v%d, 0' % (vL + i) for i in range(5)])

def conv(k):
    L = []
    for qs in range(5):
        d = rQ(k, qs)
        if opt.pk: L += ['v_pk_mul_f32 %s, %s, s[%d:%d]' % (vr(d + 2 * i, 2), vr(d + 2 * i, 2), sSC, sSC + 1) for i in range(4)]
        else: L += ['v_mul_f32 v%d, s%d, v%d' % (d + i, sSC, d + i) for i in range(8)]
        L += ['v_cvt_pk_bf16_f32 v%d, v%d, v%d' % (d + i, d + 2 * i, d + 2 * i + 1) for i in range(4)]
    return L
def qk0_mfmas():
    bb = []
    for f in range(8):
        k, kt = divmod(f, 2)
        for qs in range(5):
            s = rS(kt, qs)
            bb.append(I('%s %s, %s, %s, %s' % (MF, vr(s, 4), vr(vF + 4 * (f % NB), 4), vr(rQ(k, qs), 4), '0' if k == 0 else vr(s, 4))))
    return bb
def kread0(f):
    k, kt = divmod(f, 2)
    return [I('ds_read_b128 %s, v%d offset:%d' % (vr(vF + 4 * (f % NB), 4), vKA + k, kt * 4096), 'g%d' % f)]

def k1_qproj():
    b = Block('qproj')
    bb = []
    for c in range(16):
        for t in range(8):
            for qs in range(5):
                d = rQ(t // 2, qs) + 4 * (t % 2)
                bb.append(I('%s %s, %s, %s, %s' % (MF, vr(d, 4), ar(aFA + 4 * (t % 4), 4), ar(aFB + 20 * (c % 2) + 4 * qs, 4), '0' if c == 0 else vr(d, 4))))
    G = Gaps(bb, 8)
    def ybar(c): return -1 if c == 0 else 40 * c - 14
    cur = [0] * 4
    def wq_read(c, t):
        k, bsel = divmod(t, 2)
        want = 0 if WBUF[c % 3] < 65536 else 131072
        off = WBUF[c % 3] - want + 8 * bsel
        r = aFA + 4 * (t % 4)
        L = []
        if bsel == 0 and want != cur[k]:
            L.append(I('v_add_u32 v%d, 0x%x, v%d' % (vWA + k, (want - cur[k]) & 0xffffffff, vWA + k))); cur[k] = want
        return L, [I('ds_read_b64_tr_b16 %s, v%d offset:%d' % (ar(r, 2), vWA + k, off), 'fa'), I('ds_read_b64_tr_b16 %s, v%d offset:%d' % (ar(r + 2, 2), vWA + k, off + 2048), 'fa%d_%d' % (c, t))]
    kvq = dma_kv('K', 0, True) + dma_kv('K', 1, True) + dma_kv('V', 0, True) + dma_kv('V', 1, True) + stash_load('K', 2) + stash_load('V', 2) + stash_load('K', 3)
    nkv = opt.kvend
    bursts = dict(tuple(int(v) for v in x.split(':')) for x in opt.burst.split())
    assert not bursts or sum(bursts.values()) == 7
    if bursts: kvq = dma_kv('K', 0) + dma_kv('K', 1) + dma_kv('V', 0) + dma_kv('V', 1) + kvq[16:]
    for c in range(16):
        y = ybar(c); base = 40 * c
        G.put(y, I('@waitlgkm *'), I('@waitvm wq%d' % c + (',x%d' % (c // 2) if c % 2 == 0 else '') + (',K0' if c == 15 else '')), I('s_barrier'))
        if opt.qstamps and c % opt.qevery == 0: G.put(y, *stamp_ins())
        xr = [I('ds_read_b128 %s, v%d offset:%d' % (ar(aFB + 20 * (c % 2) + 4 * qs, 4), vXA + c % 2, (c // 2 % 2) * 20480 + 2048 * qs), 'xr%d_%d' % (c, qs)) for qs in range(5)]
        for t in range(8):
            g = max(base + 5 * (t - 3) - 1, y + 1 if c else y)
            pre, rd = wq_read(c, t)
            G.put(max(g - 1, -1), *pre); G.put(g, *rd)
            if t == 0:
                for qs in range(5): G.put(y + ((2, 4, 5, 6, 7)[qs] if c else 0), xr[qs])
                G.put(base - 1, I('@waitlgkm fa%d_1,xr%d_4' % (c, c)))
            if t % 2 == 0 and t: G.put(base + 5 * t - 1, I('@waitlgkm fa%d_%d' % (c, t + 1)))
        d = []
        if c == 0 and opt.upfront == 1: d += dma_x(1) + dma_wq(2)
        if 1 <= c < 14: d += dma_wq(c + 2)
        if c % 2 == 0 and 2 <= c < 14: d += dma_x(c // 2 + 1)
        if not bursts and c < nkv: d += kvq[(c * len(kvq)) // nkv:((c + 1) * len(kvq)) // nkv]
        flat = [x for g in d for x in g]
        if c in bursts:
            if flat: G.spread2(flat, y + 1 if c else 0, y + 14)
            flat = [x for g in kvq[:4 * bursts[c]] for x in g]; kvq = kvq[4 * bursts[c]:]
            G.spread2(flat, y + 15, y + 15 + len(flat) // 2); flat = []
        if c == 14: flat += stash_flush('K', 2) + stash_flush('V', 2)
        if c == 15: flat += stash_flush('K', 3)
        if flat: G.spread2(flat, y + 1 if c else 0, y + (39 if c < 15 else 20))
    G.spread2(zero_acc(), 20, 580)
    for f in range(3): G.put(624 + 5 * f, *kread0(f))
    G.spread2(conv(0), 613, 626); G.spread2(conv(1), 627, 639)
    em = G.emit()
    if 'd' in opt.qf: em = [x for x in em if x.cls not in ('dma', 'vld') and 'm0' not in x.w]
    if 'b' in opt.qf: em = [x for x in em if x.op != 's_barrier']
    if 'r' in opt.qf: em = [x for x in em if x.cls != 'dsr']
    if 'z' in opt.qf: em = [x for x in em if x.op != 'v_accvgpr_write_b32']
    if 'x' in opt.qf: em = [x for x in em if x.op != 'ds_read_b128']
    if 't' in opt.qf: em = [x for x in em if x.op != 'ds_read_b64_tr_b16']
    b.extend(em)
    print('qproj est cycles', G.est_cycles(16), file=sys.stderr)
    G = Gaps(qk0_mfmas(), 8)
    for f in range(3, 8): G.put(5 * (f - 3) - 1, *kread0(f))
    G.spread2(conv(2), -1, 17); G.spread2(conv(3), 18, 27)
    b.extend(G.emit())
    stamp(b)
    return b

XBAR = 66
def kread(f, slot):
    kt, k = divmod(f, 4)
    return [I('ds_read_b128 %s, v%d offset:%d' % (vr(vF + 4 * (f % NB), 4), vKA + k, slot * 16384 + kt * 4096), 'f%d' % f)]
def vread(f, slot):
    dt = f - 8; r = vF + 4 * (f % NB)
    return [I('ds_read_b64_tr_b16 %s, v%d offset:%d' % (vr(r, 2), vVA + dt, slot * 16384), 'fx'),
            I('ds_read_b64_tr_b16 %s, v%d offset:%d' % (vr(r + 2, 2), vVA + dt, slot * 16384 + 4096), 'f%d' % f)]
def neg_adds(kt): return ['v_add_f32 v%d, v%d, v%d' % (rS(kt, qs) + i, rS(kt, qs) + i, vN + 4 * qs) for qs in range(5) for i in range(4)]
def sm_chain(par):
    C = []; pend = []
    for kt in range(2):
        for qs in range(5):
            s = rS(kt, qs); p = rP(par, qs) + 2 * kt
            e = ['v_exp_f32 v%d, v%d' % (s + i, s + i) for i in range(4)]
            a = ['v_add_f32 v%d, v%d, v%d' % (vL + qs, vL + qs, s + i) for i in range(4)]
            cv = ['v_cvt_pk_bf16_f32 v%d, v%d, v%d' % (p + i, s + 2 * i, s + 2 * i + 1) for i in range(2)]
            C.append((e[0], kt, qs)); C += pend
            if opt.ones: C += [(x, kt, qs) for x in (e[1], e[2], cv[0], e[3])]; pend = [(cv[1], kt, qs)]
            else: C += [(x, kt, qs) for x in (e[1], a[0], e[2], a[1], cv[0], e[3], a[2])]; pend = [(a[3], kt, qs), (cv[1], kt, qs)]
    return C + pend
def qk_mfmas(first):
    bb = []
    for f in range(8):
        kt, k = divmod(f, 4)
        for qs in range(5):
            s = rS(kt, qs)
            c = ('0' if first else vr(vN + 4 * qs, 4)) if k == 0 else vr(s, 4)
            bb.append(I('%s %s, %s, %s, %s' % (MF, vr(s, 4), vr(vF + 4 * (f % NB), 4), vr(rQ(k, qs), 4), c)))
    return bb
def pv_mfmas(par):
    bb = []
    for f in range(8, 16):
        for qs in range(5):
            bb.append(I('%s %s, %s, %s, %s' % (MF, ar(aO(f - 8, qs), 4), vr(vF + 4 * (f % NB), 4), vr(rP(par, qs), 4), ar(aO(f - 8, qs), 4))))
    return bb
def ones_mfmas(par): return [I('%s %s, %s, %s, %s' % (MF, ar(aL + 4 * qs, 4), ar(aONE, 4), vr(rP(par, qs), 4), ar(aL + 4 * qs, 4))) for qs in range(5)]
SPLIT = [None]; SMPOS = [None]
def period(j):
    pu, pn = j % 2, (j + 1) % 2
    ks, vs = (j + 1) % 4, j
    lg = qk_mfmas(False) + pv_mfmas(pu)
    bb = []; ix = {-1: -1}
    on = ones_mfmas(pu) if opt.ones else []
    for i, x in enumerate(lg):
        bb.append(x); ix[i] = len(bb) - 1
        if on and i in (44, 49, 54, 59, 64): bb.append(on.pop(0))
    G = Gaps(bb, 8); N = len(bb)
    for f in range(3, 16):
        G.put(ix[5 * (f - 3) - 1] if f > 3 else 0, *(kread(f, ks) if f < 8 else vread(f, vs)))
        if f % 2 == 0 and f < 15: G.put(ix[5 * f] - 1, I('@waitlgkm f%d' % (f + 1)))
    G.put(ix[XBAR], I('@waitlgkm *'), I('@waitvm K%d,V%d' % ((j + 2) % 4, (j + 1) % 4)), I('s_barrier'))
    for f, g in ((0, XBAR + 1), (1, 69), (2, 74)): G.put(ix[g], *kread(f, (j + 2) % 4))
    G.put(N - 1, I('@waitlgkm f1')); G.put(9, I('@waitlgkm f3'))
    slots = [2, 7, 12, 17, 22, 27, 32, 37, 42, 47, 52, 57, 62] if opt.dsp == 5 else [1 + opt.dsp * m for m in range(8)]
    for m, g in enumerate(dma_kv('K', j) + dma_kv('V', (j + 3) % 4)):
        p = ix[slots[m]]
        if len(g) == 2 and g[0].cls == 'salu': G.put(p - 1, g[0]); G.put(p, g[1])
        elif len(g) == 2: G.put(p, g[0]); G.put(p + 1, g[1])
        else: G.put(p, *g)
    if j == 2:
        G.put(ix[71], I('s_sub_u32 s%d, s%d, 1' % (sCNT, sCNT))); G.put(ix[77], I('s_cmp_eq_u32 s%d, 0' % sCNT))
    chn, chu = sm_chain(pn), sm_chain(pu)
    if SMPOS[0] is None:
        s0 = 18; gaps = list(range(s0, N)) + list(range(0, s0))
        gaps += list(range(s0, 24))
        lo = [ix[15 + 20 * kt + qs] + 4 - s0 for (_, kt, qs) in chn]
        hi = [(N - s0 + qs - 1) if kt == 0 else (N - s0 + 19 + qs) for (_, kt, qs) in chn]
        hi = [min(h, N - 1) for h in hi]
        _, pos = G.dp([x for x, _, _ in chn], gaps, lo, hi)
        SMPOS[0] = [gaps[p] for p in pos]; SPLIT[0] = sum(p < N - s0 for p in pos)
    for k, (x, _, _) in enumerate(chu):
        if k >= SPLIT[0]: G.put(SMPOS[0][k], I(x))
    for k, (x, _, _) in enumerate(chn):
        if k < SPLIT[0]: G.put(SMPOS[0][k], I(x))
    if j == 3: G.put(ix[XBAR], *stamp_ins())
    return G

def k1_attention():
    P = [period(j) for j in range(4)]
    print('period est cycles', [g.est_cycles(16) for g in P], [P[0].used(i) for i in range(len(P[0].bb))], file=sys.stderr)
    pro = Block('pro'); T = vT
    pro('L_start:')
    pro('@waitlgkm *\n@waitvm K1,V0\ns_barrier')
    for f in range(3): pro.extend(kread(f, 1))
    if opt.fallback: pro('s_cmp_lg_u32 s%d, 0\ns_cbranch_scc1 L_nomax' % sEX)
    mx = Block('pro_max')
    for qs in range(5):
        a, c = rS(0, qs), rS(1, qs); t = T + 2 * qs
        mx('v_max3_f32 v%d, v%d, v%d, v%d\nv_max3_f32 v%d, v%d, v%d, v%d' % (t, a, a + 1, a + 2, t + 1, c, c + 1, c + 2))
        mx('v_max3_f32 v%d, v%d, v%d, v%d\nv_max_f32 v%d, v%d, v%d' % (t, t, a + 3, c + 3, t, t, t + 1))
    max_finish(mx, T)
    p2 = Block('pro2'); p2('L_nomax:')
    p2.extend(neg_adds(0) + neg_adds(1) + [x for x, _, _ in sm_chain(0)[:SPLIT[0]]])
    p2('@waitlgkm f1\ns_mov_b32 s%d, 8' % sCNT)
    stamp(p2)
    lp = [Block('per%d' % j) for j in range(4)]
    lp[0]('L_loop:')
    for j in range(4): lp[j].extend(P[j].emit())
    lp[2]('s_cbranch_scc1 L_tail')
    lp[3]('s_branch L_loop')
    return pro, mx, p2, lp

def max_finish(b, T):
    for qs in range(5): b('v_mov_b32 v%d, v%d' % (T + 2 * qs + 1, T + 2 * qs))
    for qs in range(5): b('v_permlane16_swap_b32 v%d, v%d' % (T + 2 * qs, T + 2 * qs + 1))
    for qs in range(5): b('v_max_f32 v%d, v%d, v%d' % (T + 2 * qs, T + 2 * qs, T + 2 * qs + 1))
    for qs in range(5): b('v_mov_b32 v%d, v%d' % (T + 2 * qs + 1, T + 2 * qs))
    for qs in range(5): b('v_permlane32_swap_b32 v%d, v%d' % (T + 2 * qs, T + 2 * qs + 1))
    for qs in range(5): b('v_max_f32 v%d, v%d, v%d' % (T + 2 * qs, T + 2 * qs, T + 2 * qs + 1))
    for qs in range(5):
        for i in range(4): b('v_sub_f32 v%d, 0, v%d' % (vN + 4 * qs + i, T + 2 * qs))

def k1_tail():
    b = Block('tail'); T = vT
    b('L_tail:')
    for f in range(8, 11): b.extend(vread(f, 3))
    b.extend([x for x, _, _ in sm_chain(1)[SPLIT[0]:]])
    R = T
    if opt.ones:
        b.extend(ones_mfmas(1))
    G = Gaps(pv_mfmas(1), 8)
    for f in range(11, 16): G.put(5 * (f - 11) + 4, *vread(f, 3))
    rc = []
    if opt.ones:
        rc += ['v_accvgpr_read_b32 v%d, a%d' % (R + qs, aL + 4 * qs) for qs in range(5)]
    else:
        for sw in ('v_permlane16_swap_b32', 'v_permlane32_swap_b32'):
            rc += ['v_mov_b32 v%d, v%d' % (R + 5 + qs, vL + qs) for qs in range(5)]
            rc += ['%s v%d, v%d' % (sw, vL + qs, R + 5 + qs) for qs in range(5)]
            rc += ['v_add_f32 v%d, v%d, v%d' % (vL + qs, vL + qs, R + 5 + qs) for qs in range(5)]
        rc += ['v_mov_b32 v%d, v%d' % (R + qs, vL + qs) for qs in range(5)]
    rc += ['v_add_f32 v%d, v%d, v%d' % (R + 6, R, R + 1),
           'v_add_f32 v%d, v%d, v%d' % (R + 6, R + 6, R + 2), 'v_add_f32 v%d, v%d, v%d' % (R + 7, R + 3, R + 4), 'v_add_f32 v%d, v%d, v%d' % (R + 6, R + 6, R + 7)]
    rc += ['v_rcp_f32 v%d, v%d' % (vN + i, R + i // 2) for i in range(10)]
    rc += ['v_cmp_ngt_f32 vcc, s%d, v%d' % (sTH, R + 6), 'v_lshlrev_b32 v%d, 4, v%d' % (R + 8, vLANE), 'v_add_u32 v%d, 4096, v%d' % (R + 9, R + 8)]
    G.spread2(rc, 3, 12)
    def out(k):
        L = []
        for qs in range(5):
            d = rS(0, qs) if (k * 5 + qs) % 2 == 0 else rS(1, qs); e = rP(0, qs)
            src = [aO(2 * k, qs) + i for i in range(4)] + [aO(2 * k + 1, qs) + i for i in range(4)]
            tmp = [d + i for i in range(4)] + [e + i for i in range(4)]
            L += ['v_accvgpr_read_b32 v%d, a%d' % (tmp[i], src[i]) for i in range(8)]
            if opt.pk: L += ['v_pk_mul_f32 %s, %s, %s' % (vr(tmp[i], 2), vr(tmp[i], 2), vr(vN + 2 * qs, 2)) for i in range(0, 8, 2)]
            else: L += ['v_mul_f32 v%d, v%d, v%d' % (tmp[i], vN + 2 * qs, tmp[i]) for i in range(8)]
            L += ['v_cvt_pk_bf16_f32 v%d, v%d, v%d' % (d + i, tmp[2 * i], tmp[2 * i + 1]) for i in range(4)]
            L += [I('buffer_store_dwordx4 %s, v%d, s[%d:%d], s38 offen offset:%d%s' % (vr(d, 4), R + 8 + qs // 4, S_O, S_O + 3, 1024 * (qs % 4), opt.o_st_pol), 'O')]
        return ['s_mov_b32 s38, %d' % (10240 * k)] + L
    G.spread2(out(0), 14, 39)
    b.extend(G.emit())
    for k in range(1, 4): b.extend(out(k))
    stamp(b)
    if opt.fallback:
        b('s_cmp_lg_u64 vcc, 0\ns_cselect_b32 s38, 1, 0\nv_mov_b32 v%d, s38\ns_lshl_b32 s39, s%d, 2\ns_add_u32 s39, s39, %d\nv_mov_b32 v%d, s39' % (R + 10, sW, FLAGB, R + 11))
        b('ds_write_b32 v%d, v%d\nv_mov_b32 v%d, %d\ns_waitcnt lgkmcnt(0)\ns_barrier\nds_read_b128 %s, v%d' % (R + 11, R + 10, R + 11, FLAGB, vr(R + 12, 4), R + 11))
        b('v_or_b32 v%d, v%d, v%d\nv_or3_b32 v%d, v%d, v%d, v%d\nv_readfirstlane_b32 s38, v%d' % (R + 10, R + 12, R + 13, R + 10, R + 10, R + 14, R + 15, R + 10))
        b('s_cmp_lg_u32 s%d, 0\ns_cselect_b32 s38, 0, s38\ns_cmp_eq_u32 s38, 0\ns_cbranch_scc1 L_k1_end' % sEX)
    else: b('s_branch L_k1_end')
    return b

def k1_fallback():
    b = Block('fb'); T = vT
    b('s_waitcnt vmcnt(0) lgkmcnt(0)\ns_nop 15\ns_barrier')
    b('v_and_b32 v1, 15, v%d\nv_lshrrev_b32 v2, 4, v%d\nv_lshlrev_b32 v2, 4, v2\nv_lshl_add_u32 v%d, v1, 8, v2' % (vLANE, vLANE, T + 10))
    for qs in range(5): b('v_mov_b32 v%d, 0xff800000' % (T + 2 * qs))
    b('s_mov_b32 s39, 0')
    lp = Block('fbl'); lp('L_fb_loop:')
    for k in range(4): lp('buffer_load_dwordx4 %s, v%d, s[%d:%d], s39 offen offset:%d' % (vr(vF + 4 * k, 4), T + 10, S_K, S_K + 3, 64 * k))
    lp('s_waitcnt vmcnt(0)')
    lp.extend(qk_mfmas(True)[:20])
    lp('s_nop 15')
    for qs in range(5):
        s = rS(0, qs); t = T + 2 * qs
        lp('v_max3_f32 v%d, v%d, v%d, v%d\nv_max3_f32 v%d, v%d, v%d, v%d' % (t, t, s, s + 1, t, t, s + 2, s + 3))
    lp('s_add_u32 s39, s39, 4096\ns_cmp_lt_u32 s39, 262144\ns_cbranch_scc1 L_fb_loop')
    e = Block('fbe')
    max_finish(e, T)
    e.extend(zero_acc())
    e('s_and_b32 s40, s%d, 1\ns_lshl_b32 s%d, s40, 12\ns_mov_b32 s%d, s%d' % (sW, sKO, sVO, sKO))
    for g in dma_kv('K', 0) + dma_kv('K', 1) + dma_kv('K', 2) + dma_kv('K', 3) + dma_kv('V', 0) + dma_kv('V', 1) + dma_kv('V', 2): e.extend(g)
    e('s_mov_b32 s%d, 1\ns_waitcnt vmcnt(0)\ns_barrier' % sEX)
    G = Gaps(qk0_mfmas(), 8)
    for f in range(8): G.put(max(5 * (f - 3) - 1, -1), *kread0(f))
    e.extend(G.emit())
    e('s_nop 7\ns_branch L_start')
    return b, lp, e

def kernel_text(kname, blocks, traces, vgpr, accum, sgpr=102):
    d = {b.name: b for b in blocks}
    assert len(d) == len(blocks)
    place_waits(d, traces)
    n = place_nops(d, traces)
    print(kname[:12], 'nop states inserted', n, 'instructions', {b.name: len(b.ins) for b in blocks}, file=sys.stderr)
    t = '.text\n.globl %s\n.p2align 8\n.type %s,@function\n%s:\n' % (kname, kname, kname) + render(blocks)
    t += '.section .rodata,"a"\n.p2align 6\n.amdhsa_kernel %s\n' % kname
    t += '  .amdhsa_next_free_vgpr %d\n  .amdhsa_next_free_sgpr %d\n  .amdhsa_accum_offset %d\n' % (vgpr, sgpr, accum)
    t += '  .amdhsa_group_segment_fixed_size 0\n  .amdhsa_kernarg_size 104\n  .amdhsa_user_sgpr_count 2\n'
    t += '  .amdhsa_user_sgpr_kernarg_segment_ptr 1\n  .amdhsa_system_sgpr_workgroup_id_x 1\n.end_amdhsa_kernel\n'
    return t

def gen_k1(kname):
    setup = k1_setup(); qp = k1_qproj()
    pro, mx, p2, lp = k1_attention(); tail = k1_tail()
    end = Block('end'); end('L_k1_end:\ns_endpgm')
    blocks = [setup, qp, pro, mx, p2] + lp + [tail]
    loop = ['per0', 'per1', 'per2', 'per3'] * 2 + ['per0', 'per1', 'per2', 'tail']
    traces = [['setup', 'qproj', 'pro', 'pro_max', 'pro2'] + loop + ['end']]
    if opt.fallback:
        fb, fbl, fbe = k1_fallback(); blocks += [fb, fbl, fbe]
        traces.append(traces[0][:-1] + ['fb', 'fbl', 'fbl', 'fbe', 'pro', 'pro2'] + loop + ['end'])
    blocks.append(end)
    return kernel_text(kname, blocks, traces, 512, 256)

def gen_k2(kname):
    sW, sC0 = 24, 25
    vRA, vDA, vOL, vXW, vXR, vST = 8, 12, 16, 20, 24, 28
    vFO, vFW = 32, 112
    aA = 0; XB_ = 65536
    s = Block('k2_setup')
    s('s_cmp_ge_u32 s2, 256\ns_cbranch_scc1 L_k2_end')
    s('''s_and_b32 s38, s2, 7
         s_lshr_b32 s46, s38, 2
         s_and_b32 s38, s38, 3
         s_lshr_b32 s39, s2, 3
         s_lshr_b32 s40, s39, 4
         s_lshl_b32 s38, s38, 1
         s_add_u32 s45, s38, s40
         s_lshr_b32 s40, s39, 3
         s_and_b32 s44, s40, 1
         s_and_b32 s43, s39, 7
         s_lshl_b32 s40, s40, 1
         s_add_u32 s25, s43, s40
         s_mul_i32 s38, s46, 40
         s_add_u32 s60, s0, s38
         s_addc_u32 s61, s1, 0
         s_load_dwordx2 s[64:65], s[60:61], 32
         s_load_dwordx2 s[66:67], s[0:1], 80
         s_load_dwordx2 s[68:69], s[0:1], 96
         v_lshrrev_b32 v2, 6, v0
         v_and_b32 v1, 63, v0
         v_readfirstlane_b32 s24, v2
         v_lshrrev_b32 v3, 4, v1''')
    s('v_lshlrev_b32 v2, 1, v3\nv_and_b32 v6, 7, v1\nv_xor_b32 v2, v2, v6\nv_lshlrev_b32 v2, 4, v2\nv_lshrrev_b32 v6, 3, v1\nv_lshl_add_u32 v2, v6, 10, v2')
    for n in range(4): s('v_add_u32 v%d, %d, v2' % (vDA + n, 7168 * n))
    s('v_lshlrev_b32 v%d, 4, v1\nv_add_u32 v%d, 4096, v%d\ns_lshl_b32 s26, s24, 14' % (vOL, vOL + 1, vOL))
    s('s_and_b32 s27, s2, 7\ns_mul_i32 s27, s27, %d\ns_add_u32 s25, s25, s27' % opt.k2stag)
    s('s_waitcnt lgkmcnt(0)')
    s('''s_lshl_b32 s38, s46, 3
         s_add_u32 s38, s38, s45
         s_mul_i32 s38, s38, 1310720
         s_mul_i32 s39, s24, 10240
         s_mul_i32 s40, s44, 5120
         s_add_u32 s39, s39, s40
         s_add_u32 s38, s38, s39''')
    srd(s, 4, 68, 's38', 's_sub_u32 s%d, 1310720, s39')
    s('s_lshl_b32 s38, s43, 7\ns_lshl_b32 s39, s24, 15\ns_add_u32 s38, s38, s39')
    srd(s, 8, 64, 's38', 's_sub_u32 s%d, 4194304, s38')
    def loads(t):
        G = [[I('s_add_u32 s38, s%d, %d' % (sC0, t)), I('s_and_b32 s38, s38, 7'), I('s_add_u32 s39, s27, %d' % t), I('s_and_b32 s39, s39, 24'), I('s_add_u32 s38, s38, s39'),
              I('s_mul_i32 s39, s38, 40960'), I('s_lshl_b32 s38, s38, 17'), I('s_add_u32 m0, s26, %d' % ((t % 4) * 4096))]]
        for n in range(4):
            G.append([I('buffer_load_dwordx4 v%d, s[8:11], s38 offen offset:%d%s lds' % (vDA + n, 1024 * n, opt.wo_pol), 'wo%d' % t)])
        for f in range(5):
            G.append([I('buffer_load_dwordx4 %s, v%d, s[4:7], s39 offen offset:%d%s' % (vr(vFO + 20 * (t % 4) + 4 * f, 4), vOL + f // 4, 1024 * (f % 4), opt.o_ld_pol))])
        return G
    for t in range(3):
        for g in loads(t): s.extend(g)
    s('''s_mul_i32 s38, s45, 160
         s_mul_i32 s39, s44, 80
         s_add_u32 s38, s38, s39
         s_lshl_b32 s38, s38, 11
         s_lshl_b32 s39, s46, 10
         s_add_u32 s38, s38, s39
         s_lshl_b32 s39, s43, 7
         s_add_u32 s38, s38, s39''')
    srd(s, 12, 66, 's38', 's_sub_u32 s%d, 2621440, s38')
    s('''v_bfe_u32 v4, v1, 2, 2
         v_and_b32 v5, 3, v1
         v_lshl_add_u32 v6, v3, 2, v4
         v_bfe_u32 v2, v6, 1, 2
         v_xor_b32 v2, s24, v2
         v_lshlrev_b32 v6, 7, v6
         v_lshl_add_u32 v6, v5, 3, v6
         v_add_u32 v6, s26, v6''')
    for nl in range(4): s('v_xor_b32 v7, %d, v2\nv_lshl_add_u32 v%d, v7, 5, v6' % (nl, vRA + nl))
    for j in range(1, 4):
        s('s_xor_b32 s39, s24, %d\ns_lshl_b32 s40, s39, 2\ns_add_u32 s40, s40, s24\ns_mul_i32 s40, s40, 5120\ns_add_u32 s40, s40, %d\nv_add_u32 v%d, s40, v%d' % (j, XB_, vXW + j, vOL))
        s('s_lshl_b32 s40, s24, 2\ns_add_u32 s40, s40, s39\ns_mul_i32 s40, s40, 5120\ns_add_u32 s40, s40, %d\nv_add_u32 v%d, s40, v%d' % (XB_, vXR + j, vOL))
    s('v_and_b32 v2, 15, v1\nv_lshlrev_b32 v2, 11, v2\nv_lshl_add_u32 v2, v3, 3, v2\ns_lshl_b32 s39, s24, 5\nv_add_u32 v%d, s39, v2' % vST)
    stamp_setup(s, 68, 24, 0x2010000)
    def reads(t):
        G = []
        for nl in range(4):
            r = vFW + 16 * (t % 2) + 4 * nl
            G.append([I('ds_read_b64_tr_b16 %s, v%d offset:%d' % (vr(r, 2), vRA + nl, (t % 4) * 4096)),
                      I('ds_read_b64_tr_b16 %s, v%d offset:%d' % (vr(r + 2, 2), vRA + nl, (t % 4) * 4096 + 2048))])
        return G
    m = Block('k2_main')
    m('@waitvm wo0')
    for g in reads(0): m.extend(g)
    bb = []
    for t in range(32):
        for nl in range(4):
            for f in range(5):
                c = aA + 4 * (5 * nl + f)
                bb.append(I('%s %s, %s, %s, %s' % (MF, ar(c, 4), vr(vFW + 16 * (t % 2) + 4 * nl, 4), vr(vFO + 20 * (t % 4) + 4 * f, 4), '0' if t == 0 else ar(c, 4))))
    G = Gaps(bb, 8)
    for t in range(32):
        base = 20 * t
        if t + 3 < 32:
            for k, g in enumerate(loads(t + 3)): G.put(base + k, *g)
        if t + 1 < 32:
            G.put(base + 10, I('@waitvm wo%d' % (t + 1)))
            if t % 4 == 0: G.put(base + 10, *stamp_ins())
            for k, g in enumerate(reads(t + 1)): G.put(base + 10 + 2 * k, *g)
    m.extend(G.emit())
    stamp(m)
    T = 32
    for j in (1, 2, 3):
        for f in range(5): m('ds_write_b128 v%d, %s offset:%d' % (vXW + j, ar(aA + 4 * (5 * j + f), 4), 1024 * f))
    for i in range(20): m('v_accvgpr_read_b32 v%d, a%d' % (T + i, aA + i))
    m('s_waitcnt lgkmcnt(0)\ns_barrier')
    for f in range(5):
        for j in (1, 2, 3): m('ds_read_b128 %s, v%d offset:%d' % (vr(T + 20 * j + 4 * f, 4), vXR + j, 1024 * f))
    for f in range(5):
        for i in range(4 * f, 4 * f + 4):
            m('v_add_f32 v%d, v%d, v%d\nv_add_f32 v%d, v%d, v%d' % (T + i, T + i, T + 20 + i, T + 40 + i, T + 40 + i, T + 60 + i))
        for i in range(4 * f, 4 * f + 4): m('v_add_f32 v%d, v%d, v%d' % (T + i, T + i, T + 40 + i))
        m('v_cvt_pk_bf16_f32 v%d, v%d, v%d\nv_cvt_pk_bf16_f32 v%d, v%d, v%d' % (T + 4 * f, T + 4 * f, T + 4 * f + 1, T + 4 * f + 1, T + 4 * f + 2, T + 4 * f + 3))
        m('s_mov_b32 s38, %d' % (f * 32768))
        m('buffer_store_dwordx2 %s, v%d, s[12:15], s38 offen%s' % (vr(T + 4 * f, 2), vST, opt.out_pol))
    if opt.stamps: m('s_waitcnt vmcnt(0)')
    stamp(m)
    end = Block('k2_end'); end('L_k2_end:\ns_endpgm')
    return kernel_text(kname, [s, m, end], [['k2_setup', 'k2_main', 'k2_end']], 256, 160)

def gen_diag(kname):
    a, b_, gain = [int(x, 0) for x in opt.diag.split()]
    b = Block('dg')
    b('''s_cmp_ge_u32 s2, 1
         s_cbranch_scc1 L_dg_end
         s_load_dwordx2 s[4:5], s[0:1], 96
         s_waitcnt lgkmcnt(0)
         s_add_u32 s4, s4, 0x2000000
         s_addc_u32 s5, s5, 0
         s_load_dword s6, s[4:5], %d
         s_load_dword s7, s[4:5], %d
         s_memrealtime s[8:9]
         s_waitcnt lgkmcnt(0)
         s_sub_u32 s6, s7, s6
         s_min_u32 s6, s6, 20000
         s_mul_i32 s6, s6, %d
         L_dg:
         s_memrealtime s[10:11]
         s_waitcnt lgkmcnt(0)
         s_sub_u32 s10, s10, s8
         s_cmp_lt_u32 s10, s6
         s_cbranch_scc1 L_dg
         L_dg_end:
         s_endpgm''' % (a, b_, gain))
    return kernel_text(kname, [b], [['dg']], 8, 8, 16)

def main(out, only=None):
    t = open('cdna_kernels/%s.s.ref' % NAME).read().split('; Override launch')[0]
    k1, k2 = NAME + '_kernel', 'oproj_kernel'
    if only != 2: t += '; @launch kernel=%s grid=(256,1,1) block=(256,1,1) lds=163840\n' % k1
    if only != 1: t += '; @launch kernel=%s grid=(256,1,1) block=(256,1,1) lds=147456\n' % k2
    if opt.diag.strip(): t += '; @launch kernel=diag_kernel grid=(1,1,1) block=(64,1,1) lds=0\n'
    t += '.amdgcn_target "amdgcn-amd-amdhsa--gfx950"\n'
    t += gen_k1(k1) + gen_k2(k2)
    if opt.diag.strip(): t += gen_diag('diag_kernel')
    open(out, 'w').write(t)

if __name__ == '__main__':
    out = sys.argv[1]; only = None
    for a in sys.argv[2:]:
        k, v = a.split('=')
        if k == 'only': only = int(v)
        elif isinstance(getattr(opt, k), bool): setattr(opt, k, v == '1')
        elif isinstance(getattr(opt, k), int): setattr(opt, k, int(v))
        else: setattr(opt, k, (' ' + v.replace('+', ' ')) if v else '')
    main(out, only)
```

```python
import sys, math, struct
from asmlib import *

NAME = "concat_heads__gqa_block_cached__gqa_block_cached__near_ridge"
def f32bits(x): return struct.unpack('<I', struct.pack('<f', x))[0]
MF = 'v_mfma_f32_16x16x32_bf16'
def vr(b, n=1, k='v'): return '%s%d' % (k, b) if n == 1 else '%s[%d:%d]' % (k, b, b + n - 1)
def ar(b, n=1): return vr(b, n, 'a')

class Opt:
    kv_pol = ' nt'; w_pol = ''; x_pol = ''; o_st_pol = ' sc1'; o_ld_pol = ' sc1'; wo_pol = ''; out_pol = ''; p_st_pol = ' sc1'; p_ld_pol = ' sc1'
    stamps = False; fallback = True; ones = True; nokv = False; nox = False; noxq = False; qstamps = False
    dsp = 7; kvend = 13; burst = ' '; k2stag = 1; qevery = 4; warm = 322; qf = ' '; pk = False; upfront = 1; diag = ' '; tstamps = False; touch = True; flagpos = 24; pollpos = 88; chkpos = 132
opt = Opt()

S_K, S_V, S_X, S_WQ, S_O = 4, 8, 12, 16, 20
sW, sW4, sKO, sVO, sCNT, sEX, sC0, sB, sBR, sH1, sTH, sM0B = 24, 25, 26, 27, 28, 29, 30, 31, 32, 33, 34, 35
sSC = 36
S_TS, sTSA, sTSN = 52, 56, 58
sWO, sXO = 76, 92
STASH = {'K2': 32, 'V2': 224, 'K3': 240}
vSW = 2
vKA, vVA, vKD, vVD, vLANE, vL = 8, 12, 20, 24, 26, 59
vF = 32; NB = 4
vWA, vXA, vWD, vXD = 48, 52, 54, 58
vACC = 64
def rQ(k, qs): return vACC + 8 * (5 * k + qs)
def hole(i): return vACC + 8 * i + 4
def rS(kt, qs): return hole(5 * kt + qs)
def rP(par, qs): return hole(10 + 5 * par + qs)
vN = 224
vT = 48; vT2 = 244
def aO(dt, qs): return 4 * (5 * dt + qs)
aL, aONE, aFA, aFB = 160, 180, 184, 200
KS0, VS0 = 0, 65536
WBUF = [139264, 32768, 49152]
XBUF = [98304, 118784]
sJP, sKQ = 3, 59
S_F, S_D, S_P, S_OUT, S_WO, S_OR = 44, 48, 64, 68, 12, 16
sOK, sWOO, sORO, sPW, sPR, sD01, sD12, sMK1, sMK2 = 76, 80, 88, 96, 99, 30, 33, 42, 43
POFF, FOFF, TSOFF = 0x1500000, 0x2a00000, 0x3000000
vOD, vOL, vXW, vXR, vYW, vYR, vST, vFA, vPA, vDA = 54, 58, 62, 63, 48, 49, 50, 51, 28, 30
vRA = [8, 9, 10, 11, 20, 21, 22, 23]
WOB = [131072, 0, 65536, 32768, 98304]
BADB = 98304 + 10240
BS = [[vACC + 8 * i for i in range(10)], [vACC + 8 * i for i in range(10, 20)], [hole(i) for i in range(10)]]
SPIN = 1 << 15

def stamp_ins():
    if not opt.stamps: return []
    return [I('s_memrealtime s[%d:%d]' % (sTSA, sTSA + 1)), I('s_memtime s[62:63]'), I('s_waitcnt lgkmcnt(0)'), I('v_mov_b32 v5, s%d' % sTSA), I('v_mov_b32 v6, s%d' % sTSN), I('v_mov_b32 v7, s62'),
            I('buffer_store_dword v5, v6, s[%d:%d], 0 offen' % (S_TS, S_TS + 3), 'stamp'), I('buffer_store_dword v7, v6, s[%d:%d], 0 offen offset:128' % (S_TS, S_TS + 3), 'stamp'), I('s_add_u32 s%d, s%d, 4' % (sTSN, sTSN))]
def stamp(b): b.extend(stamp_ins())
def stamp_setup(b, ws, w, off=TSOFF, first=False):
    if not opt.stamps: return
    b('''s_lshl_b32 s39, s2, 8
         s_add_u32 s39, s39, {off}
         s_add_u32 s{T}, s{ws}, s39
         s_addc_u32 s{T1}, s{ws1}, 0
         s_cmp_eq_u32 s{w}, 0
         s_cselect_b32 s{T2}, 256, 0
         s_mov_b32 s{T3}, 0x20000
         s_mov_b32 s{N}, 0'''.format(T=S_TS, T1=S_TS + 1, T2=S_TS + 2, T3=S_TS + 3, w=w, ws=ws, ws1=ws + 1, N=sTSN, off=off))
    if first:
        b('v_mov_b32 v5, s100\nv_mov_b32 v6, 0\nv_mov_b32 v7, s42')
        b('buffer_store_dword v5, v6, s[%d:%d], 0 offen\nbuffer_store_dword v7, v6, s[%d:%d], 0 offen offset:128\ns_mov_b32 s%d, 4' % (S_TS, S_TS + 3, S_TS, S_TS + 3, sTSN))
    stamp(b)

def srd(b, d, lo, off, num):
    b('s_add_u32 s%d, s%d, %s\ns_addc_u32 s%d, s%d, 0\n%s\ns_mov_b32 s%d, 0x20000' % (d, lo, off, d + 1, lo + 1,
      ('s_mov_b32 s%d, %d' % (d + 2, num)) if isinstance(num, int) else num % (d + 2), d + 3))

def off_calc(X):
    return ['s_add_u32 s38, s%d, %d' % (sC0, X), 's_and_b32 s38, s38, 7', 's_lshl_b32 s%d, s38, 19' % (sWO + 2 * X),
            's_add_u32 s%d, s%d, 262144' % (sWO + 2 * X + 1, sWO + 2 * X)]
def dma_wq(c):
    G = [[I('s_add_u32 m0, s%d, %d' % (sW4, WBUF[c % 3]))]]
    for n in range(4):
        G.append([I('buffer_load_dwordx4 v%d, s[%d:%d], s%d offen offset:%d%s lds' % (vWD + n, S_WQ, S_WQ + 3, sWO + c, 1024 * n, opt.w_pol), 'wq%d' % c)])
    return G
def dma_x(X):
    G = [[I('s_lshr_b32 s39, s%d, 12' % (sWO + 2 * X))], [I('s_add_u32 m0, s%d, %d' % (sW4, XBUF[X % 2]))]]
    for n in range(4):
        G.append([I('buffer_load_dwordx4 v%d, s[%d:%d], s%d offen offset:%d%s lds' % (vXD + n, S_X, S_X + 3, 39, 1024 * n, opt.x_pol), 'x%d' % X)])
    G.append([I('s_add_u32 m0, s%d, %d' % (sM0B, XBUF[X % 2] + 16384))])
    G.append([I('buffer_load_dwordx4 v%d, s[%d:%d], s%d offen%s lds' % (vXD + 4, S_X, S_X + 3, 39, opt.x_pol), 'x%d' % X)])
    return G
def stash_load(which, slot):
    K = which == 'K'; srd_, so = (S_K, sKO) if K else (S_V, sVO); r = STASH['%s%d' % (which, slot)]
    G = [[I('buffer_load_dwordx4 %s, v%d, s[%d:%d], s%d offen offset:%d%s' % (vr(r + 4 * m, 4), vKD + m if K else vVD + m % 2, srd_, srd_ + 3, so, 1024 * m, opt.kv_pol), 'st')] for m in range(4)]
    G[3].append(I('s_add_u32 s%d, s%d, 8192' % (so, so)))
    return G
def stash_flush(which, slot):
    r = STASH['%s%d' % (which, slot)]; base = (KS0 if which == 'K' else VS0) + 16384 * slot
    return [I('ds_write_b128 v%d, %s offset:%d' % (vSW + base // 65536, vr(r + 4 * m, 4), base % 65536 + 1024 * m)) for m in range(4)]
def dma_kv(which, slot, m0each=False):
    G = []; K = which == 'K'
    srd_, so = (S_K, sKO) if K else (S_V, sVO)
    for m in range(4):
        g = []
        if m == 0 or m0each: g.append(I('s_add_u32 m0, s%d, %d' % (sW4, (KS0 if K else VS0) + 16384 * slot)))
        g.append(I('buffer_load_dwordx4 v%d, s[%d:%d], s%d offen offset:%d%s lds' % (vKD + m if K else vVD + m % 2, srd_, srd_ + 3, so, 1024 * m, opt.kv_pol), '%s%d' % (which, slot)))
        if m == 3: g.append(I('s_add_u32 s%d, s%d, 8192' % (so, so)))
        G.append(g)
    return G

def dma_wo(c):
    buf = WOB[c % 5]; G = []
    for m in range(8):
        g = []
        if m == 4: g.append(I('s_add_u32 s38, s%d, 16384' % (sWOO + c)))
        if m % 4 == 0: g.append(I('s_add_u32 m0, s%d, %d' % (sM0B, buf + 4096 * (m // 4))))
        g.append(I('buffer_load_dwordx4 v%d, s[%d:%d], s%d offen offset:%d%s lds' % (vOD + m % 4, S_WO, S_WO + 3, sWOO + c if m < 4 else 38, 1024 * (m % 4), opt.wo_pol), 'wo%d' % c))
        G.append(g)
    return G

def tail_setup_a(b):
    b('s_mov_b32 s72, s92\ns_mov_b32 s73, s93')
    b('''s_and_b32 s98, s{w}, 1
         s_lshr_b32 s99, s{w}, 1
         s_lshl_b32 s96, s{B}, 1
         s_add_u32 s96, s96, s98
         s_mul_i32 s96, s96, 163840
         s_lshl_b32 s97, s{BR}, 2
         s_add_u32 s97, s97, s{JP}
         s_lshl_b32 s97, s97, 1
         s_add_u32 s97, s97, s99
         s_lshl_b32 s97, s97, 2
         s_add_u32 s97, s97, s{KQ}
         s_lshl_b32 s97, s97, 5
         s_add_u32 s96, s96, s97'''.format(w=sW, B=sB, BR=sBR, JP=sJP, KQ=sKQ))
    srd(b, S_OUT, 94, 's96', 's_sub_u32 s%d, 2621440, s96')
    b('s_lshl_b32 s38, 0x5555, s98\ns_lshl_b32 s39, s%d, 2\ns_lshl_b32 s39, 15, s39\ns_andn2_b32 s%d, s38, s39' % (sJP, sMK1))
    b('s_lshl_b32 s38, 0x1111, s%d\ns_lshl_b32 s39, s%d, 2\ns_lshl_b32 s39, 15, s39\ns_andn2_b32 s%d, s38, s39' % (sW, sKQ, sMK2))
    b('s_lshl_b32 s38, s%d, 3\ns_add_u32 s38, s38, s%d\ns_lshl_b32 s38, s38, 2\ns_add_u32 s38, s38, s%d\ns_mul_i32 s38, s38, 327680\ns_mul_i32 s39, s%d, 5120\ns_add_u32 s38, s38, s39\ns_add_u32 s38, s38, 0x%x' % (sBR, sB, sJP, sW, POFF))
    srd(b, S_P, 74, 's38', 's_sub_u32 s%d, 327680, s39')
    for j in (1, 2, 3):
        b('s_xor_b32 s38, s%d, %d\ns_lshl_b32 s39, s38, 2\ns_add_u32 s39, s39, s%d\ns_mul_i32 s%d, s39, 20480' % (sKQ, j, sKQ, sPW + j - 1))
        b('s_lshl_b32 s39, s%d, 2\ns_add_u32 s39, s39, s38\ns_mul_i32 s%d, s39, 20480' % (sKQ, sPR + j - 1))

def wo_srd(b):
    b('s_lshl_b32 s38, s%d, 20\ns_lshl_b32 s39, s%d, 8\ns_add_u32 s38, s38, s39' % (sKQ, sJP))
    srd(b, S_WO, 72, 's38', 's_sub_u32 s%d, 4194304, s38')
def wo_touch(b):
    b('s_lshl_b32 s38, s%d, 2\ns_add_u32 s38, s38, s%d\ns_lshl_b32 s38, s38, 15\nv_lshrrev_b32 v4, 1, v%d\nv_and_b32 v5, 1, v%d\nv_lshlrev_b32 v5, 7, v5\nv_lshl_add_u32 v4, v4, 10, v5' % (sB, sW, vLANE, vLANE))
    b('buffer_load_dword v246, v4, s[%d:%d], s38 offen' % (S_WO, S_WO + 3))
def tail_setup_b(b):
    L = vLANE
    b('s_and_b32 s78, s%d, 1\ns_lshr_b32 s79, s%d, 1' % (sW, sW))
    b('''s_lshl_b32 s38, s{BR}, 3
         s_add_u32 s38, s38, s{B}
         s_lshl_b32 s38, s38, 2
         s_add_u32 s38, s38, s{KQ}
         s_mul_i32 s38, s38, 327680
         s_mul_i32 s39, s79, 20480
         s_mul_i32 s40, s78, 5120
         s_add_u32 s39, s39, s40
         s_add_u32 s38, s38, s39'''.format(B=sB, BR=sBR, KQ=sKQ))
    srd(b, S_OR, 74, 's38', 's_sub_u32 s%d, 327680, s39')
    b('s_lshl_b32 s40, s%d, 15\ns_lshl_b32 s%d, s%d, 13' % (sW, sM0B, sW))
    for c in range(8):
        b('s_lshl_b32 s38, s%d, 1\ns_add_u32 s38, s38, %d\ns_and_b32 s38, s38, 7\ns_mul_i32 s%d, s38, 40960\ns_lshl_b32 s38, s38, 17\ns_add_u32 s%d, s38, s40' % (sJP, c, sORO + c, sWOO + c))
    b('s_lshl_b32 s38, s79, 17\ns_lshl_b32 s39, s38, 1\ns_sub_u32 s%d, s39, 131072\ns_sub_u32 s%d, 65536, s38' % (sD01, sD12))
    b('v_lshrrev_b32 v4, 4, v%d\nv_and_b32 v5, 15, v%d' % (L, L))
    for m in range(4):
        b('v_add_u32 v6, %d, v4\nv_lshlrev_b32 v6, 1, v6\nv_xor_b32 v6, v6, v5\nv_lshlrev_b32 v6, 4, v6\nv_lshl_add_u32 v6, v4, 10, v6\nv_add_u32 v%d, %d, v6' % (4 * (m % 2), vOD + m, 3072 * m))
    b('v_lshlrev_b32 v%d, 4, v%d' % (vOL, L))
    for i, o in ((1, 4096), (2, 10240), (3, 14336)): b('v_add_u32 v%d, %d, v%d' % (vOL + i, o, vOL))
    b('v_lshlrev_b32 v5, 11, v5\nv_lshl_add_u32 v%d, v4, 3, v5' % vST)
    for (reg, wsel, step, lo, hi) in ((vXW, sW, 10240, 32768, 98304), (vXR, 41, 10240, 32768, 98304), (vYW, sW, 20480, 98304, 32768), (vYR, 41, 20480, 98304, 32768)):
        b('s_xor_b32 s41, s%d, 2\ns_mul_i32 s38, s%d, %d\ns_add_u32 s38, s38, %d\ns_cmp_eq_u32 s%d, 3\ns_cselect_b32 s38, %d, s38\nv_add_u32 v%d, s38, v%d' % (sW, wsel, step, lo, wsel, hi, reg, vOL))
    b('s_lshl_b32 s38, s%d, 2\ns_add_u32 s38, s38, s%d\ns_lshl_b32 s38, s38, 2\nv_readfirstlane_b32 s39, v%d\ns_add_u32 s38, s38, s39\nv_lshl_add_u32 v%d, v%d, 16, s38' % (sJP, sW, vPA, vFA, L))
    b('s_lshl_b32 s38, s%d, 2\ns_add_u32 s38, s38, s%d\ns_lshl_b32 s38, s38, 2\nv_readfirstlane_b32 s39, v%d\ns_add_u32 s38, s38, s39\nv_lshl_add_u32 v%d, v%d, 16, s38' % (sKQ, sW, vPA + 1, vFA + 1, L))
    for kl in range(4): b('s_lshl_b32 s38, s79, 1\ns_xor_b32 s38, s38, %d\ns_mul_i32 s%d, s38, 10240' % (kl, 38 if kl == 3 else sOK + kl))
    b('s_mov_b32 s%d, s38' % (sOK + 3))

def k1_setup():
    b = Block('setup'); L = vLANE; T = vT2
    b('s_cmp_ge_u32 s2, 256\ns_cbranch_scc1 L_k1_end')
    if opt.stamps: b('s_memrealtime s[100:101]\ns_memtime s[42:43]')
    if opt.warm:
        b('s_getpc_b64 s[40:41]\nv_lshlrev_b32 v2, 7, v0\nv_mov_b32 v3, s41\nv_add_co_u32 v2, vcc, s40, v2\nv_addc_co_u32 v3, vcc, 0, v3, vcc')
        b('global_load_dword v63, v[2:3], off\nv_add_u32 v4, 256, v0\nv_min_u32 v4, %d, v4\nv_lshlrev_b32 v4, 7, v4\nv_mov_b32 v5, s41' % (opt.warm - 1))
        b('v_add_co_u32 v4, vcc, s40, v4\nv_addc_co_u32 v5, vcc, 0, v5, vcc\nglobal_load_dword v62, v[4:5], off')
    b('''s_and_b32 s38, s2, 7
         s_lshr_b32 s{BR}, s38, 2
         s_and_b32 s{KQ}, s38, 3
         s_lshr_b32 s39, s2, 3
         s_and_b32 s{B}, s39, 7
         s_lshr_b32 s{JP}, s39, 3
         s_lshl_b32 s38, s{KQ}, 3
         s_lshl_b32 s40, s{JP}, 1
         s_add_u32 s{H}, s38, s40
         s_add_u32 s{C}, s{B}, s40
         s_and_b32 s{C}, s{C}, 7
         s_mul_i32 s38, s{BR}, 40
         s_add_u32 s60, s0, s38
         s_addc_u32 s61, s1, 0
         s_load_dwordx8 s[64:71], s[60:61], 0
         s_load_dwordx4 s[72:75], s[0:1], 88
         s_load_dwordx2 s[92:93], s[60:61], 32
         s_load_dwordx2 s[94:95], s[0:1], 80
         v_lshrrev_b32 v1, 6, v0
         v_and_b32 v{L}, 63, v0
         v_readfirstlane_b32 s{W}, v1
         v_and_b32 v1, 31, v{L}
         v_lshrrev_b32 v2, 5, v{L}
         v_lshrrev_b32 v3, 4, v{L}
         v_and_b32 v4, 15, v{L}
         s_lshl_b32 s{W4}, s{W}, 12
         s_lshl_b32 s{M}, s{W}, 10'''.format(BR=sBR, B=sB, H=sH1, C=sC0, L=L, W=sW, W4=sW4, M=sM0B, KQ=sKQ, JP=sJP))
    b('s_lshl_b32 s39, s%d, 16' % sW)
    for n in range(4):
        b('''v_add_u32 v{a}, {n2}, v2
             v_and_b32 v{c}, 3, v{a}
             v_lshlrev_b32 v{c}, 2, v{c}
             v_xor_b32 v{c}, v{c}, v1
             v_lshlrev_b32 v{c}, 4, v{c}
             v_lshl_add_u32 v{c}, v{a}, 13, v{c}
             v_add_u32 v{c}, s39, v{c}
             v_subrev_u32 v{d}, {sub}, v{c}'''.format(a=T, c=T + 1, n2=2 * n, d=vWD + n, sub=1024 * n))
    b('s_lshl_b32 s39, s%d, 15\nv_lshrrev_b32 v%d, 3, v%d\nv_and_b32 v%d, 7, v%d\ns_lshl_b32 s38, s%d, 2' % (sW, T + 3, L, T + 4, L, sW))
    for n in range(4):
        b('''v_add_u32 v{a}, {n4}, v3
             v_and_b32 v{a}, 7, v{a}
             v_xor_b32 v{a}, v{a}, v{p}
             v_lshlrev_b32 v{a}, 4, v{a}
             v_lshl_add_u32 v{a}, v{r}, 10, v{a}
             v_add_u32 v{a}, {add}, v{a}
             v_add_u32 v{d}, s39, v{a}'''.format(a=T, n4=4 * n, p=T + 4, r=T + 3, add=7 * 1024 * n, d=vXD + n))
    b('''s_lshl_b32 s39, s{w}, 13
         s_add_u32 s39, s39, 131072
         v_add_u32 v{a}, s38, v3
         v_and_b32 v{a}, 7, v{a}
         v_xor_b32 v{a}, v{a}, v{p}
         v_lshlrev_b32 v{a}, 4, v{a}
         v_lshl_add_u32 v{a}, v{r}, 10, v{a}
         v_add_u32 v{d}, s39, v{a}'''.format(w=sW, a=T, p=T + 4, r=T + 3, d=vXD + 4))
    b('s_waitcnt lgkmcnt(0)')
    b('s_mul_i32 s39, s%d, 163840' % sB); srd(b, S_X, 64, 's39', 163840)
    b('s_lshl_b32 s39, s%d, 8' % sH1); srd(b, S_WQ, 70, 's39', 's_sub_u32 s%d, 4194304, s39')
    if opt.nox: b('s_mov_b32 s%d, 0' % (S_X + 2))
    if opt.noxq: b('s_mov_b32 s%d, 0' % (S_WQ + 2))
    b.extend(off_calc(0) + off_calc(1))
    for g in dma_wq(0) + dma_x(0) + (dma_wq(1) + dma_x(1) + dma_wq(2) if opt.upfront == 2 else []): b.extend(g)
    for X in range(2, 8): b.extend(off_calc(X))
    b('s_lshr_b32 s41, s%d, 1\ns_lshl_b32 s38, s%d, 5\ns_add_u32 s38, s38, s%d\ns_add_u32 s38, s38, s41\ns_lshl_b32 s39, s38, 18' % (sW, sB, sH1))
    srd(b, S_K, 66, 's39', 0 if opt.nokv else 262144); srd(b, S_V, 68, 's39', 0 if opt.nokv else 262144)
    b('s_lshl_b32 s39, s%d, 8\ns_add_u32 s38, s38, s39\ns_mul_i32 s39, s38, 40960\ns_and_b32 s40, s%d, 1\ns_mul_i32 s38, s40, 5120\ns_add_u32 s39, s39, s38' % (sBR, sW))
    srd(b, S_O, 74, 's39', 's_sub_u32 s%d, 40960, s38')
    b('s_lshl_b32 s%d, s40, 12\ns_mov_b32 s%d, s%d' % (sKO, sVO, sKO))
    stamp_setup(b, 74, sW, first=True)
    srd(b, S_F, 74, '0x%x' % FOFF, 16384); srd(b, S_D, 72, '0', 256)
    b('''s_and_b32 s38, s2, 7
         s_lshl_b32 s38, s38, 3
         s_add_u32 s38, s38, s{B}
         s_lshl_b32 s39, s{BR}, 3
         s_add_u32 s39, s39, s{B}
         s_lshl_b32 s39, s39, 2
         s_add_u32 s39, s39, s{JP}
         v_and_b32 v5, 1, v{L}
         v_mov_b32 v6, s38
         v_mov_b32 v7, s39
         v_cmp_eq_u32 vcc, 0, v5
         v_cndmask_b32 v6, v7, v6, vcc
         v_lshlrev_b32 v{DA}, 2, v6
         s_lshl_b32 s38, s38, 7
         s_lshl_b32 s39, s39, 7
         s_add_u32 s39, s39, 8192
         v_lshl_add_u32 v{PA}, v4, 2, s38
         v_lshl_add_u32 v{PB}, v4, 2, s39
         s_lshl_b32 s41, s{JP}, 4
         s_add_u32 s38, s38, s41
         s_lshl_b32 s41, s{KQ}, 4
         s_add_u32 s39, s39, s41
         v_mov_b32 v6, s38
         v_mov_b32 v7, s39
         v_cndmask_b32 v6, v7, v6, vcc
         v_lshrrev_b32 v7, 1, v0
         v_lshl_add_u32 v6, v7, 16, v6
         v_mov_b32 v{T}, 0
         v_mov_b32 v{T1}, 0
         v_mov_b32 v{T2}, 0
         v_mov_b32 v{T3}, 0'''.format(B=sB, BR=sBR, JP=sJP, KQ=sKQ, L=L, DA=vDA, PA=vPA, PB=vPA + 1, T=T, T1=T + 1, T2=T + 2, T3=T + 3))
    b('buffer_store_dwordx4 %s, v6, s[%d:%d], 0 offen sc1' % (vr(T, 4), S_F, S_F + 3), 'fz')
    tail_setup_a(b)
    b('s_lshr_b32 s41, s%d, 1' % sW)
    b('v_bfe_u32 v5, v%d, 2, 2\nv_and_b32 v6, 3, v%d' % (L, L))
    for m in range(4):
        b('v_add_u32 v%d, %d, v3\nv_xor_b32 v%d, v%d, v4\nv_lshlrev_b32 v%d, 4, v%d\nv_lshl_add_u32 v%d, v3, 8, v%d' % (T, 4 * m, T, T, T, T, vKD + m, T))
    for m in range(2):
        b('v_add_u32 v%d, %d, v3\nv_lshlrev_b32 v%d, 1, v%d\nv_xor_b32 v%d, v%d, v4\nv_lshlrev_b32 v%d, 4, v%d\nv_lshl_add_u32 v%d, v3, 8, v%d' % (T, 4 * m, T, T, T, T, T, T, vVD + m, T))
    b('s_lshl_b32 s41, s41, 13\nv_xor_b32 v%d, v3, v4\nv_lshlrev_b32 v%d, 8, v4\nv_add_u32 v%d, s41, v%d' % (T, T + 1, T + 1, T + 1))
    for k in range(4): b('v_xor_b32 v%d, %d, v%d\nv_lshl_add_u32 v%d, v%d, 4, v%d' % (T + 2, 4 * k, T, vKA + k, T + 2, T + 1))
    b('''v_lshl_add_u32 v{a}, v3, 2, v5
         v_lshlrev_b32 v{c}, 8, v{a}
         v_lshl_add_u32 v{c}, v6, 3, v{c}
         s_add_u32 s41, s41, {vs}
         v_add_u32 v{c}, s41, v{c}
         v_and_b32 v{a}, 7, v{a}
         s_and_b32 s38, s{w}, 2
         s_lshl_b32 s38, s38, 1
         v_xor_b32 v{a}, s38, v{a}'''.format(a=T, c=T + 1, vs=VS0, w=sW))
    for dt in range(8): b('v_xor_b32 v%d, %d, v%d\nv_lshl_add_u32 v%d, v%d, 5, v%d' % (T + 2, dt, T, vVA + dt, T + 2, T + 1))
    b('''v_lshl_add_u32 v{c}, v3, 3, v5
         v_lshlrev_b32 v{c}, 9, v{c}
         s_lshr_b32 s41, s{w}, 1
         s_lshl_b32 s41, s41, 8
         v_add_u32 v{c}, s41, v{c}
         v_lshl_add_u32 v{a}, v5, 2, v6'''.format(a=T, c=T + 1, w=sW))
    for k in range(4): b('v_xor_b32 v%d, %d, v%d\nv_lshl_add_u32 v%d, v%d, 4, v%d' % (T + 2, 4 * k, T, vWA + k, T + 2, T + 1))
    b('''v_lshrrev_b32 v{a}, 1, v4
         v_xor_b32 v{a}, v{a}, v3
         s_mul_i32 s41, s40, 10240
         s_add_u32 s41, s41, {xb}
         v_lshlrev_b32 v{c}, 7, v4
         v_add_u32 v{c}, s41, v{c}'''.format(a=T, c=T + 1, xb=XBUF[0]))
    for k in range(2): b('v_xor_b32 v%d, %d, v%d\nv_lshl_add_u32 v%d, v%d, 4, v%d' % (T + 2, 4 * k, T, vXA + k, T + 2, T + 1))
    c = math.log2(math.e) / math.sqrt(128.0)
    b('s_mov_b32 s%d, 0x%08x\ns_mov_b32 s%d, 0x%08x\ns_mov_b32 s%d, 0x%08x\ns_mov_b32 s%d, 0' % (sSC, f32bits(c), sSC + 1, f32bits(c), sTH, f32bits(2.0 ** 30), sEX))
    b('v_lshl_add_u32 v%d, v%d, 4, s%d\nv_add_u32 v%d, 0x10000, v%d' % (vSW, L, sW4, vSW + 1, vSW))
    b('v_mov_b32 v%d, 0x3f803f80' % T)
    for i in range(4): b('v_accvgpr_write_b32 a%d, v%d' % (aONE + i, T))
    if opt.upfront == 1:
        for g in dma_wq(1): b.extend(g)
    return b

def zero_acc():
    return ['v_accvgpr_write_b32 a%d, 0' % i for i in range(180 if opt.ones else 160)] + ([] if opt.ones else ['v_mov_b32 v%d, 0' % (vL + i) for i in range(5)])

def conv(k):
    L = []
    for qs in range(5):
        d = rQ(k, qs)
        if opt.pk: L += ['v_pk_mul_f32 %s, %s, s[%d:%d]' % (vr(d + 2 * i, 2), vr(d + 2 * i, 2), sSC, sSC + 1) for i in range(4)]
        else: L += ['v_mul_f32 v%d, s%d, v%d' % (d + i, sSC, d + i) for i in range(8)]
        L += ['v_cvt_pk_bf16_f32 v%d, v%d, v%d' % (d + i, d + 2 * i, d + 2 * i + 1) for i in range(4)]
    return L
def qk0_mfmas():
    bb = []
    for f in range(8):
        k, kt = divmod(f, 2)
        for qs in range(5):
            s = rS(kt, qs)
            bb.append(I('%s %s, %s, %s, %s' % (MF, vr(s, 4), vr(vF + 4 * (f % NB), 4), vr(rQ(k, qs), 4), '0' if k == 0 else vr(s, 4))))
    return bb
def kread0(f):
    k, kt = divmod(f, 2)
    return [I('ds_read_b128 %s, v%d offset:%d' % (vr(vF + 4 * (f % NB), 4), vKA + k, kt * 4096), 'g%d' % f)]

def k1_qproj():
    b = Block('qproj')
    bb = []
    for c in range(16):
        for t in range(8):
            for qs in range(5):
                d = rQ(t // 2, qs) + 4 * (t % 2)
                bb.append(I('%s %s, %s, %s, %s' % (MF, vr(d, 4), ar(aFA + 4 * (t % 4), 4), ar(aFB + 20 * (c % 2) + 4 * qs, 4), '0' if c == 0 else vr(d, 4))))
    G = Gaps(bb, 8)
    def ybar(c): return -1 if c == 0 else 40 * c - 14
    cur = [0] * 4
    def wq_read(c, t):
        k, bsel = divmod(t, 2)
        want = 0 if WBUF[c % 3] < 65536 else 131072
        off = WBUF[c % 3] - want + 8 * bsel
        r = aFA + 4 * (t % 4)
        L = []
        if bsel == 0 and want != cur[k]:
            L.append(I('v_add_u32 v%d, 0x%x, v%d' % (vWA + k, (want - cur[k]) & 0xffffffff, vWA + k))); cur[k] = want
        return L, [I('ds_read_b64_tr_b16 %s, v%d offset:%d' % (ar(r, 2), vWA + k, off), 'fa'), I('ds_read_b64_tr_b16 %s, v%d offset:%d' % (ar(r + 2, 2), vWA + k, off + 2048), 'fa%d_%d' % (c, t))]
    kvq = dma_kv('K', 0, True) + dma_kv('K', 1, True) + dma_kv('V', 0, True) + dma_kv('V', 1, True) + stash_load('K', 2) + stash_load('V', 2) + stash_load('K', 3)
    nkv = opt.kvend
    bursts = dict(tuple(int(v) for v in x.split(':')) for x in opt.burst.split())
    assert not bursts or sum(bursts.values()) == 7
    if bursts: kvq = dma_kv('K', 0) + dma_kv('K', 1) + dma_kv('V', 0) + dma_kv('V', 1) + kvq[16:]
    for c in range(16):
        y = ybar(c); base = 40 * c
        G.put(y, I('@waitlgkm *'), I('@waitvm wq%d' % c + (',x%d' % (c // 2) if c % 2 == 0 else '') + (',K0' if c == 15 else '')), I('s_barrier'))
        if opt.qstamps and c % opt.qevery == 0: G.put(y, *stamp_ins())
        if c == 3:
            G.put(y + 9, I('v_and_b32 v4, 1, v%d' % vLANE)); G.put(y + 10, I('v_lshlrev_b32 v4, 4, v4')); G.put(y + 11, I('v_lshlrev_b32 v4, v4, 1'))
            G.put(y + 12, I('v_lshrrev_b32 v1, 1, v0')); G.put(y + 13, I('v_lshl_add_u32 v1, v1, 16, v%d' % vDA))
            G.put(y + 14, I('@waitvm fz'), I('buffer_atomic_add v4, v1, s[%d:%d], 0 offen sc1' % (S_D, S_D + 3)))
        xr = [I('ds_read_b128 %s, v%d offset:%d' % (ar(aFB + 20 * (c % 2) + 4 * qs, 4), vXA + c % 2, (c // 2 % 2) * 20480 + 2048 * qs), 'xr%d_%d' % (c, qs)) for qs in range(5)]
        for t in range(8):
            g = max(base + 5 * (t - 3) - 1, y + 1 if c else y)
            pre, rd = wq_read(c, t)
            G.put(max(g - 1, -1), *pre); G.put(g, *rd)
            if t == 0:
                for qs in range(5): G.put(y + ((2, 4, 5, 6, 7)[qs] if c else 0), xr[qs])
                G.put(base - 1, I('@waitlgkm fa%d_1,xr%d_4' % (c, c)))
            if t % 2 == 0 and t: G.put(base + 5 * t - 1, I('@waitlgkm fa%d_%d' % (c, t + 1)))
        d = []
        if c == 0 and opt.upfront == 1: d += dma_x(1) + dma_wq(2)
        if 1 <= c < 14: d += dma_wq(c + 2)
        if c % 2 == 0 and 2 <= c < 14: d += dma_x(c // 2 + 1)
        if not bursts and c < nkv: d += kvq[(c * len(kvq)) // nkv:((c + 1) * len(kvq)) // nkv]
        flat = [x for g in d for x in g]
        if c in bursts:
            if flat: G.spread2(flat, y + 1 if c else 0, y + 14)
            flat = [x for g in kvq[:4 * bursts[c]] for x in g]; kvq = kvq[4 * bursts[c]:]
            G.spread2(flat, y + 15, y + 15 + len(flat) // 2); flat = []
        if c == 14: flat += stash_flush('K', 2) + stash_flush('V', 2)
        if c == 15: flat += stash_flush('K', 3)
        if flat: G.spread2(flat, y + 1 if c else 0, y + (39 if c < 15 else 20))
    G.spread2(zero_acc(), 20, 580)
    for f in range(3): G.put(624 + 5 * f, *kread0(f))
    G.spread2(conv(0), 613, 626); G.spread2(conv(1), 627, 639)
    em = G.emit()
    if 'd' in opt.qf: em = [x for x in em if x.cls not in ('dma', 'vld') and 'm0' not in x.w]
    if 'b' in opt.qf: em = [x for x in em if x.op != 's_barrier']
    if 'r' in opt.qf: em = [x for x in em if x.cls != 'dsr']
    if 'z' in opt.qf: em = [x for x in em if x.op != 'v_accvgpr_write_b32']
    if 'x' in opt.qf: em = [x for x in em if x.op != 'ds_read_b128']
    if 't' in opt.qf: em = [x for x in em if x.op != 'ds_read_b64_tr_b16']
    b.extend(em)
    print('qproj est cycles', G.est_cycles(16), file=sys.stderr)
    G = Gaps(qk0_mfmas(), 8)
    for f in range(3, 8): G.put(5 * (f - 3) - 1, *kread0(f))
    G.spread2(conv(2), -1, 17); G.spread2(conv(3), 18, 27)
    b.extend(G.emit())
    stamp(b)
    return b

XBAR = 66
def kread(f, slot):
    kt, k = divmod(f, 4)
    return [I('ds_read_b128 %s, v%d offset:%d' % (vr(vF + 4 * (f % NB), 4), vKA + k, slot * 16384 + kt * 4096), 'f%d' % f)]
def vread(f, slot):
    dt = f - 8; r = vF + 4 * (f % NB)
    return [I('ds_read_b64_tr_b16 %s, v%d offset:%d' % (vr(r, 2), vVA + dt, slot * 16384), 'fx'),
            I('ds_read_b64_tr_b16 %s, v%d offset:%d' % (vr(r + 2, 2), vVA + dt, slot * 16384 + 4096), 'f%d' % f)]
def neg_adds(kt): return ['v_add_f32 v%d, v%d, v%d' % (rS(kt, qs) + i, rS(kt, qs) + i, vN + 4 * qs) for qs in range(5) for i in range(4)]
def sm_chain(par):
    C = []; pend = []
    for kt in range(2):
        for qs in range(5):
            s = rS(kt, qs); p = rP(par, qs) + 2 * kt
            e = ['v_exp_f32 v%d, v%d' % (s + i, s + i) for i in range(4)]
            a = ['v_add_f32 v%d, v%d, v%d' % (vL + qs, vL + qs, s + i) for i in range(4)]
            cv = ['v_cvt_pk_bf16_f32 v%d, v%d, v%d' % (p + i, s + 2 * i, s + 2 * i + 1) for i in range(2)]
            C.append((e[0], kt, qs)); C += pend
            if opt.ones: C += [(x, kt, qs) for x in (e[1], e[2], cv[0], e[3])]; pend = [(cv[1], kt, qs)]
            else: C += [(x, kt, qs) for x in (e[1], a[0], e[2], a[1], cv[0], e[3], a[2])]; pend = [(a[3], kt, qs), (cv[1], kt, qs)]
    return C + pend
def qk_mfmas(first):
    bb = []
    for f in range(8):
        kt, k = divmod(f, 4)
        for qs in range(5):
            s = rS(kt, qs)
            c = ('0' if first else vr(vN + 4 * qs, 4)) if k == 0 else vr(s, 4)
            bb.append(I('%s %s, %s, %s, %s' % (MF, vr(s, 4), vr(vF + 4 * (f % NB), 4), vr(rQ(k, qs), 4), c)))
    return bb
def pv_mfmas(par):
    bb = []
    for f in range(8, 16):
        for qs in range(5):
            bb.append(I('%s %s, %s, %s, %s' % (MF, ar(aO(f - 8, qs), 4), vr(vF + 4 * (f % NB), 4), vr(rP(par, qs), 4), ar(aO(f - 8, qs), 4))))
    return bb
def ones_mfmas(par): return [I('%s %s, %s, %s, %s' % (MF, ar(aL + 4 * qs, 4), ar(aONE, 4), vr(rP(par, qs), 4), ar(aL + 4 * qs, 4))) for qs in range(5)]
SPLIT = [None]; SMPOS = [None]
def period(j, peel=False):
    pu, pn = j % 2, (j + 1) % 2
    ks, vs = (j + 1) % 4, j
    lg = qk_mfmas(False) + pv_mfmas(pu)
    bb = []; ix = {-1: -1}
    on = ones_mfmas(pu) if opt.ones else []
    for i, x in enumerate(lg):
        bb.append(x); ix[i] = len(bb) - 1
        if on and i in (44, 49, 54, 59, 64): bb.append(on.pop(0))
    G = Gaps(bb, 8); N = len(bb)
    for f in range(3, 16):
        G.put(ix[5 * (f - 3) - 1] if f > 3 else 0, *(kread(f, ks) if f < 8 else vread(f, vs)))
        if f % 2 == 0 and f < 15: G.put(ix[5 * f] - 1, I('@waitlgkm f%d' % (f + 1)))
    G.put(ix[XBAR], I('@waitlgkm *'), I('@waitvm K%d,V%d' % ((j + 2) % 4, (j + 1) % 4)), I('s_barrier'))
    if peel and j == 2:
        for f, g in ((8, XBAR + 1), (9, 69), (10, 74)): G.put(ix[g], *vread(f, 3))
    else:
        for f, g in ((0, XBAR + 1), (1, 69), (2, 74)): G.put(ix[g], *kread(f, (j + 2) % 4))
        G.put(N - 1, I('@waitlgkm f1'))
    G.put(9, I('@waitlgkm f3'))
    slots = [2, 7, 12, 17, 22, 27, 32, 37, 42, 47, 52, 57, 62] if opt.dsp == 5 else [1 + opt.dsp * m for m in range(8)]
    dl = dma_kv('K', j) + dma_kv('V', (j + 3) % 4)
    if peel: dl = dma_kv('V', 3) if j == 0 else dma_wo(j)
    if peel and j == 0:
        tb = Block('x'); tail_setup_b(tb); extra = tb.ins + [x for g in dma_wo(0) for x in g]
    for m, g in enumerate(dl):
        p = ix[slots[m]]
        if len(g) == 2 and g[0].cls == 'salu': G.put(p - 1, g[0]); G.put(p, g[1])
        elif len(g) == 2: G.put(p, g[0]); G.put(p + 1, g[1])
        elif len(g) == 3: G.put(p - 2, g[0]); G.put(p - 1, g[1]); G.put(p, g[2])
        else: G.put(p, *g)
    if j == 3:
        G.put(ix[71], I('s_sub_u32 s%d, s%d, 1' % (sCNT, sCNT))); G.put(ix[77], I('s_cmp_lg_u32 s%d, 0' % sCNT))
    if peel and j == 0: G.put(ix[40], I('buffer_load_dword v244, v%d, s[%d:%d], 0 offen sc1' % (vDA, S_D, S_D + 3)))
    chn, chu = sm_chain(pn), sm_chain(pu)
    if SMPOS[0] is None:
        s0 = 18; gaps = list(range(s0, N)) + list(range(0, s0))
        gaps += list(range(s0, 24))
        lo = [ix[15 + 20 * kt + qs] + 4 - s0 for (_, kt, qs) in chn]
        hi = [(N - s0 + qs - 1) if kt == 0 else (N - s0 + 19 + qs) for (_, kt, qs) in chn]
        hi = [min(h, N - 1) for h in hi]
        _, pos = G.dp([x for x, _, _ in chn], gaps, lo, hi)
        SMPOS[0] = [gaps[p] for p in pos]; SPLIT[0] = sum(p < N - s0 for p in pos)
    for k, (x, _, _) in enumerate(chu):
        if k >= SPLIT[0]: G.put(SMPOS[0][k], I(x))
    for k, (x, _, _) in enumerate(chn):
        if k < SPLIT[0]: G.put(SMPOS[0][k], I(x))
    if peel and j == 0: G.spread2(extra, ix[slots[3]] + 2, N - 1)
    if j == 3: G.put(ix[XBAR], *stamp_ins())
    return G

def k1_attention():
    P = [period(j) for j in range(4)]
    print('period est cycles', [g.est_cycles(16) for g in P], [P[0].used(i) for i in range(len(P[0].bb))], file=sys.stderr)
    pro = Block('pro'); T = vT
    pro('L_start:')
    pro('@waitlgkm *\n@waitvm K1,V0\ns_barrier')
    for f in range(3): pro.extend(kread(f, 1))
    if opt.fallback: pro('s_cmp_lg_u32 s%d, 0\ns_cbranch_scc1 L_nomax' % sEX)
    mx = Block('pro_max')
    for qs in range(5):
        a, c = rS(0, qs), rS(1, qs); t = T + 2 * qs
        mx('v_max3_f32 v%d, v%d, v%d, v%d\nv_max3_f32 v%d, v%d, v%d, v%d' % (t, a, a + 1, a + 2, t + 1, c, c + 1, c + 2))
        mx('v_max3_f32 v%d, v%d, v%d, v%d\nv_max_f32 v%d, v%d, v%d' % (t, t, a + 3, c + 3, t, t, t + 1))
    max_finish(mx, T)
    p2 = Block('pro2'); p2('L_nomax:')
    p2.extend(neg_adds(0) + neg_adds(1) + [x for x, _, _ in sm_chain(0)[:SPLIT[0]]])
    wo_srd(p2)
    if opt.touch: wo_touch(p2)
    p2('@waitlgkm f1')
    p2('s_mov_b32 s%d, 7' % sCNT)
    stamp(p2)
    lp = [Block('per%d' % j) for j in range(4)]
    lp[0]('L_loop:')
    for j in range(4): lp[j].extend(P[j].emit())
    lp[3]('s_cbranch_scc1 L_loop')
    pe = [Block('pe%d' % j) for j in range(4)]
    pe[0].extend(period(0, True).emit()); pe[1].extend(period(1, True).emit())
    pe[1]('v_readlane_b32 s38, v244, 0\nv_readlane_b32 s39, v244, 1\ns_and_b32 s38, s38, 0xffff\ns_lshr_b32 s39, s39, 16\ns_min_u32 s38, s38, s39\ns_cmp_lt_u32 s38, 4\ns_cbranch_scc1 L_spin_d')
    pe[2]('L_back_d:')
    pe[2].extend(period(2, True).emit())
    sp = pe[3]; sp.name = 'spin_d'
    sp('L_spin_d:\ns_mov_b32 s40, %d\nL_spin_d2:\ns_sleep 4\nbuffer_load_dword v244, v%d, s[%d:%d], 0 offen sc1\ns_waitcnt vmcnt(0)' % (SPIN, vDA, S_D, S_D + 3))
    sp('v_readlane_b32 s38, v244, 0\nv_readlane_b32 s39, v244, 1\ns_and_b32 s38, s38, 0xffff\ns_lshr_b32 s39, s39, 16\ns_min_u32 s38, s38, s39\ns_cmp_ge_u32 s38, 4\ns_cbranch_scc1 L_back_d')
    sp('s_sub_u32 s40, s40, 1\ns_cmp_lg_u32 s40, 0\ns_cbranch_scc1 L_spin_d2\ns_branch L_back_d')
    return pro, mx, p2, lp, pe

def max_finish(b, T):
    for qs in range(5): b('v_mov_b32 v%d, v%d' % (T + 2 * qs + 1, T + 2 * qs))
    for qs in range(5): b('v_permlane16_swap_b32 v%d, v%d' % (T + 2 * qs, T + 2 * qs + 1))
    for qs in range(5): b('v_max_f32 v%d, v%d, v%d' % (T + 2 * qs, T + 2 * qs, T + 2 * qs + 1))
    for qs in range(5): b('v_mov_b32 v%d, v%d' % (T + 2 * qs + 1, T + 2 * qs))
    for qs in range(5): b('v_permlane32_swap_b32 v%d, v%d' % (T + 2 * qs, T + 2 * qs + 1))
    for qs in range(5): b('v_max_f32 v%d, v%d, v%d' % (T + 2 * qs, T + 2 * qs, T + 2 * qs + 1))
    for qs in range(5):
        for i in range(4): b('v_sub_f32 v%d, 0, v%d' % (vN + 4 * qs + i, T + 2 * qs))

def poll_test(reg, mask): return ['v_cmp_ne_u32 vcc, 0, v%d' % reg, 's_and_b32 s38, vcc_lo, s%d' % mask, 's_cmp_lg_u32 s38, s%d' % mask]
def spin_block(name, addr, mask):
    sp = Block('spin_' + name)
    sp('L_spin_%s:\ns_mov_b32 s40, %d\nL_spin_%s2:\ns_sleep 1\nbuffer_load_dword v244, v%d, s[%d:%d], 0 offen sc1\ns_waitcnt vmcnt(0)' % (name, SPIN, name, addr, S_F, S_F + 3))
    sp.extend(poll_test(244, mask))
    sp('s_cbranch_scc0 L_back_%s\ns_sub_u32 s40, s40, 1\ns_cmp_lg_u32 s40, 0\ns_cbranch_scc1 L_spin_%s2\ns_branch L_back_%s' % (name, name, name))
    return sp

def k1_tail():
    t1 = Block('tail1'); t2 = Block('tail2'); L = vLANE
    t1.extend([x for x, _, _ in sm_chain(1)[SPLIT[0]:]])
    t1.extend(ones_mfmas(1))
    G = Gaps(pv_mfmas(1), 8)
    for f in range(11, 16): G.put(5 * (f - 11) + 4, *vread(f, 3))
    R = vN + 5
    rc = ['v_accvgpr_read_b32 v%d, a%d' % (R + qs, aL + 4 * qs) for qs in range(5)]
    rc += ['v_add_f32 v%d, v%d, v%d' % (R + 5, R, R + 1), 'v_add_f32 v%d, v%d, v%d' % (R + 6, R + 2, R + 3), 'v_add_f32 v%d, v%d, v%d' % (R + 5, R + 5, R + 4), 'v_add_f32 v%d, v%d, v%d' % (R + 5, R + 5, R + 6)]
    if opt.fallback:
        rc += ['v_cmp_ngt_f32 vcc, s%d, v%d' % (sTH, R + 5), 's_lshl_b32 s39, s%d, 2' % sW, 's_add_u32 s39, s39, %d' % BADB, 'v_mov_b32 v%d, s39' % (R + 6),
               's_cmp_lg_u64 vcc, 0', 's_cselect_b32 s38, 1, 0', 'v_mov_b32 v%d, s38' % (R + 5), I('ds_write_b32 v%d, v%d' % (R + 6, R + 5), 'bad'), 'v_mov_b32 v%d, %d' % (R + 6, BADB)]
    rc += ['v_rcp_f32 v%d, v%d' % (vN + i, R + i) for i in range(5)]
    G.spread2(rc, 2, 11)
    if opt.fallback:
        G.put(12, I('@waitlgkm bad'), I('s_barrier'), I('ds_read_b128 %s, v%d' % (vr(R + 7, 4), R + 6)))
        G.put(16, I('v_or_b32 v%d, v%d, v%d' % (R + 5, R + 7, R + 8)), I('v_or3_b32 v%d, v%d, v%d, v%d' % (R + 5, R + 5, R + 9, R + 10)))
        G.put(17, I('v_readfirstlane_b32 s38, v%d' % (R + 5)))
        G.put(18, I('s_cmp_lg_u32 s%d, 0' % sEX), I('s_cselect_b32 s38, 0, s38'), I('s_cmp_lg_u32 s38, 0'), I('s_cbranch_scc1 L_fallback'))
    def out(kl):
        Lst = []
        for qs in range(5):
            idx = 5 * kl + qs
            d = BS[0][idx] if kl < 2 else hole(idx % 10); e = hole(10 + idx % 5)
            src = [aO(2 * kl, qs) + i for i in range(4)] + [aO(2 * kl + 1, qs) + i for i in range(4)]
            tmp = [d + i for i in range(4)] + [e + i for i in range(4)]
            Lst += ['v_accvgpr_read_b32 v%d, a%d' % (tmp[i], src[i]) for i in range(8)]
            Lst += ['v_mul_f32 v%d, v%d, v%d' % (tmp[i], vN + qs, tmp[i]) for i in range(8)]
            Lst += ['v_cvt_pk_bf16_f32 v%d, v%d, v%d' % (d + i, tmp[2 * i], tmp[2 * i + 1]) for i in range(4)]
            Lst += [I('buffer_store_dwordx4 %s, v%d, s[%d:%d], s%d offen offset:%d%s' % (vr(d, 4), vOL + qs // 4, S_O, S_O + 3, sOK + kl, 1024 * (qs % 4), opt.o_st_pol), 'O')]
            if kl >= 2: Lst += [I('ds_write_b128 v%d, %s offset:%d' % (vXW, vr(d, 4), 1024 * (idx - 10)))]
        return Lst
    G.spread2(out(0), 19, 39)
    t1.extend(G.emit(-1, 18)); t2.extend(G.emit(19, 39))
    for kl in range(1, 4): t2.extend(out(kl))
    t2('''v_lshrrev_b32 v1, 4, v{L}
          v_bfe_u32 v4, v{L}, 2, 2
          v_lshl_add_u32 v1, v1, 2, v4
          v_and_b32 v4, 3, v{L}
          v_lshlrev_b32 v4, 3, v4
          v_lshl_add_u32 v4, v1, 8, v4
          s_lshr_b32 s38, s{w}, 1
          s_lshl_b32 s39, s38, 2
          s_add_u32 s39, s39, s{KQ}
          s_mul_i32 s38, s38, {x}
          s_add_u32 s38, s38, 131072
          v_add_u32 v4, s38, v4
          v_and_b32 v1, 7, v1
          v_xor_b32 v1, s39, v1'''.format(L=L, w=sW, KQ=sKQ, x=(16384 - 131072) & 0xffffffff))
    for n in range(8): t2('v_xor_b32 v5, %d, v1\nv_lshl_add_u32 v%d, v5, 5, v4' % (n, vRA[n]))
    t2('v_mov_b32 v245, 1')
    stamp(t2)
    bb = []; frs = []
    for c in range(8):
        for kp in range(2):
            order = (4, 5, 6, 7, 0, 1, 2, 3) if (c, kp) == (7, 1) else range(8)
            for n in order:
                fi = len(frs); frs.append((c, kp, n))
                for f in range(5):
                    a = 4 * (5 * n + f)
                    bb.append(I('%s %s, %s, %s, %s' % (MF, ar(a, 4), vr(vF + 4 * (fi % NB), 4), vr(BS[c % 3][5 * kp + f], 4), '0' if (c, kp) == (0, 0) else ar(a, 4))))
    G = Gaps(bb, 8)
    bars = {0: 'wo0,wo1,wo2', 2: '', 3: 'wo3,wo4', 5: 'wo5,wo6,wo7', 6: ''}
    base = [None, None, WOB[2], WOB[3], WOB[4], WOB[0], WOB[1], WOB[2]]
    for c, tg in bars.items():
        G.put(80 * c - 14 if c else -1, *([I('@waitlgkm *')] + ([I('@waitvm ' + tg)] if tg else []) + [I('s_barrier')]))
    for fi, (c, kp, n) in enumerate(frs):
        g = max(5 * (fi - 3) - 1, -1)
        if c in bars and c: g = max(g, 80 * c - 13)
        r = vF + 4 * (fi % NB)
        G.put(g, I('ds_read_b64_tr_b16 %s, v%d offset:%d' % (vr(r, 2), vRA[n], kp * 8192), 'wx'), I('ds_read_b64_tr_b16 %s, v%d offset:%d' % (vr(r + 2, 2), vRA[n], kp * 8192 + 4096), 'w%d' % fi))
        if kp == 1 and c < 7:
            dl = 's%d' % (sD01 if c == 0 else sD12) if c < 2 else '0x%x' % ((base[c + 1] - base[c]) & 0xffffffff)
            G.put(g + 1, I('v_add_u32 v%d, %s, v%d' % (vRA[n], dl, vRA[n])))
        if fi % 2 == 0 and fi: G.put(5 * fi - 1, I('@waitlgkm w%d' % (fi + 1)))
    for i in range(10): G.put(i // 2 * 5 + 1 + i % 2, I('ds_read_b128 %s, v%d offset:%d' % (vr(BS[1][i], 4), vXR, 1024 * i), 'xr'))
    G.put(opt.flagpos, I('@waitvm O'), I('buffer_store_dword v245, v%d, s[%d:%d], 0 offen sc1' % (vFA, S_F, S_F + 3)))
    G.put(opt.flagpos + 3, I('@waitlgkm xr'), I('s_barrier'))
    flat = lambda d: [x for g in d for x in g]
    def oload(c):
        return [I('buffer_load_dwordx4 %s, v%d, s[%d:%d], s%d offen offset:%d%s' % (vr(BS[c % 3][5 * kp + f], 4), vOL + 2 * kp + f // 4, S_OR, S_OR + 3, sORO + c, 1024 * (f % 4), opt.o_ld_pol)) for kp in range(2) for f in range(5)]
    G.spread2(flat(dma_wo(3) + dma_wo(4)), opt.flagpos + 4, 78)
    G.put(opt.pollpos, I('buffer_load_dword v244, v%d, s[%d:%d], 0 offen sc1' % (vPA, S_F, S_F + 3)))
    ck = opt.chkpos
    G.put(ck, *[I(x) for x in poll_test(244, sMK1) + ['s_cbranch_scc1 L_spin_o']])
    G.spread2(oload(2) + oload(3), ck + 1, ck + 14)
    G.spread2(oload(4) + flat(dma_wo(5) + dma_wo(6)), 160, 222)
    G.spread2(oload(5) + flat(dma_wo(7)), 240, 300)
    G.spread2(oload(6), 320, 360); G.spread2(oload(7), 400, 440)
    for i in range(20): G.put(min(606 + i + 3, 639) if i < 15 else 639, I('ds_write_b128 v%d, %s offset:%d' % (vYW, ar(80 + 4 * i, 4), 1024 * i)))
    if opt.tstamps:
        for g in (opt.flagpos + 3, 79, opt.chkpos - 1, opt.chkpos + 1, 159, 164, 239, 319, 399, 479, 559): G.put(g, *stamp_ins())
    print('oproj est cycles', G.est_cycles(16), file=sys.stderr)
    t2.extend(G.emit(-1, ck))
    t3 = Block('tail3'); t3('L_back_o:')
    t3.extend(G.emit(ck + 1, 639))
    stamp(t3)
    t3('@waitlgkm *\ns_barrier')
    RG = BS[0] + BS[1]
    order = [5 * nl + f for nl in (1, 2, 3, 0) for f in range(5)]
    for i in order: t3('ds_read_b128 %s, v%d offset:%d' % (vr(RG[i], 4), vYR, 1024 * i))
    for k, i in enumerate(order):
        tm = hole(k % 10)
        for e in range(4): t3('v_accvgpr_read_b32 v%d, a%d' % (tm + e, 4 * i + e))
        for e in range(4): t3('v_add_f32 v%d, v%d, v%d' % (RG[i] + e, RG[i] + e, tm + e))
        nl, f = divmod(i, 5)
        if nl: t3('buffer_store_dwordx4 %s, v%d, s[%d:%d], s%d offen offset:%d%s' % (vr(RG[i], 4), vOL + f // 4, S_P, S_P + 3, sPW + nl - 1, 1024 * (f % 4), opt.p_st_pol), 'P')
    t3('@waitvm P\nbuffer_store_dword v245, v%d, s[%d:%d], 0 offen sc1' % (vFA + 1, S_F, S_F + 3))
    stamp(t3)
    t3('buffer_load_dword v244, v%d, s[%d:%d], 0 offen sc1' % (vPA + 1, S_F, S_F + 3))
    t3.extend(poll_test(244, sMK2) + ['s_cbranch_scc1 L_spin_p'])
    t4 = Block('tail4'); t4('L_back_p:')
    stamp(t4)
    for f in range(5):
        for j in (1, 2, 3):
            t4('buffer_load_dwordx4 %s, v%d, s[%d:%d], s%d offen offset:%d%s' % (vr(RG[5 * j + f], 4), vOL + f // 4, S_P, S_P + 3, sPR + j - 1, 1024 * (f % 4), opt.p_ld_pol))
    for f in range(5):
        a, b1, b2, b3 = RG[f], RG[5 + f], RG[10 + f], RG[15 + f]
        for e in range(4): t4('v_add_f32 v%d, v%d, v%d\nv_add_f32 v%d, v%d, v%d' % (a + e, a + e, b1 + e, b2 + e, b2 + e, b3 + e))
        for e in range(4): t4('v_add_f32 v%d, v%d, v%d' % (a + e, a + e, b2 + e))
        t4('v_cvt_pk_bf16_f32 v%d, v%d, v%d\nv_cvt_pk_bf16_f32 v%d, v%d, v%d\ns_mov_b32 s38, %d' % (a, a, a + 1, a + 1, a + 2, a + 3, 32768 * f))
        t4('buffer_store_dwordx2 %s, v%d, s[%d:%d], s38 offen%s' % (vr(a, 2), vST, S_OUT, S_OUT + 3, opt.out_pol))
    if opt.stamps: t4('s_waitcnt vmcnt(0)')
    stamp(t4)
    t4('s_endpgm')
    return [t1, t2, t3, t4, spin_block('o', vPA, sMK1), spin_block('p', vPA + 1, sMK2)]

def k1_fallback():
    b = Block('fb'); T = vT
    b('L_fallback:')
    b('s_waitcnt vmcnt(0) lgkmcnt(0)\ns_nop 15\ns_barrier')
    b('v_and_b32 v1, 15, v%d\nv_lshrrev_b32 v2, 4, v%d\nv_lshlrev_b32 v2, 4, v2\nv_lshl_add_u32 v%d, v1, 8, v2' % (vLANE, vLANE, T + 10))
    for qs in range(5): b('v_mov_b32 v%d, 0xff800000' % (T + 2 * qs))
    b('s_mov_b32 s39, 0')
    lp = Block('fbl'); lp('L_fb_loop:')
    for k in range(4): lp('buffer_load_dwordx4 %s, v%d, s[%d:%d], s39 offen offset:%d' % (vr(vF + 4 * k, 4), T + 10, S_K, S_K + 3, 64 * k))
    lp('s_waitcnt vmcnt(0)')
    lp.extend(qk_mfmas(True)[:20])
    lp('s_nop 15')
    for qs in range(5):
        s = rS(0, qs); t = T + 2 * qs
        lp('v_max3_f32 v%d, v%d, v%d, v%d\nv_max3_f32 v%d, v%d, v%d, v%d' % (t, t, s, s + 1, t, t, s + 2, s + 3))
    lp('s_add_u32 s39, s39, 4096\ns_cmp_lt_u32 s39, 262144\ns_cbranch_scc1 L_fb_loop')
    e = Block('fbe')
    max_finish(e, T)
    e.extend(zero_acc())
    e('s_and_b32 s40, s%d, 1\ns_lshl_b32 s%d, s40, 12\ns_mov_b32 s%d, s%d' % (sW, sKO, sVO, sKO))
    for g in dma_kv('K', 0) + dma_kv('K', 1) + dma_kv('K', 2) + dma_kv('K', 3) + dma_kv('V', 0) + dma_kv('V', 1) + dma_kv('V', 2): e.extend(g)
    e('s_mov_b32 s%d, 1\ns_waitcnt vmcnt(0)\ns_barrier' % sEX)
    G = Gaps(qk0_mfmas(), 8)
    for f in range(8): G.put(max(5 * (f - 3) - 1, -1), *kread0(f))
    e.extend(G.emit())
    e('s_nop 7\ns_branch L_start')
    return b, lp, e

def kernel_text(kname, blocks, traces, vgpr, accum, sgpr=102):
    d = {b.name: b for b in blocks}
    assert len(d) == len(blocks)
    place_waits(d, traces)
    n = place_nops(d, traces)
    print(kname[:12], 'nop states inserted', n, 'instructions', {b.name: len(b.ins) for b in blocks}, file=sys.stderr)
    t = '.text\n.globl %s\n.p2align 8\n.type %s,@function\n%s:\n' % (kname, kname, kname) + render(blocks)
    t += '.section .rodata,"a"\n.p2align 6\n.amdhsa_kernel %s\n' % kname
    t += '  .amdhsa_next_free_vgpr %d\n  .amdhsa_next_free_sgpr %d\n  .amdhsa_accum_offset %d\n' % (vgpr, sgpr, accum)
    t += '  .amdhsa_group_segment_fixed_size 0\n  .amdhsa_kernarg_size 104\n  .amdhsa_user_sgpr_count 2\n'
    t += '  .amdhsa_user_sgpr_kernarg_segment_ptr 1\n  .amdhsa_system_sgpr_workgroup_id_x 1\n.end_amdhsa_kernel\n'
    return t

def gen_k1(kname):
    setup = k1_setup(); qp = k1_qproj()
    pro, mx, p2, lp, pe = k1_attention(); tl = k1_tail()
    end = Block('end'); end('L_k1_end:\ns_endpgm')
    blocks = [setup, qp, pro, mx, p2] + lp + pe[:3] + tl + [pe[3]]
    loop = ['per0', 'per1', 'per2', 'per3'] * 3 + ['pe0', 'pe1', 'pe2', 'tail1']
    head = ['setup', 'qproj', 'pro', 'pro_max', 'pro2']
    traces = [head + loop + ['tail2', 'tail3', 'tail4'],
              head + loop[:-2] + ['spin_d', 'spin_d', 'pe2', 'tail1', 'tail2', 'spin_o', 'spin_o', 'tail3', 'spin_p', 'spin_p', 'tail4']]
    if opt.fallback:
        fb, fbl, fbe = k1_fallback(); blocks += [fb, fbl, fbe]
        traces.append(head + loop + ['fb', 'fbl', 'fbl', 'fbe', 'pro', 'pro2'] + loop + ['tail2', 'tail3', 'tail4'])
    blocks.append(end)
    return kernel_text(kname, blocks, traces, 512, 256)

def gen_diag(kname):
    a, b_, gain = [int(x, 0) for x in opt.diag.split()]
    b = Block('dg')
    b('''s_cmp_ge_u32 s2, 1
         s_cbranch_scc1 L_dg_end
         s_load_dwordx2 s[4:5], s[0:1], 96
         s_waitcnt lgkmcnt(0)
         s_add_u32 s4, s4, 0x3000000
         s_addc_u32 s5, s5, 0
         s_load_dword s6, s[4:5], %d
         s_load_dword s7, s[4:5], %d
         s_memrealtime s[8:9]
         s_waitcnt lgkmcnt(0)
         s_sub_u32 s6, s7, s6
         s_min_u32 s6, s6, 20000
         s_mul_i32 s6, s6, %d
         L_dg:
         s_memrealtime s[10:11]
         s_waitcnt lgkmcnt(0)
         s_sub_u32 s10, s10, s8
         s_cmp_lt_u32 s10, s6
         s_cbranch_scc1 L_dg
         L_dg_end:
         s_endpgm''' % (a, b_, gain))
    return kernel_text(kname, [b], [['dg']], 8, 8, 16)

def main(out, only=None):
    t = open('cdna_kernels/%s.s.ref' % NAME).read().split('; Override launch')[0]
    k1 = NAME + '_kernel'
    if opt.diag.strip():
        t += '; @launch kernel=%s grid=(256,1,1) block=(256,1,1) lds=163840\n; @launch kernel=diag_kernel grid=(1,1,1) block=(64,1,1) lds=0\n' % k1
    else: t += '; @launch grid=(256,1,1) block=(256,1,1) lds=163840\n'
    t += '.amdgcn_target "amdgcn-amd-amdhsa--gfx950"\n'
    t += gen_k1(k1)
    if opt.diag.strip(): t += gen_diag('diag_kernel')
    open(out, 'w').write(t)

if __name__ == '__main__':
    out = sys.argv[1]; only = None
    for a in sys.argv[2:]:
        k, v = a.split('=')
        if k == 'only': only = int(v)
        elif isinstance(getattr(opt, k), bool): setattr(opt, k, v == '1')
        elif isinstance(getattr(opt, k), int): setattr(opt, k, int(v))
        else: setattr(opt, k, (' ' + v.replace('+', ' ')) if v else '')
    main(out, only)
```

```python
import sys, math, struct
from asmlib import *

NAME = "concat_heads__gqa_block_cached__gqa_block_cached__near_ridge"
def f32bits(x): return struct.unpack('<I', struct.pack('<f', x))[0]
MF = 'v_mfma_f32_16x16x32_bf16'
def vr(b, n=1, k='v'): return '%s%d' % (k, b) if n == 1 else '%s[%d:%d]' % (k, b, b + n - 1)
def ar(b, n=1): return vr(b, n, 'a')

class Opt:
    kv_pol = ' nt'; w_pol = ''; x_pol = ''; o_st_pol = ' sc1'; o_ld_pol = ' sc1'; wo_pol = ''; out_pol = ''; p_st_pol = ' sc1'; p_ld_pol = ' sc1'
    stamps = False; fallback = True; ones = True; nokv = False; nox = False; noxq = False; qstamps = False
    dsp = 7; kvend = 13; burst = ' 1:1 3:1 5:1 7:1 9:1 11:1 12:1'; k2stag = 1; qevery = 4; warm = 336; qf = ' '; pk = False; upfront = 1; diag = ' '; spin = 32768; pstamps = False; tstamps = False; thre = 0; thro = 0; thrn = 1; ptouch = False; touch = True; flagpos = 40; pollpos = 90; chkpos = 125; chk2 = 235; chk3 = 355; plead = 40; pbf = True; pk2 = True
opt = Opt()

S_K, S_V, S_X, S_WQ, S_O = 4, 8, 12, 16, 20
sW, sW4, sKO, sVO, sCNT, sEX, sC0, sB, sBR, sH1, sTH, sM0B = 24, 25, 26, 27, 28, 29, 30, 31, 32, 33, 34, 35
sSC = 36
S_TS, sTSA, sTSN = 52, 56, 58
sWO, sXO = 76, 92
STASH = {'K2': 32, 'V2': 224, 'K3': 240}
vSW = 2
vKA, vVA, vKD, vVD, vLANE, vL = 8, 12, 20, 24, 26, 59
vF = 32; NB = 4
vWA, vXA, vWD, vXD = 48, 52, 54, 58
vACC = 64
def rQ(k, qs): return vACC + 8 * (5 * k + qs)
def hole(i): return vACC + 8 * i + 4
def rS(kt, qs): return hole(5 * kt + qs)
def rP(par, qs): return hole(10 + 5 * par + qs)
vN = 224
vT = 48; vT2 = 244
def aO(dt, qs): return 4 * (5 * dt + qs)
aL, aONE, aFA, aFB = 160, 180, 184, 200
KS0, VS0 = 0, 65536
WBUF = [139264, 32768, 49152]
XBUF = [98304, 118784]
sJP, sKQ = 3, 59
S_F, S_D, S_P, S_OUT, S_WO, S_OR = 44, 48, 64, 68, 12, 16
sOK, sWOO, sORO, sPW, sPR, sD01, sD12, sMK1, sMK2 = 76, 80, 88, 96, 99, 30, 33, 42, 43
MK1 = [None, 42, 60, 61]
POFF, FOFF, TSOFF = 0x1500000, 0x2a00000, 0x3000000
vOD, vOL, vXW, vXR, vYW, vYR, vST, vFA, vPA, vDA = 54, 58, 62, 63, 48, 49, 50, 51, 28, 30
vRA = [8, 9, 10, 11, 20, 21, 22, 23]
WOB = [131072, 0, 65536, 32768, 98304]
BADB = 98304 + 10240
BS = [[vACC + 8 * i for i in range(10)], [vACC + 8 * i for i in range(10, 20)], [hole(i) for i in range(10)]]
SPIN = 1 << 15

def stamp_ins():
    if not opt.stamps: return []
    return [I('s_memrealtime s[%d:%d]' % (sTSA, sTSA + 1)), I('s_memtime s[62:63]'), I('s_waitcnt lgkmcnt(0)'), I('v_mov_b32 v5, s%d' % sTSA), I('v_mov_b32 v6, s%d' % sTSN), I('v_mov_b32 v7, s62'),
            I('buffer_store_dword v5, v6, s[%d:%d], 0 offen' % (S_TS, S_TS + 3), 'stamp'), I('buffer_store_dword v7, v6, s[%d:%d], 0 offen offset:256' % (S_TS, S_TS + 3), 'stamp'), I('s_add_u32 s%d, s%d, 4' % (sTSN, sTSN))]
def stamp(b): b.extend(stamp_ins())
def stamp_setup(b, ws, w, off=TSOFF, first=False):
    if not opt.stamps: return
    b('''s_lshl_b32 s39, s2, 9
         s_add_u32 s39, s39, {off}
         s_add_u32 s{T}, s{ws}, s39
         s_addc_u32 s{T1}, s{ws1}, 0
         s_cmp_eq_u32 s{w}, 0
         s_cselect_b32 s{T2}, 512, 0
         s_mov_b32 s{T3}, 0x20000
         s_mov_b32 s{N}, 0'''.format(T=S_TS, T1=S_TS + 1, T2=S_TS + 2, T3=S_TS + 3, w=w, ws=ws, ws1=ws + 1, N=sTSN, off=off))
    if first:
        b('v_mov_b32 v5, s100\nv_mov_b32 v6, 0\nv_mov_b32 v7, s42')
        b('buffer_store_dword v5, v6, s[%d:%d], 0 offen\nbuffer_store_dword v7, v6, s[%d:%d], 0 offen offset:256\ns_mov_b32 s%d, 4' % (S_TS, S_TS + 3, S_TS, S_TS + 3, sTSN))
    stamp(b)

def srd(b, d, lo, off, num):
    b('s_add_u32 s%d, s%d, %s\ns_addc_u32 s%d, s%d, 0\n%s\ns_mov_b32 s%d, 0x20000' % (d, lo, off, d + 1, lo + 1,
      ('s_mov_b32 s%d, %d' % (d + 2, num)) if isinstance(num, int) else num % (d + 2), d + 3))

def off_calc(X):
    return ['s_add_u32 s38, s%d, %d' % (sC0, X), 's_and_b32 s38, s38, 7', 's_lshl_b32 s%d, s38, 19' % (sWO + 2 * X),
            's_add_u32 s%d, s%d, 262144' % (sWO + 2 * X + 1, sWO + 2 * X)]
def dma_wq(c):
    G = [[I('s_add_u32 m0, s%d, %d' % (sW4, WBUF[c % 3]))]]
    for n in range(4):
        G.append([I('buffer_load_dwordx4 v%d, s[%d:%d], s%d offen offset:%d%s lds' % (vWD + n, S_WQ, S_WQ + 3, sWO + c, 1024 * n, opt.w_pol), 'wq%d' % c)])
    return G
def dma_x(X):
    G = [[I('s_lshr_b32 s39, s%d, 12' % (sWO + 2 * X))], [I('s_add_u32 m0, s%d, %d' % (sW4, XBUF[X % 2]))]]
    for n in range(4):
        G.append([I('buffer_load_dwordx4 v%d, s[%d:%d], s%d offen offset:%d%s lds' % (vXD + n, S_X, S_X + 3, 39, 1024 * n, opt.x_pol), 'x%d' % X)])
    G.append([I('s_add_u32 m0, s%d, %d' % (sM0B, XBUF[X % 2] + 16384))])
    G.append([I('buffer_load_dwordx4 v%d, s[%d:%d], s%d offen%s lds' % (vXD + 4, S_X, S_X + 3, 39, opt.x_pol), 'x%d' % X)])
    return G
def stash_load(which, slot):
    K = which == 'K'; srd_, so = (S_K, sKO) if K else (S_V, sVO); r = STASH['%s%d' % (which, slot)]
    G = [[I('buffer_load_dwordx4 %s, v%d, s[%d:%d], s%d offen offset:%d%s' % (vr(r + 4 * m, 4), vKD + m if K else vVD + m % 2, srd_, srd_ + 3, so, 1024 * m, opt.kv_pol), 'st')] for m in range(4)]
    G[3].append(I('s_add_u32 s%d, s%d, 8192' % (so, so)))
    return G
def stash_flush(which, slot):
    r = STASH['%s%d' % (which, slot)]; base = (KS0 if which == 'K' else VS0) + 16384 * slot
    return [I('ds_write_b128 v%d, %s offset:%d' % (vSW + base // 65536, vr(r + 4 * m, 4), base % 65536 + 1024 * m)) for m in range(4)]
def dma_kv(which, slot, m0each=False):
    G = []; K = which == 'K'
    srd_, so = (S_K, sKO) if K else (S_V, sVO)
    for m in range(4):
        g = []
        if m == 0 or m0each: g.append(I('s_add_u32 m0, s%d, %d' % (sW4, (KS0 if K else VS0) + 16384 * slot)))
        g.append(I('buffer_load_dwordx4 v%d, s[%d:%d], s%d offen offset:%d%s lds' % (vKD + m if K else vVD + m % 2, srd_, srd_ + 3, so, 1024 * m, opt.kv_pol), '%s%d' % (which, slot)))
        if m == 3: g.append(I('s_add_u32 s%d, s%d, 8192' % (so, so)))
        G.append(g)
    return G

def dma_wo(c):
    buf = WOB[c % 5]; G = []
    for m in range(8):
        g = []
        if m == 4: g.append(I('s_add_u32 s38, s%d, 16384' % (sWOO + c)))
        if m % 4 == 0: g.append(I('s_add_u32 m0, s%d, %d' % (sM0B, buf + 4096 * (m // 4))))
        g.append(I('buffer_load_dwordx4 v%d, s[%d:%d], s%d offen offset:%d%s lds' % (vOD + m % 4, S_WO, S_WO + 3, sWOO + c if m < 4 else 38, 1024 * (m % 4), opt.wo_pol), 'wo%d' % c))
        G.append(g)
    return G

def tail_setup_a(b):
    b('s_mov_b32 s72, s92\ns_mov_b32 s73, s93')
    b('''s_and_b32 s98, s{w}, 1
         s_lshr_b32 s99, s{w}, 1
         s_lshl_b32 s96, s{B}, 1
         s_add_u32 s96, s96, s98
         s_mul_i32 s96, s96, 163840
         s_lshl_b32 s97, s{BR}, 2
         s_add_u32 s97, s97, s{JP}
         s_lshl_b32 s97, s97, 1
         s_add_u32 s97, s97, s99
         s_lshl_b32 s97, s97, 2
         s_add_u32 s97, s97, s{KQ}
         s_lshl_b32 s97, s97, 5
         s_add_u32 s96, s96, s97'''.format(w=sW, B=sB, BR=sBR, JP=sJP, KQ=sKQ))
    srd(b, S_OUT, 94, 's96', 's_sub_u32 s%d, 2621440, s96')
    for p in (1, 2, 3): b('s_add_u32 s38, s%d, %d\ns_and_b32 s38, s38, 3\ns_lshl_b32 s38, s38, 2\ns_add_u32 s38, s38, s98\ns_lshl_b32 s%d, 5, s38' % (sJP, p, MK1[p]))
    b('s_lshl_b32 s38, 0x1111, s%d\ns_lshl_b32 s39, s%d, 2\ns_lshl_b32 s39, 15, s39\ns_andn2_b32 s%d, s38, s39' % (sW, sKQ, sMK2))
    b('s_lshl_b32 s38, s%d, 3\ns_add_u32 s38, s38, s%d\ns_lshl_b32 s38, s38, 2\ns_add_u32 s38, s38, s%d\ns_mul_i32 s38, s38, 327680\ns_mul_i32 s39, s%d, 5120\ns_add_u32 s38, s38, s39\ns_add_u32 s38, s38, 0x%x' % (sBR, sB, sJP, sW, POFF))
    srd(b, S_P, 74, 's38', 's_sub_u32 s%d, 327680, s39')
    for j in (1, 2, 3):
        b('s_xor_b32 s38, s%d, %d\ns_lshl_b32 s39, s38, 2\ns_add_u32 s39, s39, s%d\ns_mul_i32 s%d, s39, 20480' % (sKQ, j, sKQ, sPW + j - 1))
        b('s_lshl_b32 s39, s%d, 2\ns_add_u32 s39, s39, s38\ns_mul_i32 s%d, s39, 20480' % (sKQ, sPR + j - 1))

def wo_srd(b, S_WO=S_WO):
    b('s_lshl_b32 s38, s%d, 20\ns_lshl_b32 s39, s%d, 8\ns_add_u32 s38, s38, s39' % (sKQ, sJP))
    srd(b, S_WO, 72, 's38', 's_sub_u32 s%d, 4194304, s38')
def wo_touch(b):
    b('s_lshl_b32 s38, s%d, 2\ns_add_u32 s38, s38, s%d\ns_lshl_b32 s38, s38, 15\nv_lshrrev_b32 v4, 1, v%d\nv_and_b32 v5, 1, v%d\nv_lshlrev_b32 v5, 7, v5\nv_lshl_add_u32 v4, v4, 10, v5' % (sB, sW, vLANE, vLANE))
    b('buffer_load_dword v246, v4, s[%d:%d], s38 offen' % (S_WO, S_WO + 3))
def tail_setup_b(b):
    L = vLANE
    b('s_and_b32 s78, s%d, 1\ns_lshr_b32 s79, s%d, 1' % (sW, sW))
    b('''s_lshl_b32 s38, s{BR}, 3
         s_add_u32 s38, s38, s{B}
         s_lshl_b32 s38, s38, 2
         s_add_u32 s38, s38, s{KQ}
         s_mul_i32 s38, s38, 327680
         s_mul_i32 s39, s79, 20480
         s_mul_i32 s40, s78, 5120
         s_add_u32 s39, s39, s40
         s_add_u32 s38, s38, s39'''.format(B=sB, BR=sBR, KQ=sKQ))
    srd(b, S_OR, 74, 's38', 's_sub_u32 s%d, 327680, s39')
    b('s_lshl_b32 s40, s%d, 15\ns_lshl_b32 s%d, s%d, 13' % (sW, sM0B, sW))
    for c in range(8):
        b('s_lshl_b32 s38, s%d, 1\ns_add_u32 s38, s38, %d\ns_and_b32 s38, s38, 7\ns_mul_i32 s%d, s38, 40960\ns_lshl_b32 s38, s38, 17\ns_add_u32 s%d, s38, s40' % (sJP, c, sORO + c, sWOO + c))
    b('s_lshl_b32 s38, s79, 17\ns_lshl_b32 s39, s38, 1\ns_sub_u32 s%d, s39, 131072\ns_sub_u32 s%d, 65536, s38' % (sD01, sD12))
    b('v_lshrrev_b32 v4, 4, v%d\nv_and_b32 v5, 15, v%d' % (L, L))
    for m in range(4):
        b('v_add_u32 v6, %d, v4\nv_lshlrev_b32 v6, 1, v6\nv_xor_b32 v6, v6, v5\nv_lshlrev_b32 v6, 4, v6\nv_lshl_add_u32 v6, v4, 10, v6\nv_add_u32 v%d, %d, v6' % (4 * (m % 2), vOD + m, 3072 * m))
    b('v_lshlrev_b32 v%d, 4, v%d' % (vOL, L))
    for i, o in ((1, 4096), (2, 10240), (3, 14336)): b('v_add_u32 v%d, %d, v%d' % (vOL + i, o, vOL))
    b('v_lshlrev_b32 v5, 11, v5\nv_lshl_add_u32 v%d, v4, 3, v5' % vST)
    for (reg, wsel, step, lo, hi) in ((vXW, sW, 10240, 32768, 98304), (vXR, 41, 10240, 32768, 98304), (vYW, sW, 20480, 98304, 32768), (vYR, 41, 20480, 98304, 32768)):
        b('s_xor_b32 s41, s%d, 2\ns_mul_i32 s38, s%d, %d\ns_add_u32 s38, s38, %d\ns_cmp_eq_u32 s%d, 3\ns_cselect_b32 s38, %d, s38\nv_add_u32 v%d, s38, v%d' % (sW, wsel, step, lo, wsel, hi, reg, vOL))
    b('s_lshl_b32 s38, s%d, 2\ns_add_u32 s38, s38, s%d\ns_lshl_b32 s38, s38, 2\nv_readfirstlane_b32 s39, v%d\ns_add_u32 s38, s38, s39\nv_lshl_add_u32 v%d, v%d, 16, s38' % (sJP, sW, vPA, vFA, L))
    b('s_lshl_b32 s38, s%d, 2\ns_add_u32 s38, s38, s%d\ns_lshl_b32 s38, s38, 2\nv_readfirstlane_b32 s39, v%d\ns_add_u32 s38, s38, s39\nv_lshl_add_u32 v%d, v%d, 16, s38' % (sKQ, sW, vPA + 1, vFA + 1, L))
    for kl in range(4): b('s_lshl_b32 s38, s79, 1\ns_xor_b32 s38, s38, %d\ns_mul_i32 s%d, s38, 10240' % (kl, 38 if kl == 3 else sOK + kl))
    b('s_mov_b32 s%d, s38' % (sOK + 3))

def k1_setup():
    b = Block('setup'); L = vLANE; T = vT2
    b('s_cmp_ge_u32 s2, 256\ns_cbranch_scc1 L_k1_end')
    if opt.stamps: b('s_memrealtime s[100:101]\ns_memtime s[42:43]')
    if opt.warm: b('s_getpc_b64 s[96:97]')
    b('''s_and_b32 s38, s2, 7
         s_lshr_b32 s{BR}, s38, 2
         s_and_b32 s{KQ}, s38, 3
         s_lshr_b32 s39, s2, 3
         s_and_b32 s{B}, s39, 7
         s_lshr_b32 s{JP}, s39, 3
         s_lshl_b32 s38, s{KQ}, 3
         s_lshl_b32 s40, s{JP}, 1
         s_add_u32 s{H}, s38, s40
         s_add_u32 s{C}, s{B}, s40
         s_and_b32 s{C}, s{C}, 7
         s_mul_i32 s38, s{BR}, 40
         s_add_u32 s60, s0, s38
         s_addc_u32 s61, s1, 0
         s_load_dwordx8 s[64:71], s[60:61], 0
         s_load_dwordx4 s[72:75], s[0:1], 88
         s_load_dwordx2 s[92:93], s[60:61], 32
         s_load_dwordx2 s[94:95], s[0:1], 80
         v_lshrrev_b32 v1, 6, v0
         v_and_b32 v{L}, 63, v0
         v_readfirstlane_b32 s{W}, v1
         v_and_b32 v1, 31, v{L}
         v_lshrrev_b32 v2, 5, v{L}
         v_lshrrev_b32 v3, 4, v{L}
         v_and_b32 v4, 15, v{L}
         s_lshl_b32 s{W4}, s{W}, 12
         s_lshl_b32 s{M}, s{W}, 10'''.format(BR=sBR, B=sB, H=sH1, C=sC0, L=L, W=sW, W4=sW4, M=sM0B, KQ=sKQ, JP=sJP))
    b('s_lshl_b32 s39, s%d, 16' % sW)
    for n in range(4):
        b('''v_add_u32 v{a}, {n2}, v2
             v_and_b32 v{c}, 3, v{a}
             v_lshlrev_b32 v{c}, 2, v{c}
             v_xor_b32 v{c}, v{c}, v1
             v_lshlrev_b32 v{c}, 4, v{c}
             v_lshl_add_u32 v{c}, v{a}, 13, v{c}
             v_add_u32 v{c}, s39, v{c}
             v_subrev_u32 v{d}, {sub}, v{c}'''.format(a=T, c=T + 1, n2=2 * n, d=vWD + n, sub=1024 * n))
    b('s_lshl_b32 s39, s%d, 15\nv_lshrrev_b32 v%d, 3, v%d\nv_and_b32 v%d, 7, v%d\ns_lshl_b32 s38, s%d, 2' % (sW, T + 3, L, T + 4, L, sW))
    for n in range(4):
        b('''v_add_u32 v{a}, {n4}, v3
             v_and_b32 v{a}, 7, v{a}
             v_xor_b32 v{a}, v{a}, v{p}
             v_lshlrev_b32 v{a}, 4, v{a}
             v_lshl_add_u32 v{a}, v{r}, 10, v{a}
             v_add_u32 v{a}, {add}, v{a}
             v_add_u32 v{d}, s39, v{a}'''.format(a=T, n4=4 * n, p=T + 4, r=T + 3, add=7 * 1024 * n, d=vXD + n))
    b('''s_lshl_b32 s39, s{w}, 13
         s_add_u32 s39, s39, 131072
         v_add_u32 v{a}, s38, v3
         v_and_b32 v{a}, 7, v{a}
         v_xor_b32 v{a}, v{a}, v{p}
         v_lshlrev_b32 v{a}, 4, v{a}
         v_lshl_add_u32 v{a}, v{r}, 10, v{a}
         v_add_u32 v{d}, s39, v{a}'''.format(w=sW, a=T, p=T + 4, r=T + 3, d=vXD + 4))
    b('s_waitcnt lgkmcnt(0)')
    b('s_mul_i32 s39, s%d, 163840' % sB); srd(b, S_X, 64, 's39', 163840)
    b('s_lshl_b32 s39, s%d, 8' % sH1); srd(b, S_WQ, 70, 's39', 's_sub_u32 s%d, 4194304, s39')
    if opt.nox: b('s_mov_b32 s%d, 0' % (S_X + 2))
    if opt.noxq: b('s_mov_b32 s%d, 0' % (S_WQ + 2))
    b.extend(off_calc(0) + off_calc(1))
    for g in dma_wq(0) + dma_x(0) + (dma_wq(1) + dma_x(1) + dma_wq(2) if opt.upfront == 2 else []): b.extend(g)
    if opt.warm:
        n8 = (opt.warm + 7) // 8
        b('s_lshr_b32 s38, s2, 3\ns_and_b32 s38, s38, 7\ns_mul_i32 s38, s38, %d\nv_min_u32 v6, %d, v%d\nv_add_u32 v6, s38, v6\nv_lshlrev_b32 v6, 7, v6\nv_mov_b32 v7, s97' % (n8, n8 - 1, L))
        b('v_add_co_u32 v6, vcc, s96, v6\nv_addc_co_u32 v7, vcc, 0, v7, vcc\nglobal_load_dword v63, v[6:7], off')
    for X in range(2, 8): b.extend(off_calc(X))
    b('s_lshr_b32 s41, s%d, 1\ns_lshl_b32 s38, s%d, 5\ns_add_u32 s38, s38, s%d\ns_add_u32 s38, s38, s41\ns_lshl_b32 s39, s38, 18' % (sW, sB, sH1))
    srd(b, S_K, 66, 's39', 0 if opt.nokv else 262144); srd(b, S_V, 68, 's39', 0 if opt.nokv else 262144)
    b('s_lshl_b32 s39, s%d, 8\ns_add_u32 s38, s38, s39\ns_mul_i32 s39, s38, 40960\ns_and_b32 s40, s%d, 1\ns_mul_i32 s38, s40, 5120\ns_add_u32 s39, s39, s38' % (sBR, sW))
    srd(b, S_O, 74, 's39', 's_sub_u32 s%d, 40960, s38')
    b('s_lshl_b32 s%d, s40, 12\ns_mov_b32 s%d, s%d' % (sKO, sVO, sKO))
    stamp_setup(b, 74, sW, first=True)
    srd(b, S_F, 74, '0x%x' % FOFF, 16384); srd(b, S_D, 72, '0', 256)
    b('''s_and_b32 s38, s2, 7
         s_lshl_b32 s38, s38, 3
         s_add_u32 s38, s38, s{B}
         s_lshl_b32 s39, s{BR}, 3
         s_add_u32 s39, s39, s{B}
         s_lshl_b32 s39, s39, 2
         s_add_u32 s39, s39, s{JP}
         v_and_b32 v5, 1, v{L}
         v_mov_b32 v6, s38
         v_mov_b32 v7, s39
         v_cmp_eq_u32 vcc, 0, v5
         v_cndmask_b32 v6, v7, v6, vcc
         v_lshlrev_b32 v{DA}, 2, v6
         s_lshl_b32 s38, s38, 7
         s_lshl_b32 s39, s39, 7
         s_add_u32 s39, s39, 8192
         v_lshl_add_u32 v{PA}, v4, 2, s38
         v_lshl_add_u32 v{PB}, v4, 2, s39
         s_lshl_b32 s41, s{JP}, 4
         s_add_u32 s38, s38, s41
         s_lshl_b32 s41, s{KQ}, 4
         s_add_u32 s39, s39, s41
         v_mov_b32 v6, s38
         v_mov_b32 v7, s39
         v_cndmask_b32 v6, v7, v6, vcc
         v_lshrrev_b32 v7, 1, v0
         v_lshl_add_u32 v6, v7, 16, v6
         v_mov_b32 v{T}, 0
         v_mov_b32 v{T1}, 0
         v_mov_b32 v{T2}, 0
         v_mov_b32 v{T3}, 0'''.format(B=sB, BR=sBR, JP=sJP, KQ=sKQ, L=L, DA=vDA, PA=vPA, PB=vPA + 1, T=T, T1=T + 1, T2=T + 2, T3=T + 3))
    b('buffer_store_dwordx4 %s, v6, s[%d:%d], 0 offen sc1' % (vr(T, 4), S_F, S_F + 3), 'fz')
    tail_setup_a(b)
    if opt.ptouch:
        wo_srd(b, 92)
        b('v_mov_b32 v7, 0')
        for i, d in enumerate((S_K, S_V, S_O, S_P, S_OUT, 92)): b('buffer_load_dword v%d, v7, s[%d:%d], 0 offen%s' % (250 + i, d, d + 3, ' nt' if i < 2 else ''))
    b('s_lshr_b32 s41, s%d, 1' % sW)
    b('v_bfe_u32 v5, v%d, 2, 2\nv_and_b32 v6, 3, v%d' % (L, L))
    for m in range(4):
        b('v_add_u32 v%d, %d, v3\nv_xor_b32 v%d, v%d, v4\nv_lshlrev_b32 v%d, 4, v%d\nv_lshl_add_u32 v%d, v3, 8, v%d' % (T, 4 * m, T, T, T, T, vKD + m, T))
    for m in range(2):
        b('v_add_u32 v%d, %d, v3\nv_lshlrev_b32 v%d, 1, v%d\nv_xor_b32 v%d, v%d, v4\nv_lshlrev_b32 v%d, 4, v%d\nv_lshl_add_u32 v%d, v3, 8, v%d' % (T, 4 * m, T, T, T, T, T, T, vVD + m, T))
    b('s_lshl_b32 s41, s41, 13\nv_xor_b32 v%d, v3, v4\nv_lshlrev_b32 v%d, 8, v4\nv_add_u32 v%d, s41, v%d' % (T, T + 1, T + 1, T + 1))
    for k in range(4): b('v_xor_b32 v%d, %d, v%d\nv_lshl_add_u32 v%d, v%d, 4, v%d' % (T + 2, 4 * k, T, vKA + k, T + 2, T + 1))
    b('''v_lshl_add_u32 v{a}, v3, 2, v5
         v_lshlrev_b32 v{c}, 8, v{a}
         v_lshl_add_u32 v{c}, v6, 3, v{c}
         s_add_u32 s41, s41, {vs}
         v_add_u32 v{c}, s41, v{c}
         v_and_b32 v{a}, 7, v{a}
         s_and_b32 s38, s{w}, 2
         s_lshl_b32 s38, s38, 1
         v_xor_b32 v{a}, s38, v{a}'''.format(a=T, c=T + 1, vs=VS0, w=sW))
    for dt in range(8): b('v_xor_b32 v%d, %d, v%d\nv_lshl_add_u32 v%d, v%d, 5, v%d' % (T + 2, dt, T, vVA + dt, T + 2, T + 1))
    b('''v_lshl_add_u32 v{c}, v3, 3, v5
         v_lshlrev_b32 v{c}, 9, v{c}
         s_lshr_b32 s41, s{w}, 1
         s_lshl_b32 s41, s41, 8
         v_add_u32 v{c}, s41, v{c}
         v_lshl_add_u32 v{a}, v5, 2, v6'''.format(a=T, c=T + 1, w=sW))
    for k in range(4): b('v_xor_b32 v%d, %d, v%d\nv_lshl_add_u32 v%d, v%d, 4, v%d' % (T + 2, 4 * k, T, vWA + k, T + 2, T + 1))
    b('''v_lshrrev_b32 v{a}, 1, v4
         v_xor_b32 v{a}, v{a}, v3
         s_mul_i32 s41, s40, 10240
         s_add_u32 s41, s41, {xb}
         v_lshlrev_b32 v{c}, 7, v4
         v_add_u32 v{c}, s41, v{c}'''.format(a=T, c=T + 1, xb=XBUF[0]))
    for k in range(2): b('v_xor_b32 v%d, %d, v%d\nv_lshl_add_u32 v%d, v%d, 4, v%d' % (T + 2, 4 * k, T, vXA + k, T + 2, T + 1))
    c = math.log2(math.e) / math.sqrt(128.0)
    b('s_mov_b32 s%d, 0x%08x\ns_mov_b32 s%d, 0x%08x\ns_mov_b32 s%d, 0x%08x\ns_mov_b32 s%d, 0' % (sSC, f32bits(c), sSC + 1, f32bits(c), sTH, f32bits(2.0 ** 30), sEX))
    b('v_lshl_add_u32 v%d, v%d, 4, s%d\nv_add_u32 v%d, 0x10000, v%d' % (vSW, L, sW4, vSW + 1, vSW))
    b('v_mov_b32 v%d, 0x3f803f80' % T)
    for i in range(4): b('v_accvgpr_write_b32 a%d, v%d' % (aONE + i, T))
    if opt.upfront == 1:
        for g in dma_wq(1): b.extend(g)
    return b

def zero_acc():
    return ['v_accvgpr_write_b32 a%d, 0' % i for i in range(180 if opt.ones else 160)] + ([] if opt.ones else ['v_mov_b32 v%d, 0' % (vL + i) for i in range(5)])

def conv(k):
    L = []
    for qs in range(5):
        d = rQ(k, qs)
        if opt.pk: L += ['v_pk_mul_f32 %s, %s, s[%d:%d]' % (vr(d + 2 * i, 2), vr(d + 2 * i, 2), sSC, sSC + 1) for i in range(4)]
        else: L += ['v_mul_f32 v%d, s%d, v%d' % (d + i, sSC, d + i) for i in range(8)]
        L += ['v_cvt_pk_bf16_f32 v%d, v%d, v%d' % (d + i, d + 2 * i, d + 2 * i + 1) for i in range(4)]
    return L
def qk0_mfmas():
    bb = []
    for f in range(8):
        k, kt = divmod(f, 2)
        for qs in range(5):
            s = rS(kt, qs)
            bb.append(I('%s %s, %s, %s, %s' % (MF, vr(s, 4), vr(vF + 4 * (f % NB), 4), vr(rQ(k, qs), 4), '0' if k == 0 else vr(s, 4))))
    return bb
def kread0(f):
    k, kt = divmod(f, 2)
    return [I('ds_read_b128 %s, v%d offset:%d' % (vr(vF + 4 * (f % NB), 4), vKA + k, kt * 4096), 'g%d' % f)]

def k1_qproj():
    b = Block('qproj')
    bb = []
    for c in range(16):
        for t in range(8):
            for qs in range(5):
                d = rQ(t // 2, qs) + 4 * (t % 2)
                bb.append(I('%s %s, %s, %s, %s' % (MF, vr(d, 4), ar(aFA + 4 * (t % 4), 4), ar(aFB + 20 * (c % 2) + 4 * qs, 4), '0' if c == 0 else vr(d, 4))))
    G = Gaps(bb, 8)
    def ybar(c): return -1 if c == 0 else 40 * c - 14
    cur = [0] * 4
    def wq_read(c, t):
        k, bsel = divmod(t, 2)
        want = 0 if WBUF[c % 3] < 65536 else 131072
        off = WBUF[c % 3] - want + 8 * bsel
        r = aFA + 4 * (t % 4)
        L = []
        if bsel == 0 and want != cur[k]:
            L.append(I('v_add_u32 v%d, 0x%x, v%d' % (vWA + k, (want - cur[k]) & 0xffffffff, vWA + k))); cur[k] = want
        return L, [I('ds_read_b64_tr_b16 %s, v%d offset:%d' % (ar(r, 2), vWA + k, off), 'fa'), I('ds_read_b64_tr_b16 %s, v%d offset:%d' % (ar(r + 2, 2), vWA + k, off + 2048), 'fa%d_%d' % (c, t))]
    kvq = dma_kv('K', 0, True) + dma_kv('K', 1, True) + dma_kv('V', 0, True) + dma_kv('V', 1, True) + stash_load('K', 2) + stash_load('V', 2) + stash_load('K', 3)
    nkv = opt.kvend
    bursts = dict(tuple(int(v) for v in x.split(':')) for x in opt.burst.split())
    assert not bursts or sum(bursts.values()) == 7
    if bursts: kvq = dma_kv('K', 0) + dma_kv('K', 1) + dma_kv('V', 0) + dma_kv('V', 1) + kvq[16:]
    for c in range(16):
        y = ybar(c); base = 40 * c
        G.put(y, I('@waitlgkm *'), I('@waitvm wq%d' % c + (',x%d' % (c // 2) if c % 2 == 0 else '') + (',K0' if c == 15 else '')), I('s_barrier'))
        if opt.qstamps and c % opt.qevery == 0: G.put(y, *stamp_ins())
        if c == 3:
            G.put(y + 9, I('v_and_b32 v4, 1, v%d' % vLANE)); G.put(y + 10, I('v_lshlrev_b32 v4, 4, v4')); G.put(y + 11, I('v_lshlrev_b32 v4, v4, 1'))
            G.put(y + 12, I('v_lshrrev_b32 v1, 1, v0')); G.put(y + 13, I('v_lshl_add_u32 v1, v1, 16, v%d' % vDA))
            G.put(y + 14, I('@waitvm fz'), I('buffer_atomic_add v4, v1, s[%d:%d], 0 offen sc1' % (S_D, S_D + 3)))
        xr = [I('ds_read_b128 %s, v%d offset:%d' % (ar(aFB + 20 * (c % 2) + 4 * qs, 4), vXA + c % 2, (c // 2 % 2) * 20480 + 2048 * qs), 'xr%d_%d' % (c, qs)) for qs in range(5)]
        for t in range(8):
            g = max(base + 5 * (t - 3) - 1, y + 1 if c else y)
            pre, rd = wq_read(c, t)
            G.put(max(g - 1, -1), *pre); G.put(g, *rd)
            if t == 0:
                for qs in range(5): G.put(y + ((2, 4, 5, 6, 7)[qs] if c else 0), xr[qs])
                G.put(base - 1, I('@waitlgkm fa%d_1,xr%d_4' % (c, c)))
            if t % 2 == 0 and t: G.put(base + 5 * t - 1, I('@waitlgkm fa%d_%d' % (c, t + 1)))
        d = []
        if c == 0 and opt.upfront == 1: d += dma_x(1) + dma_wq(2)
        if 1 <= c < 14: d += dma_wq(c + 2)
        if c % 2 == 0 and 2 <= c < 14: d += dma_x(c // 2 + 1)
        if not bursts and c < nkv: d += kvq[(c * len(kvq)) // nkv:((c + 1) * len(kvq)) // nkv]
        flat = [x for g in d for x in g]
        if c in bursts:
            if flat: G.spread2(flat, y + 1 if c else 0, y + 14)
            flat = [x for g in kvq[:4 * bursts[c]] for x in g]; kvq = kvq[4 * bursts[c]:]
            G.spread2(flat, y + 15, y + 15 + len(flat) // 2); flat = []
        if c == 14: flat += stash_flush('K', 2) + stash_flush('V', 2)
        if c == 15: flat += stash_flush('K', 3)
        if flat: G.spread2(flat, y + 1 if c else 0, 25 if c == 0 else y + (39 if c < 15 else 20))
    G.spread2(zero_acc(), 20, 580)
    for f in range(3): G.put(624 + 5 * f, *kread0(f))
    G.spread2(conv(0), 613, 626); G.spread2(conv(1), 627, 639)
    em = G.emit()
    if 'd' in opt.qf: em = [x for x in em if x.cls not in ('dma', 'vld') and 'm0' not in x.w]
    if 'b' in opt.qf: em = [x for x in em if x.op != 's_barrier']
    if 'r' in opt.qf: em = [x for x in em if x.cls != 'dsr']
    if 'z' in opt.qf: em = [x for x in em if x.op != 'v_accvgpr_write_b32']
    if 'x' in opt.qf: em = [x for x in em if x.op != 'ds_read_b128']
    if 't' in opt.qf: em = [x for x in em if x.op != 'ds_read_b64_tr_b16']
    b.extend(em)
    print('qproj est cycles', G.est_cycles(16), file=sys.stderr)
    G = Gaps(qk0_mfmas(), 8)
    for f in range(3, 8): G.put(5 * (f - 3) - 1, *kread0(f))
    G.spread2(conv(2), -1, 17); G.spread2(conv(3), 18, 27)
    b.extend(G.emit())
    stamp(b)
    return b

XBAR = 66
def kread(f, slot):
    kt, k = divmod(f, 4)
    return [I('ds_read_b128 %s, v%d offset:%d' % (vr(vF + 4 * (f % NB), 4), vKA + k, slot * 16384 + kt * 4096), 'f%d' % f)]
def vread(f, slot):
    dt = f - 8; r = vF + 4 * (f % NB)
    return [I('ds_read_b64_tr_b16 %s, v%d offset:%d' % (vr(r, 2), vVA + dt, slot * 16384), 'fx'),
            I('ds_read_b64_tr_b16 %s, v%d offset:%d' % (vr(r + 2, 2), vVA + dt, slot * 16384 + 4096), 'f%d' % f)]
def neg_adds(kt): return ['v_add_f32 v%d, v%d, v%d' % (rS(kt, qs) + i, rS(kt, qs) + i, vN + 4 * qs) for qs in range(5) for i in range(4)]
def sm_chain(par):
    C = []; pend = []
    for kt in range(2):
        for qs in range(5):
            s = rS(kt, qs); p = rP(par, qs) + 2 * kt
            e = ['v_exp_f32 v%d, v%d' % (s + i, s + i) for i in range(4)]
            a = ['v_add_f32 v%d, v%d, v%d' % (vL + qs, vL + qs, s + i) for i in range(4)]
            cv = ['v_cvt_pk_bf16_f32 v%d, v%d, v%d' % (p + i, s + 2 * i, s + 2 * i + 1) for i in range(2)]
            C.append((e[0], kt, qs)); C += pend
            if opt.ones: C += [(x, kt, qs) for x in (e[1], e[2], cv[0], e[3])]; pend = [(cv[1], kt, qs)]
            else: C += [(x, kt, qs) for x in (e[1], a[0], e[2], a[1], cv[0], e[3], a[2])]; pend = [(a[3], kt, qs), (cv[1], kt, qs)]
    return C + pend
def qk_mfmas(first):
    bb = []
    for f in range(8):
        kt, k = divmod(f, 4)
        for qs in range(5):
            s = rS(kt, qs)
            c = ('0' if first else vr(vN + 4 * qs, 4)) if k == 0 else vr(s, 4)
            bb.append(I('%s %s, %s, %s, %s' % (MF, vr(s, 4), vr(vF + 4 * (f % NB), 4), vr(rQ(k, qs), 4), c)))
    return bb
def pv_mfmas(par):
    bb = []
    for f in range(8, 16):
        for qs in range(5):
            bb.append(I('%s %s, %s, %s, %s' % (MF, ar(aO(f - 8, qs), 4), vr(vF + 4 * (f % NB), 4), vr(rP(par, qs), 4), ar(aO(f - 8, qs), 4))))
    return bb
def ones_mfmas(par): return [I('%s %s, %s, %s, %s' % (MF, ar(aL + 4 * qs, 4), ar(aONE, 4), vr(rP(par, qs), 4), ar(aL + 4 * qs, 4))) for qs in range(5)]
SPLIT = [None]; SMPOS = [None]
def period(j, peel=False):
    pu, pn = j % 2, (j + 1) % 2
    ks, vs = (j + 1) % 4, j
    lg = qk_mfmas(False) + pv_mfmas(pu)
    bb = []; ix = {-1: -1}
    on = ones_mfmas(pu) if opt.ones else []
    for i, x in enumerate(lg):
        bb.append(x); ix[i] = len(bb) - 1
        if on and i in (44, 49, 54, 59, 64): bb.append(on.pop(0))
    G = Gaps(bb, 8); N = len(bb)
    for f in range(3, 16):
        G.put(ix[5 * (f - 3) - 1] if f > 3 else 0, *(kread(f, ks) if f < 8 else vread(f, vs)))
        if f % 2 == 0 and f < 15: G.put(ix[5 * f] - 1, I('@waitlgkm f%d' % (f + 1)))
    G.put(ix[XBAR], I('@waitlgkm *'), I('@waitvm K%d,V%d' % ((j + 2) % 4, (j + 1) % 4)), I('s_barrier'))
    if peel and j == 2:
        for f, g in ((8, XBAR + 1), (9, 69), (10, 74)): G.put(ix[g], *vread(f, 3))
    else:
        for f, g in ((0, XBAR + 1), (1, 69), (2, 74)): G.put(ix[g], *kread(f, (j + 2) % 4))
        G.put(N - 1, I('@waitlgkm f1'))
    G.put(9, I('@waitlgkm f3'))
    slots = [2, 7, 12, 17, 22, 27, 32, 37, 42, 47, 52, 57, 62] if opt.dsp == 5 else [2 + opt.dsp * m for m in range(8)]
    dl = dma_kv('K', j) + dma_kv('V', (j + 3) % 4)
    if peel: dl = dma_kv('V', 3) if j == 0 else dma_wo(j)
    if peel and j == 0:
        tb = Block('x'); tail_setup_b(tb); extra = tb.ins + [x for g in dma_wo(0) for x in g]
    for m, g in enumerate(dl):
        p = ix[slots[m]]
        if not peel and m % opt.thrn == 0:
            if opt.thro: G.put(p - 1, I('@raw s_waitcnt vmcnt(%d)' % opt.thro))
            if opt.thre: G.put(p - 1, I('s_cbranch_vccnz L_t%d_%d' % (j, m)), I('@raw s_waitcnt vmcnt(%d)' % opt.thre), I('L_t%d_%d:' % (j, m)))
        if len(g) == 2 and g[0].cls == 'salu': G.put(p - 1, g[0]); G.put(p, g[1])
        elif len(g) == 2: G.put(p, g[0]); G.put(p + 1, g[1])
        elif len(g) == 3: G.put(p - 2, g[0]); G.put(p - 1, g[1]); G.put(p, g[2])
        else: G.put(p, *g)
    if j == 3:
        G.put(ix[71], I('s_sub_u32 s%d, s%d, 1' % (sCNT, sCNT))); G.put(ix[77], I('s_cmp_lg_u32 s%d, 0' % sCNT))
    if peel and j == 0: G.put(ix[40], I('buffer_load_dword v244, v%d, s[%d:%d], 0 offen sc1' % (vDA, S_D, S_D + 3)))
    chn, chu = sm_chain(pn), sm_chain(pu)
    if SMPOS[0] is None:
        s0 = 18; gaps = list(range(s0, N)) + list(range(0, s0))
        gaps += list(range(s0, 24))
        lo = [ix[15 + 20 * kt + qs] + 4 - s0 for (_, kt, qs) in chn]
        hi = [(N - s0 + qs - 1) if kt == 0 else (N - s0 + 19 + qs) for (_, kt, qs) in chn]
        hi = [min(h, N - 1) for h in hi]
        _, pos = G.dp([x for x, _, _ in chn], gaps, lo, hi)
        SMPOS[0] = [gaps[p] for p in pos]; SPLIT[0] = sum(p < N - s0 for p in pos)
    for k, (x, _, _) in enumerate(chu):
        if k >= SPLIT[0]: G.put(SMPOS[0][k], I(x))
    for k, (x, _, _) in enumerate(chn):
        if k < SPLIT[0]: G.put(SMPOS[0][k], I(x))
    if peel and j == 0: G.spread2(extra, ix[slots[3]] + 2, N - 1)
    if j == 3 or opt.pstamps: G.put(ix[XBAR], *stamp_ins())
    return G

def k1_attention():
    P = [period(j) for j in range(4)]
    print('period est cycles', [g.est_cycles(16) for g in P], [P[0].used(i) for i in range(len(P[0].bb))], file=sys.stderr)
    pro = Block('pro'); T = vT
    pro('L_start:')
    pro('@waitlgkm *\n@waitvm K1,V0\ns_barrier')
    for f in range(3): pro.extend(kread(f, 1))
    if opt.fallback: pro('s_cmp_lg_u32 s%d, 0\ns_cbranch_scc1 L_nomax' % sEX)
    mx = Block('pro_max')
    for qs in range(5):
        a, c = rS(0, qs), rS(1, qs); t = T + 2 * qs
        mx('v_max3_f32 v%d, v%d, v%d, v%d\nv_max3_f32 v%d, v%d, v%d, v%d' % (t, a, a + 1, a + 2, t + 1, c, c + 1, c + 2))
        mx('v_max3_f32 v%d, v%d, v%d, v%d\nv_max_f32 v%d, v%d, v%d' % (t, t, a + 3, c + 3, t, t, t + 1))
    max_finish(mx, T)
    p2 = Block('pro2'); p2('L_nomax:')
    p2.extend(neg_adds(0) + neg_adds(1) + [x for x, _, _ in sm_chain(0)[:SPLIT[0]]])
    wo_srd(p2)
    if opt.touch: wo_touch(p2)
    p2('@waitlgkm f1')
    p2('s_mov_b32 s%d, 7' % sCNT)
    if opt.thre: p2('s_getreg_b32 s38, hwreg(HW_REG_XCC_ID, 0, 1)\ns_mov_b32 vcc_lo, s38\ns_mov_b32 vcc_hi, 0')
    stamp(p2)
    lp = [Block('per%d' % j) for j in range(4)]
    lp[0]('L_loop:')
    for j in range(4): lp[j].extend(P[j].emit())
    lp[3]('s_cbranch_scc1 L_loop')
    pe = [Block('pe%d' % j) for j in range(4)]
    pe[0].extend(period(0, True).emit()); pe[1].extend(period(1, True).emit())
    pe[1]('v_readlane_b32 s38, v244, 0\nv_readlane_b32 s39, v244, 1\ns_and_b32 s38, s38, 0xffff\ns_lshr_b32 s39, s39, 16\ns_min_u32 s38, s38, s39\ns_cmp_lt_u32 s38, 4\ns_cbranch_scc1 L_spin_d')
    pe[2]('L_back_d:')
    pe[2].extend(period(2, True).emit())
    sp = pe[3]; sp.name = 'spin_d'
    sp('L_spin_d:\ns_mov_b32 s40, %d\nL_spin_d2:\ns_sleep 4\nbuffer_load_dword v244, v%d, s[%d:%d], 0 offen sc1\ns_waitcnt vmcnt(0)' % (opt.spin, vDA, S_D, S_D + 3))
    sp('v_readlane_b32 s38, v244, 0\nv_readlane_b32 s39, v244, 1\ns_and_b32 s38, s38, 0xffff\ns_lshr_b32 s39, s39, 16\ns_min_u32 s38, s38, s39\ns_cmp_ge_u32 s38, 4\ns_cbranch_scc1 L_back_d')
    sp('s_sub_u32 s40, s40, 1\ns_cmp_lg_u32 s40, 0\ns_cbranch_scc1 L_spin_d2\ns_branch L_back_d')
    return pro, mx, p2, lp, pe

def max_finish(b, T):
    for qs in range(5): b('v_mov_b32 v%d, v%d' % (T + 2 * qs + 1, T + 2 * qs))
    for qs in range(5): b('v_permlane16_swap_b32 v%d, v%d' % (T + 2 * qs, T + 2 * qs + 1))
    for qs in range(5): b('v_max_f32 v%d, v%d, v%d' % (T + 2 * qs, T + 2 * qs, T + 2 * qs + 1))
    for qs in range(5): b('v_mov_b32 v%d, v%d' % (T + 2 * qs + 1, T + 2 * qs))
    for qs in range(5): b('v_permlane32_swap_b32 v%d, v%d' % (T + 2 * qs, T + 2 * qs + 1))
    for qs in range(5): b('v_max_f32 v%d, v%d, v%d' % (T + 2 * qs, T + 2 * qs, T + 2 * qs + 1))
    for qs in range(5):
        for i in range(4): b('v_sub_f32 v%d, 0, v%d' % (vN + 4 * qs + i, T + 2 * qs))

def poll_test(reg, mask): return ['v_cmp_ne_u32 vcc, 0, v%d' % reg, 's_and_b32 s38, vcc_lo, s%d' % mask, 's_cmp_lg_u32 s38, s%d' % mask]
def spin_block(name, addr, mask):
    sp = Block('spin_' + name)
    sp('L_spin_%s:\ns_mov_b32 s40, %d\nL_spin_%s2:\ns_sleep 1\nbuffer_load_dword v244, v%d, s[%d:%d], 0 offen sc1\ns_waitcnt vmcnt(0)' % (name, opt.spin, name, addr, S_F, S_F + 3))
    sp.extend(poll_test(244, mask))
    sp('s_cbranch_scc0 L_back_%s\ns_sub_u32 s40, s40, 1\ns_cmp_lg_u32 s40, 0\ns_cbranch_scc1 L_spin_%s2\ns_branch L_back_%s' % (name, name, name))
    return sp

def k1_tail():
    t1 = Block('tail1'); t2 = Block('tail2'); L = vLANE
    t1.extend([x for x, _, _ in sm_chain(1)[SPLIT[0]:]])
    t1.extend(ones_mfmas(1))
    G = Gaps(pv_mfmas(1), 8)
    for f in range(11, 16): G.put(5 * (f - 11) + 4, *vread(f, 3))
    R = vN + 5
    rc = ['v_accvgpr_read_b32 v%d, a%d' % (R + qs, aL + 4 * qs) for qs in range(5)]
    rc += ['v_add_f32 v%d, v%d, v%d' % (R + 5, R, R + 1), 'v_add_f32 v%d, v%d, v%d' % (R + 6, R + 2, R + 3), 'v_add_f32 v%d, v%d, v%d' % (R + 5, R + 5, R + 4), 'v_add_f32 v%d, v%d, v%d' % (R + 5, R + 5, R + 6)]
    if opt.fallback:
        rc += ['v_cmp_ngt_f32 vcc, s%d, v%d' % (sTH, R + 5), 's_lshl_b32 s39, s%d, 2' % sW, 's_add_u32 s39, s39, %d' % BADB, 'v_mov_b32 v%d, s39' % (R + 6),
               's_cmp_lg_u64 vcc, 0', 's_cselect_b32 s38, 1, 0', 'v_mov_b32 v%d, s38' % (R + 5), I('ds_write_b32 v%d, v%d' % (R + 6, R + 5), 'bad'), 'v_mov_b32 v%d, %d' % (R + 6, BADB)]
    rc += ['v_rcp_f32 v%d, v%d' % (vN + i, R + i) for i in range(5)]
    G.spread2(rc, 2, 11)
    if opt.fallback:
        G.put(12, I('@waitlgkm bad'), I('s_barrier'), I('ds_read_b128 %s, v%d' % (vr(R + 7, 4), R + 6)))
        G.put(16, I('v_or_b32 v%d, v%d, v%d' % (R + 5, R + 7, R + 8)), I('v_or3_b32 v%d, v%d, v%d, v%d' % (R + 5, R + 5, R + 9, R + 10)))
        G.put(17, I('v_readfirstlane_b32 s38, v%d' % (R + 5)))
        G.put(18, I('s_cmp_lg_u32 s%d, 0' % sEX), I('s_cselect_b32 s38, 0, s38'), I('s_cmp_lg_u32 s38, 0'), I('s_cbranch_scc1 L_fallback'))
    def out(kl):
        Lst = []
        for qs in range(5):
            idx = 5 * kl + qs
            d = BS[0][idx] if kl < 2 else hole(idx % 10); e = hole(10 + idx % 5)
            src = [aO(2 * kl, qs) + i for i in range(4)] + [aO(2 * kl + 1, qs) + i for i in range(4)]
            tmp = [d + i for i in range(4)] + [e + i for i in range(4)]
            Lst += ['v_accvgpr_read_b32 v%d, a%d' % (tmp[i], src[i]) for i in range(8)]
            if kl and opt.pk2: Lst += ['v_pk_mul_f32 %s, %s, %s' % (vr(tmp[i], 2), vr(tmp[i], 2), vr(246 + 2 * qs, 2)) for i in range(0, 8, 2)]
            else: Lst += ['v_mul_f32 v%d, v%d, v%d' % (tmp[i], vN + qs, tmp[i]) for i in range(8)]
            Lst += ['v_cvt_pk_bf16_f32 v%d, v%d, v%d' % (d + i, tmp[2 * i], tmp[2 * i + 1]) for i in range(4)]
            Lst += [I('buffer_store_dwordx4 %s, v%d, s[%d:%d], s%d offen offset:%d%s' % (vr(d, 4), vOL + qs // 4, S_O, S_O + 3, sOK + kl, 1024 * (qs % 4), opt.o_st_pol), 'O')]
            if kl >= 2: Lst += [I('ds_write_b128 v%d, %s offset:%d' % (vXW, vr(d, 4), 1024 * (idx - 10)))]
        return Lst
    G.spread2(out(0), 19, 39)
    t1.extend(G.emit(-1, 18)); t2.extend(G.emit(19, 39))
    if opt.pk2: t2.extend(['v_mov_b32 v%d, v%d' % (246 + i, vN + i // 2) for i in range(10)])
    for kl in range(1, 4): t2.extend(out(kl))
    t2('''v_lshrrev_b32 v1, 4, v{L}
          v_bfe_u32 v4, v{L}, 2, 2
          v_lshl_add_u32 v1, v1, 2, v4
          v_and_b32 v4, 3, v{L}
          v_lshlrev_b32 v4, 3, v4
          v_lshl_add_u32 v4, v1, 8, v4
          s_lshr_b32 s38, s{w}, 1
          s_lshl_b32 s39, s38, 2
          s_add_u32 s39, s39, s{KQ}
          s_mul_i32 s38, s38, {x}
          s_add_u32 s38, s38, 131072
          v_add_u32 v4, s38, v4
          v_and_b32 v1, 7, v1
          v_xor_b32 v1, s39, v1'''.format(L=L, w=sW, KQ=sKQ, x=(16384 - 131072) & 0xffffffff))
    for n in range(8): t2('v_xor_b32 v5, %d, v1\nv_lshl_add_u32 v%d, v5, 5, v4' % (n, vRA[n]))
    t2('v_mov_b32 v245, 1')
    stamp(t2)
    bb = []; frs = []
    for c in range(8):
        for kp in range(2):
            order = (4, 5, 6, 7, 0, 1, 2, 3) if (c, kp) == (7, 1) else range(8)
            for n in order:
                fi = len(frs); frs.append((c, kp, n))
                for f in range(5):
                    a = 4 * (5 * n + f)
                    bb.append(I('%s %s, %s, %s, %s' % (MF, ar(a, 4), vr(vF + 4 * (fi % NB), 4), vr(BS[c % 3][5 * kp + f], 4), '0' if (c, kp) == (0, 0) else ar(a, 4))))
    G = Gaps(bb, 8)
    bars = {0: 'wo0,wo1,wo2', 2: '', 3: 'wo3,wo4', 5: 'wo5,wo6', 7: 'wo7'}
    base = [None, None, WOB[2], WOB[3], WOB[4], WOB[0], WOB[1], WOB[2]]
    for c, tg in bars.items():
        G.put(80 * c - 14 if c else -1, *([I('@waitlgkm *')] + ([I('@waitvm ' + tg)] if tg else []) + [I('s_barrier')]))
    for fi, (c, kp, n) in enumerate(frs):
        g = max(5 * (fi - 3) - 1, -1)
        if c in bars and c: g = max(g, 80 * c - 13)
        r = vF + 4 * (fi % NB)
        G.put(g, I('ds_read_b64_tr_b16 %s, v%d offset:%d' % (vr(r, 2), vRA[n], kp * 8192), 'wx'), I('ds_read_b64_tr_b16 %s, v%d offset:%d' % (vr(r + 2, 2), vRA[n], kp * 8192 + 4096), 'w%d' % fi))
        if kp == 1 and c < 7:
            dl = 's%d' % (sD01 if c == 0 else sD12) if c < 2 else '0x%x' % ((base[c + 1] - base[c]) & 0xffffffff)
            G.put(g + 1, I('v_add_u32 v%d, %s, v%d' % (vRA[n], dl, vRA[n])))
        if fi % 2 == 0 and fi: G.put(5 * fi - 1, I('@waitlgkm w%d' % (fi + 1)))
    for i in range(10): G.put(i // 2 + (i >= 8), I('ds_read_b128 %s, v%d offset:%d' % (vr(BS[1][i], 4), vXR, 1024 * i), 'xr'))
    G.put(opt.flagpos, I('@waitvm O'), I('buffer_store_dword v245, v%d, s[%d:%d], 0 offen sc1' % (vFA, S_F, S_F + 3)))
    G.put(13, I('@waitlgkm xr'), I('s_barrier'))
    flat = lambda d: [x for g in d for x in g]
    def oload(c):
        return [I('buffer_load_dwordx4 %s, v%d, s[%d:%d], s%d offen offset:%d%s' % (vr(BS[c % 3][5 * kp + f], 4), vOL + 2 * kp + f // 4, S_OR, S_OR + 3, sORO + c, 1024 * (f % 4), opt.o_ld_pol)) for kp in range(2) for f in range(5)]
    G.spread2(flat(dma_wo(3) + dma_wo(4)), 15, 62)
    cks = [None, opt.chkpos, opt.chk2, opt.chk3]
    for p, pos in ((1, opt.pollpos), (2, opt.chk2 - opt.plead), (3, opt.chk3 - opt.plead)):
        G.put(pos, I('buffer_load_dword v244, v%d, s[%d:%d], 0 offen sc1' % (vPA, S_F, S_F + 3)))
        G.put(cks[p], *[I(x) for x in poll_test(244, MK1[p]) + ['s_cbranch_scc1 L_spin_o%d' % p]])
    ck = opt.chkpos
    def even(lst, lo, hi):
        mem = [x for x in lst if x.cls in ('dma', 'vld')]; k = 0; pend = []
        for x in lst:
            if x.cls in ('dma', 'vld'):
                g = lo + (k * (hi - lo)) // max(len(mem) - 1, 1); k += 1
                for j, y in enumerate(pend): G.put(g - len(pend) + j, y)
                G.put(g, x); pend = []
            else: pend.append(x)
    G.spread2(oload(2), ck + 1, ck + 8)
    c2, c3 = opt.chk2, opt.chk3
    even(oload(3), ck + 14, c2 - 42); even(flat(dma_wo(5)), max(c2 - 38, 150), c2 - 3)
    even(oload(4), c2 + 1, c2 + 40); even(flat(dma_wo(6)), c2 + 45, c3 - 48)
    even(oload(5), c3 - 44, c3 - 3); even(oload(6), c3 + 1, c3 + 42)
    even(flat(dma_wo(7)), c3 + 47, c3 + 80); even(oload(7), max(c3 + 84, 401), c3 + 125)
    for i in range(20): G.put(min(606 + i + 3, 639) if i < 15 else 639, I('ds_write_b128 v%d, %s offset:%d' % (vYW, ar(80 + 4 * i, 4), 1024 * i)))
    if opt.tstamps:
        for g in (opt.flagpos + 1, 79, opt.chkpos - 1, opt.chkpos + 1, 159, 164, opt.chk2 - 1, opt.chk2 + 1, 239, opt.chk3 - 1, opt.chk3 + 1, 399, 479, 559): G.put(g, *stamp_ins())
    print('oproj est cycles', G.est_cycles(16), file=sys.stderr)
    t2.extend(G.emit(-1, ck))
    t2b = Block('tail2b'); t2b('L_back_o1:'); t2b.extend(G.emit(ck + 1, opt.chk2))
    t2c = Block('tail2c'); t2c('L_back_o2:'); t2c.extend(G.emit(opt.chk2 + 1, opt.chk3))
    t3 = Block('tail3'); t3('L_back_o3:')
    t3.extend(G.emit(opt.chk3 + 1, 639))
    stamp(t3)
    t3('@waitlgkm *\ns_barrier')
    RG = BS[0] + BS[1]
    order = [5 * nl + f for nl in (1, 2, 3, 0) for f in range(5)]
    for i in order: t3('ds_read_b128 %s, v%d offset:%d' % (vr(RG[i], 4), vYR, 1024 * i))
    for k, i in enumerate(order):
        tm = hole(k % 10)
        for e in range(4): t3('v_accvgpr_read_b32 v%d, a%d' % (tm + e, 4 * i + e))
        for e in range(4): t3('v_add_f32 v%d, v%d, v%d' % (RG[i] + e, RG[i] + e, tm + e))
        nl, f = divmod(i, 5)
        if nl and not opt.pbf: t3('buffer_store_dwordx4 %s, v%d, s[%d:%d], s%d offen offset:%d%s' % (vr(RG[i], 4), vOL + f // 4, S_P, S_P + 3, sPW + nl - 1, 1024 * (f % 4), opt.p_st_pol), 'P')
        if nl and opt.pbf:
            d = RG[5 * nl + f // 2 * 2] + 2 * (f % 2)
            t3('v_cvt_pk_bf16_f32 v%d, v%d, v%d\nv_cvt_pk_bf16_f32 v%d, v%d, v%d' % (d, RG[i], RG[i] + 1, d + 1, RG[i] + 2, RG[i] + 3))
            if f % 2 or f == 4: t3('buffer_store_dwordx4 %s, v%d, s[%d:%d], s%d offen offset:%d%s' % (vr(RG[5 * nl + f // 2 * 2], 4), vOL, S_P, S_P + 3, sPW + nl - 1, 1024 * (f // 2), opt.p_st_pol), 'P')
    t3('@waitvm P\nbuffer_store_dword v245, v%d, s[%d:%d], 0 offen sc1' % (vFA + 1, S_F, S_F + 3))
    stamp(t3)
    t3('buffer_load_dword v244, v%d, s[%d:%d], 0 offen sc1' % (vPA + 1, S_F, S_F + 3))
    t3.extend(poll_test(244, sMK2) + ['s_cbranch_scc1 L_spin_p'])
    t4 = Block('tail4'); t4('L_back_p:')
    stamp(t4)
    for f in range(0, 5, 2 if opt.pbf else 1):
        for j in (1, 2, 3):
            if opt.pbf: t4('buffer_load_dwordx4 %s, v%d, s[%d:%d], s%d offen offset:%d%s' % (vr(RG[5 * j + f], 4), vOL, S_P, S_P + 3, sPR + j - 1, 1024 * (f // 2), opt.p_ld_pol))
            else: t4('buffer_load_dwordx4 %s, v%d, s[%d:%d], s%d offen offset:%d%s' % (vr(RG[5 * j + f], 4), vOL + f // 4, S_P, S_P + 3, sPR + j - 1, 1024 * (f % 4), opt.p_ld_pol))
    if opt.pbf: t4('s_mov_b32 s39, 0xffff0000')
    for f in range(5):
        a, b1, b2, b3 = RG[f], RG[5 + f], RG[10 + f], RG[15 + f]
        if opt.pbf:
            for j in (1, 2, 3):
                src = RG[5 * j + f // 2 * 2] + 2 * (f % 2); tm = hole(j)
                t4('v_lshlrev_b32 v%d, 16, v%d\nv_and_b32 v%d, s39, v%d\nv_lshlrev_b32 v%d, 16, v%d\nv_and_b32 v%d, s39, v%d' % (tm, src, tm + 1, src, tm + 2, src + 1, tm + 3, src + 1))
            b1, b2, b3 = hole(1), hole(2), hole(3)
        for e in range(4): t4('v_add_f32 v%d, v%d, v%d\nv_add_f32 v%d, v%d, v%d' % (a + e, a + e, b1 + e, b2 + e, b2 + e, b3 + e))
        for e in range(4): t4('v_add_f32 v%d, v%d, v%d' % (a + e, a + e, b2 + e))
        t4('v_cvt_pk_bf16_f32 v%d, v%d, v%d\nv_cvt_pk_bf16_f32 v%d, v%d, v%d\ns_mov_b32 s38, %d' % (a, a, a + 1, a + 1, a + 2, a + 3, 32768 * f))
        t4('buffer_store_dwordx2 %s, v%d, s[%d:%d], s38 offen%s' % (vr(a, 2), vST, S_OUT, S_OUT + 3, opt.out_pol))
    if opt.stamps: t4('s_waitcnt vmcnt(0)')
    stamp(t4)
    t4('s_endpgm')
    return [t1, t2, t2b, t2c, t3, t4] + [spin_block('o%d' % p, vPA, MK1[p]) for p in (1, 2, 3)] + [spin_block('p', vPA + 1, sMK2)]

def k1_fallback():
    b = Block('fb'); T = vT
    b('L_fallback:')
    b('s_waitcnt vmcnt(0) lgkmcnt(0)\ns_nop 15\ns_barrier')
    b('v_and_b32 v1, 15, v%d\nv_lshrrev_b32 v2, 4, v%d\nv_lshlrev_b32 v2, 4, v2\nv_lshl_add_u32 v%d, v1, 8, v2' % (vLANE, vLANE, T + 10))
    for qs in range(5): b('v_mov_b32 v%d, 0xff800000' % (T + 2 * qs))
    b('s_mov_b32 s39, 0')
    lp = Block('fbl'); lp('L_fb_loop:')
    for k in range(4): lp('buffer_load_dwordx4 %s, v%d, s[%d:%d], s39 offen offset:%d' % (vr(vF + 4 * k, 4), T + 10, S_K, S_K + 3, 64 * k))
    lp('s_waitcnt vmcnt(0)')
    lp.extend(qk_mfmas(True)[:20])
    lp('s_nop 15')
    for qs in range(5):
        s = rS(0, qs); t = T + 2 * qs
        lp('v_max3_f32 v%d, v%d, v%d, v%d\nv_max3_f32 v%d, v%d, v%d, v%d' % (t, t, s, s + 1, t, t, s + 2, s + 3))
    lp('s_add_u32 s39, s39, 4096\ns_cmp_lt_u32 s39, 262144\ns_cbranch_scc1 L_fb_loop')
    e = Block('fbe')
    max_finish(e, T)
    e.extend(zero_acc())
    e('s_and_b32 s40, s%d, 1\ns_lshl_b32 s%d, s40, 12\ns_mov_b32 s%d, s%d' % (sW, sKO, sVO, sKO))
    for g in dma_kv('K', 0) + dma_kv('K', 1) + dma_kv('K', 2) + dma_kv('K', 3) + dma_kv('V', 0) + dma_kv('V', 1) + dma_kv('V', 2): e.extend(g)
    e('s_mov_b32 s%d, 1\ns_waitcnt vmcnt(0)\ns_barrier' % sEX)
    G = Gaps(qk0_mfmas(), 8)
    for f in range(8): G.put(max(5 * (f - 3) - 1, -1), *kread0(f))
    e.extend(G.emit())
    e('s_nop 7\ns_branch L_start')
    return b, lp, e

def kernel_text(kname, blocks, traces, vgpr, accum, sgpr=102):
    d = {b.name: b for b in blocks}
    assert len(d) == len(blocks)
    place_waits(d, traces)
    n = place_nops(d, traces)
    print(kname[:12], 'nop states inserted', n, 'instructions', {b.name: len(b.ins) for b in blocks}, file=sys.stderr)
    t = '.text\n.globl %s\n.p2align 8\n.type %s,@function\n%s:\n' % (kname, kname, kname) + render(blocks)
    t += '.section .rodata,"a"\n.p2align 6\n.amdhsa_kernel %s\n' % kname
    t += '  .amdhsa_next_free_vgpr %d\n  .amdhsa_next_free_sgpr %d\n  .amdhsa_accum_offset %d\n' % (vgpr, sgpr, accum)
    t += '  .amdhsa_group_segment_fixed_size 0\n  .amdhsa_kernarg_size 104\n  .amdhsa_user_sgpr_count 2\n'
    t += '  .amdhsa_user_sgpr_kernarg_segment_ptr 1\n  .amdhsa_system_sgpr_workgroup_id_x 1\n.end_amdhsa_kernel\n'
    return t

def gen_k1(kname):
    setup = k1_setup(); qp = k1_qproj()
    pro, mx, p2, lp, pe = k1_attention(); tl = k1_tail()
    end = Block('end'); end('L_k1_end:\ns_endpgm')
    blocks = [setup, qp, pro, mx, p2] + lp + pe[:3] + tl + [pe[3]]
    loop = ['per0', 'per1', 'per2', 'per3'] * 3 + ['pe0', 'pe1', 'pe2', 'tail1']
    head = ['setup', 'qproj', 'pro', 'pro_max', 'pro2']
    traces = [head + loop + ['tail2', 'tail2b', 'tail2c', 'tail3', 'tail4'],
              head + loop[:-2] + ['spin_d', 'spin_d', 'pe2', 'tail1', 'tail2', 'spin_o1', 'spin_o1', 'tail2b', 'spin_o2', 'tail2c', 'spin_o3', 'tail3', 'spin_p', 'spin_p', 'tail4']]
    if opt.fallback:
        fb, fbl, fbe = k1_fallback(); blocks += [fb, fbl, fbe]
        traces.append(head + loop + ['fb', 'fbl', 'fbl', 'fbe', 'pro', 'pro2'] + loop + ['tail2', 'tail2b', 'tail2c', 'tail3', 'tail4'])
    blocks.append(end)
    return kernel_text(kname, blocks, traces, 512, 256)

def gen_diag(kname):
    a, b_, gain = [int(x, 0) for x in opt.diag.split()]
    b = Block('dg')
    b('''s_cmp_ge_u32 s2, 1
         s_cbranch_scc1 L_dg_end
         s_load_dwordx2 s[4:5], s[0:1], 96
         s_waitcnt lgkmcnt(0)
         s_add_u32 s4, s4, 0x3000000
         s_addc_u32 s5, s5, 0
         s_load_dword s6, s[4:5], %d
         s_load_dword s7, s[4:5], %d
         s_memrealtime s[8:9]
         s_waitcnt lgkmcnt(0)
         s_sub_u32 s6, s7, s6
         s_min_u32 s6, s6, 20000
         s_mul_i32 s6, s6, %d
         L_dg:
         s_memrealtime s[10:11]
         s_waitcnt lgkmcnt(0)
         s_sub_u32 s10, s10, s8
         s_cmp_lt_u32 s10, s6
         s_cbranch_scc1 L_dg
         L_dg_end:
         s_endpgm''' % (a, b_, gain))
    return kernel_text(kname, [b], [['dg']], 8, 8, 16)

def main(out, only=None):
    t = open('cdna_kernels/%s.s.ref' % NAME).read().split('; Override launch')[0]
    k1 = NAME + '_kernel'
    if opt.diag.strip():
        t += '; @launch kernel=%s grid=(256,1,1) block=(256,1,1) lds=163840\n; @launch kernel=diag_kernel grid=(1,1,1) block=(64,1,1) lds=0\n' % k1
    else: t += '; @launch grid=(256,1,1) block=(256,1,1) lds=163840\n'
    t += '.amdgcn_target "amdgcn-amd-amdhsa--gfx950"\n'
    t += gen_k1(k1)
    if opt.diag.strip(): t += gen_diag('diag_kernel')
    open(out, 'w').write(t)

if __name__ == '__main__':
    out = sys.argv[1]; only = None
    for a in sys.argv[2:]:
        k, v = a.split('=')
        if k == 'only': only = int(v)
        elif isinstance(getattr(opt, k), bool): setattr(opt, k, v == '1')
        elif isinstance(getattr(opt, k), int): setattr(opt, k, int(v))
        else: setattr(opt, k, (' ' + v.replace('+', ' ')) if v else '')
    main(out, only)
```

```python
import sys, math, struct
from asmlib import *

NAME = "concat_heads__gqa_block_cached__gqa_block_cached__near_ridge"
def f32bits(x): return struct.unpack('<I', struct.pack('<f', x))[0]
MF = 'v_mfma_f32_16x16x32_bf16'
def vr(b, n=1, k='v'): return '%s%d' % (k, b) if n == 1 else '%s[%d:%d]' % (k, b, b + n - 1)
def ar(b, n=1): return vr(b, n, 'a')

class Opt:
    kv_pol = ' nt'; w_pol = ''; x_pol = ''; o_st_pol = ' sc1'; o_ld_pol = ' sc1'; wo_pol = ''; out_pol = ''; p_st_pol = ' sc1'; p_ld_pol = ' sc1'
    stamps = False; fallback = True; ones = True; nokv = False; nox = False; noxq = False; qstamps = False
    dsp = 10; kvend = 13; burst = ' 9:2 12:2'; k2stag = 1; qevery = 4; warm = 336; qf = ' '; pk = False; upfront = 3; diag = ' '; spin = 32768; sb = 1; pstamps = False; tstamps = False; thre = 0; thro = 4; thrn = 2; ptouch = False; touchc = 15; flagpos = 40; pollpos = 90; chkpos = 125; chk2 = 235; chk3 = 355; plead = 40; pbf = True; pk2 = True
opt = Opt()

S_K, S_V, S_X, S_WQ, S_O = 4, 8, 12, 16, 20
sW, sW4, sKO, sVO, sCNT, sEX, sC0, sB, sBR, sH1, sTH, sM0B = 24, 25, 26, 27, 28, 29, 30, 31, 32, 33, 34, 35
sSC = 36
S_TS, sTSA, sTSN = 52, 56, 58
sWO, sXO = 76, 92
STASH = {'K2': 32, 'V2': 224, 'K3': 240}
vSW = 2
vKA, vVA, vKD, vVD, vLANE, vL = 8, 12, 20, 24, 26, 59
vF = 32; NB = 4
vWA, vXA, vWD, vXD = 48, 52, 54, 58
vACC = 64
def rQ(k, qs): return vACC + 8 * (5 * k + qs)
def hole(i): return vACC + 8 * i + 4
def rS(kt, qs): return hole(5 * kt + qs)
def rP(par, qs): return hole(10 + 5 * par + qs)
vN = 224
vT = 48; vT2 = 244
def aO(dt, qs): return 4 * (5 * dt + qs)
aL, aONE, aFA, aFB = 160, 180, 184, 200
KS0, VS0 = 0, 65536
WBUF = [139264, 32768, 49152]
XBUF = [98304, 118784]
sJP, sKQ = 3, 59
S_F, S_D, S_P, S_OUT, S_WO, S_OR = 44, 48, 64, 68, 12, 16
sOK, sWOO, sORO, sPW, sPR, sD01, sD12, sMK1, sMK2 = 76, 80, 88, 96, 99, 30, 33, 42, 43
MK1 = [None, 42, 60, 61]
POFF, FOFF, TSOFF = 0x1500000, 0x2a00000, 0x3000000
vOD, vOL, vXW, vXR, vYW, vYR, vST, vFA, vPA, vDA = 54, 58, 62, 63, 48, 49, 50, 51, 28, 30
vRA = [8, 9, 10, 11, 20, 21, 22, 23]
WOB = [131072, 0, 65536, 32768, 98304]
BADB = 98304 + 10240
BS = [[vACC + 8 * i for i in range(10)], [vACC + 8 * i for i in range(10, 20)], [hole(i) for i in range(10)]]
SPIN = 1 << 15

def stamp_ins():
    if not opt.stamps: return []
    return [I('s_memrealtime s[%d:%d]' % (sTSA, sTSA + 1)), I('s_memtime s[62:63]'), I('s_waitcnt lgkmcnt(0)'), I('v_mov_b32 v5, s%d' % sTSA), I('v_mov_b32 v6, s%d' % sTSN), I('v_mov_b32 v7, s62'),
            I('buffer_store_dword v5, v6, s[%d:%d], 0 offen' % (S_TS, S_TS + 3), 'stamp'), I('buffer_store_dword v7, v6, s[%d:%d], 0 offen offset:256' % (S_TS, S_TS + 3), 'stamp'), I('s_add_u32 s%d, s%d, 4' % (sTSN, sTSN))]
def stamp(b): b.extend(stamp_ins())
def stamp_setup(b, ws, w, off=TSOFF, first=False):
    if not opt.stamps: return
    b('''s_lshl_b32 s39, s2, 9
         s_add_u32 s39, s39, {off}
         s_add_u32 s{T}, s{ws}, s39
         s_addc_u32 s{T1}, s{ws1}, 0
         s_cmp_eq_u32 s{w}, 0
         s_cselect_b32 s{T2}, 512, 0
         s_mov_b32 s{T3}, 0x20000
         s_mov_b32 s{N}, 0'''.format(T=S_TS, T1=S_TS + 1, T2=S_TS + 2, T3=S_TS + 3, w=w, ws=ws, ws1=ws + 1, N=sTSN, off=off))
    if first:
        b('v_mov_b32 v5, s100\nv_mov_b32 v6, 0\nv_mov_b32 v7, s42')
        b('buffer_store_dword v5, v6, s[%d:%d], 0 offen\nbuffer_store_dword v7, v6, s[%d:%d], 0 offen offset:256\ns_mov_b32 s%d, 4' % (S_TS, S_TS + 3, S_TS, S_TS + 3, sTSN))
    stamp(b)

def srd(b, d, lo, off, num):
    b('s_add_u32 s%d, s%d, %s\ns_addc_u32 s%d, s%d, 0\n%s\ns_mov_b32 s%d, 0x20000' % (d, lo, off, d + 1, lo + 1,
      ('s_mov_b32 s%d, %d' % (d + 2, num)) if isinstance(num, int) else num % (d + 2), d + 3))

def off_calc(X):
    return ['s_add_u32 s38, s%d, %d' % (sC0, X), 's_and_b32 s38, s38, 7', 's_lshl_b32 s%d, s38, 19' % (sWO + 2 * X),
            's_add_u32 s%d, s%d, 262144' % (sWO + 2 * X + 1, sWO + 2 * X)]
def dma_wq(c):
    G = [[I('s_add_u32 m0, s%d, %d' % (sW4, WBUF[c % 3]))]]
    for n in range(4):
        G.append([I('buffer_load_dwordx4 v%d, s[%d:%d], s%d offen offset:%d%s lds' % (vWD + n, S_WQ, S_WQ + 3, sWO + c, 1024 * n, opt.w_pol), 'wq%d' % c)])
    return G
def dma_x(X):
    G = [[I('s_lshr_b32 s39, s%d, 12' % (sWO + 2 * X))], [I('s_add_u32 m0, s%d, %d' % (sW4, XBUF[X % 2]))]]
    for n in range(4):
        G.append([I('buffer_load_dwordx4 v%d, s[%d:%d], s%d offen offset:%d%s lds' % (vXD + n, S_X, S_X + 3, 39, 1024 * n, opt.x_pol), 'x%d' % X)])
    G.append([I('s_add_u32 m0, s%d, %d' % (sM0B, XBUF[X % 2] + 16384))])
    G.append([I('buffer_load_dwordx4 v%d, s[%d:%d], s%d offen%s lds' % (vXD + 4, S_X, S_X + 3, 39, opt.x_pol), 'x%d' % X)])
    return G
def stash_load(which, slot):
    K = which == 'K'; srd_, so = (S_K, sKO) if K else (S_V, sVO); r = STASH['%s%d' % (which, slot)]
    G = [[I('buffer_load_dwordx4 %s, v%d, s[%d:%d], s%d offen offset:%d%s' % (vr(r + 4 * m, 4), vKD + m if K else vVD + m % 2, srd_, srd_ + 3, so, 1024 * m, opt.kv_pol), 'st')] for m in range(4)]
    G[3].append(I('s_add_u32 s%d, s%d, 8192' % (so, so)))
    return G
def stash_flush(which, slot):
    r = STASH['%s%d' % (which, slot)]; base = (KS0 if which == 'K' else VS0) + 16384 * slot
    return [I('ds_write_b128 v%d, %s offset:%d' % (vSW + base // 65536, vr(r + 4 * m, 4), base % 65536 + 1024 * m)) for m in range(4)]
def dma_kv(which, slot, m0each=False):
    G = []; K = which == 'K'
    srd_, so = (S_K, sKO) if K else (S_V, sVO)
    for m in range(4):
        g = []
        if m == 0 or m0each: g.append(I('s_add_u32 m0, s%d, %d' % (sW4, (KS0 if K else VS0) + 16384 * slot)))
        g.append(I('buffer_load_dwordx4 v%d, s[%d:%d], s%d offen offset:%d%s lds' % (vKD + m if K else vVD + m % 2, srd_, srd_ + 3, so, 1024 * m, opt.kv_pol), '%s%d' % (which, slot)))
        if m == 3: g.append(I('s_add_u32 s%d, s%d, 8192' % (so, so)))
        G.append(g)
    return G

def dma_wo(c):
    buf = WOB[c % 5]; G = []
    for m in range(8):
        g = []
        if m == 4: g.append(I('s_add_u32 s2, s%d, 16384' % (sWOO + c)))
        if m % 4 == 0: g.append(I('s_add_u32 m0, s%d, %d' % (sM0B, buf + 4096 * (m // 4))))
        g.append(I('buffer_load_dwordx4 v%d, s[%d:%d], s%d offen offset:%d%s lds' % (vOD + m % 4, S_WO, S_WO + 3, sWOO + c if m < 4 else 2, 1024 * (m % 4), opt.wo_pol), 'wo%d' % c))
        G.append(g)
    return G

def tail_setup_a(b):
    b('s_mov_b32 s72, s92\ns_mov_b32 s73, s93')
    b('''s_and_b32 s98, s{w}, 1
         s_lshr_b32 s99, s{w}, 1
         s_lshl_b32 s96, s{B}, 1
         s_add_u32 s96, s96, s98
         s_mul_i32 s96, s96, 163840
         s_lshl_b32 s97, s{BR}, 2
         s_add_u32 s97, s97, s{JP}
         s_lshl_b32 s97, s97, 1
         s_add_u32 s97, s97, s99
         s_lshl_b32 s97, s97, 2
         s_add_u32 s97, s97, s{KQ}
         s_lshl_b32 s97, s97, 5
         s_add_u32 s96, s96, s97'''.format(w=sW, B=sB, BR=sBR, JP=sJP, KQ=sKQ))
    srd(b, S_OUT, 94, 's96', 's_sub_u32 s%d, 2621440, s96')
    for p in (1, 2, 3): b('s_add_u32 s38, s%d, %d\ns_and_b32 s38, s38, 3\ns_lshl_b32 s38, s38, 2\ns_add_u32 s38, s38, s98\ns_lshl_b32 s%d, 5, s38' % (sJP, p, MK1[p]))
    b('s_lshl_b32 s38, 0x1111, s%d\ns_lshl_b32 s39, s%d, 2\ns_lshl_b32 s39, 15, s39\ns_andn2_b32 s%d, s38, s39' % (sW, sKQ, sMK2))
    b('s_lshl_b32 s38, s%d, 3\ns_add_u32 s38, s38, s%d\ns_lshl_b32 s38, s38, 2\ns_add_u32 s38, s38, s%d\ns_mul_i32 s38, s38, 327680\ns_mul_i32 s39, s%d, 5120\ns_add_u32 s38, s38, s39\ns_add_u32 s38, s38, 0x%x' % (sBR, sB, sJP, sW, POFF))
    srd(b, S_P, 74, 's38', 's_sub_u32 s%d, 327680, s39')
    for j in (1, 2, 3):
        b('s_xor_b32 s38, s%d, %d\ns_lshl_b32 s39, s38, 2\ns_add_u32 s39, s39, s%d\ns_mul_i32 s%d, s39, 20480' % (sKQ, j, sKQ, sPW + j - 1))
        b('s_lshl_b32 s39, s%d, 2\ns_add_u32 s39, s39, s38\ns_mul_i32 s%d, s39, 20480' % (sKQ, sPR + j - 1))

def wo_srd(b, S_WO=S_WO):
    b('s_lshl_b32 s38, s%d, 20\ns_lshl_b32 s39, s%d, 8\ns_add_u32 s38, s38, s39' % (sKQ, sJP))
    srd(b, S_WO, 72, 's38', 's_sub_u32 s%d, 4194304, s38')
def wo_touch(b):
    b('s_lshl_b32 s38, s%d, 2\ns_add_u32 s38, s38, s%d\ns_lshl_b32 s38, s38, 15\nv_lshrrev_b32 v4, 1, v%d\nv_and_b32 v5, 1, v%d\nv_lshlrev_b32 v5, 7, v5\nv_lshl_add_u32 v4, v4, 10, v5' % (sB, sW, vLANE, vLANE))
    b('buffer_load_dword v31, v4, s[%d:%d], s38 offen' % (S_WO, S_WO + 3))
def tail_setup_b(b):
    L = vLANE
    b('s_and_b32 s78, s%d, 1\ns_lshr_b32 s79, s%d, 1' % (sW, sW))
    b('''s_lshl_b32 s38, s{BR}, 3
         s_add_u32 s38, s38, s{B}
         s_lshl_b32 s38, s38, 2
         s_add_u32 s38, s38, s{KQ}
         s_mul_i32 s38, s38, 327680
         s_mul_i32 s39, s79, 20480
         s_mul_i32 s40, s78, 5120
         s_add_u32 s39, s39, s40
         s_add_u32 s38, s38, s39'''.format(B=sB, BR=sBR, KQ=sKQ))
    srd(b, S_OR, 74, 's38', 's_sub_u32 s%d, 327680, s39')
    b('s_lshl_b32 s40, s%d, 15\ns_lshl_b32 s%d, s%d, 13' % (sW, sM0B, sW))
    for c in range(8):
        b('s_lshl_b32 s38, s%d, 1\ns_add_u32 s38, s38, %d\ns_and_b32 s38, s38, 7\ns_mul_i32 s%d, s38, 40960\ns_lshl_b32 s38, s38, 17\ns_add_u32 s%d, s38, s40' % (sJP, c, sORO + c, sWOO + c))
    b('s_lshl_b32 s38, s79, 17\ns_lshl_b32 s39, s38, 1\ns_sub_u32 s%d, s39, 131072\ns_sub_u32 s%d, 65536, s38' % (sD01, sD12))
    b('v_lshrrev_b32 v4, 4, v%d\nv_and_b32 v5, 15, v%d' % (L, L))
    for m in range(4):
        b('v_add_u32 v6, %d, v4\nv_lshlrev_b32 v6, 1, v6\nv_xor_b32 v6, v6, v5\nv_lshlrev_b32 v6, 4, v6\nv_lshl_add_u32 v6, v4, 10, v6\nv_add_u32 v%d, %d, v6' % (4 * (m % 2), vOD + m, 3072 * m))
    b('v_lshlrev_b32 v%d, 4, v%d' % (vOL, L))
    for i, o in ((1, 4096), (2, 10240), (3, 14336)): b('v_add_u32 v%d, %d, v%d' % (vOL + i, o, vOL))
    b('v_lshlrev_b32 v5, 11, v5\nv_lshl_add_u32 v%d, v4, 3, v5' % vST)
    for (reg, wsel, step, lo, hi) in ((vXW, sW, 10240, 32768, 98304), (vXR, 41, 10240, 32768, 98304), (vYW, sW, 20480, 98304, 32768), (vYR, 41, 20480, 98304, 32768)):
        b('s_xor_b32 s41, s%d, 2\ns_mul_i32 s38, s%d, %d\ns_add_u32 s38, s38, %d\ns_cmp_eq_u32 s%d, 3\ns_cselect_b32 s38, %d, s38\nv_add_u32 v%d, s38, v%d' % (sW, wsel, step, lo, wsel, hi, reg, vOL))
    b('s_lshl_b32 s38, s%d, 2\ns_add_u32 s38, s38, s%d\ns_lshl_b32 s38, s38, 2\nv_readfirstlane_b32 s39, v%d\ns_add_u32 s38, s38, s39\nv_lshl_add_u32 v%d, v%d, 16, s38' % (sJP, sW, vPA, vFA, L))
    b('s_lshl_b32 s38, s%d, 2\ns_add_u32 s38, s38, s%d\ns_lshl_b32 s38, s38, 2\nv_readfirstlane_b32 s39, v%d\ns_add_u32 s38, s38, s39\nv_lshl_add_u32 v%d, v%d, 16, s38' % (sKQ, sW, vPA + 1, vFA + 1, L))
    for kl in range(4): b('s_lshl_b32 s38, s79, 1\ns_xor_b32 s38, s38, %d\ns_mul_i32 s%d, s38, 10240' % (kl, 38 if kl == 3 else sOK + kl))
    b('s_mov_b32 s%d, s38' % (sOK + 3))

def k1_setup():
    b = Block('setup'); L = vLANE; T = vT2
    b('s_cmp_ge_u32 s2, 256\ns_cbranch_scc1 L_k1_end')
    if opt.stamps: b('s_memrealtime s[100:101]\ns_memtime s[42:43]')
    if opt.warm: b('s_getpc_b64 s[96:97]')
    b('''s_and_b32 s38, s2, 7
         s_lshr_b32 s{BR}, s38, 2
         s_and_b32 s{KQ}, s38, 3
         s_lshr_b32 s39, s2, 3
         s_and_b32 s{B}, s39, 7
         s_lshr_b32 s{JP}, s39, 3
         s_lshl_b32 s38, s{KQ}, 3
         s_lshl_b32 s40, s{JP}, 1
         s_add_u32 s{H}, s38, s40
         s_add_u32 s{C}, s{B}, s40
         s_and_b32 s{C}, s{C}, 7
         s_mul_i32 s38, s{BR}, 40
         s_add_u32 s60, s0, s38
         s_addc_u32 s61, s1, 0
         s_load_dwordx8 s[64:71], s[60:61], 0
         s_load_dwordx4 s[72:75], s[0:1], 88
         s_load_dwordx2 s[92:93], s[60:61], 32
         s_load_dwordx2 s[94:95], s[0:1], 80
         v_lshrrev_b32 v1, 6, v0
         v_and_b32 v{L}, 63, v0
         v_readfirstlane_b32 s{W}, v1
         v_and_b32 v1, 31, v{L}
         v_lshrrev_b32 v2, 5, v{L}
         v_lshrrev_b32 v3, 4, v{L}
         v_and_b32 v4, 15, v{L}
         s_lshl_b32 s{W4}, s{W}, 12
         s_lshl_b32 s{M}, s{W}, 10'''.format(BR=sBR, B=sB, H=sH1, C=sC0, L=L, W=sW, W4=sW4, M=sM0B, KQ=sKQ, JP=sJP))
    b('s_lshl_b32 s39, s%d, 16' % sW)
    for n in range(4):
        b('''v_add_u32 v{a}, {n2}, v2
             v_and_b32 v{c}, 3, v{a}
             v_lshlrev_b32 v{c}, 2, v{c}
             v_xor_b32 v{c}, v{c}, v1
             v_lshlrev_b32 v{c}, 4, v{c}
             v_lshl_add_u32 v{c}, v{a}, 13, v{c}
             v_add_u32 v{c}, s39, v{c}
             v_subrev_u32 v{d}, {sub}, v{c}'''.format(a=T, c=T + 1, n2=2 * n, d=vWD + n, sub=1024 * n))
    b('s_lshl_b32 s39, s%d, 15\nv_lshrrev_b32 v%d, 3, v%d\nv_and_b32 v%d, 7, v%d\ns_lshl_b32 s38, s%d, 2' % (sW, T + 3, L, T + 4, L, sW))
    for n in range(4):
        b('''v_add_u32 v{a}, {n4}, v3
             v_and_b32 v{a}, 7, v{a}
             v_xor_b32 v{a}, v{a}, v{p}
             v_lshlrev_b32 v{a}, 4, v{a}
             v_lshl_add_u32 v{a}, v{r}, 10, v{a}
             v_add_u32 v{a}, {add}, v{a}
             v_add_u32 v{d}, s39, v{a}'''.format(a=T, n4=4 * n, p=T + 4, r=T + 3, add=7 * 1024 * n, d=vXD + n))
    b('''s_lshl_b32 s39, s{w}, 13
         s_add_u32 s39, s39, 131072
         v_add_u32 v{a}, s38, v3
         v_and_b32 v{a}, 7, v{a}
         v_xor_b32 v{a}, v{a}, v{p}
         v_lshlrev_b32 v{a}, 4, v{a}
         v_lshl_add_u32 v{a}, v{r}, 10, v{a}
         v_add_u32 v{d}, s39, v{a}'''.format(w=sW, a=T, p=T + 4, r=T + 3, d=vXD + 4))
    b('s_waitcnt lgkmcnt(0)')
    b('s_mul_i32 s39, s%d, 163840' % sB); srd(b, S_X, 64, 's39', 163840)
    b('s_lshl_b32 s39, s%d, 8' % sH1); srd(b, S_WQ, 70, 's39', 's_sub_u32 s%d, 4194304, s39')
    if opt.nox: b('s_mov_b32 s%d, 0' % (S_X + 2))
    if opt.noxq: b('s_mov_b32 s%d, 0' % (S_WQ + 2))
    b.extend(off_calc(0) + off_calc(1))
    for g in dma_wq(0) + dma_x(0) + (dma_wq(1) + dma_x(1) + dma_wq(2) if opt.upfront == 2 else []): b.extend(g)
    if opt.warm:
        n8 = (opt.warm + 7) // 8
        b('s_lshr_b32 s38, s2, 3\ns_and_b32 s38, s38, 7\ns_mul_i32 s38, s38, %d\nv_min_u32 v6, %d, v%d\nv_add_u32 v6, s38, v6\nv_lshlrev_b32 v6, 7, v6\nv_mov_b32 v7, s97' % (n8, n8 - 1, L))
        b('v_add_co_u32 v6, vcc, s96, v6\nv_addc_co_u32 v7, vcc, 0, v7, vcc\nglobal_load_dword v63, v[6:7], off')
    for X in range(2, 8): b.extend(off_calc(X))
    b('s_lshr_b32 s41, s%d, 1\ns_lshl_b32 s38, s%d, 5\ns_add_u32 s38, s38, s%d\ns_add_u32 s38, s38, s41\ns_lshl_b32 s39, s38, 18' % (sW, sB, sH1))
    srd(b, S_K, 66, 's39', 0 if opt.nokv else 262144); srd(b, S_V, 68, 's39', 0 if opt.nokv else 262144)
    b('s_lshl_b32 s39, s%d, 8\ns_add_u32 s38, s38, s39\ns_mul_i32 s39, s38, 40960\ns_and_b32 s40, s%d, 1\ns_mul_i32 s38, s40, 5120\ns_add_u32 s39, s39, s38' % (sBR, sW))
    srd(b, S_O, 74, 's39', 's_sub_u32 s%d, 40960, s38')
    b('s_lshl_b32 s%d, s40, 12\ns_mov_b32 s%d, s%d' % (sKO, sVO, sKO))
    stamp_setup(b, 74, sW, first=True)
    srd(b, S_F, 74, '0x%x' % FOFF, 16384); srd(b, S_D, 72, '0', 256)
    b('''s_and_b32 s38, s2, 7
         s_lshl_b32 s38, s38, 3
         s_add_u32 s38, s38, s{B}
         s_lshl_b32 s39, s{BR}, 3
         s_add_u32 s39, s39, s{B}
         s_lshl_b32 s39, s39, 2
         s_add_u32 s39, s39, s{JP}
         v_and_b32 v5, 1, v{L}
         v_mov_b32 v6, s38
         v_mov_b32 v7, s39
         v_cmp_eq_u32 vcc, 0, v5
         v_cndmask_b32 v6, v7, v6, vcc
         v_lshlrev_b32 v{DA}, 2, v6
         s_lshl_b32 s38, s38, 7
         s_lshl_b32 s39, s39, 7
         s_add_u32 s39, s39, 8192
         v_lshl_add_u32 v{PA}, v4, 2, s38
         v_lshl_add_u32 v{PB}, v4, 2, s39
         s_lshl_b32 s41, s{JP}, 4
         s_add_u32 s38, s38, s41
         s_lshl_b32 s41, s{KQ}, 4
         s_add_u32 s39, s39, s41
         v_mov_b32 v6, s38
         v_mov_b32 v7, s39
         v_cndmask_b32 v6, v7, v6, vcc
         v_lshrrev_b32 v7, 1, v0
         v_lshl_add_u32 v6, v7, 16, v6
         v_mov_b32 v{T}, 0
         v_mov_b32 v{T1}, 0
         v_mov_b32 v{T2}, 0
         v_mov_b32 v{T3}, 0'''.format(B=sB, BR=sBR, JP=sJP, KQ=sKQ, L=L, DA=vDA, PA=vPA, PB=vPA + 1, T=T, T1=T + 1, T2=T + 2, T3=T + 3))
    b('buffer_store_dwordx4 %s, v6, s[%d:%d], 0 offen sc1' % (vr(T, 4), S_F, S_F + 3), 'fz')
    tail_setup_a(b)
    if opt.ptouch:
        wo_srd(b, 92)
        b('v_mov_b32 v7, 0')
        for i, d in enumerate((S_K, S_V, S_O, S_P, S_OUT, 92)): b('buffer_load_dword v%d, v7, s[%d:%d], 0 offen%s' % (250 + i, d, d + 3, ' nt' if i < 2 else ''))
    b('s_lshr_b32 s41, s%d, 1' % sW)
    b('v_bfe_u32 v5, v%d, 2, 2\nv_and_b32 v6, 3, v%d' % (L, L))
    for m in range(4):
        b('v_add_u32 v%d, %d, v3\nv_xor_b32 v%d, v%d, v4\nv_lshlrev_b32 v%d, 4, v%d\nv_lshl_add_u32 v%d, v3, 8, v%d' % (T, 4 * m, T, T, T, T, vKD + m, T))
    for m in range(2):
        b('v_add_u32 v%d, %d, v3\nv_lshlrev_b32 v%d, 1, v%d\nv_xor_b32 v%d, v%d, v4\nv_lshlrev_b32 v%d, 4, v%d\nv_lshl_add_u32 v%d, v3, 8, v%d' % (T, 4 * m, T, T, T, T, T, T, vVD + m, T))
    b('s_lshl_b32 s41, s41, 13\nv_xor_b32 v%d, v3, v4\nv_lshlrev_b32 v%d, 8, v4\nv_add_u32 v%d, s41, v%d' % (T, T + 1, T + 1, T + 1))
    for k in range(4): b('v_xor_b32 v%d, %d, v%d\nv_lshl_add_u32 v%d, v%d, 4, v%d' % (T + 2, 4 * k, T, vKA + k, T + 2, T + 1))
    b('''v_lshl_add_u32 v{a}, v3, 2, v5
         v_lshlrev_b32 v{c}, 8, v{a}
         v_lshl_add_u32 v{c}, v6, 3, v{c}
         s_add_u32 s41, s41, {vs}
         v_add_u32 v{c}, s41, v{c}
         v_and_b32 v{a}, 7, v{a}
         s_and_b32 s38, s{w}, 2
         s_lshl_b32 s38, s38, 1
         v_xor_b32 v{a}, s38, v{a}'''.format(a=T, c=T + 1, vs=VS0, w=sW))
    for dt in range(8): b('v_xor_b32 v%d, %d, v%d\nv_lshl_add_u32 v%d, v%d, 5, v%d' % (T + 2, dt, T, vVA + dt, T + 2, T + 1))
    b('''v_lshl_add_u32 v{c}, v3, 3, v5
         v_lshlrev_b32 v{c}, 9, v{c}
         s_lshr_b32 s41, s{w}, 1
         s_lshl_b32 s41, s41, 8
         v_add_u32 v{c}, s41, v{c}
         v_lshl_add_u32 v{a}, v5, 2, v6'''.format(a=T, c=T + 1, w=sW))
    for k in range(4): b('v_xor_b32 v%d, %d, v%d\nv_lshl_add_u32 v%d, v%d, 4, v%d' % (T + 2, 4 * k, T, vWA + k, T + 2, T + 1))
    b('''v_lshrrev_b32 v{a}, 1, v4
         v_xor_b32 v{a}, v{a}, v3
         s_mul_i32 s41, s40, 10240
         s_add_u32 s41, s41, {xb}
         v_lshlrev_b32 v{c}, 7, v4
         v_add_u32 v{c}, s41, v{c}'''.format(a=T, c=T + 1, xb=XBUF[0]))
    for k in range(2): b('v_xor_b32 v%d, %d, v%d\nv_lshl_add_u32 v%d, v%d, 4, v%d' % (T + 2, 4 * k, T, vXA + k, T + 2, T + 1))
    c = math.log2(math.e) / math.sqrt(128.0)
    b('s_mov_b32 s%d, 0x%08x\ns_mov_b32 s%d, 0x%08x\ns_mov_b32 s%d, 0x%08x\ns_mov_b32 s%d, 0' % (sSC, f32bits(c), sSC + 1, f32bits(c), sTH, f32bits(2.0 ** 30), sEX))
    b('v_lshl_add_u32 v%d, v%d, 4, s%d\nv_add_u32 v%d, 0x10000, v%d' % (vSW, L, sW4, vSW + 1, vSW))
    b('v_mov_b32 v%d, 0x3f803f80' % T)
    for i in range(4): b('v_accvgpr_write_b32 a%d, v%d' % (aONE + i, T))
    if opt.upfront != 2:
        for g in dma_wq(1) + (dma_x(1) if opt.upfront == 3 else []): b.extend(g)
    return b

def zero_acc():
    return ['v_accvgpr_write_b32 a%d, 0' % i for i in range(180 if opt.ones else 160)] + ([] if opt.ones else ['v_mov_b32 v%d, 0' % (vL + i) for i in range(5)])

def conv(k):
    L = []
    for qs in range(5):
        d = rQ(k, qs)
        if opt.pk: L += ['v_pk_mul_f32 %s, %s, s[%d:%d]' % (vr(d + 2 * i, 2), vr(d + 2 * i, 2), sSC, sSC + 1) for i in range(4)]
        else: L += ['v_mul_f32 v%d, s%d, v%d' % (d + i, sSC, d + i) for i in range(8)]
        L += ['v_cvt_pk_bf16_f32 v%d, v%d, v%d' % (d + i, d + 2 * i, d + 2 * i + 1) for i in range(4)]
    return L
def qk0_mfmas():
    bb = []
    for f in range(8):
        k, kt = divmod(f, 2)
        for qs in range(5):
            s = rS(kt, qs)
            bb.append(I('%s %s, %s, %s, %s' % (MF, vr(s, 4), vr(vF + 4 * (f % NB), 4), vr(rQ(k, qs), 4), '0' if k == 0 else vr(s, 4))))
    return bb
def kread0(f):
    k, kt = divmod(f, 2)
    return [I('ds_read_b128 %s, v%d offset:%d' % (vr(vF + 4 * (f % NB), 4), vKA + k, kt * 4096), 'g%d' % f)]

def k1_qproj():
    b = Block('qproj')
    bb = []
    for c in range(16):
        for t in range(8):
            for qs in range(5):
                d = rQ(t // 2, qs) + 4 * (t % 2)
                bb.append(I('%s %s, %s, %s, %s' % (MF, vr(d, 4), ar(aFA + 4 * (t % 4), 4), ar(aFB + 20 * (c % 2) + 4 * qs, 4), '0' if c == 0 else vr(d, 4))))
    G = Gaps(bb, 8)
    def ybar(c): return -1 if c == 0 else 40 * c - 14
    cur = [0] * 4
    def wq_read(c, t):
        k, bsel = divmod(t, 2)
        want = 0 if WBUF[c % 3] < 65536 else 131072
        off = WBUF[c % 3] - want + 8 * bsel
        r = aFA + 4 * (t % 4)
        L = []
        if bsel == 0 and want != cur[k]:
            L.append(I('v_add_u32 v%d, 0x%x, v%d' % (vWA + k, (want - cur[k]) & 0xffffffff, vWA + k))); cur[k] = want
        return L, [I('ds_read_b64_tr_b16 %s, v%d offset:%d' % (ar(r, 2), vWA + k, off), 'fa'), I('ds_read_b64_tr_b16 %s, v%d offset:%d' % (ar(r + 2, 2), vWA + k, off + 2048), 'fa%d_%d' % (c, t))]
    kvq = dma_kv('K', 0, True) + dma_kv('K', 1, True) + dma_kv('V', 0, True) + dma_kv('V', 1, True) + stash_load('K', 2) + stash_load('V', 2) + stash_load('K', 3)
    nkv = opt.kvend
    bursts = dict(tuple(int(v) for v in x.split(':')) for x in opt.burst.split())
    nst = sum(bursts.values()) - 4
    assert 0 <= nst <= 3
    if bursts: kvq = dma_kv('K', 0) + dma_kv('K', 1) + dma_kv('V', 0) + dma_kv('V', 1) + kvq[16:]
    for c in range(16):
        y = ybar(c); base = 40 * c
        G.put(y, I('@waitlgkm *'), I('@waitvm wq%d' % c + (',x%d' % (c // 2) if c % 2 == 0 else '') + (',K0' if c == 15 else '')), I('s_barrier'))
        if opt.qstamps and c % opt.qevery == 0: G.put(y, *stamp_ins())
        if c == 3:
            G.put(y + 9, I('v_and_b32 v4, 1, v%d' % vLANE)); G.put(y + 10, I('v_lshlrev_b32 v4, 4, v4')); G.put(y + 11, I('v_lshlrev_b32 v4, v4, 1'))
            G.put(y + 12, I('v_lshrrev_b32 v1, 1, v0')); G.put(y + 13, I('v_lshl_add_u32 v1, v1, 16, v%d' % vDA))
            G.put(y + 14, I('@waitvm fz'), I('buffer_atomic_add v4, v1, s[%d:%d], 0 offen sc1' % (S_D, S_D + 3)))
        xr = [I('ds_read_b128 %s, v%d offset:%d' % (ar(aFB + 20 * (c % 2) + 4 * qs, 4), vXA + c % 2, (c // 2 % 2) * 20480 + 2048 * qs), 'xr%d_%d' % (c, qs)) for qs in range(5)]
        for t in range(8):
            g = max(base + 5 * (t - 3) - 1, y + 1 if c else y)
            pre, rd = wq_read(c, t)
            G.put(max(g - 1, -1), *pre); G.put(g, *rd)
            if t == 0:
                for qs in range(5): G.put(y + ((2, 4, 5, 6, 7)[qs] if c else 0), xr[qs])
                G.put(base - 1, I('@waitlgkm fa%d_1,xr%d_4' % (c, c)))
            if t % 2 == 0 and t: G.put(base + 5 * t - 1, I('@waitlgkm fa%d_%d' % (c, t + 1)))
        d = []
        if c == 0 and opt.upfront != 2: d += (dma_x(1) if opt.upfront == 1 else []) + dma_wq(2)
        if 1 <= c < 14: d += dma_wq(c + 2)
        if c % 2 == 0 and 2 <= c < 14: d += dma_x(c // 2 + 1)
        if not bursts and c < nkv: d += kvq[(c * len(kvq)) // nkv:((c + 1) * len(kvq)) // nkv]
        flat = [x for g in d for x in g]
        if c in bursts:
            if flat: G.spread2(flat, y + 1 if c else 0, y + 14)
            flat = [x for g in kvq[:4 * bursts[c]] for x in g]; kvq = kvq[4 * bursts[c]:]
            G.spread2(flat, y + 15, y + 15 + len(flat) // 2); flat = []
        late = lambda w, sl, k: stash_flush(w, sl) if nst > k else [x for g in dma_kv(w, sl) for x in g]
        if c == 14: flat += late('K', 2, 0) + late('V', 2, 1)
        if c == 15: flat += late('K', 3, 2)
        if c == opt.touchc:
            tb = Block('x'); wo_srd(tb); wo_touch(tb); flat += tb.ins
        if flat: G.spread2(flat, y + 1 if c else 0, 25 if c == 0 else y + (39 if c < 14 else 20))
    G.spread2(zero_acc(), 20, 580)
    for f in range(3): G.put(624 + 5 * f, *kread0(f))
    G.spread2(conv(0), 613, 626); G.spread2(conv(1), 627, 639)
    em = G.emit()
    if 'd' in opt.qf: em = [x for x in em if x.cls not in ('dma', 'vld') and 'm0' not in x.w]
    if 'b' in opt.qf: em = [x for x in em if x.op != 's_barrier']
    if 'h' in opt.qf:
        k = [0]
        def keep(x):
            if x.op != 's_barrier': return True
            k[0] += 1; return k[0] % 2 == 1
        em = [x for x in em if keep(x)]
    if 'w' in opt.qf: em = [x for x in em if not (x.op == '@waitlgkm' and x.wait == ['*'])]
    if 'r' in opt.qf: em = [x for x in em if x.cls != 'dsr']
    if 'z' in opt.qf: em = [x for x in em if x.op != 'v_accvgpr_write_b32']
    if 'x' in opt.qf: em = [x for x in em if x.op != 'ds_read_b128']
    if 't' in opt.qf: em = [x for x in em if x.op != 'ds_read_b64_tr_b16']
    b.extend(em)
    print('qproj est cycles', G.est_cycles(16), file=sys.stderr)
    G = Gaps(qk0_mfmas(), 8)
    for f in range(3, 8): G.put(5 * (f - 3) - 1, *kread0(f))
    G.spread2(conv(2), -1, 17); G.spread2(conv(3), 18, 27)
    b.extend(G.emit())
    stamp(b)
    return b

XBAR = 66
def kread(f, slot):
    kt, k = divmod(f, 4)
    return [I('ds_read_b128 %s, v%d offset:%d' % (vr(vF + 4 * (f % NB), 4), vKA + k, slot * 16384 + kt * 4096), 'f%d' % f)]
def vread(f, slot):
    dt = f - 8; r = vF + 4 * (f % NB)
    return [I('ds_read_b64_tr_b16 %s, v%d offset:%d' % (vr(r, 2), vVA + dt, slot * 16384), 'fx'),
            I('ds_read_b64_tr_b16 %s, v%d offset:%d' % (vr(r + 2, 2), vVA + dt, slot * 16384 + 4096), 'f%d' % f)]
def neg_adds(kt): return ['v_add_f32 v%d, v%d, v%d' % (rS(kt, qs) + i, rS(kt, qs) + i, vN + 4 * qs) for qs in range(5) for i in range(4)]
def sm_chain(par):
    C = []; pend = []
    for kt in range(2):
        for qs in range(5):
            s = rS(kt, qs); p = rP(par, qs) + 2 * kt
            e = ['v_exp_f32 v%d, v%d' % (s + i, s + i) for i in range(4)]
            a = ['v_add_f32 v%d, v%d, v%d' % (vL + qs, vL + qs, s + i) for i in range(4)]
            cv = ['v_cvt_pk_bf16_f32 v%d, v%d, v%d' % (p + i, s + 2 * i, s + 2 * i + 1) for i in range(2)]
            C.append((e[0], kt, qs)); C += pend
            if opt.ones: C += [(x, kt, qs) for x in (e[1], e[2], cv[0], e[3])]; pend = [(cv[1], kt, qs)]
            else: C += [(x, kt, qs) for x in (e[1], a[0], e[2], a[1], cv[0], e[3], a[2])]; pend = [(a[3], kt, qs), (cv[1], kt, qs)]
    return C + pend
def qk_mfmas(first):
    bb = []
    for f in range(8):
        kt, k = divmod(f, 4)
        for qs in range(5):
            s = rS(kt, qs)
            c = ('0' if first else vr(vN + 4 * qs, 4)) if k == 0 else vr(s, 4)
            bb.append(I('%s %s, %s, %s, %s' % (MF, vr(s, 4), vr(vF + 4 * (f % NB), 4), vr(rQ(k, qs), 4), c)))
    return bb
def pv_mfmas(par):
    bb = []
    for f in range(8, 16):
        for qs in range(5):
            bb.append(I('%s %s, %s, %s, %s' % (MF, ar(aO(f - 8, qs), 4), vr(vF + 4 * (f % NB), 4), vr(rP(par, qs), 4), ar(aO(f - 8, qs), 4))))
    return bb
def ones_mfmas(par): return [I('%s %s, %s, %s, %s' % (MF, ar(aL + 4 * qs, 4), ar(aONE, 4), vr(rP(par, qs), 4), ar(aL + 4 * qs, 4))) for qs in range(5)]
SPLIT = [None]; SMPOS = [None]
def period(j, peel=False):
    pu, pn = j % 2, (j + 1) % 2
    ks, vs = (j + 1) % 4, j
    lg = qk_mfmas(False) + pv_mfmas(pu)
    bb = []; ix = {-1: -1}
    on = ones_mfmas(pu) if opt.ones else []
    for i, x in enumerate(lg):
        bb.append(x); ix[i] = len(bb) - 1
        if on and i in (44, 49, 54, 59, 64): bb.append(on.pop(0))
    G = Gaps(bb, 8); N = len(bb)
    for f in range(3, 16):
        G.put(ix[5 * (f - 3) - 1] if f > 3 else 0, *(kread(f, ks) if f < 8 else vread(f, vs)))
        if f % 2 == 0 and f < 15: G.put(ix[5 * f] - 1, I('@waitlgkm f%d' % (f + 1)))
    G.put(ix[XBAR], I('@waitlgkm *'), I('@waitvm K%d,V%d' % ((j + 2) % 4, (j + 1) % 4)), I('s_barrier'))
    if peel and j == 2:
        for f, g in ((8, XBAR + 1), (9, 69), (10, 74)): G.put(ix[g], *vread(f, 3))
    else:
        for f, g in ((0, XBAR + 1), (1, 69), (2, 74)): G.put(ix[g], *kread(f, (j + 2) % 4))
        G.put(N - 1, I('@waitlgkm f1'))
    G.put(9, I('@waitlgkm f3'))
    slots = [2, 7, 12, 17, 22, 27, 32, 37, 42, 47, 52, 57, 62] if opt.dsp == 5 else [2 + opt.dsp * m for m in range(8)]
    dl = dma_kv('K', j) + dma_kv('V', (j + 3) % 4)
    if peel: dl = dma_kv('V', 3) if j == 0 else dma_wo(j)
    extra = []
    if peel and opt.sb == 1 and j < 2:
        tb = Block('x'); tail_setup_b(tb)
        cut = [k for k, x in enumerate(tb.ins) if x.w == {'v%d' % (vOD + 3)}][0] + 1
        extra = tb.ins[:cut] if j == 0 else tb.ins[cut:]
    if peel and j == 0: extra = extra + [x for g in dma_wo(0) for x in g]
    for m, g in enumerate(dl):
        p = ix[slots[m]]
        if not peel and m % opt.thrn == 0:
            if opt.thro: G.put(p - 1, I('@raw s_waitcnt vmcnt(%d)' % opt.thro))
            if opt.thre: G.put(p - 1, I('s_cbranch_vccnz L_t%d_%d' % (j, m)), I('@raw s_waitcnt vmcnt(%d)' % opt.thre), I('L_t%d_%d:' % (j, m)))
        if len(g) == 2 and g[0].cls == 'salu': G.put(p - 1, g[0]); G.put(p, g[1])
        elif len(g) == 2: G.put(p, g[0]); G.put(p + 1, g[1])
        elif len(g) == 3: G.put(p - 2, g[0]); G.put(p - 1, g[1]); G.put(p, g[2])
        else: G.put(p, *g)
    if j == 3:
        G.put(ix[71], I('s_sub_u32 s%d, s%d, 1' % (sCNT, sCNT))); G.put(ix[77], I('s_cmp_lg_u32 s%d, 0' % sCNT))
    if peel and j == 0: G.put(ix[40], I('buffer_load_dword v244, v%d, s[%d:%d], 0 offen sc1' % (vDA, S_D, S_D + 3)))
    chn, chu = sm_chain(pn), sm_chain(pu)
    if SMPOS[0] is None:
        s0 = 18; gaps = list(range(s0, N)) + list(range(0, s0))
        gaps += list(range(s0, 24))
        lo = [ix[15 + 20 * kt + qs] + 4 - s0 for (_, kt, qs) in chn]
        hi = [(N - s0 + qs - 1) if kt == 0 else (N - s0 + 19 + qs) for (_, kt, qs) in chn]
        hi = [min(h, N - 1) for h in hi]
        _, pos = G.dp([x for x, _, _ in chn], gaps, lo, hi)
        SMPOS[0] = [gaps[p] for p in pos]; SPLIT[0] = sum(p < N - s0 for p in pos)
    for k, (x, _, _) in enumerate(chu):
        if k >= SPLIT[0]: G.put(SMPOS[0][k], I(x))
    for k, (x, _, _) in enumerate(chn):
        if k < SPLIT[0]: G.put(SMPOS[0][k], I(x))
    if extra and j == 0: G.spread2(extra, ix[slots[3]] + 2, N - 1)
    if extra and j == 1: G.spread2(extra, ix[slots[4]] + 1, N - 1)
    if j == 3 or opt.pstamps: G.put(ix[XBAR], *stamp_ins())
    return G

def k1_attention():
    P = [period(j) for j in range(4)]
    print('period est cycles', [g.est_cycles(16) for g in P], [P[0].used(i) for i in range(len(P[0].bb))], file=sys.stderr)
    pro = Block('pro'); T = vT
    pro('L_start:')
    pro('@waitlgkm *\n@waitvm K1,V0\ns_barrier')
    for f in range(3): pro.extend(kread(f, 1))
    if opt.fallback: pro('s_cmp_lg_u32 s%d, 0\ns_cbranch_scc1 L_nomax' % sEX)
    mx = Block('pro_max')
    for qs in range(5):
        a, c = rS(0, qs), rS(1, qs); t = T + 2 * qs
        mx('v_max3_f32 v%d, v%d, v%d, v%d\nv_max3_f32 v%d, v%d, v%d, v%d' % (t, a, a + 1, a + 2, t + 1, c, c + 1, c + 2))
        mx('v_max3_f32 v%d, v%d, v%d, v%d\nv_max_f32 v%d, v%d, v%d' % (t, t, a + 3, c + 3, t, t, t + 1))
    max_finish(mx, T)
    p2 = Block('pro2'); p2('L_nomax:')
    p2.extend(neg_adds(0) + neg_adds(1) + [x for x, _, _ in sm_chain(0)[:SPLIT[0]]])
    if opt.touchc > 15:
        wo_srd(p2); wo_touch(p2)
    if opt.sb == 0: tail_setup_b(p2)
    p2('@waitlgkm f1')
    p2('s_mov_b32 s%d, 7' % sCNT)
    if opt.thre: p2('s_getreg_b32 s38, hwreg(HW_REG_XCC_ID, 0, 1)\ns_mov_b32 vcc_lo, s38\ns_mov_b32 vcc_hi, 0')
    stamp(p2)
    lp = [Block('per%d' % j) for j in range(4)]
    lp[0]('L_loop:')
    for j in range(4): lp[j].extend(P[j].emit())
    lp[3]('s_cbranch_scc1 L_loop')
    pe = [Block('pe%d' % j) for j in range(4)]
    pe[0].extend(period(0, True).emit()); pe[1].extend(period(1, True).emit())
    pe[1]('v_readlane_b32 s38, v244, 0\nv_readlane_b32 s39, v244, 1\ns_and_b32 s38, s38, 0xffff\ns_lshr_b32 s39, s39, 16\ns_min_u32 s38, s38, s39\ns_cmp_lt_u32 s38, 4\ns_cbranch_scc1 L_spin_d')
    pe[2]('L_back_d:')
    pe[2].extend(period(2, True).emit())
    sp = pe[3]; sp.name = 'spin_d'
    sp('L_spin_d:\ns_mov_b32 s40, %d\nL_spin_d2:\ns_sleep 4\nbuffer_load_dword v244, v%d, s[%d:%d], 0 offen sc1\ns_waitcnt vmcnt(0)' % (opt.spin, vDA, S_D, S_D + 3))
    sp('v_readlane_b32 s38, v244, 0\nv_readlane_b32 s39, v244, 1\ns_and_b32 s38, s38, 0xffff\ns_lshr_b32 s39, s39, 16\ns_min_u32 s38, s38, s39\ns_cmp_ge_u32 s38, 4\ns_cbranch_scc1 L_back_d')
    sp('s_sub_u32 s40, s40, 1\ns_cmp_lg_u32 s40, 0\ns_cbranch_scc1 L_spin_d2\ns_branch L_back_d')
    return pro, mx, p2, lp, pe

def max_finish(b, T):
    for qs in range(5): b('v_mov_b32 v%d, v%d' % (T + 2 * qs + 1, T + 2 * qs))
    for qs in range(5): b('v_permlane16_swap_b32 v%d, v%d' % (T + 2 * qs, T + 2 * qs + 1))
    for qs in range(5): b('v_max_f32 v%d, v%d, v%d' % (T + 2 * qs, T + 2 * qs, T + 2 * qs + 1))
    for qs in range(5): b('v_mov_b32 v%d, v%d' % (T + 2 * qs + 1, T + 2 * qs))
    for qs in range(5): b('v_permlane32_swap_b32 v%d, v%d' % (T + 2 * qs, T + 2 * qs + 1))
    for qs in range(5): b('v_max_f32 v%d, v%d, v%d' % (T + 2 * qs, T + 2 * qs, T + 2 * qs + 1))
    for qs in range(5):
        for i in range(4): b('v_sub_f32 v%d, 0, v%d' % (vN + 4 * qs + i, T + 2 * qs))

def poll_test(reg, mask): return ['v_cmp_ne_u32 vcc, 0, v%d' % reg, 's_and_b32 s38, vcc_lo, s%d' % mask, 's_cmp_lg_u32 s38, s%d' % mask]
def spin_block(name, addr, mask):
    sp = Block('spin_' + name)
    sp('L_spin_%s:\ns_mov_b32 s40, %d\nL_spin_%s2:\ns_sleep 1\nbuffer_load_dword v244, v%d, s[%d:%d], 0 offen sc1\ns_waitcnt vmcnt(0)' % (name, opt.spin, name, addr, S_F, S_F + 3))
    sp.extend(poll_test(244, mask))
    sp('s_cbranch_scc0 L_back_%s\ns_sub_u32 s40, s40, 1\ns_cmp_lg_u32 s40, 0\ns_cbranch_scc1 L_spin_%s2\ns_branch L_back_%s' % (name, name, name))
    return sp

def k1_tail():
    t1 = Block('tail1'); t2 = Block('tail2'); L = vLANE
    t1.extend([x for x, _, _ in sm_chain(1)[SPLIT[0]:]])
    t1.extend(ones_mfmas(1))
    G = Gaps(pv_mfmas(1), 8)
    for f in range(11, 16): G.put(5 * (f - 11) + 4, *vread(f, 3))
    R = vN + 5
    rc = ['v_accvgpr_read_b32 v%d, a%d' % (R + qs, aL + 4 * qs) for qs in range(5)]
    rc += ['v_add_f32 v%d, v%d, v%d' % (R + 5, R, R + 1), 'v_add_f32 v%d, v%d, v%d' % (R + 6, R + 2, R + 3), 'v_add_f32 v%d, v%d, v%d' % (R + 5, R + 5, R + 4), 'v_add_f32 v%d, v%d, v%d' % (R + 5, R + 5, R + 6)]
    if opt.fallback:
        rc += ['v_cmp_ngt_f32 vcc, s%d, v%d' % (sTH, R + 5), 's_lshl_b32 s39, s%d, 2' % sW, 's_add_u32 s39, s39, %d' % BADB, 'v_mov_b32 v%d, s39' % (R + 6),
               's_cmp_lg_u64 vcc, 0', 's_cselect_b32 s38, 1, 0', 'v_mov_b32 v%d, s38' % (R + 5), I('ds_write_b32 v%d, v%d' % (R + 6, R + 5), 'bad'), 'v_mov_b32 v%d, %d' % (R + 6, BADB)]
    rc += ['v_rcp_f32 v%d, v%d' % (vN + i, R + i) for i in range(5)]
    G.spread2(rc, 2, 11)
    if opt.fallback:
        G.put(12, I('@waitlgkm bad'), I('s_barrier'), I('ds_read_b128 %s, v%d' % (vr(R + 7, 4), R + 6)))
        G.put(16, I('v_or_b32 v%d, v%d, v%d' % (R + 5, R + 7, R + 8)), I('v_or3_b32 v%d, v%d, v%d, v%d' % (R + 5, R + 5, R + 9, R + 10)))
        G.put(17, I('v_readfirstlane_b32 s38, v%d' % (R + 5)))
        G.put(18, I('s_cmp_lg_u32 s%d, 0' % sEX), I('s_cselect_b32 s38, 0, s38'), I('s_cmp_lg_u32 s38, 0'), I('s_cbranch_scc1 L_fallback'))
    def out(kl):
        Lst = []
        for qs in range(5):
            idx = 5 * kl + qs
            d = BS[0][idx] if kl < 2 else hole(idx % 10); e = hole(10 + idx % 5)
            src = [aO(2 * kl, qs) + i for i in range(4)] + [aO(2 * kl + 1, qs) + i for i in range(4)]
            tmp = [d + i for i in range(4)] + [e + i for i in range(4)]
            Lst += ['v_accvgpr_read_b32 v%d, a%d' % (tmp[i], src[i]) for i in range(8)]
            if kl and opt.pk2: Lst += ['v_pk_mul_f32 %s, %s, %s' % (vr(tmp[i], 2), vr(tmp[i], 2), vr(246 + 2 * qs, 2)) for i in range(0, 8, 2)]
            else: Lst += ['v_mul_f32 v%d, v%d, v%d' % (tmp[i], vN + qs, tmp[i]) for i in range(8)]
            Lst += ['v_cvt_pk_bf16_f32 v%d, v%d, v%d' % (d + i, tmp[2 * i], tmp[2 * i + 1]) for i in range(4)]
            Lst += [I('buffer_store_dwordx4 %s, v%d, s[%d:%d], s%d offen offset:%d%s' % (vr(d, 4), vOL + qs // 4, S_O, S_O + 3, sOK + kl, 1024 * (qs % 4), opt.o_st_pol), 'O')]
            if kl >= 2: Lst += [I('ds_write_b128 v%d, %s offset:%d' % (vXW, vr(d, 4), 1024 * (idx - 10)))]
        return Lst
    G.spread2(out(0), 19, 39)
    t1.extend(G.emit(-1, 18)); t2.extend(G.emit(19, 39))
    if opt.pk2: t2.extend(['v_mov_b32 v%d, v%d' % (246 + i, vN + i // 2) for i in range(10)])
    for kl in range(1, 4): t2.extend(out(kl))
    t2('''v_lshrrev_b32 v1, 4, v{L}
          v_bfe_u32 v4, v{L}, 2, 2
          v_lshl_add_u32 v1, v1, 2, v4
          v_and_b32 v4, 3, v{L}
          v_lshlrev_b32 v4, 3, v4
          v_lshl_add_u32 v4, v1, 8, v4
          s_lshr_b32 s38, s{w}, 1
          s_lshl_b32 s39, s38, 2
          s_add_u32 s39, s39, s{KQ}
          s_mul_i32 s38, s38, {x}
          s_add_u32 s38, s38, 131072
          v_add_u32 v4, s38, v4
          v_and_b32 v1, 7, v1
          v_xor_b32 v1, s39, v1'''.format(L=L, w=sW, KQ=sKQ, x=(16384 - 131072) & 0xffffffff))
    for n in range(8): t2('v_xor_b32 v5, %d, v1\nv_lshl_add_u32 v%d, v5, 5, v4' % (n, vRA[n]))
    t2('v_mov_b32 v245, 1')
    stamp(t2)
    bb = []; frs = []
    for c in range(8):
        seq = [(kp, n) for kp in range(2) for n in range(8)]
        if c == 7: seq = [(kp, n) for kp in range(2) for n in (4, 5, 6, 7)] + [(kp, n) for kp in range(2) for n in (1, 2, 3, 0)]
        for kp, n in seq:
            fi = len(frs); frs.append((c, kp, n))
            for f in range(5):
                a = 4 * (5 * n + f)
                bb.append(I('%s %s, %s, %s, %s' % (MF, ar(a, 4), vr(vF + 4 * (fi % NB), 4), vr(BS[c % 3][5 * kp + f], 4), '0' if (c, kp) == (0, 0) else ar(a, 4))))
    G = Gaps(bb, 8)
    bars = {0: 'wo0,wo1,wo2', 2: '', 3: 'wo3,wo4', 5: 'wo5,wo6', 7: 'wo7'}
    base = [None, None, WOB[2], WOB[3], WOB[4], WOB[0], WOB[1], WOB[2]]
    for c, tg in bars.items():
        G.put(80 * c - 14 if c else -1, *([I('@waitlgkm *')] + ([I('@waitvm ' + tg)] if tg else []) + [I('s_barrier')]))
    for fi, (c, kp, n) in enumerate(frs):
        g = max(5 * (fi - 3) - 1, -1)
        if c in bars and c: g = max(g, 80 * c - 13)
        r = vF + 4 * (fi % NB)
        G.put(g, I('ds_read_b64_tr_b16 %s, v%d offset:%d' % (vr(r, 2), vRA[n], kp * 8192), 'wx'), I('ds_read_b64_tr_b16 %s, v%d offset:%d' % (vr(r + 2, 2), vRA[n], kp * 8192 + 4096), 'w%d' % fi))
        if kp == 1 and c < 7:
            dl = 's%d' % (sD01 if c == 0 else sD12) if c < 2 else '0x%x' % ((base[c + 1] - base[c]) & 0xffffffff)
            G.put(g + 1, I('v_add_u32 v%d, %s, v%d' % (vRA[n], dl, vRA[n])))
        if fi % 2 == 0 and fi: G.put(5 * fi - 1, I('@waitlgkm w%d' % (fi + 1)))
    for i in range(10): G.put(i // 2 + (i >= 8), I('ds_read_b128 %s, v%d offset:%d' % (vr(BS[1][i], 4), vXR, 1024 * i), 'xr'))
    G.put(opt.flagpos, I('@waitvm O'), I('buffer_store_dword v245, v%d, s[%d:%d], 0 offen sc1' % (vFA, S_F, S_F + 3)))
    G.put(13, I('@waitlgkm xr'), I('s_barrier'))
    flat = lambda d: [x for g in d for x in g]
    def oload(c):
        return [I('buffer_load_dwordx4 %s, v%d, s[%d:%d], s%d offen offset:%d%s' % (vr(BS[c % 3][5 * kp + f], 4), vOL + 2 * kp + f // 4, S_OR, S_OR + 3, sORO + c, 1024 * (f % 4), opt.o_ld_pol)) for kp in range(2) for f in range(5)]
    G.spread2(flat(dma_wo(3) + dma_wo(4)), 15, 62)
    cks = [None, opt.chkpos, opt.chk2, opt.chk3]
    for p, pos in ((1, opt.pollpos), (2, opt.chk2 - opt.plead), (3, opt.chk3 - opt.plead)):
        G.put(pos, I('buffer_load_dword v244, v%d, s[%d:%d], 0 offen sc1' % (vPA, S_F, S_F + 3)))
        G.put(cks[p], *[I(x) for x in poll_test(244, MK1[p]) + ['s_cbranch_scc1 L_spin_o%d' % p]])
    ck = opt.chkpos
    def even(lst, lo, hi):
        mem = [x for x in lst if x.cls in ('dma', 'vld')]; k = 0; pend = []
        for x in lst:
            if x.cls in ('dma', 'vld'):
                g = lo + (k * (hi - lo)) // max(len(mem) - 1, 1); k += 1
                for j, y in enumerate(pend): G.put(g - len(pend) + j, y)
                G.put(g, x); pend = []
            else: pend.append(x)
    G.spread2(oload(2), ck + 1, ck + 8)
    c2, c3 = opt.chk2, opt.chk3
    even(oload(3), ck + 14, c2 - 42); even(flat(dma_wo(5)), max(c2 - 38, 150), c2 - 3)
    even(oload(4), c2 + 1, c2 + 40); even(flat(dma_wo(6)), c2 + 45, c3 - 48)
    even(oload(5), c3 - 44, c3 - 3); even(oload(6), c3 + 1, c3 + 42)
    even(flat(dma_wo(7)), c3 + 47, c3 + 80); even(oload(7), max(c3 + 84, 401), c3 + 125)
    RG = BS[0] + BS[2]
    order = [5 * nl + f for nl in (1, 2, 3, 0) for f in range(5)]
    for i in range(20): G.put(585 + (3 * i) // 2, I('ds_write_b128 v%d, %s offset:%d' % (vYW, ar(80 + 4 * i, 4), 1024 * i), 'yw'))
    G.put(619, I('@waitlgkm yw'), I('s_barrier'))
    for k, i in enumerate(order): G.put(620 + k, I('ds_read_b128 %s, v%d offset:%d' % (vr(RG[i], 4), vYR, 1024 * i)))
    if opt.tstamps:
        for g in (opt.flagpos + 1, 79, opt.chkpos - 1, opt.chkpos + 1, 159, 164, opt.chk2 - 1, opt.chk2 + 1, 239, opt.chk3 - 1, opt.chk3 + 1, 399, 479, 559): G.put(g, *stamp_ins())
    print('oproj est cycles', G.est_cycles(16), file=sys.stderr)
    t2.extend(G.emit(-1, ck))
    t2b = Block('tail2b'); t2b('L_back_o1:'); t2b.extend(G.emit(ck + 1, opt.chk2))
    t2c = Block('tail2c'); t2c('L_back_o2:'); t2c.extend(G.emit(opt.chk2 + 1, opt.chk3))
    t3 = Block('tail3'); t3('L_back_o3:')
    t3.extend(G.emit(opt.chk3 + 1, 639))
    stamp(t3)
    for k, i in enumerate(order):
        tm = BS[1][k % 10]
        for e in range(4): t3('v_accvgpr_read_b32 v%d, a%d' % (tm + e, 4 * i + e))
        for e in range(4): t3('v_add_f32 v%d, v%d, v%d' % (RG[i] + e, RG[i] + e, tm + e))
        nl, f = divmod(i, 5)
        if nl and not opt.pbf: t3('buffer_store_dwordx4 %s, v%d, s[%d:%d], s%d offen offset:%d%s' % (vr(RG[i], 4), vOL + f // 4, S_P, S_P + 3, sPW + nl - 1, 1024 * (f % 4), opt.p_st_pol), 'P')
        if nl and opt.pbf:
            d = RG[5 * nl + f // 2 * 2] + 2 * (f % 2)
            t3('v_cvt_pk_bf16_f32 v%d, v%d, v%d\nv_cvt_pk_bf16_f32 v%d, v%d, v%d' % (d, RG[i], RG[i] + 1, d + 1, RG[i] + 2, RG[i] + 3))
            if f % 2 or f == 4: t3('buffer_store_dwordx4 %s, v%d, s[%d:%d], s%d offen offset:%d%s' % (vr(RG[5 * nl + f // 2 * 2], 4), vOL, S_P, S_P + 3, sPW + nl - 1, 1024 * (f // 2), opt.p_st_pol), 'P')
    t3('@waitvm P\nbuffer_store_dword v245, v%d, s[%d:%d], 0 offen sc1' % (vFA + 1, S_F, S_F + 3))
    stamp(t3)
    t3('buffer_load_dword v244, v%d, s[%d:%d], 0 offen sc1' % (vPA + 1, S_F, S_F + 3))
    t3.extend(poll_test(244, sMK2) + ['s_cbranch_scc1 L_spin_p'])
    t4 = Block('tail4'); t4('L_back_p:')
    stamp(t4)
    for f in range(0, 5, 2 if opt.pbf else 1):
        for j in (1, 2, 3):
            if opt.pbf: t4('buffer_load_dwordx4 %s, v%d, s[%d:%d], s%d offen offset:%d%s' % (vr(RG[5 * j + f], 4), vOL, S_P, S_P + 3, sPR + j - 1, 1024 * (f // 2), opt.p_ld_pol))
            else: t4('buffer_load_dwordx4 %s, v%d, s[%d:%d], s%d offen offset:%d%s' % (vr(RG[5 * j + f], 4), vOL + f // 4, S_P, S_P + 3, sPR + j - 1, 1024 * (f % 4), opt.p_ld_pol))
    if opt.pbf: t4('s_mov_b32 s39, 0xffff0000')
    for f in range(5):
        a, b1, b2, b3 = RG[f], RG[5 + f], RG[10 + f], RG[15 + f]
        if opt.pbf:
            for j in (1, 2, 3):
                src = RG[5 * j + f // 2 * 2] + 2 * (f % 2); tm = BS[1][j]
                t4('v_lshlrev_b32 v%d, 16, v%d\nv_and_b32 v%d, s39, v%d\nv_lshlrev_b32 v%d, 16, v%d\nv_and_b32 v%d, s39, v%d' % (tm, src, tm + 1, src, tm + 2, src + 1, tm + 3, src + 1))
            b1, b2, b3 = BS[1][1], BS[1][2], BS[1][3]
        for e in range(4): t4('v_add_f32 v%d, v%d, v%d\nv_add_f32 v%d, v%d, v%d' % (a + e, a + e, b1 + e, b2 + e, b2 + e, b3 + e))
        for e in range(4): t4('v_add_f32 v%d, v%d, v%d' % (a + e, a + e, b2 + e))
        t4('v_cvt_pk_bf16_f32 v%d, v%d, v%d\nv_cvt_pk_bf16_f32 v%d, v%d, v%d\ns_mov_b32 s38, %d' % (a, a, a + 1, a + 1, a + 2, a + 3, 32768 * f))
        t4('buffer_store_dwordx2 %s, v%d, s[%d:%d], s38 offen%s' % (vr(a, 2), vST, S_OUT, S_OUT + 3, opt.out_pol))
    if opt.stamps: t4('s_waitcnt vmcnt(0)')
    stamp(t4)
    t4('s_endpgm')
    return [t1, t2, t2b, t2c, t3, t4] + [spin_block('o%d' % p, vPA, MK1[p]) for p in (1, 2, 3)] + [spin_block('p', vPA + 1, sMK2)]

def k1_fallback():
    b = Block('fb'); T = vT
    b('L_fallback:')
    b('s_waitcnt vmcnt(0) lgkmcnt(0)\ns_nop 15\ns_barrier')
    b('v_and_b32 v1, 15, v%d\nv_lshrrev_b32 v2, 4, v%d\nv_lshlrev_b32 v2, 4, v2\nv_lshl_add_u32 v%d, v1, 8, v2' % (vLANE, vLANE, T + 10))
    for qs in range(5): b('v_mov_b32 v%d, 0xff800000' % (T + 2 * qs))
    b('s_mov_b32 s39, 0')
    lp = Block('fbl'); lp('L_fb_loop:')
    for k in range(4): lp('buffer_load_dwordx4 %s, v%d, s[%d:%d], s39 offen offset:%d' % (vr(vF + 4 * k, 4), T + 10, S_K, S_K + 3, 64 * k))
    lp('s_waitcnt vmcnt(0)')
    lp.extend(qk_mfmas(True)[:20])
    lp('s_nop 15')
    for qs in range(5):
        s = rS(0, qs); t = T + 2 * qs
        lp('v_max3_f32 v%d, v%d, v%d, v%d\nv_max3_f32 v%d, v%d, v%d, v%d' % (t, t, s, s + 1, t, t, s + 2, s + 3))
    lp('s_add_u32 s39, s39, 4096\ns_cmp_lt_u32 s39, 262144\ns_cbranch_scc1 L_fb_loop')
    e = Block('fbe')
    max_finish(e, T)
    e.extend(zero_acc())
    e('s_and_b32 s40, s%d, 1\ns_lshl_b32 s%d, s40, 12\ns_mov_b32 s%d, s%d' % (sW, sKO, sVO, sKO))
    for g in dma_kv('K', 0) + dma_kv('K', 1) + dma_kv('K', 2) + dma_kv('K', 3) + dma_kv('V', 0) + dma_kv('V', 1) + dma_kv('V', 2): e.extend(g)
    e('s_mov_b32 s%d, 1\ns_waitcnt vmcnt(0)\ns_barrier' % sEX)
    G = Gaps(qk0_mfmas(), 8)
    for f in range(8): G.put(max(5 * (f - 3) - 1, -1), *kread0(f))
    e.extend(G.emit())
    e('s_nop 7\ns_branch L_start')
    return b, lp, e

def kernel_text(kname, blocks, traces, vgpr, accum, sgpr=102):
    d = {b.name: b for b in blocks}
    assert len(d) == len(blocks)
    place_waits(d, traces)
    n = place_nops(d, traces)
    print(kname[:12], 'nop states inserted', n, 'instructions', {b.name: len(b.ins) for b in blocks}, file=sys.stderr)
    t = '.text\n.globl %s\n.p2align 8\n.type %s,@function\n%s:\n' % (kname, kname, kname) + render(blocks)
    t += '.section .rodata,"a"\n.p2align 6\n.amdhsa_kernel %s\n' % kname
    t += '  .amdhsa_next_free_vgpr %d\n  .amdhsa_next_free_sgpr %d\n  .amdhsa_accum_offset %d\n' % (vgpr, sgpr, accum)
    t += '  .amdhsa_group_segment_fixed_size 0\n  .amdhsa_kernarg_size 104\n  .amdhsa_user_sgpr_count 2\n'
    t += '  .amdhsa_user_sgpr_kernarg_segment_ptr 1\n  .amdhsa_system_sgpr_workgroup_id_x 1\n.end_amdhsa_kernel\n'
    return t

def gen_k1(kname):
    setup = k1_setup(); qp = k1_qproj()
    pro, mx, p2, lp, pe = k1_attention(); tl = k1_tail()
    end = Block('end'); end('L_k1_end:\ns_endpgm')
    blocks = [setup, qp, pro, mx, p2] + lp + pe[:3] + tl + [pe[3]]
    loop = ['per0', 'per1', 'per2', 'per3'] * 3 + ['pe0', 'pe1', 'pe2', 'tail1']
    head = ['setup', 'qproj', 'pro', 'pro_max', 'pro2']
    traces = [head + loop + ['tail2', 'tail2b', 'tail2c', 'tail3', 'tail4'],
              head + loop[:-2] + ['spin_d', 'spin_d', 'pe2', 'tail1', 'tail2', 'spin_o1', 'spin_o1', 'tail2b', 'spin_o2', 'tail2c', 'spin_o3', 'tail3', 'spin_p', 'spin_p', 'tail4']]
    if opt.fallback:
        fb, fbl, fbe = k1_fallback(); blocks += [fb, fbl, fbe]
        traces.append(head + loop + ['fb', 'fbl', 'fbl', 'fbe', 'pro', 'pro2'] + loop + ['tail2', 'tail2b', 'tail2c', 'tail3', 'tail4'])
    blocks.append(end)
    return kernel_text(kname, blocks, traces, 512, 256)

def gen_diag(kname):
    a, b_, gain = [int(x, 0) for x in opt.diag.split()]
    b = Block('dg')
    b('''s_cmp_ge_u32 s2, 1
         s_cbranch_scc1 L_dg_end
         s_load_dwordx2 s[4:5], s[0:1], 96
         s_waitcnt lgkmcnt(0)
         s_add_u32 s4, s4, 0x3000000
         s_addc_u32 s5, s5, 0
         s_load_dword s6, s[4:5], %d
         s_load_dword s7, s[4:5], %d
         s_memrealtime s[8:9]
         s_waitcnt lgkmcnt(0)
         s_sub_u32 s6, s7, s6
         s_min_u32 s6, s6, 20000
         s_mul_i32 s6, s6, %d
         L_dg:
         s_memrealtime s[10:11]
         s_waitcnt lgkmcnt(0)
         s_sub_u32 s10, s10, s8
         s_cmp_lt_u32 s10, s6
         s_cbranch_scc1 L_dg
         L_dg_end:
         s_endpgm''' % (a, b_, gain))
    return kernel_text(kname, [b], [['dg']], 8, 8, 16)

def main(out, only=None):
    t = open('cdna_kernels/%s.s.ref' % NAME).read().split('; Override launch')[0]
    k1 = NAME + '_kernel'
    if opt.diag.strip():
        t += '; @launch kernel=%s grid=(256,1,1) block=(256,1,1) lds=163840\n; @launch kernel=diag_kernel grid=(1,1,1) block=(64,1,1) lds=0\n' % k1
    else: t += '; @launch grid=(256,1,1) block=(256,1,1) lds=163840\n'
    t += '.amdgcn_target "amdgcn-amd-amdhsa--gfx950"\n'
    t += gen_k1(k1)
    if opt.diag.strip(): t += gen_diag('diag_kernel')
    open(out, 'w').write(t)

if __name__ == '__main__':
    out = sys.argv[1]; only = None
    for a in sys.argv[2:]:
        k, v = a.split('=')
        if k == 'only': only = int(v)
        elif isinstance(getattr(opt, k), bool): setattr(opt, k, v == '1')
        elif isinstance(getattr(opt, k), int): setattr(opt, k, int(v))
        else: setattr(opt, k, (' ' + v.replace('+', ' ')) if v else '')
    main(out, only)
```

```python
import re

REG_RE = re.compile(r'^(-|abs\()?([vas])(?:(\d+)|\[(\d+):(\d+)\])\)?$')

def regs_of(tok):
    tok = tok.strip()
    if tok in ('vcc', 'vcc_lo', 'vcc_hi'): return {'vcc'}
    if tok in ('exec', 'exec_lo', 'exec_hi'): return {'exec'}
    if tok == 'm0': return {'m0'}
    m = REG_RE.match(tok)
    if not m: return set()
    k = m.group(2)
    if m.group(3) is not None: return {k + m.group(3)}
    return {k + str(i) for i in range(int(m.group(4)), int(m.group(5)) + 1)}

TRANS = ('v_exp_f32', 'v_log_f32', 'v_rcp_f32', 'v_rsq_f32', 'v_sqrt_f32', 'v_sin_f32', 'v_cos_f32')

class Ins:
    __slots__ = ('text', 'op', 'cls', 'w', 'r', 'rc', 'tag', 'passes', 'wait', 'label', 'wide', 'data', 'd_exact')
    def __init__(self, text, tag=None):
        self.text = text; self.tag = tag; self.wait = None; self.label = None
        self.w = set(); self.r = set(); self.rc = set(); self.passes = 0; self.wide = False; self.data = set()
        t = text.split(';')[0].strip()
        if t.endswith(':'):
            self.op = 'label'; self.cls = 'label'; self.label = t[:-1]; return
        if t.startswith('@raw '):
            self.text = t[5:]; self.op = 'raw'; self.cls = 'ctl'; return
        if t.startswith('@'):
            p = t[1:].split(None, 1); self.op = '@' + p[0]; self.cls = 'pseudo'; self.wait = p[1].split(',') if len(p) > 1 else []
            return
        if t.startswith('.') or t == '':
            self.op = 'dir'; self.cls = 'dir'; return
        p = t.split(None, 1); op = p[0]; self.op = op
        rest = re.sub(r' op_sel\S*', '', p[1]) if len(p) > 1 else ''
        ops = [x.strip() for x in rest.split(',')] if rest else []
        mods = []
        if ops:
            last = ops[-1].split()
            ops[-1] = last[0]; mods = last[1:]
        R = [regs_of(o) for o in ops]
        def allr(lst):
            s = set()
            for x in lst: s |= x
            return s
        if op.startswith('v_mfma'):
            self.cls = 'mfma'; self.w = R[0]; self.r = R[1] | R[2]; self.rc = R[3]
            self.passes = 8 if '32x32' in op else 4
        elif op.startswith('ds_read') or op.startswith('ds_bpermute') or op.startswith('ds_swizzle'):
            self.cls = 'dsr'; self.w = R[0]; self.r = allr(R[1:])
        elif op.startswith('ds_'):
            self.cls = 'dsw'; self.r = allr(R)
        elif op.startswith('buffer_load') or op.startswith('global_load'):
            if 'lds' in mods:
                self.cls = 'dma'; self.r = allr(R) | {'m0'}
            else:
                self.cls = 'vld'; self.w = R[0]; self.r = allr(R[1:])
        elif op.startswith('buffer_store') or op.startswith('global_store') or op.startswith('buffer_atomic') or op.startswith('global_atomic'):
            self.cls = 'vst'; self.r = allr(R)
            if op.startswith('buffer_'): self.data = R[0]
            else: self.data = R[1]
            self.wide = ('x4' in op or 'x3' in op)
            if 'atomic' in op and 'sc0' in mods: self.w = R[0]; self.cls = 'vld'
        elif op.startswith('buffer_wbl2') or op.startswith('buffer_inv'):
            self.cls = 'vst'
        elif op.startswith('s_load') or op.startswith('s_memtime') or op.startswith('s_memrealtime') or op.startswith('s_buffer_load'):
            self.cls = 'smem'; self.w = R[0]; self.r = allr(R[1:])
        elif op == 's_waitcnt':
            self.cls = 'wait'
        elif op == 's_nop':
            self.cls = 'nop'; self.passes = int(ops[0], 0) + 1
        elif op in ('s_barrier', 's_endpgm', 's_setprio', 's_sleep') or op.startswith('s_cbranch') or op == 's_branch':
            self.cls = 'ctl'
            if 'vcc' in op: self.r = {'vcc'}
        elif op == 's_getpc_b64':
            self.cls = 'salu'; self.w = R[0]
        elif op.startswith('s_cmp') or op.startswith('s_bitcmp'):
            self.cls = 'salu'; self.r = allr(R); self.w = {'scc'}
        elif op.startswith('s_'):
            self.cls = 'salu'; self.w = R[0]; self.r = allr(R[1:])
            if op.startswith('s_addk') or op.startswith('s_mulk'): self.r |= R[0]
            if 'saveexec' in op: self.w |= {'exec'}
        elif op.startswith('v_'):
            self.cls = 'trans' if op.replace('_e32', '').replace('_e64', '') in TRANS else 'valu'
            if op.startswith('v_permlane') and 'swap' in op:
                self.w = R[0] | R[1]; self.r = R[0] | R[1]
            elif op.startswith('v_add_co') or op.startswith('v_addc_co') or op.startswith('v_sub_co'):
                self.w = R[0] | R[1]; self.r = allr(R[2:])
            else:
                self.w = R[0]; self.r = allr(R[1:])
                if op.startswith('v_fmac') or op.startswith('v_pk_fmac') or op.startswith('v_writelane') or op.startswith('v_dot2c'): self.r |= R[0]
                if op.startswith('v_cmpx'): self.w |= {'exec'}
        else:
            raise ValueError('unknown instruction: ' + text)
    def cost(self):
        return {'trans': 8, 'mfma': 8, 'label': 0, 'pseudo': 4, 'dir': 0}.get(self.cls, 4)

def I(text, tag=None): return Ins(text, tag)

class Block:
    def __init__(self, name): self.name = name; self.ins = []
    def __call__(self, text, tag=None):
        for line in text.split('\n'):
            line = line.strip()
            if line: self.ins.append(Ins(line, tag))
        return self
    def extend(self, lst):
        for x in lst: self.ins.append(x if isinstance(x, Ins) else Ins(x))

VM = ('dma', 'vld', 'vst')
def place_waits(blocks, traces):
    need = {}
    for tr in traces:
        vq = []; lq = []
        for name in tr:
            for idx, x in enumerate(blocks[name].ins):
                nv = nl = None
                if x.cls in ('label', 'dir'): continue
                if x.cls == 'pseudo':
                    if x.op == '@waitvm':
                        for k in range(len(vq) - 1, -1, -1):
                            if vq[k][1] in x.wait or x.wait == ['*']:
                                nv = len(vq) - 1 - k; break
                    elif x.op == '@waitlgkm':
                        for k in range(len(lq) - 1, -1, -1):
                            if lq[k][1] in x.wait or x.wait == ['*']:
                                nl = len(lq) - 1 - k; break
                elif x.cls == 'wait':
                    m = re.search(r'vmcnt\((\d+)\)', x.text)
                    if m: vq = vq[len(vq) - int(m.group(1)):] if int(m.group(1)) < len(vq) else vq
                    if m and int(m.group(1)) == 0: vq = []
                    m = re.search(r'lgkmcnt\((\d+)\)', x.text)
                    if m:
                        n = int(m.group(1))
                        if n == 0: lq = []
                        elif n < len(lq) and not any(e[2] for e in lq): lq = lq[len(lq) - n:]
                    continue
                else:
                    touched = x.r | x.rc | x.w
                    for k in range(len(vq) - 1, -1, -1):
                        if vq[k][0] & touched: nv = len(vq) - 1 - k; break
                    for k in range(len(lq) - 1, -1, -1):
                        if lq[k][0] & touched: nl = len(lq) - 1 - k; break
                if nl is not None and any(e[2] for e in lq): nl = 0
                if nv is not None: nv = min(nv, 62)
                if nl is not None: nl = min(nl, 14)
                if nv is not None or nl is not None:
                    cur = need.setdefault((name, idx), [None, None])
                    if nv is not None: cur[0] = nv if cur[0] is None else min(cur[0], nv)
                    if nl is not None: cur[1] = nl if cur[1] is None else min(cur[1], nl)
                    if nv is not None: vq = vq[len(vq) - nv:] if nv else []
                    if nl is not None: lq = lq[len(lq) - nl:] if nl else []
                if x.cls in VM: vq.append((x.w, x.tag))
                elif x.cls in ('dsr', 'dsw'): lq.append((x.w, x.tag, False))
                elif x.cls == 'smem': lq.append((x.w, x.tag, True))
    for name, b in blocks.items():
        out = []
        for idx, x in enumerate(b.ins):
            n = need.get((name, idx))
            if n:
                s = 's_waitcnt' + (' vmcnt(%d)' % n[0] if n[0] is not None else '') + (' lgkmcnt(%d)' % n[1] if n[1] is not None else '')
                out.append(Ins(s))
            if x.cls != 'pseudo': out.append(x)
        b.ins = out

def hazard_need(p, c):
    n = 0
    pv = p.cls in ('valu', 'trans')
    cv = c.cls in ('valu', 'trans')
    if p.cls == 'mfma':
        x8 = p.passes == 8
        if c.cls == 'mfma':
            if p.w & c.r: n = max(n, 12 if x8 else 8)
            if p.w & c.rc and not (p.w == c.rc and p.passes == c.passes): n = max(n, 10 if x8 else 6)
            if p.w & c.w and not (p.w == c.rc and p.passes == c.passes): n = max(n, 10 if x8 else 6)
        elif cv:
            if p.w & (c.r | c.w): n = max(n, 12 if x8 else 8)
            if p.rc & c.w: n = max(n, 7 if x8 else 3)
        elif c.cls in ('dsr', 'dsw', 'vld', 'vst', 'dma'):
            if p.w & (c.r | c.w): n = max(n, 12 if x8 else 8)
            if p.rc & c.w: n = max(n, 7 if x8 else 3)
    if pv:
        vw = {r for r in p.w if r[0] in 'va' and r != 'vcc'}
        sw = p.w - vw
        if c.cls == 'mfma' and vw & (c.r | c.rc): n = max(n, 2)
        if c.cls == 'mfma' and 'exec' in p.w: n = max(n, 4)
        if cv:
            if p.cls == 'trans' and c.cls != 'trans' and vw & c.r: n = max(n, 1)
            if p.cls == 'trans' and c.cls == 'trans' and vw & c.r: n = max(n, 1)
            if c.op.startswith('v_permlane') and vw & c.r: n = max(n, 2)
            if (c.op.startswith('v_readfirstlane') or c.op.startswith('v_readlane')) and vw & c.r: n = max(n, 1)
            if 'dpp' in c.text or 'row_' in c.text or 'quad_perm' in c.text:
                if vw & c.r: n = max(n, 2)
            if sw & c.r: n = max(n, 2)
            if c.op.startswith('v_cndmask') and 'vcc' in sw and 'vcc' in c.text: n = max(n, 2)
            if (c.op.startswith('v_readlane') or c.op.startswith('v_writelane')) and sw & c.r: n = max(n, 4)
        if c.cls in ('vld', 'vst', 'dma') and sw & c.r: n = max(n, 5)
        if c.cls in ('salu', 'smem') and sw & c.r: n = max(n, 2)
        if c.cls == 'ctl' and sw & c.r: n = max(n, 1)
    if p.cls == 'salu' and 'm0' in p.w and c.cls == 'dma': n = max(n, 1)
    if p.cls == 'vst' and p.wide and p.data & c.w: n = max(n, 2 if cv else 1)
    if p.cls == 'dsw' and False: pass
    return n

def place_nops(blocks, traces, window=24):
    need = {}
    for tr in traces:
        hist = []
        for name in tr:
            for idx, x in enumerate(blocks[name].ins):
                if x.cls in ('label', 'dir', 'pseudo'): continue
                d = 0; req = 0
                for p, st in reversed(hist):
                    h = hazard_need(p, x)
                    if h - d > req: req = h - d
                    d += st
                    if d >= 20: break
                pre = need.get((name, idx), 0)
                if req > pre: need[(name, idx)] = req; pre = req
                if pre: hist.append((Ins('s_nop 0'), pre))
                hist.append((x, x.passes if x.cls == 'nop' else 1))
                if len(hist) > window + 8: hist = hist[-window:]
    total = 0
    for name, b in blocks.items():
        out = []
        for idx, x in enumerate(b.ins):
            n = need.get((name, idx), 0)
            total += n
            while n > 0:
                k = min(n, 16); out.append(Ins('s_nop %d' % (k - 1))); n -= k
            out.append(x)
        b.ins = out
    return total

class Glued(Ins):
    __slots__ = ('lst',)
    def __init__(self, x): self.lst = [x]
    def cost(self): return sum(y.cost() for y in self.lst)

class Gaps:
    def __init__(self, backbone, budget):
        self.bb = backbone; self.budget = budget
        self.g = {i: [] for i in range(-1, len(backbone))}
    def used(self, i): return sum(x.cost() for x in self.g[i])
    def put(self, i, *ins, front=False):
        lst = [x if isinstance(x, Ins) else Ins(x) for x in ins]
        if front: self.g[i] = lst + self.g[i]
        else: self.g[i].extend(lst)
    def spread(self, chain, lo, hi):
        chain = [x if isinstance(x, Ins) else Ins(x) for x in chain]
        for level in range(4, 2000, 2):
            pos = []; i = lo; u = self.used(i)
            ok = True
            for x in chain:
                while u + x.cost() > level:
                    i += 1
                    if i > hi: ok = False; break
                    u = self.used(i)
                if not ok: break
                pos.append(i); u += x.cost()
            if ok:
                for x, i in zip(chain, pos): self.g[i].append(x)
                return level
        raise RuntimeError('cannot spread')
    def dp(self, chain, gaps, lo=None, hi=None):
        chain = [x if isinstance(x, Ins) else Ins(x) for x in chain]
        n, m = len(chain), len(gaps)
        lo = lo or [0] * n; hi = hi or [m - 1] * n
        base = [self.used(g) for g in gaps]
        pre = [0]
        for x in chain: pre.append(pre[-1] + x.cost())
        def pen(u): return max(0, u - self.budget) * 100 + u * u * 0.01
        INF = 1e18
        best = [[INF] * (n + 1) for _ in range(m + 1)]; arg = [[0] * (n + 1) for _ in range(m + 1)]
        best[0][0] = 0
        for k in range(m):
            for i in range(n + 1):
                if best[k][i] >= INF: continue
                j = i
                while True:
                    c = best[k][i] + pen(base[k] + pre[j] - pre[i])
                    if c < best[k + 1][j]: best[k + 1][j] = c; arg[k + 1][j] = i
                    if j == n or not (lo[j] <= k <= hi[j]) or j - i > 40: break
                    j += 1
        assert best[m][n] < INF, 'dp infeasible'
        pos = [0] * n; j = n
        for k in range(m, 0, -1):
            i = arg[k][j]
            for t in range(i, j): pos[t] = k - 1
            j = i
        return chain, pos
    def spread2(self, chain, lo, hi, cluster=1):
        chain = [x if isinstance(x, Ins) else Ins(x) for x in chain]
        items = []
        for x in chain:
            if items and cluster > 1 and x.cls == 'dma' and 0 < sum(y.cls == 'dma' for y in items[-1].lst) < cluster: items[-1].lst.append(x)
            elif items and x.op in ('s_addc_u32', 's_cselect_b32', 's_cbranch_scc0', 's_cbranch_scc1'): items[-1].lst.append(x)
            else: items.append(Glued(x))
        ch, pos = self.dp(items, list(range(lo, hi + 1)))
        for x, p in zip(ch, pos): self.g[lo + p].extend(x.lst)
    def emit(self, lo=-1, hi=None, with_mfma=True):
        out = []
        hi = len(self.bb) - 1 if hi is None else hi
        for i in range(lo, hi + 1):
            if i >= 0 and with_mfma: out.append(self.bb[i])
            out.extend(self.g[i])
        return out
    def est_cycles(self, mf=32):
        return sum(max(mf, 8 + self.used(i)) for i in range(len(self.bb))) + self.used(-1)

def render(blocks_in_order):
    L = []
    for b in blocks_in_order:
        for x in b.ins:
            L.append(x.text if x.cls in ('label', 'dir') else '    ' + x.text)
    return '\n'.join(L) + '\n'
```

```python
import sys, math, struct
from asmlib import *

NAME = "concat_heads__gqa_block_cached__gqa_block_cached__near_ridge"
def f32bits(x): return struct.unpack('<I', struct.pack('<f', x))[0]
MF = 'v_mfma_f32_16x16x32_bf16'
def vr(b, n=1, k='v'): return '%s%d' % (k, b) if n == 1 else '%s[%d:%d]' % (k, b, b + n - 1)
def ar(b, n=1): return vr(b, n, 'a')

class Opt:
    kv_pol = ' nt'; w_pol = ''; x_pol = ''; o_st_pol = ' sc1'; o_ld_pol = ' sc1'; wo_pol = ''; out_pol = ''; p_st_pol = ' sc1'; p_ld_pol = ' sc1'
    stamps = False; fallback = True; ones = True; nokv = False; nox = False; noxq = False; qstamps = False
    dsp = 10; kvend = 13; burst = ' 9:2 12:2'; k2stag = 1; qevery = 4; warm = 336; qf = ' '; pk = False; upfront = 3; diag = ' '; spin = 32768; z0pos = 3; stcap = 0; pecap = False; fs = False; t2x = ' '; early = False; sent = False; chkb = 168; pleadb = 30; qcl = 1; fbk = 0; fbn = 4; fbpos = 56; sb = 1; t2mode = 0; o3n = 10; pstamps = False; tstamps = False; thre = 0; thro = 4; thrn = 2; ptouch = False; touchc = 16; flagpos = 40; pollpos = 90; chkpos = 125; chk2 = 235; chk3 = 355; plead = 40; pbf = True; pk2 = True
opt = Opt()

S_K, S_V, S_X, S_WQ, S_O = 4, 8, 12, 16, 20
sW, sW4, sKO, sVO, sCNT, sEX, sC0, sB, sBR, sH1, sTH, sM0B = 24, 25, 26, 27, 28, 29, 30, 31, 32, 33, 34, 35
sSC = 36
S_TS, sTSA, sTSN = 52, 56, 58
sWO, sXO = 76, 92
STASH = {'K2': 32, 'V2': 224, 'K3': 240}
vSW = 2
vKA, vVA, vKD, vVD, vLANE, vL = 8, 12, 20, 24, 26, 59
vF = 32; NB = 4
vWA, vXA, vWD, vXD = 48, 52, 54, 58
vACC = 64
def rQ(k, qs): return vACC + 8 * (5 * k + qs)
def hole(i): return vACC + 8 * i + 4
def rS(kt, qs): return hole(5 * kt + qs)
def rP(par, qs): return hole(10 + 5 * par + qs)
vN = 224
vT = 48; vT2 = 244
def aO(dt, qs): return 4 * (5 * dt + qs)
aL, aONE, aFA, aFB = 160, 180, 184, 200
KS0, VS0 = 0, 65536
WBUF = [139264, 32768, 49152]
XBUF = [98304, 118784]
sJP, sKQ = 3, 59
S_F, S_D, S_P, S_OUT, S_WO, S_OR = 44, 48, 64, 68, 12, 16
sOK, sWOO, sORO, sPW, sPR, sD01, sD12, sMK1, sMK2 = 76, 80, 88, 96, 99, 30, 33, 42, 43
MK1 = [None, 42, 60, 61]
POFF, FOFF, TSOFF = 0x1500000, 0x2a00000, 0x3000000
vOD, vOL, vXW, vXR, vYW, vYR, vST, vFA, vPA, vDA = 54, 58, 62, 63, 48, 49, 50, 51, 28, 30
vRA = list(range(246, 254))
WOB = [131072, 0, 65536, 32768, 98304]
BADB = 98304 + 10240
BS = [[vACC + 8 * i for i in range(10)], [vACC + 8 * i for i in range(10, 20)], [hole(i) for i in range(10)]]
SPIN = 1 << 15

def stamp_ins():
    if not opt.stamps: return []
    return [I('s_memrealtime s[%d:%d]' % (sTSA, sTSA + 1)), I('s_memtime s[62:63]'), I('s_waitcnt lgkmcnt(0)'), I('v_mov_b32 v5, s%d' % sTSA), I('v_mov_b32 v6, s%d' % sTSN), I('v_mov_b32 v7, s62'),
            I('buffer_store_dword v5, v6, s[%d:%d], 0 offen' % (S_TS, S_TS + 3), 'stamp'), I('buffer_store_dword v7, v6, s[%d:%d], 0 offen offset:256' % (S_TS, S_TS + 3), 'stamp'), I('s_add_u32 s%d, s%d, 4' % (sTSN, sTSN))]
def stamp(b): b.extend(stamp_ins())
def stamp_setup(b, ws, w, off=TSOFF, first=False):
    if not opt.stamps: return
    b('''s_lshl_b32 s39, s2, 9
         s_add_u32 s39, s39, {off}
         s_add_u32 s{T}, s{ws}, s39
         s_addc_u32 s{T1}, s{ws1}, 0
         s_cmp_eq_u32 s{w}, 0
         s_cselect_b32 s{T2}, 512, 0
         s_mov_b32 s{T3}, 0x20000
         s_mov_b32 s{N}, 0'''.format(T=S_TS, T1=S_TS + 1, T2=S_TS + 2, T3=S_TS + 3, w=w, ws=ws, ws1=ws + 1, N=sTSN, off=off))
    if first:
        b('v_mov_b32 v5, s100\nv_mov_b32 v6, 0\nv_mov_b32 v7, s42')
        b('buffer_store_dword v5, v6, s[%d:%d], 0 offen\nbuffer_store_dword v7, v6, s[%d:%d], 0 offen offset:256\ns_mov_b32 s%d, 4' % (S_TS, S_TS + 3, S_TS, S_TS + 3, sTSN))
    stamp(b)

def srd(b, d, lo, off, num):
    b('s_add_u32 s%d, s%d, %s\ns_addc_u32 s%d, s%d, 0\n%s\ns_mov_b32 s%d, 0x20000' % (d, lo, off, d + 1, lo + 1,
      ('s_mov_b32 s%d, %d' % (d + 2, num)) if isinstance(num, int) else num % (d + 2), d + 3))

def off_calc(X):
    return ['s_add_u32 s38, s%d, %d' % (sC0, X), 's_and_b32 s38, s38, 7', 's_lshl_b32 s%d, s38, 19' % (sWO + 2 * X),
            's_add_u32 s%d, s%d, 262144' % (sWO + 2 * X + 1, sWO + 2 * X)]
def dma_wq(c):
    G = [[I('s_add_u32 m0, s%d, %d' % (sW4, WBUF[c % 3]))]]
    for n in range(4):
        G.append([I('buffer_load_dwordx4 v%d, s[%d:%d], s%d offen offset:%d%s lds' % (vWD + n, S_WQ, S_WQ + 3, sWO + c, 1024 * n, opt.w_pol), 'wq%d' % c)])
    return G
def dma_x(X):
    G = [[I('s_lshr_b32 s39, s%d, 12' % (sWO + 2 * X))], [I('s_add_u32 m0, s%d, %d' % (sW4, XBUF[X % 2]))]]
    for n in range(4):
        G.append([I('buffer_load_dwordx4 v%d, s[%d:%d], s%d offen offset:%d%s lds' % (vXD + n, S_X, S_X + 3, 39, 1024 * n, opt.x_pol), 'x%d' % X)])
    G.append([I('s_add_u32 m0, s%d, %d' % (sM0B, XBUF[X % 2] + 16384))])
    G.append([I('buffer_load_dwordx4 v%d, s[%d:%d], s%d offen%s lds' % (vXD + 4, S_X, S_X + 3, 39, opt.x_pol), 'x%d' % X)])
    return G
def stash_load(which, slot):
    K = which == 'K'; srd_, so = (S_K, sKO) if K else (S_V, sVO); r = STASH['%s%d' % (which, slot)]
    G = [[I('buffer_load_dwordx4 %s, v%d, s[%d:%d], s%d offen offset:%d%s' % (vr(r + 4 * m, 4), vKD + m if K else vVD + m % 2, srd_, srd_ + 3, so, 1024 * m, opt.kv_pol), 'st')] for m in range(4)]
    G[3].append(I('s_add_u32 s%d, s%d, 8192' % (so, so)))
    return G
def stash_flush(which, slot):
    r = STASH['%s%d' % (which, slot)]; base = (KS0 if which == 'K' else VS0) + 16384 * slot
    return [I('ds_write_b128 v%d, %s offset:%d' % (vSW + base // 65536, vr(r + 4 * m, 4), base % 65536 + 1024 * m)) for m in range(4)]
def dma_kv(which, slot, m0each=False):
    G = []; K = which == 'K'
    srd_, so = (S_K, sKO) if K else (S_V, sVO)
    for m in range(4):
        g = []
        if m == 0 or m0each: g.append(I('s_add_u32 m0, s%d, %d' % (sW4, (KS0 if K else VS0) + 16384 * slot)))
        g.append(I('buffer_load_dwordx4 v%d, s[%d:%d], s%d offen offset:%d%s lds' % (vKD + m if K else vVD + m % 2, srd_, srd_ + 3, so, 1024 * m, opt.kv_pol), '%s%d' % (which, slot)))
        if m == 3: g.append(I('s_add_u32 s%d, s%d, 8192' % (so, so)))
        G.append(g)
    return G

def dma_wo(c):
    buf = WOB[c % 5]; G = []
    for m in range(8):
        g = []
        if m == 4: g.append(I('s_add_u32 s2, s%d, 16384' % (sWOO + c)))
        if m % 4 == 0: g.append(I('s_add_u32 m0, s%d, %d' % (sM0B, buf + 4096 * (m // 4))))
        g.append(I('buffer_load_dwordx4 v%d, s[%d:%d], s%d offen offset:%d%s lds' % (vOD + m % 4, S_WO, S_WO + 3, sWOO + c if m < 4 else 2, 1024 * (m % 4), opt.wo_pol), 'wo%d' % c))
        G.append(g)
    return G

def tail_setup_a(b):
    b('s_mov_b32 s72, s92\ns_mov_b32 s73, s93')
    b('''s_and_b32 s98, s{w}, 1
         s_lshr_b32 s99, s{w}, 1
         s_lshl_b32 s96, s{B}, 1
         s_add_u32 s96, s96, s98
         s_mul_i32 s96, s96, 163840
         s_lshl_b32 s97, s{BR}, 2
         s_add_u32 s97, s97, s{JP}
         s_lshl_b32 s97, s97, 1
         s_add_u32 s97, s97, s99
         s_lshl_b32 s97, s97, 2
         s_add_u32 s97, s97, s{KQ}
         s_lshl_b32 s97, s97, 5
         s_add_u32 s96, s96, s97'''.format(w=sW, B=sB, BR=sBR, JP=sJP, KQ=sKQ))
    srd(b, S_OUT, 94, 's96', 's_sub_u32 s%d, 2621440, s96')
    for p in (1, 2, 3): b('s_add_u32 s38, s%d, %d\ns_and_b32 s38, s38, 3\ns_lshl_b32 s38, s38, 2\ns_add_u32 s38, s38, s98\ns_lshl_b32 s%d, 5, s38' % (sJP, p, MK1[p]))
    b('s_lshl_b32 s38, 0x1111, s%d\ns_lshl_b32 s39, s%d, 2\ns_lshl_b32 s39, 15, s39\ns_andn2_b32 s%d, s38, s39' % (sW, sKQ, sMK2))
    b('s_lshl_b32 s38, s%d, 3\ns_add_u32 s38, s38, s%d\ns_lshl_b32 s38, s38, 2\ns_add_u32 s38, s38, s%d\ns_mul_i32 s38, s38, 327680\ns_mul_i32 s39, s%d, 5120\ns_add_u32 s38, s38, s39\ns_add_u32 s38, s38, 0x%x' % (sBR, sB, sJP, sW, POFF))
    srd(b, S_P, 74, 's38', 's_sub_u32 s%d, 327680, s39')
    for j in (1, 2, 3):
        b('s_xor_b32 s38, s%d, %d\ns_lshl_b32 s39, s38, 2\ns_add_u32 s39, s39, s%d\ns_mul_i32 s%d, s39, 20480' % (sKQ, j, sKQ, sPW + j - 1))
        b('s_lshl_b32 s39, s%d, 2\ns_add_u32 s39, s39, s38\ns_mul_i32 s%d, s39, 20480' % (sKQ, sPR + j - 1))

def wo_srd(b, S_WO=S_WO):
    b('s_lshl_b32 s38, s%d, 20\ns_lshl_b32 s39, s%d, 8\ns_add_u32 s38, s38, s39' % (sKQ, sJP))
    srd(b, S_WO, 72, 's38', 's_sub_u32 s%d, 4194304, s38')
def wo_touch(b):
    b('s_lshl_b32 s38, s%d, 2\ns_add_u32 s38, s38, s%d\ns_lshl_b32 s38, s38, 15\nv_lshrrev_b32 v4, 1, v%d\nv_and_b32 v5, 1, v%d\nv_lshlrev_b32 v5, 7, v5\nv_lshl_add_u32 v4, v4, 10, v5' % (sB, sW, vLANE, vLANE))
    b('buffer_load_dword v31, v4, s[%d:%d], s38 offen' % (S_WO, S_WO + 3))
def tail_setup_b(b):
    L = vLANE
    b('s_and_b32 s78, s%d, 1\ns_lshr_b32 s79, s%d, 1' % (sW, sW))
    b('''s_lshl_b32 s38, s{BR}, 3
         s_add_u32 s38, s38, s{B}
         s_lshl_b32 s38, s38, 2
         s_add_u32 s38, s38, s{KQ}
         s_mul_i32 s38, s38, 327680
         s_mul_i32 s39, s79, 20480
         s_mul_i32 s40, s78, 5120
         s_add_u32 s39, s39, s40
         s_add_u32 s38, s38, s39'''.format(B=sB, BR=sBR, KQ=sKQ))
    srd(b, S_OR, 74, 's38', 's_sub_u32 s%d, 327680, s39')
    b('s_lshl_b32 s40, s%d, 15\ns_lshl_b32 s%d, s%d, 13' % (sW, sM0B, sW))
    for c in range(8):
        b('s_lshl_b32 s38, s%d, 1\ns_add_u32 s38, s38, %d\ns_and_b32 s38, s38, 7\n%s\ns_mul_i32 s%d, s39, 40960\ns_lshl_b32 s38, s38, 17\ns_add_u32 s%d, s38, s40' % (sJP, c, 's_xor_b32 s39, s38, s79' if opt.early else 's_mov_b32 s39, s38', sORO + c, sWOO + c))
    if opt.sent:
        b('v_mov_b32 v27, 0x100000')
        for j in range(3): b('s_add_u32 s38, s%d, 2048\nv_writelane_b32 v27, s38, %d' % (sPR + j, j))
    b('v_lshrrev_b32 v4, 4, v%d\nv_and_b32 v5, 15, v%d' % (L, L))
    for m in range(4):
        b('v_add_u32 v6, %d, v4\nv_lshlrev_b32 v6, 1, v6\nv_xor_b32 v6, v6, v5\nv_lshlrev_b32 v6, 4, v6\nv_lshl_add_u32 v6, v4, 10, v6\nv_add_u32 v%d, %d, v6' % (4 * (m % 2), vOD + m, 3072 * m))
    b('v_lshlrev_b32 v%d, 4, v%d' % (vOL, L))
    for i, o in ((1, 4096), (2, 10240), (3, 14336)): b('v_add_u32 v%d, %d, v%d' % (vOL + i, o, vOL))
    b('v_lshlrev_b32 v5, 11, v5\nv_lshl_add_u32 v%d, v4, 3, v5' % vST)
    for (reg, wsel, step, lo, hi) in ((vXW, sW, 10240, 32768, 98304), (vXR, 41, 10240, 32768, 98304), (vYW, sW, 20480, 98304, 32768), (vYR, 41, 20480, 98304, 32768)):
        b('s_xor_b32 s41, s%d, 2\ns_mul_i32 s38, s%d, %d\ns_add_u32 s38, s38, %d\ns_cmp_eq_u32 s%d, 3\ns_cselect_b32 s38, %d, s38\nv_add_u32 v%d, s38, v%d' % (sW, wsel, step, lo, wsel, hi, reg, vOL))
    b('''v_lshrrev_b32 v6, 4, v{L}
          v_bfe_u32 v4, v{L}, 2, 2
          v_lshl_add_u32 v6, v6, 2, v4
          v_and_b32 v4, 3, v{L}
          v_lshlrev_b32 v4, 3, v4
          v_lshl_add_u32 v4, v6, 8, v4
          s_lshr_b32 s38, s{w}, 1
          s_lshl_b32 s39, s38, 2
          s_add_u32 s39, s39, s{KQ}
          s_mul_i32 s38, s38, {x}
          s_add_u32 s38, s38, 131072
          v_add_u32 v4, s38, v4
          v_and_b32 v6, 7, v6
          v_xor_b32 v6, s39, v6'''.format(L=L, w=sW, KQ=sKQ, x=(16384 - 131072) & 0xffffffff))
    for n in range(8): b('v_xor_b32 v5, %d, v6\nv_lshl_add_u32 v%d, v5, 5, v4' % (n, vRA[n]))
    b('s_lshl_b32 s38, s%d, 2\ns_add_u32 s38, s38, s%d\ns_lshl_b32 s38, s38, 2\nv_readfirstlane_b32 s39, v%d\ns_add_u32 s38, s38, s39\nv_lshl_add_u32 v%d, v%d, 16, s38' % (sJP, sW, vPA, vFA, L))
    b('s_lshl_b32 s38, s%d, 2\ns_add_u32 s38, s38, s%d\ns_lshl_b32 s38, s38, 2\nv_readfirstlane_b32 s39, v%d\ns_add_u32 s38, s38, s39\nv_lshl_add_u32 v%d, v%d, 16, s38' % (sKQ, sW, vPA + 1, vFA + 1, L))
    for kl in range(4): b('s_lshl_b32 s38, s79, 1\ns_xor_b32 s38, s38, %d\ns_mul_i32 s%d, s38, 10240' % (kl, 38 if kl == 3 else sOK + kl))
    b('s_mov_b32 s%d, s38' % (sOK + 3))

def k1_setup():
    b = Block('setup'); L = vLANE; T = vT2
    b('s_cmp_ge_u32 s2, 256\ns_cbranch_scc1 L_k1_end')
    if opt.stamps: b('s_memrealtime s[100:101]\ns_memtime s[42:43]')
    if opt.warm: b('s_getpc_b64 s[96:97]')
    b('''s_and_b32 s38, s2, 7
         s_lshr_b32 s{BR}, s38, 2
         s_and_b32 s{KQ}, s38, 3
         s_lshr_b32 s39, s2, 3
         s_and_b32 s{B}, s39, 7
         s_lshr_b32 s{JP}, s39, 3
         s_lshl_b32 s38, s{KQ}, 3
         s_lshl_b32 s40, s{JP}, 1
         s_add_u32 s{H}, s38, s40
         s_add_u32 s{C}, s{B}, s40
         s_and_b32 s{C}, s{C}, 7
         s_mul_i32 s38, s{BR}, 40
         s_add_u32 s60, s0, s38
         s_addc_u32 s61, s1, 0
         s_load_dwordx8 s[64:71], s[60:61], 0
         s_load_dwordx4 s[72:75], s[0:1], 88
         s_load_dwordx2 s[92:93], s[60:61], 32
         s_load_dwordx2 s[94:95], s[0:1], 80
         v_lshrrev_b32 v1, 6, v0
         v_and_b32 v{L}, 63, v0
         v_readfirstlane_b32 s{W}, v1
         v_and_b32 v1, 31, v{L}
         v_lshrrev_b32 v2, 5, v{L}
         v_lshrrev_b32 v3, 4, v{L}
         v_and_b32 v4, 15, v{L}
         s_lshl_b32 s{W4}, s{W}, 12
         s_lshl_b32 s{M}, s{W}, 10'''.format(BR=sBR, B=sB, H=sH1, C=sC0, L=L, W=sW, W4=sW4, M=sM0B, KQ=sKQ, JP=sJP))
    b('s_lshl_b32 s39, s%d, 16' % sW)
    for n in range(4):
        b('''v_add_u32 v{a}, {n2}, v2
             v_and_b32 v{c}, 3, v{a}
             v_lshlrev_b32 v{c}, 2, v{c}
             v_xor_b32 v{c}, v{c}, v1
             v_lshlrev_b32 v{c}, 4, v{c}
             v_lshl_add_u32 v{c}, v{a}, 13, v{c}
             v_add_u32 v{c}, s39, v{c}
             v_subrev_u32 v{d}, {sub}, v{c}'''.format(a=T, c=T + 1, n2=2 * n, d=vWD + n, sub=1024 * n))
    b('s_lshl_b32 s39, s%d, 15\nv_lshrrev_b32 v%d, 3, v%d\nv_and_b32 v%d, 7, v%d\ns_lshl_b32 s38, s%d, 2' % (sW, T + 3, L, T + 4, L, sW))
    for n in range(4):
        b('''v_add_u32 v{a}, {n4}, v3
             v_and_b32 v{a}, 7, v{a}
             v_xor_b32 v{a}, v{a}, v{p}
             v_lshlrev_b32 v{a}, 4, v{a}
             v_lshl_add_u32 v{a}, v{r}, 10, v{a}
             v_add_u32 v{a}, {add}, v{a}
             v_add_u32 v{d}, s39, v{a}'''.format(a=T, n4=4 * n, p=T + 4, r=T + 3, add=7 * 1024 * n, d=vXD + n))
    b('''s_lshl_b32 s39, s{w}, 13
         s_add_u32 s39, s39, 131072
         v_add_u32 v{a}, s38, v3
         v_and_b32 v{a}, 7, v{a}
         v_xor_b32 v{a}, v{a}, v{p}
         v_lshlrev_b32 v{a}, 4, v{a}
         v_lshl_add_u32 v{a}, v{r}, 10, v{a}
         v_add_u32 v{d}, s39, v{a}'''.format(w=sW, a=T, p=T + 4, r=T + 3, d=vXD + 4))
    b('s_waitcnt lgkmcnt(0)')
    b('s_mul_i32 s39, s%d, 163840' % sB); srd(b, S_X, 64, 's39', 163840)
    b('s_lshl_b32 s39, s%d, 8' % sH1); srd(b, S_WQ, 70, 's39', 's_sub_u32 s%d, 4194304, s39')
    if opt.nox: b('s_mov_b32 s%d, 0' % (S_X + 2))
    if opt.noxq: b('s_mov_b32 s%d, 0' % (S_WQ + 2))
    b.extend(off_calc(0) + off_calc(1))
    for g in dma_wq(0) + dma_x(0) + (dma_wq(1) + dma_x(1) + dma_wq(2) if opt.upfront == 2 else []): b.extend(g)
    if opt.warm:
        n8 = (opt.warm + 7) // 8
        b('s_lshr_b32 s38, s2, 3\ns_and_b32 s38, s38, 7\ns_mul_i32 s38, s38, %d\nv_min_u32 v6, %d, v%d\nv_add_u32 v6, s38, v6\nv_lshlrev_b32 v6, 7, v6\nv_mov_b32 v7, s97' % (n8, n8 - 1, L))
        b('v_add_co_u32 v6, vcc, s96, v6\nv_addc_co_u32 v7, vcc, 0, v7, vcc\nglobal_load_dword v63, v[6:7], off')
    for X in range(2, 8): b.extend(off_calc(X))
    b('s_lshr_b32 s41, s%d, 1\ns_lshl_b32 s38, s%d, 5\ns_add_u32 s38, s38, s%d\ns_add_u32 s38, s38, s41\ns_lshl_b32 s39, s38, 18' % (sW, sB, sH1))
    srd(b, S_K, 66, 's39', 0 if opt.nokv else 262144); srd(b, S_V, 68, 's39', 0 if opt.nokv else 262144)
    b('s_lshl_b32 s39, s%d, 8\ns_add_u32 s38, s38, s39\ns_mul_i32 s39, s38, 40960\ns_and_b32 s40, s%d, 1\ns_mul_i32 s38, s40, 5120\ns_add_u32 s39, s39, s38' % (sBR, sW))
    srd(b, S_O, 74, 's39', 's_sub_u32 s%d, 40960, s38')
    b('s_lshl_b32 s%d, s40, 12\ns_mov_b32 s%d, s%d' % (sKO, sVO, sKO))
    stamp_setup(b, 74, sW, first=True)
    srd(b, S_F, 74, '0x%x' % FOFF, 32768); srd(b, S_D, 72, '0', 256)
    b('''s_and_b32 s38, s2, 7
         s_lshl_b32 s38, s38, 3
         s_add_u32 s38, s38, s{B}
         s_lshl_b32 s39, s{BR}, 3
         s_add_u32 s39, s39, s{B}
         s_lshl_b32 s39, s39, 2
         s_add_u32 s39, s39, s{JP}
         v_and_b32 v5, 1, v{L}
         v_mov_b32 v6, s38
         v_mov_b32 v7, s39
         v_cmp_eq_u32 vcc, 0, v5
         v_cndmask_b32 v6, v7, v6, vcc
         v_lshlrev_b32 v{DA}, 2, v6
         s_lshl_b32 s38, s38, 7
         s_lshl_b32 s39, s39, 7
         s_add_u32 s39, s39, 8192
         v_lshl_add_u32 v{PA}, v4, 2, s38
         v_lshl_add_u32 v{PB}, v4, 2, s39
         s_lshl_b32 s41, s{JP}, 4
         s_add_u32 s38, s38, s41
         s_lshl_b32 s41, s{KQ}, 4
         s_add_u32 s39, s39, s41
         v_mov_b32 v6, s38
         v_mov_b32 v7, s39
         v_cndmask_b32 v6, v7, v6, vcc
         v_lshrrev_b32 v7, 1, v0
         v_lshl_add_u32 v6, v7, 16, v6
         v_mov_b32 v{T}, 0
         v_mov_b32 v{T1}, 0
         v_mov_b32 v{T2}, 0
         v_mov_b32 v{T3}, 0'''.format(B=sB, BR=sBR, JP=sJP, KQ=sKQ, L=L, DA=vDA, PA=vPA, PB=vPA + 1, T=T, T1=T + 1, T2=T + 2, T3=T + 3))
    b('buffer_store_dwordx4 %s, v6, s[%d:%d], 0 offen sc1' % (vr(T, 4), S_F, S_F + 3), 'fz')
    if opt.fbk:
        b('''v_readfirstlane_b32 s38, v{PA}
             v_readfirstlane_b32 s39, v{PB}
             v_and_b32 v5, 3, v{L}
             v_lshlrev_b32 v5, 2, v5
             v_and_b32 v6, 4, v{L}
             v_cmp_eq_u32 vcc, 0, v6
             s_add_u32 s38, s38, 16384
             s_add_u32 s39, s39, 16384
             v_add_u32 v6, s38, v5
             v_add_u32 v7, s39, v5
             v_cndmask_b32 v249, v7, v6, vcc
             s_lshl_b32 s41, s{JP}, 2
             s_add_u32 s38, s38, s41
             s_lshl_b32 s41, s{KQ}, 2
             s_add_u32 s39, s39, s41
             v_and_b32 v5, 1, v{L}
             v_cmp_eq_u32 vcc, 0, v5
             v_mov_b32 v6, s38
             v_mov_b32 v7, s39
             v_cndmask_b32 v6, v7, v6, vcc
             v_lshrrev_b32 v7, 1, v0
             v_lshl_add_u32 v250, v7, 16, v6
             v_mov_b32 v251, 0'''.format(PA=vPA, PB=vPA + 1, L=L, JP=sJP, KQ=sKQ))
        b('buffer_store_dword v251, v250, s[%d:%d], 0 offen sc1' % (S_F, S_F + 3))
    tail_setup_a(b)
    if opt.ptouch:
        wo_srd(b, 92)
        b('v_mov_b32 v7, 0')
        for i, d in enumerate((S_K, S_V, S_O, S_P, S_OUT, 92)): b('buffer_load_dword v%d, v7, s[%d:%d], 0 offen%s' % (250 + i, d, d + 3, ' nt' if i < 2 else ''))
    b('s_lshr_b32 s41, s%d, 1' % sW)
    b('v_bfe_u32 v5, v%d, 2, 2\nv_and_b32 v6, 3, v%d' % (L, L))
    for m in range(4):
        b('v_add_u32 v%d, %d, v3\nv_xor_b32 v%d, v%d, v4\nv_lshlrev_b32 v%d, 4, v%d\nv_lshl_add_u32 v%d, v3, 8, v%d' % (T, 4 * m, T, T, T, T, vKD + m, T))
    for m in range(2):
        b('v_add_u32 v%d, %d, v3\nv_lshlrev_b32 v%d, 1, v%d\nv_xor_b32 v%d, v%d, v4\nv_lshlrev_b32 v%d, 4, v%d\nv_lshl_add_u32 v%d, v3, 8, v%d' % (T, 4 * m, T, T, T, T, T, T, vVD + m, T))
    b('s_lshl_b32 s41, s41, 13\nv_xor_b32 v%d, v3, v4\nv_lshlrev_b32 v%d, 8, v4\nv_add_u32 v%d, s41, v%d' % (T, T + 1, T + 1, T + 1))
    for k in range(4): b('v_xor_b32 v%d, %d, v%d\nv_lshl_add_u32 v%d, v%d, 4, v%d' % (T + 2, 4 * k, T, vKA + k, T + 2, T + 1))
    b('''v_lshl_add_u32 v{a}, v3, 2, v5
         v_lshlrev_b32 v{c}, 8, v{a}
         v_lshl_add_u32 v{c}, v6, 3, v{c}
         s_add_u32 s41, s41, {vs}
         v_add_u32 v{c}, s41, v{c}
         v_and_b32 v{a}, 7, v{a}
         s_and_b32 s38, s{w}, 2
         s_lshl_b32 s38, s38, 1
         v_xor_b32 v{a}, s38, v{a}'''.format(a=T, c=T + 1, vs=VS0, w=sW))
    for dt in range(8): b('v_xor_b32 v%d, %d, v%d\nv_lshl_add_u32 v%d, v%d, 5, v%d' % (T + 2, dt, T, vVA + dt, T + 2, T + 1))
    b('''v_lshl_add_u32 v{c}, v3, 3, v5
         v_lshlrev_b32 v{c}, 9, v{c}
         s_lshr_b32 s41, s{w}, 1
         s_lshl_b32 s41, s41, 8
         v_add_u32 v{c}, s41, v{c}
         v_lshl_add_u32 v{a}, v5, 2, v6'''.format(a=T, c=T + 1, w=sW))
    for k in range(4): b('v_xor_b32 v%d, %d, v%d\nv_lshl_add_u32 v%d, v%d, 4, v%d' % (T + 2, 4 * k, T, vWA + k, T + 2, T + 1))
    b('''v_lshrrev_b32 v{a}, 1, v4
         v_xor_b32 v{a}, v{a}, v3
         s_mul_i32 s41, s40, 10240
         s_add_u32 s41, s41, {xb}
         v_lshlrev_b32 v{c}, 7, v4
         v_add_u32 v{c}, s41, v{c}'''.format(a=T, c=T + 1, xb=XBUF[0]))
    for k in range(2): b('v_xor_b32 v%d, %d, v%d\nv_lshl_add_u32 v%d, v%d, 4, v%d' % (T + 2, 4 * k, T, vXA + k, T + 2, T + 1))
    c = math.log2(math.e) / math.sqrt(128.0)
    b('s_mov_b32 s%d, 0x%08x\ns_mov_b32 s%d, 0x%08x\ns_mov_b32 s%d, 0x%08x\ns_mov_b32 s%d, 0' % (sSC, f32bits(c), sSC + 1, f32bits(c), sTH, f32bits(2.0 ** 30), sEX))
    b('v_lshl_add_u32 v%d, v%d, 4, s%d\nv_add_u32 v%d, 0x10000, v%d' % (vSW, L, sW4, vSW + 1, vSW))
    b('v_mov_b32 v%d, 0x3f803f80' % T)
    for i in range(4): b('v_accvgpr_write_b32 a%d, v%d' % (aONE + i, T))
    if opt.upfront != 2:
        for g in dma_wq(1) + (dma_x(1) if opt.upfront == 3 else []): b.extend(g)
    return b

def zero_acc():
    return ['v_accvgpr_write_b32 a%d, 0' % i for i in range(180 if opt.ones else 160)] + ([] if opt.ones else ['v_mov_b32 v%d, 0' % (vL + i) for i in range(5)])

def conv(k):
    L = []
    for qs in range(5):
        d = rQ(k, qs)
        if opt.fs: pass
        elif opt.pk: L += ['v_pk_mul_f32 %s, %s, s[%d:%d]' % (vr(d + 2 * i, 2), vr(d + 2 * i, 2), sSC, sSC + 1) for i in range(4)]
        else: L += ['v_mul_f32 v%d, s%d, v%d' % (d + i, sSC, d + i) for i in range(8)]
        L += ['v_cvt_pk_bf16_f32 v%d, v%d, v%d' % (d + i, d + 2 * i, d + 2 * i + 1) for i in range(4)]
    return L
def qk0_mfmas():
    bb = []
    for f in range(8):
        k, kt = divmod(f, 2)
        for qs in range(5):
            s = rS(kt, qs)
            bb.append(I('%s %s, %s, %s, %s' % (MF, vr(s, 4), vr(vF + 4 * (f % NB), 4), vr(rQ(k, qs), 4), '0' if k == 0 else vr(s, 4))))
    return bb
def kread0(f):
    k, kt = divmod(f, 2)
    return [I('ds_read_b128 %s, v%d offset:%d' % (vr(vF + 4 * (f % NB), 4), vKA + k, kt * 4096), 'g%d' % f)]

def k1_qproj():
    b = Block('qproj')
    bb = []
    for c in range(16):
        for t in range(8):
            for qs in range(5):
                d = rQ(t // 2, qs) + 4 * (t % 2)
                bb.append(I('%s %s, %s, %s, %s' % (MF, vr(d, 4), ar(aFA + 4 * (t % 4), 4), ar(aFB + 20 * (c % 2) + 4 * qs, 4), '0' if c == 0 else vr(d, 4))))
    G = Gaps(bb, 8)
    def ybar(c): return -1 if c == 0 else 40 * c - 14
    cur = [0] * 4
    def wq_read(c, t):
        k, bsel = divmod(t, 2)
        want = 0 if WBUF[c % 3] < 65536 else 131072
        off = WBUF[c % 3] - want + 8 * bsel
        r = aFA + 4 * (t % 4)
        L = []
        if bsel == 0 and want != cur[k]:
            L.append(I('v_add_u32 v%d, 0x%x, v%d' % (vWA + k, (want - cur[k]) & 0xffffffff, vWA + k))); cur[k] = want
        return L, [I('ds_read_b64_tr_b16 %s, v%d offset:%d' % (ar(r, 2), vWA + k, off), 'fa'), I('ds_read_b64_tr_b16 %s, v%d offset:%d' % (ar(r + 2, 2), vWA + k, off + 2048), 'fa%d_%d' % (c, t))]
    kvq = dma_kv('K', 0, True) + dma_kv('K', 1, True) + dma_kv('V', 0, True) + dma_kv('V', 1, True) + stash_load('K', 2) + stash_load('V', 2) + stash_load('K', 3)
    nkv = opt.kvend
    bursts = dict(tuple(int(v) for v in x.split(':')) for x in opt.burst.split())
    nst = sum(bursts.values()) - 4
    assert 0 <= nst <= 3
    if bursts: kvq = dma_kv('K', 0) + dma_kv('K', 1) + dma_kv('V', 0) + dma_kv('V', 1) + kvq[16:]
    for c in range(16):
        y = ybar(c); base = 40 * c
        G.put(y, I('@waitlgkm *'), I('@waitvm wq%d' % c + (',x%d' % (c // 2) if c % 2 == 0 else '') + (',K0' if c == 15 else '')), I('s_barrier'))
        if opt.qstamps and c % opt.qevery == 0: G.put(y, *stamp_ins())
        if c == 3:
            G.put(y + 9, I('v_and_b32 v4, 1, v%d' % vLANE)); G.put(y + 10, I('v_lshlrev_b32 v4, 4, v4')); G.put(y + 11, I('v_lshlrev_b32 v4, v4, 1'))
            G.put(y + 12, I('v_lshrrev_b32 v1, 1, v0')); G.put(y + 13, I('v_lshl_add_u32 v1, v1, 16, v%d' % vDA))
            G.put(y + 14, I('@waitvm fz'), I('buffer_atomic_add v4, v1, s[%d:%d], 0 offen sc1' % (S_D, S_D + 3)))
        xr = [I('ds_read_b128 %s, v%d offset:%d' % (ar(aFB + 20 * (c % 2) + 4 * qs, 4), vXA + c % 2, (c // 2 % 2) * 20480 + 2048 * qs), 'xr%d_%d' % (c, qs)) for qs in range(5)]
        for t in range(8):
            g = max(base + 5 * (t - 3) - 1, y + 1 if c else y)
            pre, rd = wq_read(c, t)
            G.put(max(g - 1, -1), *pre); G.put(g, *rd)
            if t == 0:
                for qs in range(5): G.put(y + ((2, 4, 5, 6, 7)[qs] if c else 0), xr[qs])
                G.put(base - 1, I('@waitlgkm fa%d_1,xr%d_4' % (c, c)))
            if t % 2 == 0 and t: G.put(base + 5 * t - 1, I('@waitlgkm fa%d_%d' % (c, t + 1)))
        d = []
        if c == 0 and opt.upfront != 2: d += (dma_x(1) if opt.upfront == 1 else []) + dma_wq(2)
        if 1 <= c < 14: d += dma_wq(c + 2)
        if c % 2 == 0 and 2 <= c < 14: d += dma_x(c // 2 + 1)
        if not bursts and c < nkv: d += kvq[(c * len(kvq)) // nkv:((c + 1) * len(kvq)) // nkv]
        flat = [x for g in d for x in g]
        if c in bursts:
            if flat: G.spread2(flat, y + 1 if c else 0, y + 14)
            flat = [x for g in kvq[:4 * bursts[c]] for x in g]; kvq = kvq[4 * bursts[c]:]
            G.spread2(flat, y + 15, y + 15 + len(flat) // 2); flat = []
        late = lambda w, sl, k: stash_flush(w, sl) if nst > k else [x for g in dma_kv(w, sl) for x in g]
        if c == 14: flat += late('K', 2, 0) + late('V', 2, 1)
        if c == 15: flat += late('K', 3, 2)
        if c == opt.touchc:
            tb = Block('x'); wo_srd(tb); wo_touch(tb); flat += tb.ins
        if flat: G.spread2(flat, y + 1 if c else 0, 25 if c == 0 else y + (39 if c < 14 else 20), opt.qcl)
    G.spread2(zero_acc(), 20, 580)
    for f in range(3): G.put(624 + 5 * f, *kread0(f))
    G.spread2(conv(0), 613, 626); G.spread2(conv(1), 627, 639)
    em = G.emit()
    if 'd' in opt.qf: em = [x for x in em if x.cls not in ('dma', 'vld') and 'm0' not in x.w]
    if 'b' in opt.qf: em = [x for x in em if x.op != 's_barrier']
    if 'h' in opt.qf:
        k = [0]
        def keep(x):
            if x.op != 's_barrier': return True
            k[0] += 1; return k[0] % 2 == 1
        em = [x for x in em if keep(x)]
    if 'w' in opt.qf: em = [x for x in em if not (x.op == '@waitlgkm' and x.wait == ['*'])]
    if 'r' in opt.qf: em = [x for x in em if x.cls != 'dsr']
    if 'z' in opt.qf: em = [x for x in em if x.op != 'v_accvgpr_write_b32']
    if 'x' in opt.qf: em = [x for x in em if x.op != 'ds_read_b128']
    if 't' in opt.qf: em = [x for x in em if x.op != 'ds_read_b64_tr_b16']
    b.extend(em)
    print('qproj est cycles', G.est_cycles(16), file=sys.stderr)
    G = Gaps(qk0_mfmas(), 8)
    for f in range(3, 8): G.put(5 * (f - 3) - 1, *kread0(f))
    G.spread2(conv(2), -1, 17); G.spread2(conv(3), 18, 27)
    b.extend(G.emit())
    stamp(b)
    return b

XBAR = 66
def kread(f, slot):
    kt, k = divmod(f, 4)
    return [I('ds_read_b128 %s, v%d offset:%d' % (vr(vF + 4 * (f % NB), 4), vKA + k, slot * 16384 + kt * 4096), 'f%d' % f)]
def vread(f, slot):
    dt = f - 8; r = vF + 4 * (f % NB)
    return [I('ds_read_b64_tr_b16 %s, v%d offset:%d' % (vr(r, 2), vVA + dt, slot * 16384), 'fx'),
            I('ds_read_b64_tr_b16 %s, v%d offset:%d' % (vr(r + 2, 2), vVA + dt, slot * 16384 + 4096), 'f%d' % f)]
def neg_adds(kt): return ['v_add_f32 v%d, v%d, v%d' % (rS(kt, qs) + i, rS(kt, qs) + i, vN + 4 * qs) for qs in range(5) for i in range(4)]
def sm_chain(par):
    C = []; pend = []
    for kt in range(2):
        for qs in range(5):
            s = rS(kt, qs); p = rP(par, qs) + 2 * kt
            e = ['v_exp_f32 v%d, v%d' % (s + i, s + i) for i in range(4)]
            a = ['v_add_f32 v%d, v%d, v%d' % (vL + qs, vL + qs, s + i) for i in range(4)]
            cv = ['v_cvt_pk_bf16_f32 v%d, v%d, v%d' % (p + i, s + 2 * i, s + 2 * i + 1) for i in range(2)]
            if opt.fs: C += [('v_mul_f32 v%d, s%d, v%d' % (s + i, sSC, s + i), kt, qs) for i in range(4)]
            C.append((e[0], kt, qs)); C += pend
            if opt.ones: C += [(x, kt, qs) for x in (e[1], e[2], cv[0], e[3])]; pend = [(cv[1], kt, qs)]
            else: C += [(x, kt, qs) for x in (e[1], a[0], e[2], a[1], cv[0], e[3], a[2])]; pend = [(a[3], kt, qs), (cv[1], kt, qs)]
    return C + pend
def qk_mfmas(first):
    bb = []
    for f in range(8):
        kt, k = divmod(f, 4)
        for qs in range(5):
            s = rS(kt, qs)
            c = ('0' if first else vr(vN + 4 * qs, 4)) if k == 0 else vr(s, 4)
            bb.append(I('%s %s, %s, %s, %s' % (MF, vr(s, 4), vr(vF + 4 * (f % NB), 4), vr(rQ(k, qs), 4), c)))
    return bb
def pv_mfmas(par):
    bb = []
    for f in range(8, 16):
        for qs in range(5):
            bb.append(I('%s %s, %s, %s, %s' % (MF, ar(aO(f - 8, qs), 4), vr(vF + 4 * (f % NB), 4), vr(rP(par, qs), 4), ar(aO(f - 8, qs), 4))))
    return bb
def ones_mfmas(par): return [I('%s %s, %s, %s, %s' % (MF, ar(aL + 4 * qs, 4), ar(aONE, 4), vr(rP(par, qs), 4), ar(aL + 4 * qs, 4))) for qs in range(5)]
SPLIT = [None]; SMPOS = [None]
def period(j, peel=False):
    pu, pn = j % 2, (j + 1) % 2
    ks, vs = (j + 1) % 4, j
    lg = qk_mfmas(False) + pv_mfmas(pu)
    bb = []; ix = {-1: -1}
    on = ones_mfmas(pu) if opt.ones else []
    for i, x in enumerate(lg):
        bb.append(x); ix[i] = len(bb) - 1
        if on and i in (44, 49, 54, 59, 64): bb.append(on.pop(0))
    G = Gaps(bb, 8); N = len(bb)
    for f in range(3, 16):
        G.put(ix[5 * (f - 3) - 1] if f > 3 else 0, *(kread(f, ks) if f < 8 else vread(f, vs)))
        if f % 2 == 0 and f < 15: G.put(ix[5 * f] - 1, I('@waitlgkm f%d' % (f + 1)))
    G.put(ix[XBAR], I('@waitlgkm *'), I('@waitvm K%d,V%d' % ((j + 2) % 4, (j + 1) % 4)), I('s_barrier'))
    if peel and j == 2:
        for f, g in ((8, XBAR + 1), (9, 69), (10, 74)): G.put(ix[g], *vread(f, 3))
    else:
        for f, g in ((0, XBAR + 1), (1, 69), (2, 74)): G.put(ix[g], *kread(f, (j + 2) % 4))
        G.put(N - 1, I('@waitlgkm f1'))
    G.put(9, I('@waitlgkm f3'))
    slots = [2, 7, 12, 17, 22, 27, 32, 37, 42, 47, 52, 57, 62] if opt.dsp == 5 else [2 + opt.dsp * m for m in range(8)]
    dl = dma_kv('K', j) + dma_kv('V', (j + 3) % 4)
    if peel: dl = dma_kv('V', 3) if j == 0 else dma_wo(j)
    extra = []
    if peel and opt.sb == 1 and j < 2:
        tb = Block('x'); tail_setup_b(tb)
        cut = [k for k, x in enumerate(tb.ins) if x.w == {'v%d' % (vOD + 3)}][0] + 1
        extra = tb.ins[:cut] if j == 0 else tb.ins[cut:]
    if peel and j == 0: extra = extra + [x for g in dma_wo(0) for x in g]
    if not peel and opt.sb == 2 and j < 3:
        tb = Block('x'); tail_setup_b(tb); n3 = len(tb.ins) // 3
        cuts = [0] + [next(k for k in range(n3 * q, len(tb.ins)) if tb.ins[k].op not in ('s_addc_u32', 's_cselect_b32')) for q in (1, 2)] + [len(tb.ins)]
        inloop = tb.ins[cuts[j]:cuts[j + 1]]
    for m, g in enumerate(dl):
        p = ix[slots[m]]
        if (not peel or opt.pecap) and m % opt.thrn == 0:
            if opt.thro: G.put(p - 1, I('@raw s_waitcnt vmcnt(%d)' % opt.thro))
            if opt.thre and not peel: G.put(p - 1, I('s_cbranch_vccnz L_t%d_%d' % (j, m)), I('@raw s_waitcnt vmcnt(%d)' % opt.thre), I('L_t%d_%d:' % (j, m)))
        if len(g) == 2 and g[0].cls == 'salu': G.put(p - 1, g[0]); G.put(p, g[1])
        elif len(g) == 2: G.put(p, g[0]); G.put(p + 1, g[1])
        elif len(g) == 3: G.put(p - 2, g[0]); G.put(p - 1, g[1]); G.put(p, g[2])
        else: G.put(p, *g)
    if j == 3:
        G.put(ix[71], I('s_sub_u32 s%d, s%d, 1' % (sCNT, sCNT))); G.put(ix[77], I('s_cmp_lg_u32 s%d, 0' % sCNT))
    if opt.fbk and not peel and (j + 1) % opt.fbk == 0:
        G.put(ix[74], I('s_add_u32 s37, s37, 1')); G.put(ix[75], I('v_mov_b32 v251, s37'))
        G.put(ix[76], I('buffer_store_dword v251, v250, s[%d:%d], 0 offen sc1' % (S_F, S_F + 3)))
        G.put(ix[76], I('buffer_load_dword v252, v249, s[%d:%d], 0 offen sc1' % (S_F, S_F + 3)))
    if opt.fbk and not peel and j % opt.fbk == 0:
        G.put(ix[opt.fbpos], I('v_cmp_le_u32 vcc, s37, v252'))
        G.put(ix[opt.fbpos + 1], I('s_and_b32 vcc_lo, vcc_lo, s36'), I('s_bcnt1_i32_b32 vcc_lo, vcc_lo'))
        G.put(ix[opt.fbpos + 2], I('s_cmp_ge_u32 vcc_lo, %d' % opt.fbn), I('s_cselect_b64 vcc, 1, 0'))
    if peel and j == 0: G.put(ix[40], I('buffer_load_dword v244, v%d, s[%d:%d], 0 offen sc1' % (vDA, S_D, S_D + 3)))
    chn, chu = sm_chain(pn), sm_chain(pu)
    if SMPOS[0] is None:
        s0 = 18; gaps = list(range(s0, N)) + list(range(0, s0))
        gaps += list(range(s0, 24))
        lo = [ix[15 + 20 * kt + qs] + 4 - s0 for (_, kt, qs) in chn]
        hi = [(N - s0 + qs - 1) if kt == 0 else (N - s0 + 19 + qs) for (_, kt, qs) in chn]
        hi = [min(h, N - 1) for h in hi]
        _, pos = G.dp([x for x, _, _ in chn], gaps, lo, hi)
        SMPOS[0] = [gaps[p] for p in pos]; SPLIT[0] = sum(p < N - s0 for p in pos)
    for k, (x, _, _) in enumerate(chu):
        if k >= SPLIT[0]: G.put(SMPOS[0][k], I(x))
    for k, (x, _, _) in enumerate(chn):
        if k < SPLIT[0]: G.put(SMPOS[0][k], I(x))
    if not peel and opt.sb == 2 and j < 3: G.spread2(inloop, 0, N - 1)
    if extra and j == 0: G.spread2(extra, ix[slots[3]] + 2, N - 1)
    if extra and j == 1: G.spread2(extra, ix[slots[4]] + 1, N - 1)
    if j == 3 or opt.pstamps: G.put(ix[XBAR], *stamp_ins())
    return G

def k1_attention():
    P = [period(j) for j in range(4)]
    print('period est cycles', [g.est_cycles(16) for g in P], [P[0].used(i) for i in range(len(P[0].bb))], file=sys.stderr)
    pro = Block('pro'); T = vT
    pro('L_start:')
    pro('@waitlgkm *\n@waitvm K1,V0\ns_barrier')
    for f in range(3): pro.extend(kread(f, 1))
    if opt.fallback: pro('s_cmp_lg_u32 s%d, 0\ns_cbranch_scc1 L_nomax' % sEX)
    mx = Block('pro_max')
    for qs in range(5):
        a, c = rS(0, qs), rS(1, qs); t = T + 2 * qs
        mx('v_max3_f32 v%d, v%d, v%d, v%d\nv_max3_f32 v%d, v%d, v%d, v%d' % (t, a, a + 1, a + 2, t + 1, c, c + 1, c + 2))
        mx('v_max3_f32 v%d, v%d, v%d, v%d\nv_max_f32 v%d, v%d, v%d' % (t, t, a + 3, c + 3, t, t, t + 1))
    max_finish(mx, T)
    p2 = Block('pro2'); p2('L_nomax:')
    p2.extend(neg_adds(0) + neg_adds(1) + [x for x, _, _ in sm_chain(0)[:SPLIT[0]]])
    if opt.touchc > 15:
        wo_srd(p2); wo_touch(p2)
    if opt.sb == 0: tail_setup_b(p2)
    p2('@waitlgkm f1')
    p2('s_mov_b32 s%d, 7' % sCNT)
    if opt.thre and not opt.fbk: p2('s_getreg_b32 s38, hwreg(HW_REG_XCC_ID, 0, 1)\ns_mov_b32 vcc_lo, s38\ns_mov_b32 vcc_hi, 0')
    if opt.fbk:
        p2('s_lshl_b32 s38, 1, s%d\ns_lshl_b32 s39, 16, s%d\ns_or_b32 s38, s38, s39\ns_andn2_b32 s36, 0xff, s38\ns_mov_b32 s37, 0\ns_mov_b64 vcc, 0\nv_mov_b32 v252, 0' % (sJP, sKQ))
    stamp(p2)
    lp = [Block('per%d' % j) for j in range(4)]
    lp[0]('L_loop:')
    for j in range(4): lp[j].extend(P[j].emit())
    lp[3]('s_cbranch_scc1 L_loop')
    pe = [Block('pe%d' % j) for j in range(4)]
    pe[0].extend(period(0, True).emit()); pe[1].extend(period(1, True).emit())
    pe[1]('v_readlane_b32 s38, v244, 0\nv_readlane_b32 s39, v244, 1\ns_and_b32 s38, s38, 0xffff\ns_lshr_b32 s39, s39, 16\ns_min_u32 s38, s38, s39\ns_cmp_lt_u32 s38, 4\ns_cbranch_scc1 L_spin_d')
    pe[2]('L_back_d:')
    pe[2].extend(period(2, True).emit())
    sp = pe[3]; sp.name = 'spin_d'
    sp('L_spin_d:\ns_mov_b32 s40, %d\nL_spin_d2:\ns_sleep 4\nbuffer_load_dword v244, v%d, s[%d:%d], 0 offen sc1\ns_waitcnt vmcnt(0)' % (opt.spin, vDA, S_D, S_D + 3))
    sp('v_readlane_b32 s38, v244, 0\nv_readlane_b32 s39, v244, 1\ns_and_b32 s38, s38, 0xffff\ns_lshr_b32 s39, s39, 16\ns_min_u32 s38, s38, s39\ns_cmp_ge_u32 s38, 4\ns_cbranch_scc1 L_back_d')
    sp('s_sub_u32 s40, s40, 1\ns_cmp_lg_u32 s40, 0\ns_cbranch_scc1 L_spin_d2\ns_branch L_back_d')
    return pro, mx, p2, lp, pe

def max_finish(b, T):
    for qs in range(5): b('v_mov_b32 v%d, v%d' % (T + 2 * qs + 1, T + 2 * qs))
    for qs in range(5): b('v_permlane16_swap_b32 v%d, v%d' % (T + 2 * qs, T + 2 * qs + 1))
    for qs in range(5): b('v_max_f32 v%d, v%d, v%d' % (T + 2 * qs, T + 2 * qs, T + 2 * qs + 1))
    for qs in range(5): b('v_mov_b32 v%d, v%d' % (T + 2 * qs + 1, T + 2 * qs))
    for qs in range(5): b('v_permlane32_swap_b32 v%d, v%d' % (T + 2 * qs, T + 2 * qs + 1))
    for qs in range(5): b('v_max_f32 v%d, v%d, v%d' % (T + 2 * qs, T + 2 * qs, T + 2 * qs + 1))
    for qs in range(5):
        for i in range(4): b('v_sub_f32 v%d, 0, v%d' % (vN + 4 * qs + i, T + 2 * qs))

def poll_test(reg, mask, thr=1): return ['v_cmp_le_u32 vcc, %d, v%d' % (thr, reg), 's_and_b32 s38, vcc_lo, s%d' % mask, 's_cmp_lg_u32 s38, s%d' % mask]
def spin_block(name, addr, mask, thr=1):
    sp = Block('spin_' + name)
    sp('L_spin_%s:\ns_mov_b32 s40, %d\nL_spin_%s2:\ns_sleep 1\nbuffer_load_dword v244, v%d, s[%d:%d], 0 offen sc1\ns_waitcnt vmcnt(0)' % (name, opt.spin, name, addr, S_F, S_F + 3))
    sp.extend(poll_test(244, mask, thr))
    sp('s_cbranch_scc0 L_back_%s\ns_sub_u32 s40, s40, 1\ns_cmp_lg_u32 s40, 0\ns_cbranch_scc1 L_spin_%s2\ns_branch L_back_%s' % (name, name, name))
    return sp

def k1_tail():
    t1 = Block('tail1'); t2 = Block('tail2'); L = vLANE
    t1.extend([x for x, _, _ in sm_chain(1)[SPLIT[0]:]])
    t1.extend(ones_mfmas(1))
    G = Gaps(pv_mfmas(1), 8)
    for f in range(11, 16): G.put(5 * (f - 11) + 4, *vread(f, 3))
    R = vN + 9
    rc = ['v_accvgpr_read_b32 v%d, a%d' % (R + qs, aL + 4 * qs) for qs in range(5)]
    rc += ['v_add_f32 v%d, v%d, v%d' % (R + 5, R, R + 1), 'v_add_f32 v%d, v%d, v%d' % (R + 6, R + 2, R + 3), 'v_add_f32 v%d, v%d, v%d' % (R + 5, R + 5, R + 4), 'v_add_f32 v%d, v%d, v%d' % (R + 5, R + 5, R + 6)]
    if opt.fallback:
        rc += ['v_cmp_ngt_f32 vcc, s%d, v%d' % (sTH, R + 5), 's_lshl_b32 s39, s%d, 2' % sW, 's_add_u32 s39, s39, %d' % BADB, 'v_mov_b32 v%d, s39' % (R + 6),
               's_cmp_lg_u64 vcc, 0', 's_cselect_b32 s38, 1, 0', 'v_mov_b32 v%d, s38' % (R + 5), I('ds_write_b32 v%d, v%d' % (R + 6, R + 5), 'bad'), 'v_mov_b32 v%d, %d' % (R + 6, BADB)]
    rc += ['v_rcp_f32 v%d, v%d' % (vN + 2 * i, R + i) for i in range(5)]
    G.spread2(rc, 2, 11)
    if opt.fallback:
        G.put(12, I('@waitlgkm bad'), I('@waitvm wo0,wo1'), I('s_barrier'), I('ds_read_b128 %s, v%d' % (vr(R + 7, 4), R + 6)))
        G.put(16, I('v_or_b32 v%d, v%d, v%d' % (R + 5, R + 7, R + 8)), I('v_or3_b32 v%d, v%d, v%d, v%d' % (R + 5, R + 5, R + 9, R + 10)))
        G.put(17, I('v_readfirstlane_b32 s38, v%d' % (R + 5)))
        G.put(18, I('s_cmp_lg_u32 s%d, 0' % sEX), I('s_cselect_b32 s38, 0, s38'), I('s_cmp_lg_u32 s38, 0'), I('s_cbranch_scc1 L_fallback'))
    def out(kl):
        Lst = []
        for qs in range(5):
            idx = 5 * kl + qs
            d = BS[0][idx] if kl < 2 else hole(idx % 10); e = hole(10 + idx % 5)
            src = [aO(2 * kl, qs) + i for i in range(4)] + [aO(2 * kl + 1, qs) + i for i in range(4)]
            tmp = [d + i for i in range(4)] + [e + i for i in range(4)]
            Lst += ['v_accvgpr_read_b32 v%d, a%d' % (tmp[i], src[i]) for i in range(8)]
            if kl and opt.pk2: Lst += ['v_pk_mul_f32 %s, %s, %s op_sel_hi:[1,0]' % (vr(tmp[i], 2), vr(tmp[i], 2), vr(vN + 2 * qs, 2)) for i in range(0, 8, 2)]
            else: Lst += ['v_mul_f32 v%d, v%d, v%d' % (tmp[i], vN + 2 * qs, tmp[i]) for i in range(8)]
            Lst += ['v_cvt_pk_bf16_f32 v%d, v%d, v%d' % (d + i, tmp[2 * i], tmp[2 * i + 1]) for i in range(4)]
            if opt.stcap: Lst += [I('@raw s_waitcnt vmcnt(%d)' % opt.stcap)]
            Lst += [I('buffer_store_dwordx4 %s, v%d, s[%d:%d], s%d offen offset:%d%s' % (vr(d, 4), vOL + qs // 4, S_O, S_O + 3, sOK + kl, 1024 * (qs % 4), opt.o_st_pol), 'Oa' if kl < 2 else 'O')]
            if kl >= 2: Lst += [I('ds_write_b128 v%d, %s offset:%d' % (vXW, vr(d, 4), 1024 * (idx - 10)))]
        return Lst
    sDL = [30, 33, 28, 36, 37, 34, 29]
    b0 = [WOB[c % 5] for c in range(8)]; b1 = [WOB[(c ^ 1) % 5] if c < 2 or opt.early else WOB[c % 5] for c in range(8)]
    sc = ['s_lshr_b32 s41, s%d, 1' % sW]
    for c in range(7):
        d0, d1 = b0[c + 1] - b0[c], b1[c + 1] - b1[c]
        sc += ['s_mul_i32 s%d, s41, 0x%x' % (sDL[c], (d1 - d0) & 0xffffffff), 's_add_u32 s%d, s%d, 0x%x' % (sDL[c], sDL[c], d0 & 0xffffffff)] if d0 != d1 else ['s_mov_b32 s%d, 0x%x' % (sDL[c], d0 & 0xffffffff)]
    if opt.early: sc += ['s_lshl_b32 s26, 0x1111, s%d' % sW, 's_and_b32 s26, s26, s%d' % MK1[1], 's_xor_b32 s27, s26, s%d' % MK1[1]]
    G.spread2(out(0) + sc, 19, 39)
    t1.extend(G.emit(-1, 18)); t2.extend(G.emit(19, 39))
    for kl in (2, 3, 1) if not opt.early else (1, 2, 3):
        mark = len(t2.ins) + 40; t2.extend(out(kl))
    t2('v_mov_b32 v245, 1\nv_mov_b32 v254, 2')
    if opt.early: t2('@waitvm Oa\nbuffer_store_dword v245, v%d, s[%d:%d], 0 offen sc1' % (vFA, S_F, S_F + 3))
    stamp(t2)
    bb = []; frs = []
    for c in range(8):
        seq = [(kp, n) for kp in range(2) for n in range(8)]
        if c == 7: seq = [(kp, n) for kp in range(2) for n in (4, 5, 6, 7)] + [(kp, n) for kp in range(2) for n in (1, 2, 3, 0)]
        for kp, n in seq:
            fi = len(frs); frs.append((c, kp, n))
            for f in range(5):
                a = 4 * (5 * n + f)
                bb.append(I('%s %s, %s, %s, %s' % (MF, ar(a, 4), vr(vF + 4 * (fi % NB), 4), vr(BS[c % 3][5 * kp + f], 4), '0' if (c, kp) == (0, 0) else ar(a, 4))))
    G = Gaps(bb, 8)
    bars = {0: 'wo0,wo1,wo2', 2: '', 3: 'wo3,wo4', 5: 'wo5,wo6', 7: 'wo7'}
    if opt.early: bars = {0: 'wo0,wo1,wo2', 2: 'wo3', 4: 'wo4,wo5', 6: 'wo6,wo7'}
    if opt.fallback: bars[0] = 'wo2'
    for c, tg in bars.items():
        G.put(80 * c - 14 if c or not opt.fallback else opt.z0pos, *([I('@waitlgkm *')] + ([I('@waitvm ' + tg)] if tg else []) + [I('s_barrier')]))
    for fi, (c, kp, n) in enumerate(frs):
        g = max(5 * (fi - 3) - 1, -1)
        if c in bars and c: g = max(g, 80 * c - 13)
        r = vF + 4 * (fi % NB)
        G.put(g, I('ds_read_b64_tr_b16 %s, v%d offset:%d' % (vr(r, 2), vRA[n], kp * 8192), 'wx'), I('ds_read_b64_tr_b16 %s, v%d offset:%d' % (vr(r + 2, 2), vRA[n], kp * 8192 + 4096), 'w%d' % fi))
        if kp == 1 and c < 7:
            G.put(g + 1, I('v_add_u32 v%d, s%d, v%d' % (vRA[n], sDL[c], vRA[n])))
        if fi % 2 == 0 and fi: G.put(5 * fi - 1, I('@waitlgkm w%d' % (fi + 1)))
    z0 = opt.z0pos + 1 if opt.fallback else 0
    for i in range(10): G.put(z0 + i // 2 + (i >= 8), I('ds_read_b128 %s, v%d offset:%d' % (vr(BS[1][i], 4), vXR, 1024 * i), 'xr'))
    G.put(opt.flagpos, I('@waitvm O'), I('buffer_store_dword v254, v%d, s[%d:%d], 0 offen sc1' % (vFA, S_F, S_F + 3)))
    G.put(z0 + 13, I('@waitlgkm xr'), I('s_barrier'))
    flat = lambda d: [x for g in d for x in g]
    def oload(c):
        return [I('buffer_load_dwordx4 %s, v%d, s[%d:%d], s%d offen offset:%d%s' % (vr(BS[c % 3][5 * kp + f], 4), vOL + 2 * kp + f // 4, S_OR, S_OR + 3, sORO + c, 1024 * (f % 4), opt.o_ld_pol)) for kp in range(2) for f in range(5)]
    G.spread2(flat(dma_wo(3) + dma_wo(4)), z0 + 15, z0 + 62)
    ck = opt.chkpos
    checks = [('o1', opt.pollpos, ck, 26 if opt.early else MK1[1], 1 if opt.early else 2)]
    if opt.early: checks.append(('ob', opt.chkb - opt.pleadb, opt.chkb, 27, 2))
    checks += [('o2', opt.chk2 - opt.plead, opt.chk2, MK1[2], 2), ('o3', opt.chk3 - opt.plead, opt.chk3, MK1[3], 2)]
    for name, pp, cp, mk, thr in checks:
        G.put(pp, I('buffer_load_dword v244, v%d, s[%d:%d], 0 offen sc1' % (vPA, S_F, S_F + 3)))
        G.put(cp, *[I(x) for x in poll_test(244, mk, thr) + ['s_cbranch_scc1 L_spin_' + name]])
    def even(lst, lo, hi):
        mem = [x for x in lst if x.cls in ('dma', 'vld')]; k = 0; pend = []
        for x in lst:
            if x.cls in ('dma', 'vld'):
                g = lo + (k * (hi - lo)) // max(len(mem) - 1, 1); k += 1
                for j, y in enumerate(pend): G.put(g - len(pend) + j, y)
                G.put(g, x); pend = []
            else: pend.append(x)
    c2, c3 = opt.chk2, opt.chk3
    G.spread2(oload(2), ck + 1, ck + 8)
    if opt.early:
        even(oload(3), opt.chkb + 1, opt.chkb + 24); even(flat(dma_wo(5)), opt.chkb + 29, c2 - 3)
        even(oload(4), c2 + 1, c2 + 36); even(flat(dma_wo(6)), c2 + 41, c2 + 66)
        even(oload(5), c2 + 70, c3 - 3); even(flat(dma_wo(7)), c3 + 3, c3 + 32); even(oload(6), c3 + 36, c3 + 70)
        even(oload(7), max(c3 + 74, 401), c3 + 115)
    else:
        even(oload(3), ck + 14, c2 - 42); even(flat(dma_wo(5)), max(c2 - 38, 150), c2 - 3)
        even(oload(4), c2 + 1, c2 + 40); even(flat(dma_wo(6)), c2 + 45, c3 - 48)
        even(oload(5), c3 - 44, c3 - 3); even(oload(6), c3 + 1, c3 + 42)
        even(flat(dma_wo(7)), c3 + 47, c3 + 80); even(oload(7), max(c3 + 84, 401), c3 + 125)
    if opt.sent:
        G.spread2(['v_mov_b32 v%d, -1' % (vN + i) for i in range(4)], 63, 66)
        G.spread2([I('buffer_store_dwordx4 %s, v%d, s[%d:%d], s%d offen offset:%d sc1' % (vr(vN, 4), vOL, S_P, S_P + 3, sPW + j, 1024 * k), 'pf') for j in range(3) for k in range(3)], 67, 88)
        G.put(300, I('@waitvm pf'), I('buffer_store_dword v245, v%d, s[%d:%d], 0 offen sc1' % (vFA + 1, S_F, S_F + 3)))
        G.put(575, I('buffer_load_dword v244, v%d, s[%d:%d], 0 offen sc1' % (vPA + 1, S_F, S_F + 3)))
    RG = BS[0] + BS[2]
    order = [5 * nl + f for nl in (1, 2, 3, 0) for f in range(5)]
    for i in range(20): G.put(585 + (3 * i) // 2, I('ds_write_b128 v%d, %s offset:%d' % (vYW, ar(80 + 4 * i, 4), 1024 * i), 'yw'))
    G.put(619, I('@waitlgkm yw'), I('s_barrier'))
    for k, i in enumerate(order): G.put(620 + k, I('ds_read_b128 %s, v%d offset:%d' % (vr(RG[i], 4), vYR, 1024 * i)))
    if opt.tstamps:
        for g in (opt.flagpos + 1, 79, opt.chkpos - 1, opt.chkpos + 1, 159, 164, opt.chk2 - 1, opt.chk2 + 1, 239, opt.chk3 - 1, opt.chk3 + 1, 399, 479, 559): G.put(g, *stamp_ins())
    print('oproj est cycles', G.est_cycles(16), file=sys.stderr)
    if opt.fallback: t2.ins[mark:mark] = G.g[-1]; G.g[-1] = []
    blks = [t2]; lo = -1
    for name, pp, cp, mk, thr in checks:
        blks[-1].extend(G.emit(lo, cp)); lo = cp + 1
        blks.append(Block('t_' + name)); blks[-1]('L_back_%s:' % name)
    t3 = blks[-1]
    t3.extend(G.emit(lo, 639))
    stamp(t3)
    for k, i in enumerate(order):
        tm = BS[1][k % 10]
        for e in range(4): t3('v_accvgpr_read_b32 v%d, a%d' % (tm + e, 4 * i + e))
        for e in range(4): t3('v_add_f32 v%d, v%d, v%d' % (RG[i] + e, RG[i] + e, tm + e))
        nl, f = divmod(i, 5)
        if nl and not opt.pbf: t3('buffer_store_dwordx4 %s, v%d, s[%d:%d], s%d offen offset:%d%s' % (vr(RG[i], 4), vOL + f // 4, S_P, S_P + 3, sPW + nl - 1, 1024 * (f % 4), opt.p_st_pol), 'P')
        if nl and opt.pbf:
            d = RG[5 * nl + f // 2 * 2] + 2 * (f % 2)
            t3('v_cvt_pk_bf16_f32 v%d, v%d, v%d\nv_cvt_pk_bf16_f32 v%d, v%d, v%d' % (d, RG[i], RG[i] + 1, d + 1, RG[i] + 2, RG[i] + 3))
            if f % 2 or f == 4: t3('buffer_store_dwordx%d %s, v%d, s[%d:%d], s%d offen offset:%d%s' % (2 if f == 4 and opt.sent else 4, vr(RG[5 * nl + f // 2 * 2], 2 if f == 4 and opt.sent else 4), vOL, S_P, S_P + 3, sPW + nl - 1, 1024 * (f // 2), opt.p_st_pol), 'P')
    if not opt.sent:
        t3('@waitvm P\nbuffer_store_dword v245, v%d, s[%d:%d], 0 offen sc1' % (vFA + 1, S_F, S_F + 3))
        stamp(t3)
        t3('buffer_load_dword v244, v%d, s[%d:%d], 0 offen sc1' % (vPA + 1, S_F, S_F + 3))
    else: stamp(t3)
    t3.extend(poll_test(244, sMK2) + ['s_cbranch_scc1 L_spin_p'])
    t4 = Block('tail4'); t4('L_back_p:')
    spins = [spin_block(name, vPA, mk, thr) for name, pp, cp, mk, thr in checks] + [spin_block('p', vPA + 1, sMK2)]
    LD = [BS[1][3 * (f // 2) + j] for j in (1, 2, 3) for f in (0, 2, 4)] if opt.sent else None
    def preg(j, f): return LD[3 * (j - 1) + f // 2] if opt.sent else RG[5 * j + f]
    if opt.sent:
        blks.append(t4); t4('s_mov_b32 s41, %d' % opt.spin)
        t4 = Block('try'); t4('L_try:')
    else: stamp(t4)
    for f in range(0, 5, 2 if opt.pbf else 1):
        for j in (1, 2, 3):
            if opt.pbf: t4('buffer_load_dwordx%d %s, v%d, s[%d:%d], s%d offen offset:%d%s' % (2 if f == 4 and opt.sent else 4, vr(preg(j, f), 2 if f == 4 and opt.sent else 4), vOL, S_P, S_P + 3, sPR + j - 1, 1024 * (f // 2), opt.p_ld_pol))
            else: t4('buffer_load_dwordx4 %s, v%d, s[%d:%d], s%d offen offset:%d%s' % (vr(RG[5 * j + f], 4), vOL + f // 4, S_P, S_P + 3, sPR + j - 1, 1024 * (f % 4), opt.p_ld_pol))
    if opt.sent:
        regs = [preg(j, f) + e for f in (0, 2, 4) for j in (1, 2, 3) for e in range(2 if f == 4 else 4)]
        t4('v_max_u32 v244, v%d, v%d' % (regs[0], regs[1]))
        for k in range(2, len(regs), 2): t4('v_max3_u32 v244, v244, v%d, v%d' % (regs[k], regs[k + 1]))
        t4('v_cmp_eq_u32 vcc, -1, v244\ns_cbranch_vccnz L_spin_s')
        blks.append(t4); t4 = Block('fin'); t4('L_fin:'); stamp(t4)
        sp = Block('spin_s')
        sp('L_spin_s:\ns_sub_u32 s41, s41, 1\ns_cmp_eq_u32 s41, 0\ns_cbranch_scc1 L_fin\ns_sleep 1\nbuffer_load_dword v244, v27, s[%d:%d], 0 offen sc1\ns_waitcnt vmcnt(0)' % (S_P, S_P + 3))
        sp('v_cmp_eq_u32 vcc, -1, v244\ns_cbranch_vccnz L_spin_s\ns_branch L_try')
        spins.append(sp)
    blks.append(t4)
    if opt.pbf: t4('s_mov_b32 s39, 0xffff0000')
    for f in range(5):
        a, b1, b2, b3 = RG[f], RG[5 + f], RG[10 + f], RG[15 + f]
        if opt.pbf:
            for j in (1, 2, 3):
                src = preg(j, f // 2 * 2) + 2 * (f % 2); tm = RG[5 * j + 1]
                t4('v_lshlrev_b32 v%d, 16, v%d\nv_and_b32 v%d, s39, v%d\nv_lshlrev_b32 v%d, 16, v%d\nv_and_b32 v%d, s39, v%d' % (tm, src, tm + 1, src, tm + 2, src + 1, tm + 3, src + 1))
            b1, b2, b3 = RG[6], RG[11], RG[16]
        for e in range(4): t4('v_add_f32 v%d, v%d, v%d\nv_add_f32 v%d, v%d, v%d' % (a + e, a + e, b1 + e, b2 + e, b2 + e, b3 + e))
        for e in range(4): t4('v_add_f32 v%d, v%d, v%d' % (a + e, a + e, b2 + e))
        t4('v_cvt_pk_bf16_f32 v%d, v%d, v%d\nv_cvt_pk_bf16_f32 v%d, v%d, v%d\ns_mov_b32 s38, %d' % (a, a, a + 1, a + 1, a + 2, a + 3, 32768 * f))
        t4('buffer_store_dwordx2 %s, v%d, s[%d:%d], s38 offen%s' % (vr(a, 2), vST, S_OUT, S_OUT + 3, opt.out_pol))
    if opt.stamps: t4('s_waitcnt vmcnt(0)')
    stamp(t4)
    t4('s_endpgm')
    for b in blks:
        if 'c' in opt.t2x: b.ins = [x for x in b.ins if not (x.op == 's_cbranch_scc1' and 'spin_o' in x.text)]
        if 'p' in opt.t2x: b.ins = [x for x in b.ins if not (x.op == 's_cbranch_scc1' and 'spin_p' in x.text)]
        if 'o' in opt.t2x: b.ins = [x for x in b.ins if not (x.cls == 'vld' and 's[16:19]' in x.text)]
        if 'w' in opt.t2x: b.ins = [x for x in b.ins if x.cls != 'dma']
        if 's' in opt.t2x: b.ins = [x for x in b.ins if x.tag not in ('O', 'Oa')]
    return t1, blks, spins

def k1_fallback():
    b = Block('fb'); T = vT
    b('L_fallback:')
    b('s_waitcnt vmcnt(0) lgkmcnt(0)\ns_nop 15\ns_barrier')
    b('v_and_b32 v1, 15, v%d\nv_lshrrev_b32 v2, 4, v%d\nv_lshlrev_b32 v2, 4, v2\nv_lshl_add_u32 v%d, v1, 8, v2' % (vLANE, vLANE, T + 10))
    for qs in range(5): b('v_mov_b32 v%d, 0xff800000' % (T + 2 * qs))
    b('s_mov_b32 s39, 0')
    lp = Block('fbl'); lp('L_fb_loop:')
    for k in range(4): lp('buffer_load_dwordx4 %s, v%d, s[%d:%d], s39 offen offset:%d' % (vr(vF + 4 * k, 4), T + 10, S_K, S_K + 3, 64 * k))
    lp('s_waitcnt vmcnt(0)')
    lp.extend(qk_mfmas(True)[:20])
    lp('s_nop 15')
    for qs in range(5):
        s = rS(0, qs); t = T + 2 * qs
        lp('v_max3_f32 v%d, v%d, v%d, v%d\nv_max3_f32 v%d, v%d, v%d, v%d' % (t, t, s, s + 1, t, t, s + 2, s + 3))
    lp('s_add_u32 s39, s39, 4096\ns_cmp_lt_u32 s39, 262144\ns_cbranch_scc1 L_fb_loop')
    e = Block('fbe')
    max_finish(e, T)
    e.extend(zero_acc())
    e('s_and_b32 s40, s%d, 1\ns_lshl_b32 s%d, s40, 12\ns_mov_b32 s%d, s%d' % (sW, sKO, sVO, sKO))
    for g in dma_kv('K', 0) + dma_kv('K', 1) + dma_kv('K', 2) + dma_kv('K', 3) + dma_kv('V', 0) + dma_kv('V', 1) + dma_kv('V', 2): e.extend(g)
    e('s_mov_b32 s%d, 1\ns_waitcnt vmcnt(0)\ns_barrier' % sEX)
    G = Gaps(qk0_mfmas(), 8)
    for f in range(8): G.put(max(5 * (f - 3) - 1, -1), *kread0(f))
    e.extend(G.emit())
    e('s_nop 7\ns_branch L_start')
    return b, lp, e

def kernel_text(kname, blocks, traces, vgpr, accum, sgpr=102):
    d = {b.name: b for b in blocks}
    assert len(d) == len(blocks)
    place_waits(d, traces)
    n = place_nops(d, traces)
    print(kname[:12], 'nop states inserted', n, 'instructions', {b.name: len(b.ins) for b in blocks}, file=sys.stderr)
    t = '.text\n.globl %s\n.p2align 8\n.type %s,@function\n%s:\n' % (kname, kname, kname) + render(blocks)
    t += '.section .rodata,"a"\n.p2align 6\n.amdhsa_kernel %s\n' % kname
    t += '  .amdhsa_next_free_vgpr %d\n  .amdhsa_next_free_sgpr %d\n  .amdhsa_accum_offset %d\n' % (vgpr, sgpr, accum)
    t += '  .amdhsa_group_segment_fixed_size 0\n  .amdhsa_kernarg_size 104\n  .amdhsa_user_sgpr_count 2\n'
    t += '  .amdhsa_user_sgpr_kernarg_segment_ptr 1\n  .amdhsa_system_sgpr_workgroup_id_x 1\n.end_amdhsa_kernel\n'
    return t

def gen_k1(kname):
    setup = k1_setup(); qp = k1_qproj()
    pro, mx, p2, lp, pe = k1_attention(); t1, tb, spins = k1_tail()
    end = Block('end'); end('L_k1_end:\ns_endpgm')
    blocks = [setup, qp, pro, mx, p2] + lp + pe[:3] + [t1] + tb + spins + [pe[3]]
    loop = ['per0', 'per1', 'per2', 'per3'] * 3 + ['pe0', 'pe1', 'pe2', 'tail1']
    head = ['setup', 'qproj', 'pro', 'pro_max', 'pro2']
    rest = [b.name for b in tb]
    slow = []
    for b in tb:
        if b.name.startswith('t_'): slow += ['spin_' + b.name[2:]] * 2
        if b.name == 'tail4': slow += ['spin_p'] * 2
        if b.name == 'fin': slow += ['spin_s', 'spin_s', 'try', 'spin_s']
        slow.append(b.name)
    traces = [head + loop + rest, head + loop[:-2] + ['spin_d', 'spin_d', 'pe2', 'tail1'] + slow]
    if opt.fallback:
        fb, fbl, fbe = k1_fallback(); blocks += [fb, fbl, fbe]
        traces.append(head + loop + ['fb', 'fbl', 'fbl', 'fbe', 'pro', 'pro2'] + loop + rest)
    blocks.append(end)
    return kernel_text(kname, blocks, traces, 512, 256)

def gen_diag(kname):
    a, b_, gain = [int(x, 0) for x in opt.diag.split()]
    b = Block('dg')
    b('''s_cmp_ge_u32 s2, 1
         s_cbranch_scc1 L_dg_end
         s_load_dwordx2 s[4:5], s[0:1], 96
         s_waitcnt lgkmcnt(0)
         s_add_u32 s4, s4, 0x3000000
         s_addc_u32 s5, s5, 0
         s_load_dword s6, s[4:5], %d
         s_load_dword s7, s[4:5], %d
         s_memrealtime s[8:9]
         s_waitcnt lgkmcnt(0)
         s_sub_u32 s6, s7, s6
         s_min_u32 s6, s6, 20000
         s_mul_i32 s6, s6, %d
         L_dg:
         s_memrealtime s[10:11]
         s_waitcnt lgkmcnt(0)
         s_sub_u32 s10, s10, s8
         s_cmp_lt_u32 s10, s6
         s_cbranch_scc1 L_dg
         L_dg_end:
         s_endpgm''' % (a, b_, gain))
    return kernel_text(kname, [b], [['dg']], 8, 8, 16)

def main(out, only=None):
    t = open('cdna_kernels/%s.s.ref' % NAME).read().split('; Override launch')[0]
    k1 = NAME + '_kernel'
    if opt.diag.strip():
        t += '; @launch kernel=%s grid=(256,1,1) block=(256,1,1) lds=163840\n; @launch kernel=diag_kernel grid=(1,1,1) block=(64,1,1) lds=0\n' % k1
    else: t += '; @launch grid=(256,1,1) block=(256,1,1) lds=163840\n'
    t += '.amdgcn_target "amdgcn-amd-amdhsa--gfx950"\n'
    t += gen_k1(k1)
    if opt.diag.strip(): t += gen_diag('diag_kernel')
    open(out, 'w').write(t)

if __name__ == '__main__':
    out = sys.argv[1]; only = None
    for a in sys.argv[2:]:
        k, v = a.split('=')
        if k == 'only': only = int(v)
        elif isinstance(getattr(opt, k), bool): setattr(opt, k, v == '1')
        elif isinstance(getattr(opt, k), int): setattr(opt, k, int(v))
        else: setattr(opt, k, (' ' + v.replace('+', ' ')) if v else '')
    main(out, only)
```

```python
import sys, math, struct
from asmlib import *

NAME = "concat_heads__gqa_block_cached__gqa_block_cached__near_ridge"
def f32bits(x): return struct.unpack('<I', struct.pack('<f', x))[0]
MF = 'v_mfma_f32_16x16x32_bf16'
def vr(b, n=1, k='v'): return '%s%d' % (k, b) if n == 1 else '%s[%d:%d]' % (k, b, b + n - 1)
def ar(b, n=1): return vr(b, n, 'a')

class Opt:
    kv_pol = ' nt'; w_pol = ''; x_pol = ''; o_st_pol = ' sc1'; o_ld_pol = ' sc1'; wo_pol = ''; out_pol = ''; p_st_pol = ' sc1'; p_ld_pol = ' sc1'
    stamps = False; fallback = True; ones = True; nokv = False; nox = False; noxq = False; qstamps = False
    dsp = 10; kvend = 13; burst = ' 9:2 12:2'; k2stag = 1; qevery = 4; warm = 336; qf = ' '; pk = False; upfront = 3; diag = ' '; spin = 32768; chain = True; asym = 1; rel = 0; cape = ' 4x4x4x4x'; capl = ' 44444444'; twice = False; z0pos = 3; stcap = 0; pecap = False; fs = False; t2x = ' '; early = False; sent = False; chkb = 168; pleadb = 30; qcl = 1; fbk = 0; fbn = 4; fbpos = 56; sb = 1; t2mode = 0; o3n = 10; pstamps = False; tstamps = False; thre = 0; thro = 4; thrn = 2; ptouch = False; touchc = 16; flagpos = 40; pollpos = 90; chkpos = 125; chk2 = 235; chk3 = 355; plead = 40; pbf = True; pk2 = True
opt = Opt()

S_K, S_V, S_X, S_WQ, S_O = 4, 8, 12, 16, 20
sW, sW4, sKO, sVO, sCNT, sEX, sC0, sB, sBR, sH1, sTH, sM0B = 24, 25, 26, 27, 28, 29, 30, 31, 32, 33, 34, 35
sSC = 36
S_TS, sTSA, sTSN = 52, 56, 58
sWO, sXO = 76, 92
STASH = {'K2': 32, 'V2': 224, 'K3': 240}
vSW = 2
vKA, vVA, vKD, vVD, vLANE, vL = 8, 12, 20, 24, 26, 59
vF = 32; NB = 4
vWA, vXA, vWD, vXD = 48, 52, 54, 58
vACC = 64
def rQ(k, qs): return vACC + 8 * (5 * k + qs)
def hole(i): return vACC + 8 * i + 4
def rS(kt, qs): return hole(5 * kt + qs)
def rP(par, qs): return hole(10 + 5 * par + qs)
vN = 224
vT = 48; vT2 = 244
def aO(dt, qs): return 4 * (5 * dt + qs)
aL, aONE, aFA, aFB = 160, 180, 184, 200
KS0, VS0 = 0, 65536
WBUF = [139264, 32768, 49152]
XBUF = [98304, 118784]
sJP, sKQ = 3, 59
S_F, S_D, S_P, S_OUT, S_WO, S_OR = 44, 48, 64, 68, 12, 16
sOK, sWOO, sORO, sPW, sPR, sD01, sD12, sMK1, sMK2 = 76, 80, 88, 96, 99, 30, 33, 42, 43
MK1 = [None, 42, 60, 61]
POFF, FOFF, TSOFF = 0x1500000, 0x2a00000, 0x3000000
vOD, vOL, vXW, vXR, vYW, vYR, vST, vFA, vPA, vDA = 54, 58, 62, 63, 48, 49, 50, 51, 28, 30
vRA = list(range(246, 254))
WOB = [131072, 0, 65536, 32768, 98304]
BADB = 98304 + 10240
BS = [[vACC + 8 * i for i in range(10)], [vACC + 8 * i for i in range(10, 20)], [hole(i) for i in range(10)]]
SPIN = 1 << 15

def stamp_ins():
    if not opt.stamps: return []
    return [I('s_memrealtime s[%d:%d]' % (sTSA, sTSA + 1)), I('s_memtime s[62:63]'), I('s_waitcnt lgkmcnt(0)'), I('v_mov_b32 v5, s%d' % sTSA), I('v_mov_b32 v6, s%d' % sTSN), I('v_mov_b32 v7, s62'),
            I('buffer_store_dword v5, v6, s[%d:%d], 0 offen' % (S_TS, S_TS + 3), 'stamp'), I('buffer_store_dword v7, v6, s[%d:%d], 0 offen offset:256' % (S_TS, S_TS + 3), 'stamp'), I('s_add_u32 s%d, s%d, 4' % (sTSN, sTSN))]
def stamp(b): b.extend(stamp_ins())
def stamp_setup(b, ws, w, off=TSOFF, first=False):
    if not opt.stamps: return
    b('''s_lshl_b32 s39, s2, 9
         s_add_u32 s39, s39, {off}
         s_add_u32 s{T}, s{ws}, s39
         s_addc_u32 s{T1}, s{ws1}, 0
         s_cmp_eq_u32 s{w}, 0
         s_cselect_b32 s{T2}, 512, 0
         s_mov_b32 s{T3}, 0x20000
         s_mov_b32 s{N}, 0'''.format(T=S_TS, T1=S_TS + 1, T2=S_TS + 2, T3=S_TS + 3, w=w, ws=ws, ws1=ws + 1, N=sTSN, off=off))
    if first:
        b('v_mov_b32 v5, s100\nv_mov_b32 v6, 0\nv_mov_b32 v7, s42')
        b('buffer_store_dword v5, v6, s[%d:%d], 0 offen\nbuffer_store_dword v7, v6, s[%d:%d], 0 offen offset:256\ns_mov_b32 s%d, 4' % (S_TS, S_TS + 3, S_TS, S_TS + 3, sTSN))
    stamp(b)

def srd(b, d, lo, off, num):
    b('s_add_u32 s%d, s%d, %s\ns_addc_u32 s%d, s%d, 0\n%s\ns_mov_b32 s%d, 0x20000' % (d, lo, off, d + 1, lo + 1,
      ('s_mov_b32 s%d, %d' % (d + 2, num)) if isinstance(num, int) else num % (d + 2), d + 3))

def off_calc(X):
    return ['s_add_u32 s38, s%d, %d' % (sC0, X), 's_and_b32 s38, s38, 7', 's_lshl_b32 s%d, s38, 19' % (sWO + 2 * X),
            's_add_u32 s%d, s%d, 262144' % (sWO + 2 * X + 1, sWO + 2 * X)]
def dma_wq(c):
    G = [[I('s_add_u32 m0, s%d, %d' % (sW4, WBUF[c % 3]))]]
    for n in range(4):
        G.append([I('buffer_load_dwordx4 v%d, s[%d:%d], s%d offen offset:%d%s lds' % (vWD + n, S_WQ, S_WQ + 3, sWO + c, 1024 * n, opt.w_pol), 'wq%d' % c)])
    return G
def dma_x(X):
    G = [[I('s_lshr_b32 s39, s%d, 12' % (sWO + 2 * X))], [I('s_add_u32 m0, s%d, %d' % (sW4, XBUF[X % 2]))]]
    for n in range(4):
        G.append([I('buffer_load_dwordx4 v%d, s[%d:%d], s%d offen offset:%d%s lds' % (vXD + n, S_X, S_X + 3, 39, 1024 * n, opt.x_pol), 'x%d' % X)])
    G.append([I('s_add_u32 m0, s%d, %d' % (sM0B, XBUF[X % 2] + 16384))])
    G.append([I('buffer_load_dwordx4 v%d, s[%d:%d], s%d offen%s lds' % (vXD + 4, S_X, S_X + 3, 39, opt.x_pol), 'x%d' % X)])
    return G
def stash_load(which, slot):
    K = which == 'K'; srd_, so = (S_K, sKO) if K else (S_V, sVO); r = STASH['%s%d' % (which, slot)]
    G = [[I('buffer_load_dwordx4 %s, v%d, s[%d:%d], s%d offen offset:%d%s' % (vr(r + 4 * m, 4), vKD + m if K else vVD + m % 2, srd_, srd_ + 3, so, 1024 * m, opt.kv_pol), 'st')] for m in range(4)]
    G[3].append(I('s_add_u32 s%d, s%d, 8192' % (so, so)))
    return G
def stash_flush(which, slot):
    r = STASH['%s%d' % (which, slot)]; base = (KS0 if which == 'K' else VS0) + 16384 * slot
    return [I('ds_write_b128 v%d, %s offset:%d' % (vSW + base // 65536, vr(r + 4 * m, 4), base % 65536 + 1024 * m)) for m in range(4)]
def dma_kv(which, slot, m0each=False):
    G = []; K = which == 'K'
    srd_, so = (S_K, sKO) if K else (S_V, sVO)
    for m in range(4):
        g = []
        if m == 0 or m0each: g.append(I('s_add_u32 m0, s%d, %d' % (sW4, (KS0 if K else VS0) + 16384 * slot)))
        g.append(I('buffer_load_dwordx4 v%d, s[%d:%d], s%d offen offset:%d%s lds' % (vKD + m if K else vVD + m % 2, srd_, srd_ + 3, so, 1024 * m, opt.kv_pol), '%s%d' % (which, slot)))
        if m == 3: g.append(I('s_add_u32 s%d, s%d, 8192' % (so, so)))
        G.append(g)
    return G

def dma_wo(c):
    buf = WOB[c % 5]; G = []
    for m in range(8):
        g = []
        if m == 4: g.append(I('s_add_u32 s2, s%d, 16384' % (sWOO + c)))
        if m % 4 == 0: g.append(I('s_add_u32 m0, s%d, %d' % (sM0B, buf + 4096 * (m // 4))))
        g.append(I('buffer_load_dwordx4 v%d, s[%d:%d], s%d offen offset:%d%s lds' % (vOD + m % 4, S_WO, S_WO + 3, sWOO + c if m < 4 else 2, 1024 * (m % 4), opt.wo_pol), 'wo%d' % c))
        G.append(g)
    return G

def peer(p):
    if not opt.asym: return 's_add_u32 s38, s%d, %d\ns_and_b32 s38, s38, 3' % (sJP, p)
    if p == 0: return 's_mov_b32 s38, s%d' % sJP
    return 's_cmp_lt_u32 s%d, 2\ns_cselect_b32 s38, %d, %d\ns_xor_b32 s38, s38, s%d' % (sJP, p, p % 3 + 1, sJP)

def tail_setup_a(b):
    b('s_mov_b32 s72, s92\ns_mov_b32 s73, s93')
    b('''s_and_b32 s98, s{w}, 1
         s_lshr_b32 s99, s{w}, 1
         s_lshl_b32 s96, s{B}, 1
         s_add_u32 s96, s96, s98
         s_mul_i32 s96, s96, 163840
         s_lshl_b32 s97, s{BR}, 2
         s_add_u32 s97, s97, s{JP}
         s_lshl_b32 s97, s97, 1
         s_add_u32 s97, s97, s99
         s_lshl_b32 s97, s97, 2
         s_add_u32 s97, s97, s{KQ}
         s_lshl_b32 s97, s97, 5
         s_add_u32 s96, s96, s97'''.format(w=sW, B=sB, BR=sBR, JP=sJP, KQ=sKQ))
    srd(b, S_OUT, 94, 's96', 's_sub_u32 s%d, 2621440, s96')
    for p in (1, 2, 3): b(peer(p) + '\ns_lshl_b32 s38, s38, 2\ns_add_u32 s38, s38, s98\ns_lshl_b32 s%d, 5, s38' % MK1[p])
    b('s_lshl_b32 s38, 0x1111, s%d\ns_lshl_b32 s39, s%d, 2\ns_lshl_b32 s39, 15, s39\ns_andn2_b32 s%d, s38, s39' % (sW, sKQ, sMK2))
    b('s_lshl_b32 s38, s%d, 3\ns_add_u32 s38, s38, s%d\ns_lshl_b32 s38, s38, 2\ns_add_u32 s38, s38, s%d\ns_mul_i32 s38, s38, 327680\ns_mul_i32 s39, s%d, 5120\ns_add_u32 s38, s38, s39\ns_add_u32 s38, s38, 0x%x' % (sBR, sB, sJP, sW, POFF))
    srd(b, S_P, 74, 's38', 's_sub_u32 s%d, 327680, s39')
    for j in (1, 2, 3):
        b('s_xor_b32 s38, s%d, %d\ns_lshl_b32 s39, s38, 2\ns_add_u32 s39, s39, s%d\ns_mul_i32 s%d, s39, 20480' % (sKQ, j, sKQ, sPW + j - 1))
        b('s_lshl_b32 s39, s%d, 2\ns_add_u32 s39, s39, s38\ns_mul_i32 s%d, s39, 20480' % (sKQ, sPR + j - 1))

def wo_srd(b, S_WO=S_WO):
    b('s_lshl_b32 s38, s%d, 20\ns_lshl_b32 s39, s%d, 8\ns_add_u32 s38, s38, s39' % (sKQ, sJP))
    srd(b, S_WO, 72, 's38', 's_sub_u32 s%d, 4194304, s38')
def wo_touch(b):
    b('s_lshl_b32 s38, s%d, 2\ns_add_u32 s38, s38, s%d\ns_lshl_b32 s38, s38, 15\nv_lshrrev_b32 v4, 1, v%d\nv_and_b32 v5, 1, v%d\nv_lshlrev_b32 v5, 7, v5\nv_lshl_add_u32 v4, v4, 10, v5' % (sB, sW, vLANE, vLANE))
    b('buffer_load_dword v31, v4, s[%d:%d], s38 offen' % (S_WO, S_WO + 3))
def tail_setup_b(b):
    L = vLANE
    b('s_and_b32 s78, s%d, 1\ns_lshr_b32 s79, s%d, 1' % (sW, sW))
    b('''s_lshl_b32 s38, s{BR}, 3
         s_add_u32 s38, s38, s{B}
         s_lshl_b32 s38, s38, 2
         s_add_u32 s38, s38, s{KQ}
         s_mul_i32 s38, s38, 327680
         s_mul_i32 s39, s79, 20480
         s_mul_i32 s40, s78, 5120
         s_add_u32 s39, s39, s40
         s_add_u32 s38, s38, s39'''.format(B=sB, BR=sBR, KQ=sKQ))
    srd(b, S_OR, 74, 's38', 's_sub_u32 s%d, 327680, s39')
    b('s_lshl_b32 s40, s%d, 15\ns_lshl_b32 s%d, s%d, 13' % (sW, sM0B, sW))
    for c in range(8):
        b(peer(c // 2) + '\ns_lshl_b32 s38, s38, 1\ns_add_u32 s38, s38, %d\n%s\ns_mul_i32 s%d, s39, 40960\ns_lshl_b32 s38, s38, 17\ns_add_u32 s%d, s38, s40' % (c & 1, 's_xor_b32 s39, s38, s79' if opt.early else 's_mov_b32 s39, s38', sORO + c, sWOO + c))
    if opt.sent:
        b('v_mov_b32 v27, 0x100000')
        for j in range(3): b('s_add_u32 s38, s%d, 2048\nv_writelane_b32 v27, s38, %d' % (sPR + j, j))
    b('v_lshrrev_b32 v4, 4, v%d\nv_and_b32 v5, 15, v%d' % (L, L))
    for m in range(4):
        b('v_add_u32 v6, %d, v4\nv_lshlrev_b32 v6, 1, v6\nv_xor_b32 v6, v6, v5\nv_lshlrev_b32 v6, 4, v6\nv_lshl_add_u32 v6, v4, 10, v6\nv_add_u32 v%d, %d, v6' % (4 * (m % 2), vOD + m, 3072 * m))
    b('v_lshlrev_b32 v%d, 4, v%d' % (vOL, L))
    for i, o in ((1, 4096), (2, 10240), (3, 14336)): b('v_add_u32 v%d, %d, v%d' % (vOL + i, o, vOL))
    b('v_lshlrev_b32 v5, 11, v5\nv_lshl_add_u32 v%d, v4, 3, v5' % vST)
    for (reg, wsel, step, lo, hi) in ((vXW, sW, 10240, 32768, 98304), (vXR, 41, 10240, 32768, 98304), (vYW, sW, 20480, 98304, 32768), (vYR, 41, 20480, 98304, 32768)):
        b('s_xor_b32 s41, s%d, 2\ns_mul_i32 s38, s%d, %d\ns_add_u32 s38, s38, %d\ns_cmp_eq_u32 s%d, 3\ns_cselect_b32 s38, %d, s38\nv_add_u32 v%d, s38, v%d' % (sW, wsel, step, lo, wsel, hi, reg, vOL))
    b('''v_lshrrev_b32 v6, 4, v{L}
          v_bfe_u32 v4, v{L}, 2, 2
          v_lshl_add_u32 v6, v6, 2, v4
          v_and_b32 v4, 3, v{L}
          v_lshlrev_b32 v4, 3, v4
          v_lshl_add_u32 v4, v6, 8, v4
          s_lshr_b32 s38, s{w}, 1
          s_lshl_b32 s39, s38, 2
          s_add_u32 s39, s39, s{KQ}
          s_mul_i32 s38, s38, {x}
          s_add_u32 s38, s38, 131072
          v_add_u32 v4, s38, v4
          v_and_b32 v6, 7, v6
          v_xor_b32 v6, s39, v6'''.format(L=L, w=sW, KQ=sKQ, x=(16384 - 131072) & 0xffffffff))
    for n in range(8): b('v_xor_b32 v5, %d, v6\nv_lshl_add_u32 v%d, v5, 5, v4' % (n, vRA[n]))
    b('s_lshl_b32 s38, s%d, 2\ns_add_u32 s38, s38, s%d\ns_lshl_b32 s38, s38, 2\nv_readfirstlane_b32 s39, v%d\ns_add_u32 s38, s38, s39\nv_lshl_add_u32 v%d, v%d, 16, s38' % (sJP, sW, vPA, vFA, L))
    b('s_lshl_b32 s38, s%d, 2\ns_add_u32 s38, s38, s%d\ns_lshl_b32 s38, s38, 2\nv_readfirstlane_b32 s39, v%d\ns_add_u32 s38, s38, s39\nv_lshl_add_u32 v%d, v%d, 16, s38' % (sKQ, sW, vPA + 1, vFA + 1, L))
    for kl in range(4): b('s_lshl_b32 s38, s79, 1\ns_xor_b32 s38, s38, %d\ns_mul_i32 s%d, s38, 10240' % (kl, 38 if kl == 3 else sOK + kl))
    b('s_mov_b32 s%d, s38' % (sOK + 3))

def k1_setup():
    b = Block('setup'); L = vLANE; T = vT2
    b('s_cmp_ge_u32 s2, 256\ns_cbranch_scc1 L_k1_end')
    if opt.stamps: b('s_memrealtime s[100:101]\ns_memtime s[42:43]')
    if opt.warm: b('s_getpc_b64 s[96:97]')
    b('''s_and_b32 s38, s2, 7
         s_lshr_b32 s{BR}, s38, 2
         s_and_b32 s{KQ}, s38, 3
         s_lshr_b32 s39, s2, 3
         s_and_b32 s{B}, s39, 7
         s_lshr_b32 s{JP}, s39, 3
         s_lshl_b32 s38, s{KQ}, 3
         s_lshl_b32 s40, s{JP}, 1
         s_add_u32 s{H}, s38, s40
         s_add_u32 s{C}, s{B}, s40
         s_and_b32 s{C}, s{C}, 7
         s_mul_i32 s38, s{BR}, 40
         s_add_u32 s60, s0, s38
         s_addc_u32 s61, s1, 0
         s_load_dwordx8 s[64:71], s[60:61], 0
         s_load_dwordx4 s[72:75], s[0:1], 88
         s_load_dwordx2 s[92:93], s[60:61], 32
         s_load_dwordx2 s[94:95], s[0:1], 80
         v_lshrrev_b32 v1, 6, v0
         v_and_b32 v{L}, 63, v0
         v_readfirstlane_b32 s{W}, v1
         v_and_b32 v1, 31, v{L}
         v_lshrrev_b32 v2, 5, v{L}
         v_lshrrev_b32 v3, 4, v{L}
         v_and_b32 v4, 15, v{L}
         s_lshl_b32 s{W4}, s{W}, 12
         s_lshl_b32 s{M}, s{W}, 10'''.format(BR=sBR, B=sB, H=sH1, C=sC0, L=L, W=sW, W4=sW4, M=sM0B, KQ=sKQ, JP=sJP))
    b('s_lshl_b32 s39, s%d, 16' % sW)
    for n in range(4):
        b('''v_add_u32 v{a}, {n2}, v2
             v_and_b32 v{c}, 3, v{a}
             v_lshlrev_b32 v{c}, 2, v{c}
             v_xor_b32 v{c}, v{c}, v1
             v_lshlrev_b32 v{c}, 4, v{c}
             v_lshl_add_u32 v{c}, v{a}, 13, v{c}
             v_add_u32 v{c}, s39, v{c}
             v_subrev_u32 v{d}, {sub}, v{c}'''.format(a=T, c=T + 1, n2=2 * n, d=vWD + n, sub=1024 * n))
    b('s_lshl_b32 s39, s%d, 15\nv_lshrrev_b32 v%d, 3, v%d\nv_and_b32 v%d, 7, v%d\ns_lshl_b32 s38, s%d, 2' % (sW, T + 3, L, T + 4, L, sW))
    for n in range(4):
        b('''v_add_u32 v{a}, {n4}, v3
             v_and_b32 v{a}, 7, v{a}
             v_xor_b32 v{a}, v{a}, v{p}
             v_lshlrev_b32 v{a}, 4, v{a}
             v_lshl_add_u32 v{a}, v{r}, 10, v{a}
             v_add_u32 v{a}, {add}, v{a}
             v_add_u32 v{d}, s39, v{a}'''.format(a=T, n4=4 * n, p=T + 4, r=T + 3, add=7 * 1024 * n, d=vXD + n))
    b('''s_lshl_b32 s39, s{w}, 13
         s_add_u32 s39, s39, 131072
         v_add_u32 v{a}, s38, v3
         v_and_b32 v{a}, 7, v{a}
         v_xor_b32 v{a}, v{a}, v{p}
         v_lshlrev_b32 v{a}, 4, v{a}
         v_lshl_add_u32 v{a}, v{r}, 10, v{a}
         v_add_u32 v{d}, s39, v{a}'''.format(w=sW, a=T, p=T + 4, r=T + 3, d=vXD + 4))
    b('s_waitcnt lgkmcnt(0)')
    b('s_mul_i32 s39, s%d, 163840' % sB); srd(b, S_X, 64, 's39', 163840)
    b('s_lshl_b32 s39, s%d, 8' % sH1); srd(b, S_WQ, 70, 's39', 's_sub_u32 s%d, 4194304, s39')
    if opt.nox: b('s_mov_b32 s%d, 0' % (S_X + 2))
    if opt.noxq: b('s_mov_b32 s%d, 0' % (S_WQ + 2))
    b.extend(off_calc(0) + off_calc(1))
    for g in dma_wq(0) + dma_x(0) + (dma_wq(1) + dma_x(1) + dma_wq(2) if opt.upfront == 2 else []): b.extend(g)
    if opt.warm:
        n8 = (opt.warm + 7) // 8
        b('s_lshr_b32 s38, s2, 3\ns_and_b32 s38, s38, 7\ns_mul_i32 s38, s38, %d\nv_min_u32 v6, %d, v%d\nv_add_u32 v6, s38, v6\nv_lshlrev_b32 v6, 7, v6\nv_mov_b32 v7, s97' % (n8, n8 - 1, L))
        b('v_add_co_u32 v6, vcc, s96, v6\nv_addc_co_u32 v7, vcc, 0, v7, vcc\nglobal_load_dword v63, v[6:7], off')
    for X in range(2, 8): b.extend(off_calc(X))
    b('s_lshr_b32 s41, s%d, 1\ns_lshl_b32 s38, s%d, 5\ns_add_u32 s38, s38, s%d\ns_add_u32 s38, s38, s41\ns_lshl_b32 s39, s38, 18' % (sW, sB, sH1))
    srd(b, S_K, 66, 's39', 0 if opt.nokv else 262144); srd(b, S_V, 68, 's39', 0 if opt.nokv else 262144)
    b('s_lshl_b32 s39, s%d, 8\ns_add_u32 s38, s38, s39\ns_mul_i32 s39, s38, 40960\ns_and_b32 s40, s%d, 1\ns_mul_i32 s38, s40, 5120\ns_add_u32 s39, s39, s38' % (sBR, sW))
    srd(b, S_O, 74, 's39', 's_sub_u32 s%d, 40960, s38')
    b('s_lshl_b32 s%d, s40, 12\ns_mov_b32 s%d, s%d' % (sKO, sVO, sKO))
    stamp_setup(b, 74, sW, first=True)
    srd(b, S_F, 74, '0x%x' % FOFF, 32768); srd(b, S_D, 72, '0', 256)
    b('''s_and_b32 s38, s2, 7
         s_lshl_b32 s38, s38, 3
         s_add_u32 s38, s38, s{B}
         s_lshl_b32 s39, s{BR}, 3
         s_add_u32 s39, s39, s{B}
         s_lshl_b32 s39, s39, 2
         s_add_u32 s39, s39, s{JP}
         v_and_b32 v5, 1, v{L}
         v_mov_b32 v6, s38
         v_mov_b32 v7, s39
         v_cmp_eq_u32 vcc, 0, v5
         v_cndmask_b32 v6, v7, v6, vcc
         v_lshlrev_b32 v{DA}, 2, v6
         s_lshl_b32 s38, s38, 7
         s_lshl_b32 s39, s39, 7
         s_add_u32 s39, s39, 8192
         v_lshl_add_u32 v{PA}, v4, 2, s38
         v_lshl_add_u32 v{PB}, v4, 2, s39
         s_lshl_b32 s41, s{JP}, 4
         s_add_u32 s38, s38, s41
         s_lshl_b32 s41, s{KQ}, 4
         s_add_u32 s39, s39, s41
         v_mov_b32 v6, s38
         v_mov_b32 v7, s39
         v_cndmask_b32 v6, v7, v6, vcc
         v_lshrrev_b32 v7, 1, v0
         v_lshl_add_u32 v6, v7, 16, v6
         v_mov_b32 v{T}, 0
         v_mov_b32 v{T1}, 0
         v_mov_b32 v{T2}, 0
         v_mov_b32 v{T3}, 0'''.format(B=sB, BR=sBR, JP=sJP, KQ=sKQ, L=L, DA=vDA, PA=vPA, PB=vPA + 1, T=T, T1=T + 1, T2=T + 2, T3=T + 3))
    b('buffer_store_dwordx4 %s, v6, s[%d:%d], 0 offen sc1' % (vr(T, 4), S_F, S_F + 3), 'fz')
    if opt.fbk:
        b('''v_readfirstlane_b32 s38, v{PA}
             v_readfirstlane_b32 s39, v{PB}
             v_and_b32 v5, 3, v{L}
             v_lshlrev_b32 v5, 2, v5
             v_and_b32 v6, 4, v{L}
             v_cmp_eq_u32 vcc, 0, v6
             s_add_u32 s38, s38, 16384
             s_add_u32 s39, s39, 16384
             v_add_u32 v6, s38, v5
             v_add_u32 v7, s39, v5
             v_cndmask_b32 v249, v7, v6, vcc
             s_lshl_b32 s41, s{JP}, 2
             s_add_u32 s38, s38, s41
             s_lshl_b32 s41, s{KQ}, 2
             s_add_u32 s39, s39, s41
             v_and_b32 v5, 1, v{L}
             v_cmp_eq_u32 vcc, 0, v5
             v_mov_b32 v6, s38
             v_mov_b32 v7, s39
             v_cndmask_b32 v6, v7, v6, vcc
             v_lshrrev_b32 v7, 1, v0
             v_lshl_add_u32 v250, v7, 16, v6
             v_mov_b32 v251, 0'''.format(PA=vPA, PB=vPA + 1, L=L, JP=sJP, KQ=sKQ))
        b('buffer_store_dword v251, v250, s[%d:%d], 0 offen sc1' % (S_F, S_F + 3))
    tail_setup_a(b)
    if opt.ptouch:
        wo_srd(b, 92)
        b('v_mov_b32 v7, 0')
        for i, d in enumerate((S_K, S_V, S_O, S_P, S_OUT, 92)): b('buffer_load_dword v%d, v7, s[%d:%d], 0 offen%s' % (250 + i, d, d + 3, ' nt' if i < 2 else ''))
    b('s_lshr_b32 s41, s%d, 1' % sW)
    b('v_bfe_u32 v5, v%d, 2, 2\nv_and_b32 v6, 3, v%d' % (L, L))
    for m in range(4):
        b('v_add_u32 v%d, %d, v3\nv_xor_b32 v%d, v%d, v4\nv_lshlrev_b32 v%d, 4, v%d\nv_lshl_add_u32 v%d, v3, 8, v%d' % (T, 4 * m, T, T, T, T, vKD + m, T))
    for m in range(2):
        b('v_add_u32 v%d, %d, v3\nv_lshlrev_b32 v%d, 1, v%d\nv_xor_b32 v%d, v%d, v4\nv_lshlrev_b32 v%d, 4, v%d\nv_lshl_add_u32 v%d, v3, 8, v%d' % (T, 4 * m, T, T, T, T, T, T, vVD + m, T))
    b('s_lshl_b32 s41, s41, 13\nv_xor_b32 v%d, v3, v4\nv_lshlrev_b32 v%d, 8, v4\nv_add_u32 v%d, s41, v%d' % (T, T + 1, T + 1, T + 1))
    for k in range(4): b('v_xor_b32 v%d, %d, v%d\nv_lshl_add_u32 v%d, v%d, 4, v%d' % (T + 2, 4 * k, T, vKA + k, T + 2, T + 1))
    b('''v_lshl_add_u32 v{a}, v3, 2, v5
         v_lshlrev_b32 v{c}, 8, v{a}
         v_lshl_add_u32 v{c}, v6, 3, v{c}
         s_add_u32 s41, s41, {vs}
         v_add_u32 v{c}, s41, v{c}
         v_and_b32 v{a}, 7, v{a}
         s_and_b32 s38, s{w}, 2
         s_lshl_b32 s38, s38, 1
         v_xor_b32 v{a}, s38, v{a}'''.format(a=T, c=T + 1, vs=VS0, w=sW))
    for dt in range(8): b('v_xor_b32 v%d, %d, v%d\nv_lshl_add_u32 v%d, v%d, 5, v%d' % (T + 2, dt, T, vVA + dt, T + 2, T + 1))
    b('''v_lshl_add_u32 v{c}, v3, 3, v5
         v_lshlrev_b32 v{c}, 9, v{c}
         s_lshr_b32 s41, s{w}, 1
         s_lshl_b32 s41, s41, 8
         v_add_u32 v{c}, s41, v{c}
         v_lshl_add_u32 v{a}, v5, 2, v6'''.format(a=T, c=T + 1, w=sW))
    for k in range(4): b('v_xor_b32 v%d, %d, v%d\nv_lshl_add_u32 v%d, v%d, 4, v%d' % (T + 2, 4 * k, T, vWA + k, T + 2, T + 1))
    b('''v_lshrrev_b32 v{a}, 1, v4
         v_xor_b32 v{a}, v{a}, v3
         s_mul_i32 s41, s40, 10240
         s_add_u32 s41, s41, {xb}
         v_lshlrev_b32 v{c}, 7, v4
         v_add_u32 v{c}, s41, v{c}'''.format(a=T, c=T + 1, xb=XBUF[0]))
    for k in range(2): b('v_xor_b32 v%d, %d, v%d\nv_lshl_add_u32 v%d, v%d, 4, v%d' % (T + 2, 4 * k, T, vXA + k, T + 2, T + 1))
    c = math.log2(math.e) / math.sqrt(128.0)
    b('s_mov_b32 s%d, 0x%08x\ns_mov_b32 s%d, 0x%08x\ns_mov_b32 s%d, 0x%08x\ns_mov_b32 s%d, 0' % (sSC, f32bits(c), sSC + 1, f32bits(c), sTH, f32bits(2.0 ** 30), sEX))
    b('v_lshl_add_u32 v%d, v%d, 4, s%d\nv_add_u32 v%d, 0x10000, v%d' % (vSW, L, sW4, vSW + 1, vSW))
    b('v_mov_b32 v%d, 0x3f803f80' % T)
    for i in range(4): b('v_accvgpr_write_b32 a%d, v%d' % (aONE + i, T))
    if opt.upfront != 2:
        for g in dma_wq(1) + (dma_x(1) if opt.upfront == 3 else []): b.extend(g)
    return b

def zero_acc():
    return ['v_accvgpr_write_b32 a%d, 0' % i for i in range(180 if opt.ones else 160)] + ([] if opt.ones else ['v_mov_b32 v%d, 0' % (vL + i) for i in range(5)])

def conv(k):
    L = []
    for qs in range(5):
        d = rQ(k, qs)
        if opt.fs: pass
        elif opt.pk: L += ['v_pk_mul_f32 %s, %s, s[%d:%d]' % (vr(d + 2 * i, 2), vr(d + 2 * i, 2), sSC, sSC + 1) for i in range(4)]
        else: L += ['v_mul_f32 v%d, s%d, v%d' % (d + i, sSC, d + i) for i in range(8)]
        L += ['v_cvt_pk_bf16_f32 v%d, v%d, v%d' % (d + i, d + 2 * i, d + 2 * i + 1) for i in range(4)]
    return L
def qk0_mfmas():
    bb = []
    for f in range(8):
        k, kt = divmod(f, 2)
        for qs in range(5):
            s = rS(kt, qs)
            bb.append(I('%s %s, %s, %s, %s' % (MF, vr(s, 4), vr(vF + 4 * (f % NB), 4), vr(rQ(k, qs), 4), '0' if k == 0 else vr(s, 4))))
    return bb
def kread0(f):
    k, kt = divmod(f, 2)
    return [I('ds_read_b128 %s, v%d offset:%d' % (vr(vF + 4 * (f % NB), 4), vKA + k, kt * 4096), 'g%d' % f)]

def k1_qproj():
    b = Block('qproj')
    bb = []
    for c in range(16):
        for t in range(8):
            for qs in range(5):
                d = rQ(t // 2, qs) + 4 * (t % 2)
                bb.append(I('%s %s, %s, %s, %s' % (MF, vr(d, 4), ar(aFA + 4 * (t % 4), 4), ar(aFB + 20 * (c % 2) + 4 * qs, 4), '0' if c == 0 else vr(d, 4))))
    G = Gaps(bb, 8)
    def ybar(c): return -1 if c == 0 else 40 * c - 14
    cur = [0] * 4
    def wq_read(c, t):
        k, bsel = divmod(t, 2)
        want = 0 if WBUF[c % 3] < 65536 else 131072
        off = WBUF[c % 3] - want + 8 * bsel
        r = aFA + 4 * (t % 4)
        L = []
        if bsel == 0 and want != cur[k]:
            L.append(I('v_add_u32 v%d, 0x%x, v%d' % (vWA + k, (want - cur[k]) & 0xffffffff, vWA + k))); cur[k] = want
        return L, [I('ds_read_b64_tr_b16 %s, v%d offset:%d' % (ar(r, 2), vWA + k, off), 'fa'), I('ds_read_b64_tr_b16 %s, v%d offset:%d' % (ar(r + 2, 2), vWA + k, off + 2048), 'fa%d_%d' % (c, t))]
    kvq = dma_kv('K', 0, True) + dma_kv('K', 1, True) + dma_kv('V', 0, True) + dma_kv('V', 1, True) + stash_load('K', 2) + stash_load('V', 2) + stash_load('K', 3)
    nkv = opt.kvend
    bursts = dict(tuple(int(v) for v in x.split(':')) for x in opt.burst.split())
    nst = sum(bursts.values()) - 4
    assert 0 <= nst <= 3
    if bursts: kvq = dma_kv('K', 0) + dma_kv('K', 1) + dma_kv('V', 0) + dma_kv('V', 1) + kvq[16:]
    for c in range(16):
        y = ybar(c); base = 40 * c
        G.put(y, I('@waitlgkm *'), I('@waitvm wq%d' % c + (',x%d' % (c // 2) if c % 2 == 0 else '') + (',K0' if c == 15 else '')), I('s_barrier'))
        if opt.qstamps and c % opt.qevery == 0: G.put(y, *stamp_ins())
        if c == 3:
            G.put(y + 9, I('v_and_b32 v4, 1, v%d' % vLANE)); G.put(y + 10, I('v_lshlrev_b32 v4, 4, v4')); G.put(y + 11, I('v_lshlrev_b32 v4, v4, 1'))
            G.put(y + 12, I('v_lshrrev_b32 v1, 1, v0')); G.put(y + 13, I('v_lshl_add_u32 v1, v1, 16, v%d' % vDA))
            G.put(y + 14, I('@waitvm fz'), I('buffer_atomic_add v4, v1, s[%d:%d], 0 offen sc1' % (S_D, S_D + 3)))
        xr = [I('ds_read_b128 %s, v%d offset:%d' % (ar(aFB + 20 * (c % 2) + 4 * qs, 4), vXA + c % 2, (c // 2 % 2) * 20480 + 2048 * qs), 'xr%d_%d' % (c, qs)) for qs in range(5)]
        for t in range(8):
            g = max(base + 5 * (t - 3) - 1, y + 1 if c else y)
            pre, rd = wq_read(c, t)
            G.put(max(g - 1, -1), *pre); G.put(g, *rd)
            if t == 0:
                for qs in range(5): G.put(y + ((2, 4, 5, 6, 7)[qs] if c else 0), xr[qs])
                G.put(base - 1, I('@waitlgkm fa%d_1,xr%d_4' % (c, c)))
            if t % 2 == 0 and t: G.put(base + 5 * t - 1, I('@waitlgkm fa%d_%d' % (c, t + 1)))
        d = []
        if c == 0 and opt.upfront != 2: d += (dma_x(1) if opt.upfront == 1 else []) + dma_wq(2)
        if 1 <= c < 14: d += dma_wq(c + 2)
        if c % 2 == 0 and 2 <= c < 14: d += dma_x(c // 2 + 1)
        if not bursts and c < nkv: d += kvq[(c * len(kvq)) // nkv:((c + 1) * len(kvq)) // nkv]
        flat = [x for g in d for x in g]
        if c in bursts:
            if flat: G.spread2(flat, y + 1 if c else 0, y + 14)
            flat = [x for g in kvq[:4 * bursts[c]] for x in g]; kvq = kvq[4 * bursts[c]:]
            G.spread2(flat, y + 15, y + 15 + len(flat) // 2); flat = []
        late = lambda w, sl, k: stash_flush(w, sl) if nst > k else [x for g in dma_kv(w, sl) for x in g]
        if c == 14: flat += late('K', 2, 0) + late('V', 2, 1)
        if c == 15: flat += late('K', 3, 2)
        if c == opt.touchc:
            tb = Block('x'); wo_srd(tb); wo_touch(tb); flat += tb.ins
        if flat: G.spread2(flat, y + 1 if c else 0, 25 if c == 0 else y + (39 if c < 14 else 20), opt.qcl)
    G.spread2(zero_acc(), 20, 580)
    for f in range(3): G.put(624 + 5 * f, *kread0(f))
    G.spread2(conv(0), 613, 626); G.spread2(conv(1), 627, 639)
    em = G.emit()
    if 'd' in opt.qf: em = [x for x in em if x.cls not in ('dma', 'vld') and 'm0' not in x.w]
    if 'b' in opt.qf: em = [x for x in em if x.op != 's_barrier']
    if 'h' in opt.qf:
        k = [0]
        def keep(x):
            if x.op != 's_barrier': return True
            k[0] += 1; return k[0] % 2 == 1
        em = [x for x in em if keep(x)]
    if 'w' in opt.qf: em = [x for x in em if not (x.op == '@waitlgkm' and x.wait == ['*'])]
    if 'r' in opt.qf: em = [x for x in em if x.cls != 'dsr']
    if 'z' in opt.qf: em = [x for x in em if x.op != 'v_accvgpr_write_b32']
    if 'x' in opt.qf: em = [x for x in em if x.op != 'ds_read_b128']
    if 't' in opt.qf: em = [x for x in em if x.op != 'ds_read_b64_tr_b16']
    b.extend(em)
    print('qproj est cycles', G.est_cycles(16), file=sys.stderr)
    G = Gaps(qk0_mfmas(), 8)
    for f in range(3, 8): G.put(5 * (f - 3) - 1, *kread0(f))
    G.spread2(conv(2), -1, 17); G.spread2(conv(3), 18, 27)
    b.extend(G.emit())
    stamp(b)
    return b

XBAR = 66
aK = 184
def kread(f, slot):
    kt, k = divmod(f, 4)
    return [I('ds_read_b128 %s, v%d offset:%d' % (ar(aK + 4 * f, 4) if opt.chain else vr(vF + 4 * (f % NB), 4), vKA + k, slot * 16384 + kt * 4096), 'f%d' % f)]
def vread(f, slot):
    dt = f - 8; r = vF + 4 * (f % NB)
    return [I('ds_read_b64_tr_b16 %s, v%d offset:%d' % (vr(r, 2), vVA + dt, slot * 16384), 'fx'),
            I('ds_read_b64_tr_b16 %s, v%d offset:%d' % (vr(r + 2, 2), vVA + dt, slot * 16384 + 4096), 'f%d' % f)]
def neg_adds(kt): return ['v_add_f32 v%d, v%d, v%d' % (rS(kt, qs) + i, rS(kt, qs) + i, vN + 4 * qs) for qs in range(5) for i in range(4)]
def sm_chain(par):
    C = []; pend = []
    for kt in range(2):
        for qs in range(5):
            s = rS(kt, qs); p = rP(par, qs) + 2 * kt
            e = ['v_exp_f32 v%d, v%d' % (s + i, s + i) for i in range(4)]
            a = ['v_add_f32 v%d, v%d, v%d' % (vL + qs, vL + qs, s + i) for i in range(4)]
            cv = ['v_cvt_pk_bf16_f32 v%d, v%d, v%d' % (p + i, s + 2 * i, s + 2 * i + 1) for i in range(2)]
            if opt.fs: C += [('v_mul_f32 v%d, s%d, v%d' % (s + i, sSC, s + i), kt, qs) for i in range(4)]
            C.append((e[0], kt, qs)); C += pend
            if opt.ones: C += [(x, kt, qs) for x in (e[1], e[2], cv[0], e[3])]; pend = [(cv[1], kt, qs)]
            else: C += [(x, kt, qs) for x in (e[1], a[0], e[2], a[1], cv[0], e[3], a[2])]; pend = [(a[3], kt, qs), (cv[1], kt, qs)]
    return C + pend
def qk_mfmas(first):
    bb = []
    if opt.chain and not first:
        for kt in range(2):
            for qs in range(5):
                s = rS(kt, qs)
                for k in range(4): bb.append(I('%s %s, %s, %s, %s' % (MF, vr(s, 4), ar(aK + 16 * kt + 4 * k, 4), vr(rQ(k, qs), 4), vr(vN + 4 * qs, 4) if k == 0 else vr(s, 4))))
        return bb
    for f in range(8):
        kt, k = divmod(f, 4)
        for qs in range(5):
            s = rS(kt, qs)
            c = ('0' if first else vr(vN + 4 * qs, 4)) if k == 0 else vr(s, 4)
            bb.append(I('%s %s, %s, %s, %s' % (MF, vr(s, 4), vr(vF + 4 * (f % NB), 4), vr(rQ(k, qs), 4), c)))
    return bb
def pv_mfmas(par):
    bb = []
    for f in range(8, 16):
        for qs in range(5):
            bb.append(I('%s %s, %s, %s, %s' % (MF, ar(aO(f - 8, qs), 4), vr(vF + 4 * (f % NB), 4), vr(rP(par, qs), 4), ar(aO(f - 8, qs), 4))))
    return bb
def ones_mfmas(par): return [I('%s %s, %s, %s, %s' % (MF, ar(aL + 4 * qs, 4), ar(aONE, 4), vr(rP(par, qs), 4), ar(aL + 4 * qs, 4))) for qs in range(5)]
SPLIT = [None]; SMPOS = [None]
def period(j, peel=False):
    pu, pn = j % 2, (j + 1) % 2
    ks, vs = (j + 1) % 4, j
    lg = qk_mfmas(False) + pv_mfmas(pu)
    bb = []; ix = {-1: -1}
    on = ones_mfmas(pu) if opt.ones else []
    for i, x in enumerate(lg):
        bb.append(x); ix[i] = len(bb) - 1
        if on and i in (44, 49, 54, 59, 64): bb.append(on.pop(0))
    G = Gaps(bb, 8); N = len(bb)
    for f in range(4 if opt.chain else 3, 16):
        if opt.chain and f < 8: G.put(3 * (f - 4), *kread(f, ks)); continue
        G.put(ix[5 * (f - 3) - 1] if f > 3 else 0, *(kread(f, ks) if f < 8 else vread(f, vs)))
        if f % 2 == 0 and f < 15: G.put(ix[5 * f] - 1, I('@waitlgkm f%d' % (f + 1)))
    if opt.chain: G.put(19, I('@waitlgkm f7'))
    G.put(ix[XBAR], I('@waitlgkm *'), I('@waitvm K%d,V%d' % ((j + 2) % 4, (j + 1) % 4)), I('s_barrier'))
    if peel and j == 2:
        for f, g in ((8, XBAR + 1), (9, 69), (10, 74)): G.put(ix[g], *vread(f, 3))
    else:
        for f, g in ((0, XBAR + 1), (1, 69), (2, 71), (3, 73)) if opt.chain else ((0, XBAR + 1), (1, 69), (2, 74)): G.put(ix[g], *kread(f, (j + 2) % 4))
        G.put(N - 1, I('@waitlgkm f3' if opt.chain else '@waitlgkm f1'))
    if not opt.chain: G.put(9, I('@waitlgkm f3'))
    slots = [2, 7, 12, 17, 22, 27, 32, 37, 42, 47, 52, 57, 62] if opt.dsp == 5 else [2 + opt.dsp * m for m in range(8)]
    dl = dma_kv('K', j) + dma_kv('V', (j + 3) % 4)
    if peel: dl = dma_kv('V', 3) if j == 0 else dma_wo(j)
    extra = []
    if peel and opt.sb == 1 and j < 2:
        tb = Block('x'); tail_setup_b(tb)
        cut = [k for k, x in enumerate(tb.ins) if x.w == {'v%d' % (vOD + 3)}][0] + 1
        extra = tb.ins[:cut] if j == 0 else tb.ins[cut:]
    if peel and j == 0: extra = extra + [x for g in dma_wo(0) for x in g]
    if not peel and opt.sb == 2 and j < 3:
        tb = Block('x'); tail_setup_b(tb); n3 = len(tb.ins) // 3
        cuts = [0] + [next(k for k in range(n3 * q, len(tb.ins)) if tb.ins[k].op not in ('s_addc_u32', 's_cselect_b32')) for q in (1, 2)] + [len(tb.ins)]
        inloop = tb.ins[cuts[j]:cuts[j + 1]]
    for m, g in enumerate(dl):
        p = ix[slots[m]]
        if not peel:
            ce, cl = opt.cape.strip()[m], opt.capl.strip()[m]
            if ce != 'x': G.put(p - 1, I('@raw s_waitcnt vmcnt(%s)' % ce))
            if cl != ce: G.put(p - 1, I('s_cbranch_vccnz L_t%d_%d' % (j, m)), I('@raw s_waitcnt vmcnt(%s)' % cl), I('L_t%d_%d:' % (j, m)))
        if len(g) == 2 and g[0].cls == 'salu': G.put(p - 1, g[0]); G.put(p, g[1])
        elif len(g) == 2: G.put(p, g[0]); G.put(p + 1, g[1])
        elif len(g) == 3: G.put(p - 2, g[0]); G.put(p - 1, g[1]); G.put(p, g[2])
        else: G.put(p, *g)
    if j == 3:
        G.put(ix[71], I('s_sub_u32 s%d, s%d, 1' % (sCNT, sCNT))); G.put(ix[77], I('s_cmp_lg_u32 s%d, 0' % sCNT))
        if opt.asym and opt.rel: G.put(ix[74], I('s_cmp_le_u32 s%d, %d' % (sCNT, opt.rel)), I('s_cselect_b64 vcc, 1, vcc'))
    if opt.fbk and not peel and (j + 1) % opt.fbk == 0:
        G.put(ix[74], I('s_add_u32 s37, s37, 1')); G.put(ix[75], I('v_mov_b32 v251, s37'))
        G.put(ix[76], I('buffer_store_dword v251, v250, s[%d:%d], 0 offen sc1' % (S_F, S_F + 3)))
        G.put(ix[76], I('buffer_load_dword v252, v249, s[%d:%d], 0 offen sc1' % (S_F, S_F + 3)))
    if opt.fbk and not peel and j % opt.fbk == 0:
        G.put(ix[opt.fbpos], I('v_cmp_le_u32 vcc, s37, v252'))
        G.put(ix[opt.fbpos + 1], I('s_and_b32 vcc_lo, vcc_lo, s36'), I('s_bcnt1_i32_b32 vcc_lo, vcc_lo'))
        G.put(ix[opt.fbpos + 2], I('s_cmp_ge_u32 vcc_lo, %d' % opt.fbn), I('s_cselect_b64 vcc, 1, 0'))
    if peel and j == 0: G.put(ix[40], I('buffer_load_dword v244, v%d, s[%d:%d], 0 offen sc1' % (vDA, S_D, S_D + 3)))
    chn, chu = sm_chain(pn), sm_chain(pu)
    if SMPOS[0] is None:
        s0 = 18; gaps = list(range(s0, N)) + list(range(0, s0))
        gaps += list(range(s0, 24))
        lo = [ix[15 + 20 * kt + qs] + 4 - s0 for (_, kt, qs) in chn]
        hi = [(N - s0 + qs - 1) if kt == 0 else (N - s0 + 19 + qs) for (_, kt, qs) in chn]
        if opt.chain:
            s0 = 7; gaps = list(range(s0, N)) + list(range(0, s0))
            lo = [ix[20 * kt + 4 * qs + 3] + 4 - s0 for (_, kt, qs) in chn]
            hi = [N - s0 + 20 * kt + 4 * qs - 1 for (_, kt, qs) in chn]
        hi = [min(h, N - 1) for h in hi]
        _, pos = G.dp([x for x, _, _ in chn], gaps, lo, hi)
        SMPOS[0] = [gaps[p] for p in pos]; SPLIT[0] = sum(p < N - s0 for p in pos)
    for k, (x, _, _) in enumerate(chu):
        if k >= SPLIT[0]: G.put(SMPOS[0][k], I(x))
    for k, (x, _, _) in enumerate(chn):
        if k < SPLIT[0]: G.put(SMPOS[0][k], I(x))
    if not peel and opt.sb == 2 and j < 3: G.spread2(inloop, 0, N - 1)
    if extra and j == 0: G.spread2(extra, ix[slots[3]] + 2, N - 1)
    if extra and j == 1: G.spread2(extra, ix[slots[4]] + 1, N - 1)
    if j == 3 or opt.pstamps: G.put(ix[XBAR], *stamp_ins())
    return G

def k1_attention():
    P = [period(j) for j in range(4)]
    print('period est cycles', [g.est_cycles(16) for g in P], [P[0].used(i) for i in range(len(P[0].bb))], file=sys.stderr)
    pro = Block('pro'); T = vT
    pro('L_start:')
    pro('@waitlgkm *\n@waitvm K1,V0\ns_barrier')
    for f in range(4 if opt.chain else 3): pro.extend(kread(f, 1))
    if opt.fallback: pro('s_cmp_lg_u32 s%d, 0\ns_cbranch_scc1 L_nomax' % sEX)
    mx = Block('pro_max')
    for qs in range(5):
        a, c = rS(0, qs), rS(1, qs); t = T + 2 * qs
        mx('v_max3_f32 v%d, v%d, v%d, v%d\nv_max3_f32 v%d, v%d, v%d, v%d' % (t, a, a + 1, a + 2, t + 1, c, c + 1, c + 2))
        mx('v_max3_f32 v%d, v%d, v%d, v%d\nv_max_f32 v%d, v%d, v%d' % (t, t, a + 3, c + 3, t, t, t + 1))
    max_finish(mx, T)
    p2 = Block('pro2'); p2('L_nomax:')
    p2.extend(neg_adds(0) + neg_adds(1) + [x for x, _, _ in sm_chain(0)[:SPLIT[0]]])
    if opt.touchc > 15:
        wo_srd(p2); wo_touch(p2)
    if opt.sb == 0: tail_setup_b(p2)
    p2('@waitlgkm f3' if opt.chain else '@waitlgkm f1')
    p2('s_mov_b32 s%d, 7' % sCNT)
    if opt.asym: p2('s_cmp_lt_u32 s%d, 2\ns_cselect_b64 vcc, 1, 0' % sJP)
    if opt.thre and not opt.fbk and not opt.asym: p2('s_getreg_b32 s38, hwreg(HW_REG_XCC_ID, 0, 1)\ns_mov_b32 vcc_lo, s38\ns_mov_b32 vcc_hi, 0')
    if opt.fbk:
        p2('s_lshl_b32 s38, 1, s%d\ns_lshl_b32 s39, 16, s%d\ns_or_b32 s38, s38, s39\ns_andn2_b32 s36, 0xff, s38\ns_mov_b32 s37, 0\ns_mov_b64 vcc, 0\nv_mov_b32 v252, 0' % (sJP, sKQ))
    stamp(p2)
    lp = [Block('per%d' % j) for j in range(4)]
    lp[0]('L_loop:')
    for j in range(4): lp[j].extend(P[j].emit())
    lp[3]('s_cbranch_scc1 L_loop')
    pe = [Block('pe%d' % j) for j in range(4)]
    pe[0].extend(period(0, True).emit()); pe[1].extend(period(1, True).emit())
    pe[1]('v_readlane_b32 s38, v244, 0\nv_readlane_b32 s39, v244, 1\ns_and_b32 s38, s38, 0xffff\ns_lshr_b32 s39, s39, 16\ns_min_u32 s38, s38, s39\ns_cmp_lt_u32 s38, 4\ns_cbranch_scc1 L_spin_d')
    pe[2]('L_back_d:')
    pe[2].extend(period(2, True).emit())
    sp = pe[3]; sp.name = 'spin_d'
    sp('L_spin_d:\ns_mov_b32 s40, %d\nL_spin_d2:\ns_sleep 4\nbuffer_load_dword v244, v%d, s[%d:%d], 0 offen sc1\ns_waitcnt vmcnt(0)' % (opt.spin, vDA, S_D, S_D + 3))
    sp('v_readlane_b32 s38, v244, 0\nv_readlane_b32 s39, v244, 1\ns_and_b32 s38, s38, 0xffff\ns_lshr_b32 s39, s39, 16\ns_min_u32 s38, s38, s39\ns_cmp_ge_u32 s38, 4\ns_cbranch_scc1 L_back_d')
    sp('s_sub_u32 s40, s40, 1\ns_cmp_lg_u32 s40, 0\ns_cbranch_scc1 L_spin_d2\ns_branch L_back_d')
    return pro, mx, p2, lp, pe

def max_finish(b, T):
    for qs in range(5): b('v_mov_b32 v%d, v%d' % (T + 2 * qs + 1, T + 2 * qs))
    for qs in range(5): b('v_permlane16_swap_b32 v%d, v%d' % (T + 2 * qs, T + 2 * qs + 1))
    for qs in range(5): b('v_max_f32 v%d, v%d, v%d' % (T + 2 * qs, T + 2 * qs, T + 2 * qs + 1))
    for qs in range(5): b('v_mov_b32 v%d, v%d' % (T + 2 * qs + 1, T + 2 * qs))
    for qs in range(5): b('v_permlane32_swap_b32 v%d, v%d' % (T + 2 * qs, T + 2 * qs + 1))
    for qs in range(5): b('v_max_f32 v%d, v%d, v%d' % (T + 2 * qs, T + 2 * qs, T + 2 * qs + 1))
    for qs in range(5):
        for i in range(4): b('v_sub_f32 v%d, 0, v%d' % (vN + 4 * qs + i, T + 2 * qs))

def poll_test(reg, mask, thr=1): return ['v_cmp_le_u32 vcc, %d, v%d' % (thr, reg), 's_and_b32 s38, vcc_lo, s%d' % mask, 's_cmp_lg_u32 s38, s%d' % mask]
def spin_block(name, addr, mask, thr=1):
    sp = Block('spin_' + name)
    sp('L_spin_%s:\ns_mov_b32 s40, %d\nL_spin_%s2:\ns_sleep 1\nbuffer_load_dword v244, v%d, s[%d:%d], 0 offen sc1\ns_waitcnt vmcnt(0)' % (name, opt.spin, name, addr, S_F, S_F + 3))
    sp.extend(poll_test(244, mask, thr))
    sp('s_cbranch_scc0 L_back_%s\ns_sub_u32 s40, s40, 1\ns_cmp_lg_u32 s40, 0\ns_cbranch_scc1 L_spin_%s2\ns_branch L_back_%s' % (name, name, name))
    return sp

def k1_tail():
    t1 = Block('tail1'); t2 = Block('tail2'); L = vLANE
    t1.extend([x for x, _, _ in sm_chain(1)[SPLIT[0]:]])
    t1.extend(ones_mfmas(1))
    G = Gaps(pv_mfmas(1), 8)
    for f in range(11, 16): G.put(5 * (f - 11) + 4, *vread(f, 3))
    R = vN + 9
    rc = ['v_accvgpr_read_b32 v%d, a%d' % (R + qs, aL + 4 * qs) for qs in range(5)]
    rc += ['v_add_f32 v%d, v%d, v%d' % (R + 5, R, R + 1), 'v_add_f32 v%d, v%d, v%d' % (R + 6, R + 2, R + 3), 'v_add_f32 v%d, v%d, v%d' % (R + 5, R + 5, R + 4), 'v_add_f32 v%d, v%d, v%d' % (R + 5, R + 5, R + 6)]
    if opt.fallback:
        rc += ['v_cmp_ngt_f32 vcc, s%d, v%d' % (sTH, R + 5), 's_lshl_b32 s39, s%d, 2' % sW, 's_add_u32 s39, s39, %d' % BADB, 'v_mov_b32 v%d, s39' % (R + 6),
               's_cmp_lg_u64 vcc, 0', 's_cselect_b32 s38, 1, 0', 'v_mov_b32 v%d, s38' % (R + 5), I('ds_write_b32 v%d, v%d' % (R + 6, R + 5), 'bad'), 'v_mov_b32 v%d, %d' % (R + 6, BADB)]
    rc += ['v_rcp_f32 v%d, v%d' % (vN + 2 * i, R + i) for i in range(5)]
    G.spread2(rc, 2, 11)
    if opt.fallback:
        G.put(12, I('@waitlgkm bad'), I('@waitvm wo0,wo1'), I('s_barrier'), I('ds_read_b128 %s, v%d' % (vr(R + 7, 4), R + 6)))
        G.put(16, I('v_or_b32 v%d, v%d, v%d' % (R + 5, R + 7, R + 8)), I('v_or3_b32 v%d, v%d, v%d, v%d' % (R + 5, R + 5, R + 9, R + 10)))
        G.put(17, I('v_readfirstlane_b32 s38, v%d' % (R + 5)))
        G.put(18, I('s_cmp_lg_u32 s%d, 0' % sEX), I('s_cselect_b32 s38, 0, s38'), I('s_cmp_lg_u32 s38, 0'), I('s_cbranch_scc1 L_fallback'))
    def out(kl):
        Lst = []
        for qs in range(5):
            idx = 5 * kl + qs
            d = BS[0][idx] if kl < 2 else hole(idx % 10); e = hole(10 + idx % 5)
            src = [aO(2 * kl, qs) + i for i in range(4)] + [aO(2 * kl + 1, qs) + i for i in range(4)]
            tmp = [d + i for i in range(4)] + [e + i for i in range(4)]
            Lst += ['v_accvgpr_read_b32 v%d, a%d' % (tmp[i], src[i]) for i in range(8)]
            if kl and opt.pk2: Lst += ['v_pk_mul_f32 %s, %s, %s op_sel_hi:[1,0]' % (vr(tmp[i], 2), vr(tmp[i], 2), vr(vN + 2 * qs, 2)) for i in range(0, 8, 2)]
            else: Lst += ['v_mul_f32 v%d, v%d, v%d' % (tmp[i], vN + 2 * qs, tmp[i]) for i in range(8)]
            Lst += ['v_cvt_pk_bf16_f32 v%d, v%d, v%d' % (d + i, tmp[2 * i], tmp[2 * i + 1]) for i in range(4)]
            if opt.stcap: Lst += [I('@raw s_waitcnt vmcnt(%d)' % opt.stcap)]
            Lst += [I('buffer_store_dwordx4 %s, v%d, s[%d:%d], s%d offen offset:%d%s' % (vr(d, 4), vOL + qs // 4, S_O, S_O + 3, sOK + kl, 1024 * (qs % 4), opt.o_st_pol), 'Oa' if kl < 2 else 'O')]
            if kl >= 2: Lst += [I('ds_write_b128 v%d, %s offset:%d' % (vXW, vr(d, 4), 1024 * (idx - 10)))]
        return Lst
    sDL = [30, 33, 28, 36, 37, 34, 29]
    b0 = [WOB[c % 5] for c in range(8)]; b1 = [WOB[(c ^ 1) % 5] if c < 2 or opt.early else WOB[c % 5] for c in range(8)]
    sc = ['s_lshr_b32 s41, s%d, 1' % sW]
    for c in range(7):
        d0, d1 = b0[c + 1] - b0[c], b1[c + 1] - b1[c]
        sc += ['s_mul_i32 s%d, s41, 0x%x' % (sDL[c], (d1 - d0) & 0xffffffff), 's_add_u32 s%d, s%d, 0x%x' % (sDL[c], sDL[c], d0 & 0xffffffff)] if d0 != d1 else ['s_mov_b32 s%d, 0x%x' % (sDL[c], d0 & 0xffffffff)]
    if opt.early: sc += ['s_lshl_b32 s26, 0x1111, s%d' % sW, 's_and_b32 s26, s26, s%d' % MK1[1], 's_xor_b32 s27, s26, s%d' % MK1[1]]
    G.spread2(out(0) + sc, 19, 39)
    t1.extend(G.emit(-1, 18)); t2.extend(G.emit(19, 39))
    for kl in (2, 3, 1) if not opt.early else (1, 2, 3):
        mark = len(t2.ins) + 40; t2.extend(out(kl))
    t2('v_mov_b32 v245, 1\nv_mov_b32 v254, 2')
    if opt.early: t2('@waitvm Oa\nbuffer_store_dword v245, v%d, s[%d:%d], 0 offen sc1' % (vFA, S_F, S_F + 3))
    stamp(t2)
    bb = []; frs = []
    for c in range(8):
        seq = [(kp, n) for kp in range(2) for n in range(8)]
        if c == 7: seq = [(kp, n) for kp in range(2) for n in (4, 5, 6, 7)] + [(kp, n) for kp in range(2) for n in (1, 2, 3, 0)]
        for kp, n in seq:
            fi = len(frs); frs.append((c, kp, n))
            for f in range(5):
                a = 4 * (5 * n + f)
                bb.append(I('%s %s, %s, %s, %s' % (MF, ar(a, 4), vr(vF + 4 * (fi % NB), 4), vr(BS[c % 3][5 * kp + f], 4), '0' if (c, kp) == (0, 0) else ar(a, 4))))
    G = Gaps(bb, 8)
    bars = {0: 'wo0,wo1,wo2', 2: '', 3: 'wo3,wo4', 5: 'wo5,wo6', 7: 'wo7'}
    if opt.early: bars = {0: 'wo0,wo1,wo2', 2: 'wo3', 4: 'wo4,wo5', 6: 'wo6,wo7'}
    if opt.fallback: bars[0] = 'wo2'
    for c, tg in bars.items():
        G.put(80 * c - 14 if c or not opt.fallback else opt.z0pos, *([I('@waitlgkm *')] + ([I('@waitvm ' + tg)] if tg else []) + [I('s_barrier')]))
    for fi, (c, kp, n) in enumerate(frs):
        g = max(5 * (fi - 3) - 1, -1)
        if c in bars and c: g = max(g, 80 * c - 13)
        r = vF + 4 * (fi % NB)
        G.put(g, I('ds_read_b64_tr_b16 %s, v%d offset:%d' % (vr(r, 2), vRA[n], kp * 8192), 'wx'), I('ds_read_b64_tr_b16 %s, v%d offset:%d' % (vr(r + 2, 2), vRA[n], kp * 8192 + 4096), 'w%d' % fi))
        if kp == 1 and c < 7:
            G.put(g + 1, I('v_add_u32 v%d, s%d, v%d' % (vRA[n], sDL[c], vRA[n])))
        if fi % 2 == 0 and fi: G.put(5 * fi - 1, I('@waitlgkm w%d' % (fi + 1)))
    z0 = opt.z0pos + 1 if opt.fallback else 0
    for i in range(10): G.put(z0 + i // 2 + (i >= 8), I('ds_read_b128 %s, v%d offset:%d' % (vr(BS[1][i], 4), vXR, 1024 * i), 'xr'))
    G.put(opt.flagpos, I('@waitvm O'), I('buffer_store_dword v254, v%d, s[%d:%d], 0 offen sc1' % (vFA, S_F, S_F + 3)))
    G.put(z0 + 13, I('@waitlgkm xr'), I('s_barrier'))
    flat = lambda d: [x for g in d for x in g]
    def oload(c):
        return [I('buffer_load_dwordx4 %s, v%d, s[%d:%d], s%d offen offset:%d%s' % (vr(BS[c % 3][5 * kp + f], 4), vOL + 2 * kp + f // 4, S_OR, S_OR + 3, sORO + c, 1024 * (f % 4), opt.o_ld_pol)) for kp in range(2) for f in range(5)]
    G.spread2(flat(dma_wo(3) + dma_wo(4)), z0 + 15, z0 + 62)
    ck = opt.chkpos
    checks = [('o1', opt.pollpos, ck, 26 if opt.early else MK1[1], 1 if opt.early else 2)]
    if opt.early: checks.append(('ob', opt.chkb - opt.pleadb, opt.chkb, 27, 2))
    checks += [('o2', opt.chk2 - opt.plead, opt.chk2, MK1[2], 2), ('o3', opt.chk3 - opt.plead, opt.chk3, MK1[3], 2)]
    for name, pp, cp, mk, thr in checks:
        G.put(pp, I('buffer_load_dword v244, v%d, s[%d:%d], 0 offen sc1' % (vPA, S_F, S_F + 3)))
        G.put(cp, *[I(x) for x in poll_test(244, mk, thr) + ['s_cbranch_scc1 L_spin_' + name]])
    def even(lst, lo, hi):
        mem = [x for x in lst if x.cls in ('dma', 'vld')]; k = 0; pend = []
        for x in lst:
            if x.cls in ('dma', 'vld'):
                g = lo + (k * (hi - lo)) // max(len(mem) - 1, 1); k += 1
                for j, y in enumerate(pend): G.put(g - len(pend) + j, y)
                G.put(g, x); pend = []
            else: pend.append(x)
    c2, c3 = opt.chk2, opt.chk3
    G.spread2(oload(2), ck + 1, ck + 8)
    if opt.early:
        even(oload(3), opt.chkb + 1, opt.chkb + 24); even(flat(dma_wo(5)), opt.chkb + 29, c2 - 3)
        even(oload(4), c2 + 1, c2 + 36); even(flat(dma_wo(6)), c2 + 41, c2 + 66)
        even(oload(5), c2 + 70, c3 - 3); even(flat(dma_wo(7)), c3 + 3, c3 + 32); even(oload(6), c3 + 36, c3 + 70)
        even(oload(7), max(c3 + 74, 401), c3 + 115)
    else:
        even(oload(3), ck + 14, c2 - 42); even(flat(dma_wo(5)), max(c2 - 38, 150), c2 - 3)
        even(oload(4), c2 + 1, c2 + 40); even(flat(dma_wo(6)), c2 + 45, c3 - 48)
        even(oload(5), c3 - 44, c3 - 3); even(oload(6), c3 + 1, c3 + 42)
        even(flat(dma_wo(7)), c3 + 47, c3 + 80); even(oload(7), max(c3 + 84, 401), c3 + 125)
    if opt.sent:
        G.spread2(['v_mov_b32 v%d, -1' % (vN + i) for i in range(4)], 63, 66)
        G.spread2([I('buffer_store_dwordx4 %s, v%d, s[%d:%d], s%d offen offset:%d sc1' % (vr(vN, 4), vOL, S_P, S_P + 3, sPW + j, 1024 * k), 'pf') for j in range(3) for k in range(3)], 67, 88)
        G.put(300, I('@waitvm pf'), I('buffer_store_dword v245, v%d, s[%d:%d], 0 offen sc1' % (vFA + 1, S_F, S_F + 3)))
        G.put(575, I('buffer_load_dword v244, v%d, s[%d:%d], 0 offen sc1' % (vPA + 1, S_F, S_F + 3)))
    RG = BS[0] + BS[2]
    order = [5 * nl + f for nl in (1, 2, 3, 0) for f in range(5)]
    for i in range(20): G.put(585 + (3 * i) // 2, I('ds_write_b128 v%d, %s offset:%d' % (vYW, ar(80 + 4 * i, 4), 1024 * i), 'yw'))
    G.put(619, I('@waitlgkm yw'), I('s_barrier'))
    for k, i in enumerate(order): G.put(620 + k, I('ds_read_b128 %s, v%d offset:%d' % (vr(RG[i], 4), vYR, 1024 * i)))
    if opt.tstamps:
        for g in (opt.flagpos + 1, 79, opt.chkpos - 1, opt.chkpos + 1, 159, 164, opt.chk2 - 1, opt.chk2 + 1, 239, opt.chk3 - 1, opt.chk3 + 1, 399, 479, 559): G.put(g, *stamp_ins())
    print('oproj est cycles', G.est_cycles(16), file=sys.stderr)
    if opt.fallback: t2.ins[mark:mark] = G.g[-1]; G.g[-1] = []
    blks = [t2]; lo = -1
    for name, pp, cp, mk, thr in checks:
        blks[-1].extend(G.emit(lo, cp)); lo = cp + 1
        blks.append(Block('t_' + name)); blks[-1]('L_back_%s:' % name)
    t3 = blks[-1]
    t3.extend(G.emit(lo, 639))
    stamp(t3)
    for k, i in enumerate(order):
        tm = BS[1][k % 10]
        for e in range(4): t3('v_accvgpr_read_b32 v%d, a%d' % (tm + e, 4 * i + e))
        for e in range(4): t3('v_add_f32 v%d, v%d, v%d' % (RG[i] + e, RG[i] + e, tm + e))
        nl, f = divmod(i, 5)
        if nl and not opt.pbf: t3('buffer_store_dwordx4 %s, v%d, s[%d:%d], s%d offen offset:%d%s' % (vr(RG[i], 4), vOL + f // 4, S_P, S_P + 3, sPW + nl - 1, 1024 * (f % 4), opt.p_st_pol), 'P')
        if nl and opt.pbf:
            d = RG[5 * nl + f // 2 * 2] + 2 * (f % 2)
            t3('v_cvt_pk_bf16_f32 v%d, v%d, v%d\nv_cvt_pk_bf16_f32 v%d, v%d, v%d' % (d, RG[i], RG[i] + 1, d + 1, RG[i] + 2, RG[i] + 3))
            if f % 2 or f == 4: t3('buffer_store_dwordx%d %s, v%d, s[%d:%d], s%d offen offset:%d%s' % (2 if f == 4 and opt.sent else 4, vr(RG[5 * nl + f // 2 * 2], 2 if f == 4 and opt.sent else 4), vOL, S_P, S_P + 3, sPW + nl - 1, 1024 * (f // 2), opt.p_st_pol), 'P')
    if not opt.sent:
        t3('@waitvm P\nbuffer_store_dword v245, v%d, s[%d:%d], 0 offen sc1' % (vFA + 1, S_F, S_F + 3))
        stamp(t3)
        t3('buffer_load_dword v244, v%d, s[%d:%d], 0 offen sc1' % (vPA + 1, S_F, S_F + 3))
    else: stamp(t3)
    t3.extend(poll_test(244, sMK2) + ['s_cbranch_scc1 L_spin_p'])
    t4 = Block('tail4'); t4('L_back_p:')
    spins = [spin_block(name, vPA, mk, thr) for name, pp, cp, mk, thr in checks] + [spin_block('p', vPA + 1, sMK2)]
    LD = [BS[1][3 * (f // 2) + j] for j in (1, 2, 3) for f in (0, 2, 4)] if opt.sent else None
    def preg(j, f): return LD[3 * (j - 1) + f // 2] if opt.sent else RG[5 * j + f]
    if opt.sent:
        blks.append(t4); t4('s_mov_b32 s41, %d' % opt.spin)
        t4 = Block('try'); t4('L_try:')
    else: stamp(t4)
    for f in range(0, 5, 2 if opt.pbf else 1):
        for j in (1, 2, 3):
            if opt.pbf: t4('buffer_load_dwordx%d %s, v%d, s[%d:%d], s%d offen offset:%d%s' % (2 if f == 4 and opt.sent else 4, vr(preg(j, f), 2 if f == 4 and opt.sent else 4), vOL, S_P, S_P + 3, sPR + j - 1, 1024 * (f // 2), opt.p_ld_pol))
            else: t4('buffer_load_dwordx4 %s, v%d, s[%d:%d], s%d offen offset:%d%s' % (vr(RG[5 * j + f], 4), vOL + f // 4, S_P, S_P + 3, sPR + j - 1, 1024 * (f % 4), opt.p_ld_pol))
    if opt.sent:
        regs = [preg(j, f) + e for f in (0, 2, 4) for j in (1, 2, 3) for e in range(2 if f == 4 else 4)]
        t4('v_max_u32 v244, v%d, v%d' % (regs[0], regs[1]))
        for k in range(2, len(regs), 2): t4('v_max3_u32 v244, v244, v%d, v%d' % (regs[k], regs[k + 1]))
        t4('v_cmp_eq_u32 vcc, -1, v244\ns_cbranch_vccnz L_spin_s')
        blks.append(t4); t4 = Block('fin'); t4('L_fin:'); stamp(t4)
        sp = Block('spin_s')
        sp('L_spin_s:\ns_sub_u32 s41, s41, 1\ns_cmp_eq_u32 s41, 0\ns_cbranch_scc1 L_fin\ns_sleep 1\nbuffer_load_dword v244, v27, s[%d:%d], 0 offen sc1\ns_waitcnt vmcnt(0)' % (S_P, S_P + 3))
        sp('v_cmp_eq_u32 vcc, -1, v244\ns_cbranch_vccnz L_spin_s\ns_branch L_try')
        spins.append(sp)
    blks.append(t4)
    if opt.pbf: t4('s_mov_b32 s39, 0xffff0000')
    for f in range(5):
        a, b1, b2, b3 = RG[f], RG[5 + f], RG[10 + f], RG[15 + f]
        if opt.pbf:
            for j in (1, 2, 3):
                src = preg(j, f // 2 * 2) + 2 * (f % 2); tm = RG[5 * j + 1]
                t4('v_lshlrev_b32 v%d, 16, v%d\nv_and_b32 v%d, s39, v%d\nv_lshlrev_b32 v%d, 16, v%d\nv_and_b32 v%d, s39, v%d' % (tm, src, tm + 1, src, tm + 2, src + 1, tm + 3, src + 1))
            b1, b2, b3 = RG[6], RG[11], RG[16]
        for e in range(4): t4('v_add_f32 v%d, v%d, v%d\nv_add_f32 v%d, v%d, v%d' % (a + e, a + e, b1 + e, b2 + e, b2 + e, b3 + e))
        for e in range(4): t4('v_add_f32 v%d, v%d, v%d' % (a + e, a + e, b2 + e))
        t4('v_cvt_pk_bf16_f32 v%d, v%d, v%d\nv_cvt_pk_bf16_f32 v%d, v%d, v%d\ns_mov_b32 s38, %d' % (a, a, a + 1, a + 1, a + 2, a + 3, 32768 * f))
        t4('buffer_store_dwordx2 %s, v%d, s[%d:%d], s38 offen%s' % (vr(a, 2), vST, S_OUT, S_OUT + 3, opt.out_pol))
    if opt.stamps: t4('s_waitcnt vmcnt(0)')
    stamp(t4)
    if opt.twice: t4('s_add_u32 s63, s3, 0\ns_cmp_lt_u32 s%d, 100\ns_cbranch_scc1 L_again' % sTSN)
    t4('s_endpgm')
    for b in blks:
        if 'c' in opt.t2x: b.ins = [x for x in b.ins if not (x.op == 's_cbranch_scc1' and 'spin_o' in x.text)]
        if 'p' in opt.t2x: b.ins = [x for x in b.ins if not (x.op == 's_cbranch_scc1' and 'spin_p' in x.text)]
        if 'o' in opt.t2x: b.ins = [x for x in b.ins if not (x.cls == 'vld' and 's[16:19]' in x.text)]
        if 'w' in opt.t2x: b.ins = [x for x in b.ins if x.cls != 'dma']
        if 's' in opt.t2x: b.ins = [x for x in b.ins if x.tag not in ('O', 'Oa')]
    return t1, blks, spins

def k1_fallback():
    b = Block('fb'); T = vT
    b('L_fallback:')
    b('s_waitcnt vmcnt(0) lgkmcnt(0)\ns_nop 15\ns_barrier')
    b('v_and_b32 v1, 15, v%d\nv_lshrrev_b32 v2, 4, v%d\nv_lshlrev_b32 v2, 4, v2\nv_lshl_add_u32 v%d, v1, 8, v2' % (vLANE, vLANE, T + 10))
    for qs in range(5): b('v_mov_b32 v%d, 0xff800000' % (T + 2 * qs))
    b('s_mov_b32 s39, 0')
    lp = Block('fbl'); lp('L_fb_loop:')
    for k in range(4): lp('buffer_load_dwordx4 %s, v%d, s[%d:%d], s39 offen offset:%d' % (vr(vF + 4 * k, 4), T + 10, S_K, S_K + 3, 64 * k))
    lp('s_waitcnt vmcnt(0)')
    lp.extend(qk_mfmas(True)[:20])
    lp('s_nop 15')
    for qs in range(5):
        s = rS(0, qs); t = T + 2 * qs
        lp('v_max3_f32 v%d, v%d, v%d, v%d\nv_max3_f32 v%d, v%d, v%d, v%d' % (t, t, s, s + 1, t, t, s + 2, s + 3))
    lp('s_add_u32 s39, s39, 4096\ns_cmp_lt_u32 s39, 262144\ns_cbranch_scc1 L_fb_loop')
    e = Block('fbe')
    if opt.twice: e('L_again:\ns_waitcnt vmcnt(0) lgkmcnt(0)\ns_barrier\ns_mov_b32 s34, 0x7f800000\ns_mov_b32 s36, 0x3e000000')
    max_finish(e, T)
    e.extend(zero_acc())
    e('s_and_b32 s40, s%d, 1\ns_lshl_b32 s%d, s40, 12\ns_mov_b32 s%d, s%d' % (sW, sKO, sVO, sKO))
    for g in dma_kv('K', 0) + dma_kv('K', 1) + dma_kv('K', 2) + dma_kv('K', 3) + dma_kv('V', 0) + dma_kv('V', 1) + dma_kv('V', 2): e.extend(g)
    e('s_mov_b32 s%d, 1\ns_waitcnt vmcnt(0)\ns_barrier' % sEX)
    G = Gaps(qk0_mfmas(), 8)
    for f in range(8): G.put(max(5 * (f - 3) - 1, -1), *kread0(f))
    e.extend(G.emit())
    e('s_nop 7\ns_branch L_start')
    return b, lp, e

def kernel_text(kname, blocks, traces, vgpr, accum, sgpr=102):
    d = {b.name: b for b in blocks}
    assert len(d) == len(blocks)
    place_waits(d, traces)
    n = place_nops(d, traces)
    print(kname[:12], 'nop states inserted', n, 'instructions', {b.name: len(b.ins) for b in blocks}, file=sys.stderr)
    t = '.text\n.globl %s\n.p2align 8\n.type %s,@function\n%s:\n' % (kname, kname, kname) + render(blocks)
    t += '.section .rodata,"a"\n.p2align 6\n.amdhsa_kernel %s\n' % kname
    t += '  .amdhsa_next_free_vgpr %d\n  .amdhsa_next_free_sgpr %d\n  .amdhsa_accum_offset %d\n' % (vgpr, sgpr, accum)
    t += '  .amdhsa_group_segment_fixed_size 0\n  .amdhsa_kernarg_size 104\n  .amdhsa_user_sgpr_count 2\n'
    t += '  .amdhsa_user_sgpr_kernarg_segment_ptr 1\n  .amdhsa_system_sgpr_workgroup_id_x 1\n.end_amdhsa_kernel\n'
    return t

def gen_k1(kname):
    setup = k1_setup(); qp = k1_qproj()
    pro, mx, p2, lp, pe = k1_attention(); t1, tb, spins = k1_tail()
    end = Block('end'); end('L_k1_end:\ns_endpgm')
    blocks = [setup, qp, pro, mx, p2] + lp + pe[:3] + [t1] + tb + spins + [pe[3]]
    loop = ['per0', 'per1', 'per2', 'per3'] * 3 + ['pe0', 'pe1', 'pe2', 'tail1']
    head = ['setup', 'qproj', 'pro', 'pro_max', 'pro2']
    rest = [b.name for b in tb]
    slow = []
    for b in tb:
        if b.name.startswith('t_'): slow += ['spin_' + b.name[2:]] * 2
        if b.name == 'tail4': slow += ['spin_p'] * 2
        if b.name == 'fin': slow += ['spin_s', 'spin_s', 'try', 'spin_s']
        slow.append(b.name)
    traces = [head + loop + rest, head + loop[:-2] + ['spin_d', 'spin_d', 'pe2', 'tail1'] + slow]
    if opt.fallback:
        fb, fbl, fbe = k1_fallback(); blocks += [fb, fbl, fbe]
        traces.append(head + loop + ['fb', 'fbl', 'fbl', 'fbe', 'pro', 'pro2'] + loop + rest)
    blocks.append(end)
    return kernel_text(kname, blocks, traces, 512, 256)

def gen_diag(kname):
    a, b_, gain = [int(x, 0) for x in opt.diag.split()]
    b = Block('dg')
    b('''s_cmp_ge_u32 s2, 1
         s_cbranch_scc1 L_dg_end
         s_load_dwordx2 s[4:5], s[0:1], 96
         s_waitcnt lgkmcnt(0)
         s_add_u32 s4, s4, 0x3000000
         s_addc_u32 s5, s5, 0
         s_load_dword s6, s[4:5], %d
         s_load_dword s7, s[4:5], %d
         s_memrealtime s[8:9]
         s_waitcnt lgkmcnt(0)
         s_sub_u32 s6, s7, s6
         s_min_u32 s6, s6, 20000
         s_mul_i32 s6, s6, %d
         L_dg:
         s_memrealtime s[10:11]
         s_waitcnt lgkmcnt(0)
         s_sub_u32 s10, s10, s8
         s_cmp_lt_u32 s10, s6
         s_cbranch_scc1 L_dg
         L_dg_end:
         s_endpgm''' % (a, b_, gain))
    return kernel_text(kname, [b], [['dg']], 8, 8, 16)

def main(out, only=None):
    t = open('cdna_kernels/%s.s.ref' % NAME).read().split('; Override launch')[0]
    k1 = NAME + '_kernel'
    if opt.diag.strip():
        t += '; @launch kernel=%s grid=(256,1,1) block=(256,1,1) lds=163840\n; @launch kernel=diag_kernel grid=(1,1,1) block=(64,1,1) lds=0\n' % k1
    else: t += '; @launch grid=(256,1,1) block=(256,1,1) lds=163840\n'
    t += '.amdgcn_target "amdgcn-amd-amdhsa--gfx950"\n'
    t += gen_k1(k1)
    if opt.diag.strip(): t += gen_diag('diag_kernel')
    open(out, 'w').write(t)

if __name__ == '__main__':
    out = sys.argv[1]; only = None
    for a in sys.argv[2:]:
        k, v = a.split('=')
        if k == 'only': only = int(v)
        elif isinstance(getattr(opt, k), bool): setattr(opt, k, v == '1')
        elif isinstance(getattr(opt, k), int): setattr(opt, k, int(v))
        else: setattr(opt, k, (' ' + v.replace('+', ' ')) if v else '')
    main(out, only)
```

```python
import sys, math, struct
from asmlib import *

NAME = "concat_heads__gqa_block_cached__gqa_block_cached__near_ridge"
def f32bits(x): return struct.unpack('<I', struct.pack('<f', x))[0]
MF = 'v_mfma_f32_16x16x32_bf16'
def vr(b, n=1, k='v'): return '%s%d' % (k, b) if n == 1 else '%s[%d:%d]' % (k, b, b + n - 1)
def ar(b, n=1): return vr(b, n, 'a')

class Opt:
    kv_pol = ' nt'; w_pol = ''; x_pol = ''; o_st_pol = ' sc1'; o_ld_pol = ' sc1'; wo_pol = ''; out_pol = ''; p_st_pol = ' sc1'; p_ld_pol = ' sc1'
    stamps = False; fallback = True; ones = True; nokv = False; nox = False; noxq = False; qstamps = False
    dsp = 10; kvend = 13; burst = ' 10:2 12:2'; k2stag = 1; qevery = 4; warm = 336; qf = ' '; pk = False; upfront = 3; diag = ' '; spin = 524288; chain = True; asym = 1; rel = 1; t2ch = True; onesadj = True; cape = ' 4x4x4x4x'; capl = ' 44444444'; twice = False; z0pos = 3; stcap = 0; pecap = False; fs = False; t2x = ' '; early = False; sent = False; chkb = 168; pleadb = 30; qcl = 1; fbk = 0; fbn = 4; fbpos = 56; sb = 1; t2mode = 0; o3n = 10; pstamps = False; tstamps = False; thre = 0; thro = 4; thrn = 2; ptouch = 0; touchc = 8; flagpos = 12; pollpos = 105; chkpos = 140; chk2 = 270; chk3 = 390; plead = 40; pbf = True; pk2 = True
opt = Opt()

S_K, S_V, S_X, S_WQ, S_O = 4, 8, 12, 16, 20
sW, sW4, sKO, sVO, sCNT, sEX, sC0, sB, sBR, sH1, sTH, sM0B = 24, 25, 26, 27, 28, 29, 30, 31, 32, 33, 34, 35
sSC = 36
S_TS, sTSA, sTSN = 52, 56, 58
sWO, sXO = 76, 92
STASH = {'K2': 32, 'V2': 224, 'K3': 240}
vSW = 2
vKA, vVA, vKD, vVD, vLANE, vL = 8, 12, 20, 24, 26, 59
vF = 32; NB = 4
vWA, vXA, vWD, vXD = 48, 52, 54, 58
vACC = 64
def rQ(k, qs): return vACC + 8 * (5 * k + qs)
def hole(i): return vACC + 8 * i + 4
def rS(kt, qs): return hole(5 * kt + qs)
def rP(par, qs): return hole(10 + 5 * par + qs)
vN = 224
vT = 48; vT2 = 244
def aO(dt, qs): return 4 * (5 * dt + qs)
aL, aONE, aFA, aFB = 160, 180, 184, 200
KS0, VS0 = 0, 65536
WBUF = [139264, 32768, 49152]
XBUF = [98304, 118784]
sJP, sKQ = 3, 59
S_F, S_D, S_P, S_OUT, S_WO, S_OR = 44, 48, 64, 68, 12, 16
sOK, sWOO, sORO, sPW, sPR, sD01, sD12, sMK1, sMK2 = 76, 80, 88, 96, 99, 30, 33, 42, 43
MK1 = [None, 42, 60, 61]
POFF, FOFF, TSOFF = 0x1500000, 0x2a00000, 0x3000000
vOD, vOL, vXW, vXR, vYW, vYR, vST, vFA, vPA, vDA = 54, 58, 62, 63, 48, 49, 50, 51, 28, 30
vRA = list(range(246, 254))
WOB = [131072, 0, 65536, 32768, 98304]
BADB = 98304 + 10240
BS = [[vACC + 8 * i for i in range(10)], [vACC + 8 * i for i in range(10, 20)], [hole(i) for i in range(10)]]
SPIN = 1 << 15

def stamp_ins():
    if not opt.stamps: return []
    return [I('s_memrealtime s[%d:%d]' % (sTSA, sTSA + 1)), I('s_memtime s[62:63]'), I('s_waitcnt lgkmcnt(0)'), I('v_mov_b32 v5, s%d' % sTSA), I('v_mov_b32 v6, s%d' % sTSN), I('v_mov_b32 v7, s62'),
            I('buffer_store_dword v5, v6, s[%d:%d], 0 offen' % (S_TS, S_TS + 3), 'stamp'), I('buffer_store_dword v7, v6, s[%d:%d], 0 offen offset:256' % (S_TS, S_TS + 3), 'stamp'), I('s_add_u32 s%d, s%d, 4' % (sTSN, sTSN))]
def stamp(b): b.extend(stamp_ins())
def stamp_setup(b, ws, w, off=TSOFF, first=False):
    if not opt.stamps: return
    b('''s_lshl_b32 s39, s2, 9
         s_add_u32 s39, s39, {off}
         s_add_u32 s{T}, s{ws}, s39
         s_addc_u32 s{T1}, s{ws1}, 0
         s_cmp_eq_u32 s{w}, 0
         s_cselect_b32 s{T2}, 512, 0
         s_mov_b32 s{T3}, 0x20000
         s_mov_b32 s{N}, 0'''.format(T=S_TS, T1=S_TS + 1, T2=S_TS + 2, T3=S_TS + 3, w=w, ws=ws, ws1=ws + 1, N=sTSN, off=off))
    if first:
        b('v_mov_b32 v5, s100\nv_mov_b32 v6, 0\nv_mov_b32 v7, s42')
        b('buffer_store_dword v5, v6, s[%d:%d], 0 offen\nbuffer_store_dword v7, v6, s[%d:%d], 0 offen offset:256\ns_mov_b32 s%d, 4' % (S_TS, S_TS + 3, S_TS, S_TS + 3, sTSN))
    stamp(b)

def srd(b, d, lo, off, num):
    b('s_add_u32 s%d, s%d, %s\ns_addc_u32 s%d, s%d, 0\n%s\ns_mov_b32 s%d, 0x20000' % (d, lo, off, d + 1, lo + 1,
      ('s_mov_b32 s%d, %d' % (d + 2, num)) if isinstance(num, int) else num % (d + 2), d + 3))

def off_calc(X):
    return ['s_add_u32 s38, s%d, %d' % (sC0, X), 's_and_b32 s38, s38, 7', 's_lshl_b32 s%d, s38, 19' % (sWO + 2 * X),
            's_add_u32 s%d, s%d, 262144' % (sWO + 2 * X + 1, sWO + 2 * X)]
def dma_wq(c):
    G = [[I('s_add_u32 m0, s%d, %d' % (sW4, WBUF[c % 3]))]]
    for n in range(4):
        G.append([I('buffer_load_dwordx4 v%d, s[%d:%d], s%d offen offset:%d%s lds' % (vWD + n, S_WQ, S_WQ + 3, sWO + c, 1024 * n, opt.w_pol), 'wq%d' % c)])
    return G
def dma_x(X):
    G = [[I('s_lshr_b32 s39, s%d, 12' % (sWO + 2 * X))], [I('s_add_u32 m0, s%d, %d' % (sW4, XBUF[X % 2]))]]
    for n in range(4):
        G.append([I('buffer_load_dwordx4 v%d, s[%d:%d], s%d offen offset:%d%s lds' % (vXD + n, S_X, S_X + 3, 39, 1024 * n, opt.x_pol), 'x%d' % X)])
    G.append([I('s_add_u32 m0, s%d, %d' % (sM0B, XBUF[X % 2] + 16384))])
    G.append([I('buffer_load_dwordx4 v%d, s[%d:%d], s%d offen%s lds' % (vXD + 4, S_X, S_X + 3, 39, opt.x_pol), 'x%d' % X)])
    return G
def stash_load(which, slot):
    K = which == 'K'; srd_, so = (S_K, sKO) if K else (S_V, sVO); r = STASH['%s%d' % (which, slot)]
    G = [[I('buffer_load_dwordx4 %s, v%d, s[%d:%d], s%d offen offset:%d%s' % (vr(r + 4 * m, 4), vKD + m if K else vVD + m % 2, srd_, srd_ + 3, so, 1024 * m, opt.kv_pol), 'st')] for m in range(4)]
    G[3].append(I('s_add_u32 s%d, s%d, 8192' % (so, so)))
    return G
def stash_flush(which, slot):
    r = STASH['%s%d' % (which, slot)]; base = (KS0 if which == 'K' else VS0) + 16384 * slot
    return [I('ds_write_b128 v%d, %s offset:%d' % (vSW + base // 65536, vr(r + 4 * m, 4), base % 65536 + 1024 * m)) for m in range(4)]
def dma_kv(which, slot, m0each=False):
    G = []; K = which == 'K'
    srd_, so = (S_K, sKO) if K else (S_V, sVO)
    for m in range(4):
        g = []
        if m == 0 or m0each: g.append(I('s_add_u32 m0, s%d, %d' % (sW4, (KS0 if K else VS0) + 16384 * slot)))
        g.append(I('buffer_load_dwordx4 v%d, s[%d:%d], s%d offen offset:%d%s lds' % (vKD + m if K else vVD + m % 2, srd_, srd_ + 3, so, 1024 * m, opt.kv_pol), '%s%d' % (which, slot)))
        if m == 3: g.append(I('s_add_u32 s%d, s%d, 8192' % (so, so)))
        G.append(g)
    return G

def dma_wo(c):
    buf = WOB[c % 5]; G = []
    for m in range(8):
        g = []
        if m == 4: g.append(I('s_add_u32 s2, s%d, 16384' % (sWOO + c)))
        if m % 4 == 0: g.append(I('s_add_u32 m0, s%d, %d' % (sM0B, buf + 4096 * (m // 4))))
        g.append(I('buffer_load_dwordx4 v%d, s[%d:%d], s%d offen offset:%d%s lds' % (vOD + m % 4, S_WO, S_WO + 3, sWOO + c if m < 4 else 2, 1024 * (m % 4), opt.wo_pol), 'wo%d' % c))
        G.append(g)
    return G

def peer(p):
    if not opt.asym: return 's_add_u32 s38, s%d, %d\ns_and_b32 s38, s38, 3' % (sJP, p)
    if p == 0: return 's_mov_b32 s38, s%d' % sJP
    return 's_cmp_lt_u32 s%d, 2\ns_cselect_b32 s38, %d, %d\ns_xor_b32 s38, s38, s%d' % (sJP, p, p % 3 + 1, sJP)

def page_touch():
    return ['v_mov_b32 v1, 0'] + ['buffer_load_dword v%d, v1, s[%d:%d], 0 offen' % (253 + i, d, d + 3) for i, d in enumerate((S_O, S_P, S_OUT))]
def tail_setup_a(b):
    b('s_mov_b32 s72, s92\ns_mov_b32 s73, s93')
    b('''s_and_b32 s98, s{w}, 1
         s_lshr_b32 s99, s{w}, 1
         s_lshl_b32 s96, s{B}, 1
         s_add_u32 s96, s96, s98
         s_mul_i32 s96, s96, 163840
         s_lshl_b32 s97, s{BR}, 2
         s_add_u32 s97, s97, s{JP}
         s_lshl_b32 s97, s97, 1
         s_add_u32 s97, s97, s99
         s_lshl_b32 s97, s97, 2
         s_add_u32 s97, s97, s{KQ}
         s_lshl_b32 s97, s97, 5
         s_add_u32 s96, s96, s97'''.format(w=sW, B=sB, BR=sBR, JP=sJP, KQ=sKQ))
    srd(b, S_OUT, 94, 's96', 's_sub_u32 s%d, 2621440, s96')
    for p in (1, 2, 3): b(peer(p) + '\ns_lshl_b32 s38, s38, 2\ns_add_u32 s38, s38, s98\ns_lshl_b32 s%d, 5, s38' % MK1[p])
    b('s_lshl_b32 s38, 0x1111, s%d\ns_lshl_b32 s39, s%d, 2\ns_lshl_b32 s39, 15, s39\ns_andn2_b32 s%d, s38, s39' % (sW, sKQ, sMK2))
    b('s_lshl_b32 s38, s%d, 3\ns_add_u32 s38, s38, s%d\ns_lshl_b32 s38, s38, 2\ns_add_u32 s38, s38, s%d\ns_mul_i32 s38, s38, 327680\ns_mul_i32 s39, s%d, 5120\ns_add_u32 s38, s38, s39\ns_add_u32 s38, s38, 0x%x' % (sBR, sB, sJP, sW, POFF))
    srd(b, S_P, 74, 's38', 's_sub_u32 s%d, 327680, s39')
    for j in (1, 2, 3):
        b('s_xor_b32 s38, s%d, %d\ns_lshl_b32 s39, s38, 2\ns_add_u32 s39, s39, s%d\ns_mul_i32 s%d, s39, 20480' % (sKQ, j, sKQ, sPW + j - 1))
        b('s_lshl_b32 s39, s%d, 2\ns_add_u32 s39, s39, s38\ns_mul_i32 s%d, s39, 20480' % (sKQ, sPR + j - 1))

def wo_srd(b, S_WO=S_WO):
    b('s_lshl_b32 s38, s%d, 20\ns_lshl_b32 s39, s%d, 8\ns_add_u32 s38, s38, s39' % (sKQ, sJP))
    srd(b, S_WO, 72, 's38', 's_sub_u32 s%d, 4194304, s38')
def wo_touch(b, S_WO=S_WO):
    b('s_lshl_b32 s38, s%d, 2\ns_add_u32 s38, s38, s%d\ns_lshl_b32 s38, s38, 15\nv_lshrrev_b32 v4, 1, v%d\nv_and_b32 v5, 1, v%d\nv_lshlrev_b32 v5, 7, v5\nv_lshl_add_u32 v4, v4, 10, v5' % (sB, sW, vLANE, vLANE))
    b('buffer_load_dword v31, v4, s[%d:%d], s38 offen' % (S_WO, S_WO + 3))
def tail_setup_b(b):
    L = vLANE
    b('s_and_b32 s78, s%d, 1\ns_lshr_b32 s79, s%d, 1' % (sW, sW))
    b('''s_lshl_b32 s38, s{BR}, 3
         s_add_u32 s38, s38, s{B}
         s_lshl_b32 s38, s38, 2
         s_add_u32 s38, s38, s{KQ}
         s_mul_i32 s38, s38, 327680
         s_mul_i32 s39, s79, 20480
         s_mul_i32 s40, s78, 5120
         s_add_u32 s39, s39, s40
         s_add_u32 s38, s38, s39'''.format(B=sB, BR=sBR, KQ=sKQ))
    srd(b, S_OR, 74, 's38', 's_sub_u32 s%d, 327680, s39')
    b('s_lshl_b32 s40, s%d, 15\ns_lshl_b32 s%d, s%d, 13' % (sW, sM0B, sW))
    for c in range(8):
        b(peer(c // 2) + '\ns_lshl_b32 s38, s38, 1\ns_add_u32 s38, s38, %d\n%s\ns_mul_i32 s%d, s39, 40960\ns_lshl_b32 s38, s38, 17\ns_add_u32 s%d, s38, s40' % (c & 1, 's_xor_b32 s39, s38, s79' if opt.early else 's_mov_b32 s39, s38', sORO + c, sWOO + c))
    if opt.sent:
        b('v_mov_b32 v27, 0x100000')
        for j in range(3): b('s_add_u32 s38, s%d, 2048\nv_writelane_b32 v27, s38, %d' % (sPR + j, j))
    b('v_lshrrev_b32 v4, 4, v%d\nv_and_b32 v5, 15, v%d' % (L, L))
    for m in range(4):
        b('v_add_u32 v6, %d, v4\nv_lshlrev_b32 v6, 1, v6\nv_xor_b32 v6, v6, v5\nv_lshlrev_b32 v6, 4, v6\nv_lshl_add_u32 v6, v4, 10, v6\nv_add_u32 v%d, %d, v6' % (4 * (m % 2), vOD + m, 3072 * m))
    b('v_lshlrev_b32 v%d, 4, v%d' % (vOL, L))
    for i, o in ((1, 4096), (2, 10240), (3, 14336)): b('v_add_u32 v%d, %d, v%d' % (vOL + i, o, vOL))
    b('v_lshlrev_b32 v5, 11, v5\nv_lshl_add_u32 v%d, v4, 3, v5' % vST)
    for (reg, wsel, step, lo, hi) in ((vXW, sW, 10240, 32768, 98304), (vXR, 41, 10240, 32768, 98304), (vYW, sW, 20480, 98304, 32768), (vYR, 41, 20480, 98304, 32768)):
        b('s_xor_b32 s41, s%d, 2\ns_mul_i32 s38, s%d, %d\ns_add_u32 s38, s38, %d\ns_cmp_eq_u32 s%d, 3\ns_cselect_b32 s38, %d, s38\nv_add_u32 v%d, s38, v%d' % (sW, wsel, step, lo, wsel, hi, reg, vOL))
    b('''v_lshrrev_b32 v6, 4, v{L}
          v_bfe_u32 v4, v{L}, 2, 2
          v_lshl_add_u32 v6, v6, 2, v4
          v_and_b32 v4, 3, v{L}
          v_lshlrev_b32 v4, 3, v4
          v_lshl_add_u32 v4, v6, 8, v4
          s_lshr_b32 s38, s{w}, 1
          s_lshl_b32 s39, s38, 2
          s_add_u32 s39, s39, s{KQ}
          s_mul_i32 s38, s38, {x}
          s_add_u32 s38, s38, 131072
          v_add_u32 v4, s38, v4
          v_and_b32 v6, 7, v6
          v_xor_b32 v6, s39, v6'''.format(L=L, w=sW, KQ=sKQ, x=(16384 - 131072) & 0xffffffff))
    for n in range(8): b('v_xor_b32 v5, %d, v6\nv_lshl_add_u32 v%d, v5, 5, v4' % (n, vRA[n]))
    b('s_lshl_b32 s38, s%d, 2\ns_add_u32 s38, s38, s%d\ns_lshl_b32 s38, s38, 2\nv_readfirstlane_b32 s39, v%d\ns_add_u32 s38, s38, s39\nv_lshl_add_u32 v%d, v%d, 16, s38' % (sJP, sW, vPA, vFA, L))
    b('s_lshl_b32 s38, s%d, 2\ns_add_u32 s38, s38, s%d\ns_lshl_b32 s38, s38, 2\nv_readfirstlane_b32 s39, v%d\ns_add_u32 s38, s38, s39\nv_lshl_add_u32 v%d, v%d, 16, s38' % (sKQ, sW, vPA + 1, vFA + 1, L))
    for kl in range(4): b('s_lshl_b32 s38, s79, 1\ns_xor_b32 s38, s38, %d\ns_mul_i32 s%d, s38, 10240' % (kl, 38 if kl == 3 else sOK + kl))
    b('s_mov_b32 s%d, s38' % (sOK + 3))

def k1_setup():
    b = Block('setup'); L = vLANE; T = vT2
    b('s_cmp_ge_u32 s2, 256\ns_cbranch_scc1 L_k1_end')
    if opt.stamps: b('s_memrealtime s[100:101]\ns_memtime s[42:43]')
    if opt.warm: b('s_getpc_b64 s[96:97]')
    b('''s_and_b32 s38, s2, 7
         s_lshr_b32 s{BR}, s38, 2
         s_and_b32 s{KQ}, s38, 3
         s_lshr_b32 s39, s2, 3
         s_and_b32 s{B}, s39, 7
         s_lshr_b32 s{JP}, s39, 3
         s_lshl_b32 s38, s{KQ}, 3
         s_lshl_b32 s40, s{JP}, 1
         s_add_u32 s{H}, s38, s40
         s_add_u32 s{C}, s{B}, s40
         s_and_b32 s{C}, s{C}, 7
         s_mul_i32 s38, s{BR}, 40
         s_add_u32 s60, s0, s38
         s_addc_u32 s61, s1, 0
         s_load_dwordx8 s[64:71], s[60:61], 0
         s_load_dwordx4 s[72:75], s[0:1], 88
         s_load_dwordx2 s[92:93], s[60:61], 32
         s_load_dwordx2 s[94:95], s[0:1], 80
         v_lshrrev_b32 v1, 6, v0
         v_and_b32 v{L}, 63, v0
         v_readfirstlane_b32 s{W}, v1
         v_and_b32 v1, 31, v{L}
         v_lshrrev_b32 v2, 5, v{L}
         v_lshrrev_b32 v3, 4, v{L}
         v_and_b32 v4, 15, v{L}
         s_lshl_b32 s{W4}, s{W}, 12
         s_lshl_b32 s{M}, s{W}, 10'''.format(BR=sBR, B=sB, H=sH1, C=sC0, L=L, W=sW, W4=sW4, M=sM0B, KQ=sKQ, JP=sJP))
    b('s_lshl_b32 s39, s%d, 16' % sW)
    for n in range(4):
        b('''v_add_u32 v{a}, {n2}, v2
             v_and_b32 v{c}, 3, v{a}
             v_lshlrev_b32 v{c}, 2, v{c}
             v_xor_b32 v{c}, v{c}, v1
             v_lshlrev_b32 v{c}, 4, v{c}
             v_lshl_add_u32 v{c}, v{a}, 13, v{c}
             v_add_u32 v{c}, s39, v{c}
             v_subrev_u32 v{d}, {sub}, v{c}'''.format(a=T, c=T + 1, n2=2 * n, d=vWD + n, sub=1024 * n))
    b('s_lshl_b32 s39, s%d, 15\nv_lshrrev_b32 v%d, 3, v%d\nv_and_b32 v%d, 7, v%d\ns_lshl_b32 s38, s%d, 2' % (sW, T + 3, L, T + 4, L, sW))
    for n in range(4):
        b('''v_add_u32 v{a}, {n4}, v3
             v_and_b32 v{a}, 7, v{a}
             v_xor_b32 v{a}, v{a}, v{p}
             v_lshlrev_b32 v{a}, 4, v{a}
             v_lshl_add_u32 v{a}, v{r}, 10, v{a}
             v_add_u32 v{a}, {add}, v{a}
             v_add_u32 v{d}, s39, v{a}'''.format(a=T, n4=4 * n, p=T + 4, r=T + 3, add=7 * 1024 * n, d=vXD + n))
    b('''s_lshl_b32 s39, s{w}, 13
         s_add_u32 s39, s39, 131072
         v_add_u32 v{a}, s38, v3
         v_and_b32 v{a}, 7, v{a}
         v_xor_b32 v{a}, v{a}, v{p}
         v_lshlrev_b32 v{a}, 4, v{a}
         v_lshl_add_u32 v{a}, v{r}, 10, v{a}
         v_add_u32 v{d}, s39, v{a}'''.format(w=sW, a=T, p=T + 4, r=T + 3, d=vXD + 4))
    b('s_waitcnt lgkmcnt(0)')
    b('s_mul_i32 s39, s%d, 163840' % sB); srd(b, S_X, 64, 's39', 163840)
    b('s_lshl_b32 s39, s%d, 8' % sH1); srd(b, S_WQ, 70, 's39', 's_sub_u32 s%d, 4194304, s39')
    if opt.nox: b('s_mov_b32 s%d, 0' % (S_X + 2))
    if opt.noxq: b('s_mov_b32 s%d, 0' % (S_WQ + 2))
    b.extend(off_calc(0) + off_calc(1))
    for g in dma_wq(0) + dma_x(0) + (dma_wq(1) + dma_x(1) + dma_wq(2) if opt.upfront == 2 else []): b.extend(g)
    if opt.warm:
        n8 = (opt.warm + 7) // 8
        b('s_lshr_b32 s38, s2, 3\ns_and_b32 s38, s38, 7\ns_mul_i32 s38, s38, %d\nv_min_u32 v6, %d, v%d\nv_add_u32 v6, s38, v6\nv_lshlrev_b32 v6, 7, v6\nv_mov_b32 v7, s97' % (n8, n8 - 1, L))
        b('v_add_co_u32 v6, vcc, s96, v6\nv_addc_co_u32 v7, vcc, 0, v7, vcc\nglobal_load_dword v63, v[6:7], off')
    for X in range(2, 8): b.extend(off_calc(X))
    b('s_lshr_b32 s41, s%d, 1\ns_lshl_b32 s38, s%d, 5\ns_add_u32 s38, s38, s%d\ns_add_u32 s38, s38, s41\ns_lshl_b32 s39, s38, 18' % (sW, sB, sH1))
    srd(b, S_K, 66, 's39', 0 if opt.nokv else 262144); srd(b, S_V, 68, 's39', 0 if opt.nokv else 262144)
    b('s_lshl_b32 s39, s%d, 8\ns_add_u32 s38, s38, s39\ns_mul_i32 s39, s38, 40960\ns_and_b32 s40, s%d, 1\ns_mul_i32 s38, s40, 5120\ns_add_u32 s39, s39, s38' % (sBR, sW))
    srd(b, S_O, 74, 's39', 's_sub_u32 s%d, 40960, s38')
    b('s_lshl_b32 s%d, s40, 12\ns_mov_b32 s%d, s%d' % (sKO, sVO, sKO))
    stamp_setup(b, 74, sW, first=True)
    srd(b, S_F, 74, '0x%x' % FOFF, 32768); srd(b, S_D, 72, '0', 256)
    b('''s_and_b32 s38, s2, 7
         s_lshl_b32 s38, s38, 3
         s_add_u32 s38, s38, s{B}
         s_lshl_b32 s39, s{BR}, 3
         s_add_u32 s39, s39, s{B}
         s_lshl_b32 s39, s39, 2
         s_add_u32 s39, s39, s{JP}
         v_and_b32 v5, 1, v{L}
         v_mov_b32 v6, s38
         v_mov_b32 v7, s39
         v_cmp_eq_u32 vcc, 0, v5
         v_cndmask_b32 v6, v7, v6, vcc
         v_lshlrev_b32 v{DA}, 2, v6
         s_lshl_b32 s38, s38, 7
         s_lshl_b32 s39, s39, 7
         s_add_u32 s39, s39, 8192
         v_lshl_add_u32 v{PA}, v4, 2, s38
         v_lshl_add_u32 v{PB}, v4, 2, s39
         s_lshl_b32 s41, s{JP}, 4
         s_add_u32 s38, s38, s41
         s_lshl_b32 s41, s{KQ}, 4
         s_add_u32 s39, s39, s41
         v_mov_b32 v6, s38
         v_mov_b32 v7, s39
         v_cndmask_b32 v6, v7, v6, vcc
         v_lshrrev_b32 v7, 1, v0
         v_lshl_add_u32 v6, v7, 16, v6
         v_mov_b32 v{T}, 0
         v_mov_b32 v{T1}, 0
         v_mov_b32 v{T2}, 0
         v_mov_b32 v{T3}, 0'''.format(B=sB, BR=sBR, JP=sJP, KQ=sKQ, L=L, DA=vDA, PA=vPA, PB=vPA + 1, T=T, T1=T + 1, T2=T + 2, T3=T + 3))
    b('buffer_store_dwordx4 %s, v6, s[%d:%d], 0 offen sc1' % (vr(T, 4), S_F, S_F + 3), 'fz')
    if opt.fbk:
        b('''v_readfirstlane_b32 s38, v{PA}
             v_readfirstlane_b32 s39, v{PB}
             v_and_b32 v5, 3, v{L}
             v_lshlrev_b32 v5, 2, v5
             v_and_b32 v6, 4, v{L}
             v_cmp_eq_u32 vcc, 0, v6
             s_add_u32 s38, s38, 16384
             s_add_u32 s39, s39, 16384
             v_add_u32 v6, s38, v5
             v_add_u32 v7, s39, v5
             v_cndmask_b32 v249, v7, v6, vcc
             s_lshl_b32 s41, s{JP}, 2
             s_add_u32 s38, s38, s41
             s_lshl_b32 s41, s{KQ}, 2
             s_add_u32 s39, s39, s41
             v_and_b32 v5, 1, v{L}
             v_cmp_eq_u32 vcc, 0, v5
             v_mov_b32 v6, s38
             v_mov_b32 v7, s39
             v_cndmask_b32 v6, v7, v6, vcc
             v_lshrrev_b32 v7, 1, v0
             v_lshl_add_u32 v250, v7, 16, v6
             v_mov_b32 v251, 0'''.format(PA=vPA, PB=vPA + 1, L=L, JP=sJP, KQ=sKQ))
        b('buffer_store_dword v251, v250, s[%d:%d], 0 offen sc1' % (S_F, S_F + 3))
    tail_setup_a(b)
    if opt.ptouch == 1: b.extend(page_touch())
    b('s_lshr_b32 s41, s%d, 1' % sW)
    b('v_bfe_u32 v5, v%d, 2, 2\nv_and_b32 v6, 3, v%d' % (L, L))
    for m in range(4):
        b('v_add_u32 v%d, %d, v3\nv_xor_b32 v%d, v%d, v4\nv_lshlrev_b32 v%d, 4, v%d\nv_lshl_add_u32 v%d, v3, 8, v%d' % (T, 4 * m, T, T, T, T, vKD + m, T))
    for m in range(2):
        b('v_add_u32 v%d, %d, v3\nv_lshlrev_b32 v%d, 1, v%d\nv_xor_b32 v%d, v%d, v4\nv_lshlrev_b32 v%d, 4, v%d\nv_lshl_add_u32 v%d, v3, 8, v%d' % (T, 4 * m, T, T, T, T, T, T, vVD + m, T))
    b('s_lshl_b32 s41, s41, 13\nv_xor_b32 v%d, v3, v4\nv_lshlrev_b32 v%d, 8, v4\nv_add_u32 v%d, s41, v%d' % (T, T + 1, T + 1, T + 1))
    for k in range(4): b('v_xor_b32 v%d, %d, v%d\nv_lshl_add_u32 v%d, v%d, 4, v%d' % (T + 2, 4 * k, T, vKA + k, T + 2, T + 1))
    b('''v_lshl_add_u32 v{a}, v3, 2, v5
         v_lshlrev_b32 v{c}, 8, v{a}
         v_lshl_add_u32 v{c}, v6, 3, v{c}
         s_add_u32 s41, s41, {vs}
         v_add_u32 v{c}, s41, v{c}
         v_and_b32 v{a}, 7, v{a}
         s_and_b32 s38, s{w}, 2
         s_lshl_b32 s38, s38, 1
         v_xor_b32 v{a}, s38, v{a}'''.format(a=T, c=T + 1, vs=VS0, w=sW))
    for dt in range(8): b('v_xor_b32 v%d, %d, v%d\nv_lshl_add_u32 v%d, v%d, 5, v%d' % (T + 2, dt, T, vVA + dt, T + 2, T + 1))
    b('''v_lshl_add_u32 v{c}, v3, 3, v5
         v_lshlrev_b32 v{c}, 9, v{c}
         s_lshr_b32 s41, s{w}, 1
         s_lshl_b32 s41, s41, 8
         v_add_u32 v{c}, s41, v{c}
         v_lshl_add_u32 v{a}, v5, 2, v6'''.format(a=T, c=T + 1, w=sW))
    for k in range(4): b('v_xor_b32 v%d, %d, v%d\nv_lshl_add_u32 v%d, v%d, 4, v%d' % (T + 2, 4 * k, T, vWA + k, T + 2, T + 1))
    b('''v_lshrrev_b32 v{a}, 1, v4
         v_xor_b32 v{a}, v{a}, v3
         s_mul_i32 s41, s40, 10240
         s_add_u32 s41, s41, {xb}
         v_lshlrev_b32 v{c}, 7, v4
         v_add_u32 v{c}, s41, v{c}'''.format(a=T, c=T + 1, xb=XBUF[0]))
    for k in range(2): b('v_xor_b32 v%d, %d, v%d\nv_lshl_add_u32 v%d, v%d, 4, v%d' % (T + 2, 4 * k, T, vXA + k, T + 2, T + 1))
    c = math.log2(math.e) / math.sqrt(128.0)
    b('s_mov_b32 s%d, 0x%08x\ns_mov_b32 s%d, 0x%08x\ns_mov_b32 s%d, 0x%08x\ns_mov_b32 s%d, 0' % (sSC, f32bits(c), sSC + 1, f32bits(c), sTH, f32bits(2.0 ** 30), sEX))
    b('v_lshl_add_u32 v%d, v%d, 4, s%d\nv_add_u32 v%d, 0x10000, v%d' % (vSW, L, sW4, vSW + 1, vSW))
    b('v_mov_b32 v%d, 0x3f803f80' % T)
    for i in range(4): b('v_accvgpr_write_b32 a%d, v%d' % (aONE + i, T))
    if opt.upfront != 2:
        for g in dma_wq(1) + (dma_x(1) if opt.upfront == 3 else []): b.extend(g)
    if opt.touchc < 0: wo_srd(b, 92); wo_touch(b, 92)
    return b

def zero_acc():
    return ['v_accvgpr_write_b32 a%d, 0' % i for i in range(180 if opt.ones else 160)] + ([] if opt.ones else ['v_mov_b32 v%d, 0' % (vL + i) for i in range(5)])

def conv(k):
    L = []
    for qs in range(5):
        d = rQ(k, qs)
        if opt.fs: pass
        elif opt.pk: L += ['v_pk_mul_f32 %s, %s, s[%d:%d]' % (vr(d + 2 * i, 2), vr(d + 2 * i, 2), sSC, sSC + 1) for i in range(4)]
        else: L += ['v_mul_f32 v%d, s%d, v%d' % (d + i, sSC, d + i) for i in range(8)]
        L += ['v_cvt_pk_bf16_f32 v%d, v%d, v%d' % (d + i, d + 2 * i, d + 2 * i + 1) for i in range(4)]
    return L
def qk0_mfmas():
    bb = []
    for f in range(8):
        k, kt = divmod(f, 2)
        for qs in range(5):
            s = rS(kt, qs)
            bb.append(I('%s %s, %s, %s, %s' % (MF, vr(s, 4), vr(vF + 4 * (f % NB), 4), vr(rQ(k, qs), 4), '0' if k == 0 else vr(s, 4))))
    return bb
def kread0(f):
    k, kt = divmod(f, 2)
    return [I('ds_read_b128 %s, v%d offset:%d' % (vr(vF + 4 * (f % NB), 4), vKA + k, kt * 4096), 'g%d' % f)]

def k1_qproj():
    b = Block('qproj')
    bb = []
    for c in range(16):
        for t in range(8):
            for qs in range(5):
                d = rQ(t // 2, qs) + 4 * (t % 2)
                bb.append(I('%s %s, %s, %s, %s' % (MF, vr(d, 4), ar(aFA + 4 * (t % 4), 4), ar(aFB + 20 * (c % 2) + 4 * qs, 4), '0' if c == 0 else vr(d, 4))))
    G = Gaps(bb, 8)
    def ybar(c): return -1 if c == 0 else 40 * c - 14
    cur = [0] * 4
    def wq_read(c, t):
        k, bsel = divmod(t, 2)
        want = 0 if WBUF[c % 3] < 65536 else 131072
        off = WBUF[c % 3] - want + 8 * bsel
        r = aFA + 4 * (t % 4)
        L = []
        if bsel == 0 and want != cur[k]:
            L.append(I('v_add_u32 v%d, 0x%x, v%d' % (vWA + k, (want - cur[k]) & 0xffffffff, vWA + k))); cur[k] = want
        return L, [I('ds_read_b64_tr_b16 %s, v%d offset:%d' % (ar(r, 2), vWA + k, off), 'fa'), I('ds_read_b64_tr_b16 %s, v%d offset:%d' % (ar(r + 2, 2), vWA + k, off + 2048), 'fa%d_%d' % (c, t))]
    kvq = dma_kv('K', 0, True) + dma_kv('K', 1, True) + dma_kv('V', 0, True) + dma_kv('V', 1, True) + stash_load('K', 2) + stash_load('V', 2) + stash_load('K', 3)
    nkv = opt.kvend
    bursts = dict(tuple(int(v) for v in x.split(':')) for x in opt.burst.split())
    nst = sum(bursts.values()) - 4
    assert 0 <= nst <= 3
    if bursts: kvq = dma_kv('K', 0) + dma_kv('K', 1) + dma_kv('V', 0) + dma_kv('V', 1) + kvq[16:]
    for c in range(16):
        y = ybar(c); base = 40 * c
        G.put(y, I('@waitlgkm *'), I('@waitvm wq%d' % c + (',x%d' % (c // 2) if c % 2 == 0 else '') + (',K0' if c == 15 else '')), I('s_barrier'))
        if opt.qstamps and c % opt.qevery == 0: G.put(y, *stamp_ins())
        if c == 3:
            G.put(y + 9, I('v_and_b32 v4, 1, v%d' % vLANE)); G.put(y + 10, I('v_lshlrev_b32 v4, 4, v4')); G.put(y + 11, I('v_lshlrev_b32 v4, v4, 1'))
            G.put(y + 12, I('v_lshrrev_b32 v1, 1, v0')); G.put(y + 13, I('v_lshl_add_u32 v1, v1, 16, v%d' % vDA))
            G.put(y + 14, I('@waitvm fz'), I('buffer_atomic_add v4, v1, s[%d:%d], 0 offen sc1' % (S_D, S_D + 3)))
        xr = [I('ds_read_b128 %s, v%d offset:%d' % (ar(aFB + 20 * (c % 2) + 4 * qs, 4), vXA + c % 2, (c // 2 % 2) * 20480 + 2048 * qs), 'xr%d_%d' % (c, qs)) for qs in range(5)]
        for t in range(8):
            g = max(base + 5 * (t - 3) - 1, y + 1 if c else y)
            pre, rd = wq_read(c, t)
            G.put(max(g - 1, -1), *pre); G.put(g, *rd)
            if t == 0:
                for qs in range(5): G.put(y + ((2, 4, 5, 6, 7)[qs] if c else 0), xr[qs])
                G.put(base - 1, I('@waitlgkm fa%d_1,xr%d_4' % (c, c)))
            if t % 2 == 0 and t: G.put(base + 5 * t - 1, I('@waitlgkm fa%d_%d' % (c, t + 1)))
        d = []
        if c == 0 and opt.upfront != 2: d += (dma_x(1) if opt.upfront == 1 else []) + dma_wq(2)
        if 1 <= c < 14: d += dma_wq(c + 2)
        if c % 2 == 0 and 2 <= c < 14: d += dma_x(c // 2 + 1)
        if not bursts and c < nkv: d += kvq[(c * len(kvq)) // nkv:((c + 1) * len(kvq)) // nkv]
        flat = [x for g in d for x in g]
        if c in bursts:
            if flat: G.spread2(flat, y + 1 if c else 0, y + 14)
            flat = [x for g in kvq[:4 * bursts[c]] for x in g]; kvq = kvq[4 * bursts[c]:]
            G.spread2(flat, y + 15, y + 15 + len(flat) // 2); flat = []
        late = lambda w, sl, k: stash_flush(w, sl) if nst > k else [x for g in dma_kv(w, sl) for x in g]
        if c == 14: flat += late('K', 2, 0) + late('V', 2, 1)
        if c == 15: flat += late('K', 3, 2)
        if opt.ptouch > 1 and c == opt.ptouch: flat += [I(x) for x in page_touch()]
        if c == opt.touchc:
            tb = Block('x'); q = 92 if c < 13 else S_WO; wo_srd(tb, q); wo_touch(tb, q); flat += tb.ins
        if flat: G.spread2(flat, y + 1 if c else 0, 25 if c == 0 else y + (39 if c < 14 else 20), opt.qcl)
    G.spread2(zero_acc(), 20, 580)
    for f in range(3): G.put(624 + 5 * f, *kread0(f))
    G.spread2(conv(0), 613, 626); G.spread2(conv(1), 627, 639)
    em = G.emit()
    if 'd' in opt.qf: em = [x for x in em if x.cls not in ('dma', 'vld') and 'm0' not in x.w]
    if 'b' in opt.qf: em = [x for x in em if x.op != 's_barrier']
    if 'h' in opt.qf:
        k = [0]
        def keep(x):
            if x.op != 's_barrier': return True
            k[0] += 1; return k[0] % 2 == 1
        em = [x for x in em if keep(x)]
    if 'w' in opt.qf: em = [x for x in em if not (x.op == '@waitlgkm' and x.wait == ['*'])]
    if 'r' in opt.qf: em = [x for x in em if x.cls != 'dsr']
    if 'z' in opt.qf: em = [x for x in em if x.op != 'v_accvgpr_write_b32']
    if 'x' in opt.qf: em = [x for x in em if x.op != 'ds_read_b128']
    if 't' in opt.qf: em = [x for x in em if x.op != 'ds_read_b64_tr_b16']
    b.extend(em)
    print('qproj est cycles', G.est_cycles(16), file=sys.stderr)
    G = Gaps(qk0_mfmas(), 8)
    for f in range(3, 8): G.put(5 * (f - 3) - 1, *kread0(f))
    G.spread2(conv(2), -1, 17); G.spread2(conv(3), 18, 27)
    b.extend(G.emit())
    stamp(b)
    return b

XBAR = 66
aK = 184
def kread(f, slot):
    kt, k = divmod(f, 4)
    return [I('ds_read_b128 %s, v%d offset:%d' % (ar(aK + 4 * f, 4) if opt.chain else vr(vF + 4 * (f % NB), 4), vKA + k, slot * 16384 + kt * 4096), 'f%d' % f)]
def vread(f, slot):
    dt = f - 8; r = vF + 4 * (f % NB)
    return [I('ds_read_b64_tr_b16 %s, v%d offset:%d' % (vr(r, 2), vVA + dt, slot * 16384), 'fx'),
            I('ds_read_b64_tr_b16 %s, v%d offset:%d' % (vr(r + 2, 2), vVA + dt, slot * 16384 + 4096), 'f%d' % f)]
def neg_adds(kt): return ['v_add_f32 v%d, v%d, v%d' % (rS(kt, qs) + i, rS(kt, qs) + i, vN + 4 * qs) for qs in range(5) for i in range(4)]
def sm_chain(par):
    C = []; pend = []
    for kt in range(2):
        for qs in range(5):
            s = rS(kt, qs); p = rP(par, qs) + 2 * kt
            e = ['v_exp_f32 v%d, v%d' % (s + i, s + i) for i in range(4)]
            a = ['v_add_f32 v%d, v%d, v%d' % (vL + qs, vL + qs, s + i) for i in range(4)]
            cv = ['v_cvt_pk_bf16_f32 v%d, v%d, v%d' % (p + i, s + 2 * i, s + 2 * i + 1) for i in range(2)]
            if opt.fs: C += [('v_mul_f32 v%d, s%d, v%d' % (s + i, sSC, s + i), kt, qs) for i in range(4)]
            C.append((e[0], kt, qs)); C += pend
            if opt.ones: C += [(x, kt, qs) for x in (e[1], e[2], cv[0], e[3])]; pend = [(cv[1], kt, qs)]
            else: C += [(x, kt, qs) for x in (e[1], a[0], e[2], a[1], cv[0], e[3], a[2])]; pend = [(a[3], kt, qs), (cv[1], kt, qs)]
    return C + pend
def qk_mfmas(first):
    bb = []
    if opt.chain and not first:
        for kt in range(2):
            for qs in range(5):
                s = rS(kt, qs)
                for k in range(4): bb.append(I('%s %s, %s, %s, %s' % (MF, vr(s, 4), ar(aK + 16 * kt + 4 * k, 4), vr(rQ(k, qs), 4), vr(vN + 4 * qs, 4) if k == 0 else vr(s, 4))))
        return bb
    for f in range(8):
        kt, k = divmod(f, 4)
        for qs in range(5):
            s = rS(kt, qs)
            c = ('0' if first else vr(vN + 4 * qs, 4)) if k == 0 else vr(s, 4)
            bb.append(I('%s %s, %s, %s, %s' % (MF, vr(s, 4), vr(vF + 4 * (f % NB), 4), vr(rQ(k, qs), 4), c)))
    return bb
def pv_mfmas(par):
    bb = []
    for f in range(8, 16):
        for qs in range(5):
            bb.append(I('%s %s, %s, %s, %s' % (MF, ar(aO(f - 8, qs), 4), vr(vF + 4 * (f % NB), 4), vr(rP(par, qs), 4), ar(aO(f - 8, qs), 4))))
    return bb
def ones_mfmas(par): return [I('%s %s, %s, %s, %s' % (MF, ar(aL + 4 * qs, 4), ar(aONE, 4), vr(rP(par, qs), 4), ar(aL + 4 * qs, 4))) for qs in range(5)]
SPLIT = [None]; SMPOS = [None]
def period(j, peel=False):
    pu, pn = j % 2, (j + 1) % 2
    ks, vs = (j + 1) % 4, j
    lg = qk_mfmas(False) + pv_mfmas(pu)
    bb = []; ix = {-1: -1}
    on = ones_mfmas(pu) if opt.ones else []
    for i, x in enumerate(lg):
        bb.append(x); ix[i] = len(bb) - 1
        if on and i in ((40, 46, 52, 58, 64) if opt.onesadj else (44, 49, 54, 59, 64)): bb.append(on.pop(0))
    G = Gaps(bb, 8); N = len(bb)
    for f in range(4 if opt.chain else 3, 16):
        if opt.chain and f < 8: G.put(3 * (f - 4), *kread(f, ks)); continue
        G.put(ix[5 * (f - 3) - 1] if f > 3 else 0, *(kread(f, ks) if f < 8 else vread(f, vs)))
        if f % 2 == 0 and f < 15: G.put(ix[5 * f] - 1, I('@waitlgkm f%d' % (f + 1)))
    if opt.chain: G.put(19, I('@waitlgkm f7'))
    G.put(ix[XBAR], I('@waitlgkm *'), I('@waitvm K%d,V%d' % ((j + 2) % 4, (j + 1) % 4)), I('s_barrier'))
    if peel and j == 2:
        for f, g in ((8, XBAR + 1), (9, 69), (10, 74)): G.put(ix[g], *vread(f, 3))
    else:
        for f, g in ((0, XBAR + 1), (1, 69), (2, 71), (3, 73)) if opt.chain else ((0, XBAR + 1), (1, 69), (2, 74)): G.put(ix[g], *kread(f, (j + 2) % 4))
        G.put(N - 1, I('@waitlgkm f3' if opt.chain else '@waitlgkm f1'))
    if not opt.chain: G.put(9, I('@waitlgkm f3'))
    slots = [2, 7, 12, 17, 22, 27, 32, 37, 42, 47, 52, 57, 62] if opt.dsp == 5 else [2 + opt.dsp * m for m in range(8)]
    dl = dma_kv('K', j) + dma_kv('V', (j + 3) % 4)
    if peel: dl = dma_kv('V', 3) if j == 0 else dma_wo(j)
    extra = []
    if peel and opt.sb == 1 and j < 2:
        tb = Block('x'); tail_setup_b(tb)
        cut = [k for k, x in enumerate(tb.ins) if x.w == {'v%d' % (vOD + 3)}][0] + 1
        extra = tb.ins[:cut] if j == 0 else tb.ins[cut:]
    if peel and j == 0: extra = extra + [x for g in dma_wo(0) for x in g]
    if not peel and opt.sb == 2 and j < 3:
        tb = Block('x'); tail_setup_b(tb); n3 = len(tb.ins) // 3
        cuts = [0] + [next(k for k in range(n3 * q, len(tb.ins)) if tb.ins[k].op not in ('s_addc_u32', 's_cselect_b32')) for q in (1, 2)] + [len(tb.ins)]
        inloop = tb.ins[cuts[j]:cuts[j + 1]]
    for m, g in enumerate(dl):
        p = ix[slots[m]]
        if not peel:
            ce, cl = opt.cape.strip()[m], opt.capl.strip()[m]
            if ce != 'x': G.put(p - 1, I('@raw s_waitcnt vmcnt(%s)' % ce))
            if cl != ce: G.put(p - 1, I('s_cbranch_vccnz L_t%d_%d' % (j, m)), I('@raw s_waitcnt vmcnt(%s)' % cl), I('L_t%d_%d:' % (j, m)))
        if len(g) == 2 and g[0].cls == 'salu': G.put(p - 1, g[0]); G.put(p, g[1])
        elif len(g) == 2: G.put(p, g[0]); G.put(p + 1, g[1])
        elif len(g) == 3: G.put(p - 2, g[0]); G.put(p - 1, g[1]); G.put(p, g[2])
        else: G.put(p, *g)
    if j == 3:
        G.put(ix[71], I('s_sub_u32 s%d, s%d, 1' % (sCNT, sCNT))); G.put(ix[77], I('s_cmp_lg_u32 s%d, 0' % sCNT))
        if opt.rel: G.put(ix[74], I('s_cmp_le_u32 s%d, %d' % (sCNT, opt.rel)), I('s_cselect_b64 vcc, 1, vcc'))
    if opt.fbk and not peel and (j + 1) % opt.fbk == 0:
        G.put(ix[74], I('s_add_u32 s37, s37, 1')); G.put(ix[75], I('v_mov_b32 v251, s37'))
        G.put(ix[76], I('buffer_store_dword v251, v250, s[%d:%d], 0 offen sc1' % (S_F, S_F + 3)))
        G.put(ix[76], I('buffer_load_dword v252, v249, s[%d:%d], 0 offen sc1' % (S_F, S_F + 3)))
    if opt.fbk and not peel and j % opt.fbk == 0:
        G.put(ix[opt.fbpos], I('v_cmp_le_u32 vcc, s37, v252'))
        G.put(ix[opt.fbpos + 1], I('s_and_b32 vcc_lo, vcc_lo, s36'), I('s_bcnt1_i32_b32 vcc_lo, vcc_lo'))
        G.put(ix[opt.fbpos + 2], I('s_cmp_ge_u32 vcc_lo, %d' % opt.fbn), I('s_cselect_b64 vcc, 1, 0'))
    if peel and j == 0: G.put(ix[40], I('buffer_load_dword v244, v%d, s[%d:%d], 0 offen sc1' % (vDA, S_D, S_D + 3)))
    chn, chu = sm_chain(pn), sm_chain(pu)
    if SMPOS[0] is None:
        s0 = 18; gaps = list(range(s0, N)) + list(range(0, s0))
        gaps += list(range(s0, 24))
        lo = [ix[15 + 20 * kt + qs] + 4 - s0 for (_, kt, qs) in chn]
        hi = [(N - s0 + qs - 1) if kt == 0 else (N - s0 + 19 + qs) for (_, kt, qs) in chn]
        if opt.chain:
            s0 = 7; gaps = list(range(s0, N)) + list(range(0, s0))
            lo = [ix[20 * kt + 4 * qs + 3] + 4 - s0 for (_, kt, qs) in chn]
            hi = [N - s0 + 20 * kt + 4 * qs - 1 for (_, kt, qs) in chn]
        hi = [min(h, N - 1) for h in hi]
        _, pos = G.dp([x for x, _, _ in chn], gaps, lo, hi)
        SMPOS[0] = [gaps[p] for p in pos]; SPLIT[0] = sum(p < N - s0 for p in pos)
    for k, (x, _, _) in enumerate(chu):
        if k >= SPLIT[0]: G.put(SMPOS[0][k], I(x))
    for k, (x, _, _) in enumerate(chn):
        if k < SPLIT[0]: G.put(SMPOS[0][k], I(x))
    if not peel and opt.sb == 2 and j < 3: G.spread2(inloop, 0, N - 1)
    if extra and j == 0: G.spread2(extra, ix[slots[3]] + 2, N - 1)
    if extra and j == 1: G.spread2(extra, ix[slots[4]] + 1, N - 1)
    if j == 3 or opt.pstamps: G.put(ix[XBAR], *stamp_ins())
    return G

def k1_attention():
    P = [period(j) for j in range(4)]
    print('period est cycles', [g.est_cycles(16) for g in P], [P[0].used(i) for i in range(len(P[0].bb))], file=sys.stderr)
    pro = Block('pro'); T = vT
    pro('L_start:')
    pro('@waitlgkm *\n@waitvm K1,V0\ns_barrier')
    for f in range(4 if opt.chain else 3): pro.extend(kread(f, 1))
    if opt.fallback: pro('s_cmp_lg_u32 s%d, 0\ns_cbranch_scc1 L_nomax' % sEX)
    mx = Block('pro_max')
    for qs in range(5):
        a, c = rS(0, qs), rS(1, qs); t = T + 2 * qs
        mx('v_max3_f32 v%d, v%d, v%d, v%d\nv_max3_f32 v%d, v%d, v%d, v%d' % (t, a, a + 1, a + 2, t + 1, c, c + 1, c + 2))
        mx('v_max3_f32 v%d, v%d, v%d, v%d\nv_max_f32 v%d, v%d, v%d' % (t, t, a + 3, c + 3, t, t, t + 1))
    max_finish(mx, T)
    p2 = Block('pro2'); p2('L_nomax:')
    p2.extend(neg_adds(0) + neg_adds(1) + [x for x, _, _ in sm_chain(0)[:SPLIT[0]]])
    if opt.touchc > 15 or opt.touchc < 13: wo_srd(p2)
    if opt.touchc > 15: wo_touch(p2)
    if opt.sb == 0: tail_setup_b(p2)
    p2('@waitlgkm f3' if opt.chain else '@waitlgkm f1')
    p2('s_mov_b32 s%d, 7' % sCNT)
    if opt.asym: p2('s_cmp_lt_u32 s%d, 2\ns_cselect_b64 vcc, 1, 0' % sJP)
    elif opt.rel: p2('s_mov_b64 vcc, 0')
    if opt.thre and not opt.fbk and not opt.asym: p2('s_getreg_b32 s38, hwreg(HW_REG_XCC_ID, 0, 1)\ns_mov_b32 vcc_lo, s38\ns_mov_b32 vcc_hi, 0')
    if opt.fbk:
        p2('s_lshl_b32 s38, 1, s%d\ns_lshl_b32 s39, 16, s%d\ns_or_b32 s38, s38, s39\ns_andn2_b32 s36, 0xff, s38\ns_mov_b32 s37, 0\ns_mov_b64 vcc, 0\nv_mov_b32 v252, 0' % (sJP, sKQ))
    stamp(p2)
    lp = [Block('per%d' % j) for j in range(4)]
    lp[0]('L_loop:')
    for j in range(4): lp[j].extend(P[j].emit())
    lp[3]('s_cbranch_scc1 L_loop')
    pe = [Block('pe%d' % j) for j in range(4)]
    pe[0].extend(period(0, True).emit()); pe[1].extend(period(1, True).emit())
    pe[1]('v_readlane_b32 s38, v244, 0\nv_readlane_b32 s39, v244, 1\ns_and_b32 s38, s38, 0xffff\ns_lshr_b32 s39, s39, 16\ns_min_u32 s38, s38, s39\ns_cmp_lt_u32 s38, 4\ns_cbranch_scc1 L_spin_d')
    pe[2]('L_back_d:')
    pe[2].extend(period(2, True).emit())
    sp = pe[3]; sp.name = 'spin_d'
    sp('L_spin_d:\ns_mov_b32 s40, %d\nL_spin_d2:\ns_sleep 4\nbuffer_load_dword v244, v%d, s[%d:%d], 0 offen sc1\ns_waitcnt vmcnt(0)' % (opt.spin, vDA, S_D, S_D + 3))
    sp('v_readlane_b32 s38, v244, 0\nv_readlane_b32 s39, v244, 1\ns_and_b32 s38, s38, 0xffff\ns_lshr_b32 s39, s39, 16\ns_min_u32 s38, s38, s39\ns_cmp_ge_u32 s38, 4\ns_cbranch_scc1 L_back_d')
    sp('s_sub_u32 s40, s40, 1\ns_cmp_lg_u32 s40, 0\ns_cbranch_scc1 L_spin_d2\ns_branch L_back_d')
    return pro, mx, p2, lp, pe

def max_finish(b, T):
    for qs in range(5): b('v_mov_b32 v%d, v%d' % (T + 2 * qs + 1, T + 2 * qs))
    for qs in range(5): b('v_permlane16_swap_b32 v%d, v%d' % (T + 2 * qs, T + 2 * qs + 1))
    for qs in range(5): b('v_max_f32 v%d, v%d, v%d' % (T + 2 * qs, T + 2 * qs, T + 2 * qs + 1))
    for qs in range(5): b('v_mov_b32 v%d, v%d' % (T + 2 * qs + 1, T + 2 * qs))
    for qs in range(5): b('v_permlane32_swap_b32 v%d, v%d' % (T + 2 * qs, T + 2 * qs + 1))
    for qs in range(5): b('v_max_f32 v%d, v%d, v%d' % (T + 2 * qs, T + 2 * qs, T + 2 * qs + 1))
    for qs in range(5):
        for i in range(4): b('v_sub_f32 v%d, 0, v%d' % (vN + 4 * qs + i, T + 2 * qs))

def poll_test(reg, mask, thr=1): return ['v_cmp_le_u32 vcc, %d, v%d' % (thr, reg), 's_and_b32 s38, vcc_lo, s%d' % mask, 's_cmp_lg_u32 s38, s%d' % mask]
def spin_block(name, addr, mask, thr=1):
    sp = Block('spin_' + name)
    sp('L_spin_%s:\ns_mov_b32 s40, %d\nL_spin_%s2:\ns_sleep 1\nbuffer_load_dword v244, v%d, s[%d:%d], 0 offen sc1\ns_waitcnt vmcnt(0)' % (name, opt.spin, name, addr, S_F, S_F + 3))
    sp.extend(poll_test(244, mask, thr))
    sp('s_cbranch_scc0 L_back_%s\ns_sub_u32 s40, s40, 1\ns_cmp_lg_u32 s40, 0\ns_cbranch_scc1 L_spin_%s2\ns_branch L_back_%s' % (name, name, name))
    return sp

def k1_tail():
    t1 = Block('tail1'); t2 = Block('tail2'); L = vLANE
    t1.extend([x for x, _, _ in sm_chain(1)[SPLIT[0]:]])
    t1.extend(ones_mfmas(1))
    G = Gaps(pv_mfmas(1), 8)
    for f in range(11, 16): G.put(5 * (f - 11) + 4, *vread(f, 3))
    R = vN + 9
    rc = ['v_accvgpr_read_b32 v%d, a%d' % (R + qs, aL + 4 * qs) for qs in range(5)]
    rc += ['v_add_f32 v%d, v%d, v%d' % (R + 5, R, R + 1), 'v_add_f32 v%d, v%d, v%d' % (R + 6, R + 2, R + 3), 'v_add_f32 v%d, v%d, v%d' % (R + 5, R + 5, R + 4), 'v_add_f32 v%d, v%d, v%d' % (R + 5, R + 5, R + 6)]
    if opt.fallback:
        rc += ['v_cmp_ngt_f32 vcc, s%d, v%d' % (sTH, R + 5), 's_lshl_b32 s39, s%d, 2' % sW, 's_add_u32 s39, s39, %d' % BADB, 'v_mov_b32 v%d, s39' % (R + 6),
               's_cmp_lg_u64 vcc, 0', 's_cselect_b32 s38, 1, 0', 'v_mov_b32 v%d, s38' % (R + 5), I('ds_write_b32 v%d, v%d' % (R + 6, R + 5), 'bad'), 'v_mov_b32 v%d, %d' % (R + 6, BADB)]
    rc += ['v_rcp_f32 v%d, v%d' % (vN + 2 * i, R + i) for i in range(5)]
    G.spread2(rc, 2, 11)
    if opt.fallback:
        G.put(12, I('@waitlgkm bad'), I('@waitvm wo0,wo1'), I('s_barrier'), I('ds_read_b128 %s, v%d' % (vr(R + 7, 4), R + 6)))
        G.put(16, I('v_or_b32 v%d, v%d, v%d' % (R + 5, R + 7, R + 8)), I('v_or3_b32 v%d, v%d, v%d, v%d' % (R + 5, R + 5, R + 9, R + 10)))
        G.put(17, I('v_readfirstlane_b32 s38, v%d' % (R + 5)))
        G.put(18, I('s_cmp_lg_u32 s%d, 0' % sEX), I('s_cselect_b32 s38, 0, s38'), I('s_cmp_lg_u32 s38, 0'), I('s_cbranch_scc1 L_fallback'))
    def out(kl):
        Lst = []
        for qs in range(5):
            idx = 5 * kl + qs
            d = BS[0][idx] if kl < 2 else hole(idx % 10); e = hole(10 + idx % 5)
            src = [aO(2 * kl, qs) + i for i in range(4)] + [aO(2 * kl + 1, qs) + i for i in range(4)]
            tmp = [d + i for i in range(4)] + [e + i for i in range(4)]
            Lst += ['v_accvgpr_read_b32 v%d, a%d' % (tmp[i], src[i]) for i in range(8)]
            if kl and opt.pk2: Lst += ['v_pk_mul_f32 %s, %s, %s op_sel_hi:[1,0]' % (vr(tmp[i], 2), vr(tmp[i], 2), vr(vN + 2 * qs, 2)) for i in range(0, 8, 2)]
            else: Lst += ['v_mul_f32 v%d, v%d, v%d' % (tmp[i], vN + 2 * qs, tmp[i]) for i in range(8)]
            Lst += ['v_cvt_pk_bf16_f32 v%d, v%d, v%d' % (d + i, tmp[2 * i], tmp[2 * i + 1]) for i in range(4)]
            if opt.stcap: Lst += [I('@raw s_waitcnt vmcnt(%d)' % opt.stcap)]
            Lst += [I('buffer_store_dwordx4 %s, v%d, s[%d:%d], s%d offen offset:%d%s' % (vr(d, 4), vOL + qs // 4, S_O, S_O + 3, sOK + kl, 1024 * (qs % 4), opt.o_st_pol), 'Oa' if kl < 2 else 'O')]
            if kl >= 2: Lst += [I('ds_write_b128 v%d, %s offset:%d' % (vXW, vr(d, 4), 1024 * (idx - 10)))]
        return Lst
    sDL = [30, 33, 28, 36, 37, 34, 29]
    b0 = [WOB[c % 5] for c in range(8)]; b1 = [WOB[(c ^ 1) % 5] if c < 2 or opt.early else WOB[c % 5] for c in range(8)]
    sc = ['s_lshr_b32 s41, s%d, 1' % sW]
    for c in range(7):
        d0, d1 = b0[c + 1] - b0[c], b1[c + 1] - b1[c]
        sc += ['s_mul_i32 s%d, s41, 0x%x' % (sDL[c], (d1 - d0) & 0xffffffff), 's_add_u32 s%d, s%d, 0x%x' % (sDL[c], sDL[c], d0 & 0xffffffff)] if d0 != d1 else ['s_mov_b32 s%d, 0x%x' % (sDL[c], d0 & 0xffffffff)]
    if opt.early: sc += ['s_lshl_b32 s26, 0x1111, s%d' % sW, 's_and_b32 s26, s26, s%d' % MK1[1], 's_xor_b32 s27, s26, s%d' % MK1[1]]
    G.spread2(out(0) + sc, 19, 39)
    t1.extend(G.emit(-1, 18)); t2.extend(G.emit(19, 39))
    for kl in (2, 3, 1) if not opt.early else (1, 2, 3):
        mark = len(t2.ins) + 40; t2.extend(out(kl))
    t2('v_mov_b32 v245, 1\nv_mov_b32 v254, 2')
    if opt.early: t2('@waitvm Oa\nbuffer_store_dword v245, v%d, s[%d:%d], 0 offen sc1' % (vFA, S_F, S_F + 3))
    stamp(t2)
    bb = []; frs = []; first = []; last = []
    AR = [32, 36, 40, 44, 8, 12] if opt.t2ch else [32, 36, 40, 44]; NA = len(AR)
    def mf(c, kp, n, f, fi):
        a = 4 * (5 * n + f)
        bb.append(I('%s %s, %s, %s, %s' % (MF, ar(a, 4), vr(AR[fi % NA], 4), vr(BS[c % 3][5 * kp + f], 4), '0' if (c, kp) == (0, 0) else ar(a, 4))))
    for c in range(8):
        if opt.t2ch:
            for n in range(8) if c < 7 else (4, 5, 6, 7, 1, 2, 3, 0):
                fi = len(frs); frs += [(c, 0, n), (c, 1, n)]; first += [len(bb), len(bb) + 1]
                for f in range(5): mf(c, 0, n, f, fi); mf(c, 1, n, f, fi + 1)
                last += [len(bb) - 2, len(bb) - 1]
            continue
        seq = [(kp, n) for kp in range(2) for n in range(8)]
        if c == 7: seq = [(kp, n) for kp in range(2) for n in (4, 5, 6, 7)] + [(kp, n) for kp in range(2) for n in (1, 2, 3, 0)]
        for kp, n in seq:
            fi = len(frs); frs.append((c, kp, n)); first.append(len(bb))
            for f in range(5): mf(c, kp, n, f, fi)
            last.append(len(bb) - 1)
    G = Gaps(bb, 8)
    bars = {0: 'wo0,wo1,wo2', 2: '', 3: 'wo3,wo4', 5: 'wo5,wo6', 7: 'wo7'}
    if opt.early: bars = {0: 'wo0,wo1,wo2', 2: 'wo3', 4: 'wo4,wo5', 6: 'wo6,wo7'}
    if opt.fallback: bars[0] = 'wo2'
    for c, tg in bars.items():
        G.put(80 * c - 14 if c or not opt.fallback else opt.z0pos, *([I('@waitlgkm *')] + ([I('@waitvm ' + tg)] if tg else []) + [I('s_barrier')]))
    for fi, (c, kp, n) in enumerate(frs):
        g = max(last[fi - NA] if fi >= NA else -1, first[fi] - (18 if opt.t2ch else 16), -1)
        if c in bars and c: g = max(g, 80 * c - 13 + (fi % 2 if opt.t2ch else 0))
        r = AR[fi % NA]
        G.put(g, I('ds_read_b64_tr_b16 %s, v%d offset:%d' % (vr(r, 2), vRA[n], kp * 8192), 'wx'), I('ds_read_b64_tr_b16 %s, v%d offset:%d' % (vr(r + 2, 2), vRA[n], kp * 8192 + 4096), 'w%d' % fi))
        if kp == 1 and c < 7:
            G.put(g + 1, I('v_add_u32 v%d, s%d, v%d' % (vRA[n], sDL[c], vRA[n])))
        if fi % 2 == 0 and fi: G.put(first[fi] - 1, I('@waitlgkm w%d' % (fi + 1)))
    z0 = opt.z0pos + 1 if opt.fallback else 0
    for i in range(10): G.put(z0 + i // 2 + (i >= 8), I('ds_read_b128 %s, v%d offset:%d' % (vr(BS[1][i], 4), vXR, 1024 * i), 'xr'))
    G.put(opt.flagpos, I('@waitvm O,Oa'), I('buffer_store_dword v254, v%d, s[%d:%d], 0 offen sc1' % (vFA, S_F, S_F + 3)))
    G.put(z0 + 13, I('@waitlgkm xr'), I('s_barrier'))
    flat = lambda d: [x for g in d for x in g]
    def oload(c):
        return [I('buffer_load_dwordx4 %s, v%d, s[%d:%d], s%d offen offset:%d%s' % (vr(BS[c % 3][5 * kp + f], 4), vOL + 2 * kp + f // 4, S_OR, S_OR + 3, sORO + c, 1024 * (f % 4), opt.o_ld_pol)) for kp in range(2) for f in range(5)]
    G.spread2(flat(dma_wo(3) + dma_wo(4)), z0 + 15, z0 + 62)
    ck = opt.chkpos
    checks = [('o1', opt.pollpos, ck, 26 if opt.early else MK1[1], 1 if opt.early else 2)]
    if opt.early: checks.append(('ob', opt.chkb - opt.pleadb, opt.chkb, 27, 2))
    checks += [('o2', opt.chk2 - opt.plead, opt.chk2, MK1[2], 2), ('o3', opt.chk3 - opt.plead, opt.chk3, MK1[3], 2)]
    for name, pp, cp, mk, thr in checks:
        G.put(pp, I('buffer_load_dword v244, v%d, s[%d:%d], 0 offen sc1' % (vPA, S_F, S_F + 3)))
        G.put(cp, *[I(x) for x in poll_test(244, mk, thr) + ['s_cbranch_scc1 L_spin_' + name]])
    def even(lst, lo, hi):
        mem = [x for x in lst if x.cls in ('dma', 'vld')]; k = 0; pend = []
        for x in lst:
            if x.cls in ('dma', 'vld'):
                g = lo + (k * (hi - lo)) // max(len(mem) - 1, 1); k += 1
                for j, y in enumerate(pend): G.put(g - len(pend) + j, y)
                G.put(g, x); pend = []
            else: pend.append(x)
    c2, c3 = opt.chk2, opt.chk3
    G.spread2(oload(2), ck + 1, ck + 8)
    if opt.early:
        even(oload(3), opt.chkb + 1, opt.chkb + 24); even(flat(dma_wo(5)), opt.chkb + 29, c2 - 3)
        even(oload(4), c2 + 1, c2 + 36); even(flat(dma_wo(6)), c2 + 41, c2 + 66)
        even(oload(5), c2 + 70, c3 - 3); even(flat(dma_wo(7)), c3 + 3, c3 + 32); even(oload(6), c3 + 36, c3 + 70)
        even(oload(7), max(c3 + 74, 401), c3 + 115)
    else:
        even(oload(3), ck + 14, c2 - 42); even(flat(dma_wo(5)), max(c2 - 38, 150), c2 - 3)
        even(oload(4), c2 + 1, c2 + 40); even(flat(dma_wo(6)), c2 + 45, c3 - 48)
        even(oload(5), c3 - 44, c3 - 3); even(oload(6), c3 + 1, c3 + 42)
        even(flat(dma_wo(7)), c3 + 47, c3 + 80); even(oload(7), max(c3 + 84, 401), c3 + 125)
    if opt.sent:
        G.spread2(['v_mov_b32 v%d, -1' % (vN + i) for i in range(4)], 63, 66)
        G.spread2([I('buffer_store_dwordx4 %s, v%d, s[%d:%d], s%d offen offset:%d sc1' % (vr(vN, 4), vOL, S_P, S_P + 3, sPW + j, 1024 * k), 'pf') for j in range(3) for k in range(3)], 67, 88)
        G.put(300, I('@waitvm pf'), I('buffer_store_dword v245, v%d, s[%d:%d], 0 offen sc1' % (vFA + 1, S_F, S_F + 3)))
        G.put(575, I('buffer_load_dword v244, v%d, s[%d:%d], 0 offen sc1' % (vPA + 1, S_F, S_F + 3)))
    RG = BS[0] + BS[2]
    order = [5 * nl + f for nl in (1, 2, 3, 0) for f in range(5)]
    for i in range(20): G.put(574 + 2 * i + (i % 5 + 1) // 2 * 0 if opt.t2ch else 585 + (3 * i) // 2, I('ds_write_b128 v%d, %s offset:%d' % (vYW, ar(80 + 4 * i, 4), 1024 * i), 'yw'))
    G.put(619, I('@waitlgkm yw'), I('s_barrier'))
    for k, i in enumerate(order): G.put(620 + k, I('ds_read_b128 %s, v%d offset:%d' % (vr(RG[i], 4), vYR, 1024 * i)))
    if opt.tstamps:
        for g in (opt.flagpos + 1, 79, opt.chkpos - 1, opt.chkpos + 1, 159, 164, opt.chk2 - 1, opt.chk2 + 1, 239, opt.chk3 - 1, opt.chk3 + 1, 399, 479, 559): G.put(g, *stamp_ins())
    print('oproj est cycles', G.est_cycles(16), file=sys.stderr)
    if opt.fallback: t2.ins[mark:mark] = G.g[-1]; G.g[-1] = []
    blks = [t2]; lo = -1
    for name, pp, cp, mk, thr in checks:
        blks[-1].extend(G.emit(lo, cp)); lo = cp + 1
        blks.append(Block('t_' + name)); blks[-1]('L_back_%s:' % name)
    t3 = blks[-1]
    t3.extend(G.emit(lo, 639))
    stamp(t3)
    for k, i in enumerate(order):
        tm = BS[1][k % 10]
        for e in range(4): t3('v_accvgpr_read_b32 v%d, a%d' % (tm + e, 4 * i + e))
        for e in range(4): t3('v_add_f32 v%d, v%d, v%d' % (RG[i] + e, RG[i] + e, tm + e))
        nl, f = divmod(i, 5)
        if nl and not opt.pbf: t3('buffer_store_dwordx4 %s, v%d, s[%d:%d], s%d offen offset:%d%s' % (vr(RG[i], 4), vOL + f // 4, S_P, S_P + 3, sPW + nl - 1, 1024 * (f % 4), opt.p_st_pol), 'P')
        if nl and opt.pbf:
            d = RG[5 * nl + f // 2 * 2] + 2 * (f % 2)
            t3('v_cvt_pk_bf16_f32 v%d, v%d, v%d\nv_cvt_pk_bf16_f32 v%d, v%d, v%d' % (d, RG[i], RG[i] + 1, d + 1, RG[i] + 2, RG[i] + 3))
            if f % 2 or f == 4: t3('buffer_store_dwordx%d %s, v%d, s[%d:%d], s%d offen offset:%d%s' % (2 if f == 4 and opt.sent else 4, vr(RG[5 * nl + f // 2 * 2], 2 if f == 4 and opt.sent else 4), vOL, S_P, S_P + 3, sPW + nl - 1, 1024 * (f // 2), opt.p_st_pol), 'P')
    if not opt.sent:
        t3('@waitvm P\nbuffer_store_dword v245, v%d, s[%d:%d], 0 offen sc1' % (vFA + 1, S_F, S_F + 3))
        stamp(t3)
        t3('buffer_load_dword v244, v%d, s[%d:%d], 0 offen sc1' % (vPA + 1, S_F, S_F + 3))
    else: stamp(t3)
    t3.extend(poll_test(244, sMK2) + ['s_cbranch_scc1 L_spin_p'])
    t4 = Block('tail4'); t4('L_back_p:')
    spins = [spin_block(name, vPA, mk, thr) for name, pp, cp, mk, thr in checks] + [spin_block('p', vPA + 1, sMK2)]
    LD = [BS[1][3 * (f // 2) + j] for j in (1, 2, 3) for f in (0, 2, 4)] if opt.sent else None
    def preg(j, f): return LD[3 * (j - 1) + f // 2] if opt.sent else RG[5 * j + f]
    if opt.sent:
        blks.append(t4); t4('s_mov_b32 s41, %d' % opt.spin)
        t4 = Block('try'); t4('L_try:')
    else: stamp(t4)
    for f in range(0, 5, 2 if opt.pbf else 1):
        for j in (1, 2, 3):
            if opt.pbf: t4('buffer_load_dwordx%d %s, v%d, s[%d:%d], s%d offen offset:%d%s' % (2 if f == 4 and opt.sent else 4, vr(preg(j, f), 2 if f == 4 and opt.sent else 4), vOL, S_P, S_P + 3, sPR + j - 1, 1024 * (f // 2), opt.p_ld_pol))
            else: t4('buffer_load_dwordx4 %s, v%d, s[%d:%d], s%d offen offset:%d%s' % (vr(RG[5 * j + f], 4), vOL + f // 4, S_P, S_P + 3, sPR + j - 1, 1024 * (f % 4), opt.p_ld_pol))
    if opt.sent:
        regs = [preg(j, f) + e for f in (0, 2, 4) for j in (1, 2, 3) for e in range(2 if f == 4 else 4)]
        t4('v_max_u32 v244, v%d, v%d' % (regs[0], regs[1]))
        for k in range(2, len(regs), 2): t4('v_max3_u32 v244, v244, v%d, v%d' % (regs[k], regs[k + 1]))
        t4('v_cmp_eq_u32 vcc, -1, v244\ns_cbranch_vccnz L_spin_s')
        blks.append(t4); t4 = Block('fin'); t4('L_fin:'); stamp(t4)
        sp = Block('spin_s')
        sp('L_spin_s:\ns_sub_u32 s41, s41, 1\ns_cmp_eq_u32 s41, 0\ns_cbranch_scc1 L_fin\ns_sleep 1\nbuffer_load_dword v244, v27, s[%d:%d], 0 offen sc1\ns_waitcnt vmcnt(0)' % (S_P, S_P + 3))
        sp('v_cmp_eq_u32 vcc, -1, v244\ns_cbranch_vccnz L_spin_s\ns_branch L_try')
        spins.append(sp)
    blks.append(t4)
    if opt.pbf: t4('s_mov_b32 s39, 0xffff0000')
    for f in range(5):
        a, b1, b2, b3 = RG[f], RG[5 + f], RG[10 + f], RG[15 + f]
        if opt.pbf:
            for j in (1, 2, 3):
                src = preg(j, f // 2 * 2) + 2 * (f % 2); tm = RG[5 * j + 1]
                t4('v_lshlrev_b32 v%d, 16, v%d\nv_and_b32 v%d, s39, v%d\nv_lshlrev_b32 v%d, 16, v%d\nv_and_b32 v%d, s39, v%d' % (tm, src, tm + 1, src, tm + 2, src + 1, tm + 3, src + 1))
            b1, b2, b3 = RG[6], RG[11], RG[16]
        for e in range(4): t4('v_add_f32 v%d, v%d, v%d\nv_add_f32 v%d, v%d, v%d' % (a + e, a + e, b1 + e, b2 + e, b2 + e, b3 + e))
        for e in range(4): t4('v_add_f32 v%d, v%d, v%d' % (a + e, a + e, b2 + e))
        t4('v_cvt_pk_bf16_f32 v%d, v%d, v%d\nv_cvt_pk_bf16_f32 v%d, v%d, v%d\ns_mov_b32 s38, %d' % (a, a, a + 1, a + 1, a + 2, a + 3, 32768 * f))
        t4('buffer_store_dwordx2 %s, v%d, s[%d:%d], s38 offen%s' % (vr(a, 2), vST, S_OUT, S_OUT + 3, opt.out_pol))
    if opt.stamps: t4('s_waitcnt vmcnt(0)')
    stamp(t4)
    if opt.twice: t4('s_add_u32 s63, s3, 0\ns_cmp_lt_u32 s%d, 100\ns_cbranch_scc1 L_again' % sTSN)
    t4('s_endpgm')
    for b in blks:
        if 'c' in opt.t2x: b.ins = [x for x in b.ins if not (x.op == 's_cbranch_scc1' and 'spin_o' in x.text)]
        if 'p' in opt.t2x: b.ins = [x for x in b.ins if not (x.op == 's_cbranch_scc1' and 'spin_p' in x.text)]
        if 'o' in opt.t2x: b.ins = [x for x in b.ins if not (x.cls == 'vld' and 's[16:19]' in x.text)]
        if 'w' in opt.t2x: b.ins = [x for x in b.ins if x.cls != 'dma']
        if 's' in opt.t2x: b.ins = [x for x in b.ins if x.tag not in ('O', 'Oa')]
    return t1, blks, spins

def k1_fallback():
    b = Block('fb'); T = vT
    b('L_fallback:')
    b('s_waitcnt vmcnt(0) lgkmcnt(0)\ns_nop 15\ns_barrier')
    b('v_and_b32 v1, 15, v%d\nv_lshrrev_b32 v2, 4, v%d\nv_lshlrev_b32 v2, 4, v2\nv_lshl_add_u32 v%d, v1, 8, v2' % (vLANE, vLANE, T + 10))
    for qs in range(5): b('v_mov_b32 v%d, 0xff800000' % (T + 2 * qs))
    b('s_mov_b32 s39, 0')
    lp = Block('fbl'); lp('L_fb_loop:')
    for k in range(4): lp('buffer_load_dwordx4 %s, v%d, s[%d:%d], s39 offen offset:%d' % (vr(vF + 4 * k, 4), T + 10, S_K, S_K + 3, 64 * k))
    lp('s_waitcnt vmcnt(0)')
    lp.extend(qk_mfmas(True)[:20])
    lp('s_nop 15')
    for qs in range(5):
        s = rS(0, qs); t = T + 2 * qs
        lp('v_max3_f32 v%d, v%d, v%d, v%d\nv_max3_f32 v%d, v%d, v%d, v%d' % (t, t, s, s + 1, t, t, s + 2, s + 3))
    lp('s_add_u32 s39, s39, 4096\ns_cmp_lt_u32 s39, 262144\ns_cbranch_scc1 L_fb_loop')
    e = Block('fbe')
    if opt.twice: e('L_again:\ns_waitcnt vmcnt(0) lgkmcnt(0)\ns_barrier\ns_mov_b32 s34, 0x7f800000\ns_mov_b32 s36, 0x3e000000')
    max_finish(e, T)
    e.extend(zero_acc())
    e('s_and_b32 s40, s%d, 1\ns_lshl_b32 s%d, s40, 12\ns_mov_b32 s%d, s%d' % (sW, sKO, sVO, sKO))
    for g in dma_kv('K', 0) + dma_kv('K', 1) + dma_kv('K', 2) + dma_kv('K', 3) + dma_kv('V', 0) + dma_kv('V', 1) + dma_kv('V', 2): e.extend(g)
    e('s_mov_b32 s%d, 1\ns_waitcnt vmcnt(0)\ns_barrier' % sEX)
    G = Gaps(qk0_mfmas(), 8)
    for f in range(8): G.put(max(5 * (f - 3) - 1, -1), *kread0(f))
    e.extend(G.emit())
    e('s_nop 7\ns_branch L_start')
    return b, lp, e

def kernel_text(kname, blocks, traces, vgpr, accum, sgpr=102):
    d = {b.name: b for b in blocks}
    assert len(d) == len(blocks)
    place_waits(d, traces)
    n = place_nops(d, traces)
    print(kname[:12], 'nop states inserted', n, 'instructions', {b.name: len(b.ins) for b in blocks}, file=sys.stderr)
    t = '.text\n.globl %s\n.p2align 8\n.type %s,@function\n%s:\n' % (kname, kname, kname) + render(blocks)
    t += '.section .rodata,"a"\n.p2align 6\n.amdhsa_kernel %s\n' % kname
    t += '  .amdhsa_next_free_vgpr %d\n  .amdhsa_next_free_sgpr %d\n  .amdhsa_accum_offset %d\n' % (vgpr, sgpr, accum)
    t += '  .amdhsa_group_segment_fixed_size 0\n  .amdhsa_kernarg_size 104\n  .amdhsa_user_sgpr_count 2\n'
    t += '  .amdhsa_user_sgpr_kernarg_segment_ptr 1\n  .amdhsa_system_sgpr_workgroup_id_x 1\n.end_amdhsa_kernel\n'
    return t

def gen_k1(kname):
    setup = k1_setup(); qp = k1_qproj()
    pro, mx, p2, lp, pe = k1_attention(); t1, tb, spins = k1_tail()
    end = Block('end'); end('L_k1_end:\ns_endpgm')
    blocks = [setup, qp, pro, mx, p2] + lp + pe[:3] + [t1] + tb + spins + [pe[3]]
    loop = ['per0', 'per1', 'per2', 'per3'] * 3 + ['pe0', 'pe1', 'pe2', 'tail1']
    head = ['setup', 'qproj', 'pro', 'pro_max', 'pro2']
    rest = [b.name for b in tb]
    slow = []
    for b in tb:
        if b.name.startswith('t_'): slow += ['spin_' + b.name[2:]] * 2
        if b.name == 'tail4': slow += ['spin_p'] * 2
        if b.name == 'fin': slow += ['spin_s', 'spin_s', 'try', 'spin_s']
        slow.append(b.name)
    traces = [head + loop + rest, head + loop[:-2] + ['spin_d', 'spin_d', 'pe2', 'tail1'] + slow]
    if opt.fallback:
        fb, fbl, fbe = k1_fallback(); blocks += [fb, fbl, fbe]
        traces.append(head + loop + ['fb', 'fbl', 'fbl', 'fbe', 'pro', 'pro2'] + loop + rest)
    blocks.append(end)
    return kernel_text(kname, blocks, traces, 512, 256)

def gen_diag(kname):
    a, b_, gain = [int(x, 0) for x in opt.diag.split()]
    b = Block('dg')
    b('''s_cmp_ge_u32 s2, 1
         s_cbranch_scc1 L_dg_end
         s_load_dwordx2 s[4:5], s[0:1], 96
         s_waitcnt lgkmcnt(0)
         s_add_u32 s4, s4, 0x3000000
         s_addc_u32 s5, s5, 0
         s_load_dword s6, s[4:5], %d
         s_load_dword s7, s[4:5], %d
         s_memrealtime s[8:9]
         s_waitcnt lgkmcnt(0)
         s_sub_u32 s6, s7, s6
         s_min_u32 s6, s6, 20000
         s_mul_i32 s6, s6, %d
         L_dg:
         s_memrealtime s[10:11]
         s_waitcnt lgkmcnt(0)
         s_sub_u32 s10, s10, s8
         s_cmp_lt_u32 s10, s6
         s_cbranch_scc1 L_dg
         L_dg_end:
         s_endpgm''' % (a, b_, gain))
    return kernel_text(kname, [b], [['dg']], 8, 8, 16)

def main(out, only=None):
    t = open('cdna_kernels/%s.s.ref' % NAME).read().split('; Override launch')[0]
    k1 = NAME + '_kernel'
    if opt.diag.strip():
        t += '; @launch kernel=%s grid=(256,1,1) block=(256,1,1) lds=163840\n; @launch kernel=diag_kernel grid=(1,1,1) block=(64,1,1) lds=0\n' % k1
    else: t += '; @launch grid=(256,1,1) block=(256,1,1) lds=163840\n'
    t += '''; Generated by a script (software-pipelined instruction placement, s_waitcnt counts and wait states are computed).
;     reaches 2^30 (or is not finite) the workgroup computes the true maximum over all keys and redoes both heads.
'''
    t += '.amdgcn_target "amdgcn-amd-amdhsa--gfx950"\n'
    t += gen_k1(k1)
    if opt.diag.strip(): t += gen_diag('diag_kernel')
    open(out, 'w').write(t)

if __name__ == '__main__':
    out = sys.argv[1]; only = None
    for a in sys.argv[2:]:
        k, v = a.split('=')
        if k == 'only': only = int(v)
        elif isinstance(getattr(opt, k), bool): setattr(opt, k, v == '1')
        elif isinstance(getattr(opt, k), int): setattr(opt, k, int(v))
        else: setattr(opt, k, (' ' + v.replace('+', ' ')) if v else '')
    main(out, only)
```

```python
import sys, math, struct
from asmlib import *

NAME = "concat_heads__gqa_block_cached__gqa_block_cached__near_ridge"
def f32bits(x): return struct.unpack('<I', struct.pack('<f', x))[0]
MF = 'v_mfma_f32_16x16x32_bf16'
def vr(b, n=1, k='v'): return '%s%d' % (k, b) if n == 1 else '%s[%d:%d]' % (k, b, b + n - 1)
def ar(b, n=1): return vr(b, n, 'a')

class Opt:
    kv_pol = ' nt'; w_pol = ''; x_pol = ''; o_st_pol = ' sc1'; o_ld_pol = ' sc1'; wo_pol = ''; out_pol = ''; p_st_pol = ' sc1'; p_ld_pol = ' sc1'
    stamps = False; fallback = True; ones = True; nokv = False; nox = False; noxq = False; qstamps = False
    dsp = 10; kvend = 13; burst = ' 10:2 12:2'; k2stag = 1; qevery = 4; warm = 336; qf = ' '; pk = False; upfront = 3; diag = ' '; spin = 524288; chain = True; asym = 1; rel = 1; ramp = 1; t2ch = True; onesadj = True; cape = ' 4x4x4x4x'; capl = ' 44444444'; twice = False; z0pos = 3; stcap = 0; pecap = False; fs = False; t2x = ' '; early = False; sent = False; chkb = 168; pleadb = 30; qcl = 1; fbk = 0; fbn = 4; fbpos = 56; sb = 1; t2mode = 0; o3n = 10; pstamps = False; tstamps = False; thre = 0; thro = 4; thrn = 2; ptouch = 0; touchc = 8; flagpos = 12; pollpos = 105; chkpos = 140; chk2 = 270; chk3 = 390; plead = 40; pbf = True; pk2 = True
opt = Opt()

S_K, S_V, S_X, S_WQ, S_O = 4, 8, 12, 16, 20
sW, sW4, sKO, sVO, sCNT, sEX, sC0, sB, sBR, sH1, sTH, sM0B = 24, 25, 26, 27, 28, 29, 30, 31, 32, 33, 34, 35
sSC = 36
S_TS, sTSA, sTSN = 52, 56, 58
sWO, sXO = 76, 92
STASH = {'K2': 32, 'V2': 224, 'K3': 240}
vSW = 2
vKA, vVA, vKD, vVD, vLANE, vL = 8, 12, 20, 24, 26, 59
vF = 32; NB = 4
vWA, vXA, vWD, vXD = 48, 52, 54, 58
vACC = 64
def rQ(k, qs): return vACC + 8 * (5 * k + qs)
def hole(i): return vACC + 8 * i + 4
def rS(kt, qs): return hole(5 * kt + qs)
def rP(par, qs): return hole(10 + 5 * par + qs)
vN = 224
vT = 48; vT2 = 244
def aO(dt, qs): return 4 * (5 * dt + qs)
aL, aONE, aFA, aFB = 160, 180, 184, 200
KS0, VS0 = 0, 65536
WBUF = [139264, 32768, 49152]
XBUF = [98304, 118784]
sJP, sKQ = 3, 59
S_F, S_D, S_P, S_OUT, S_WO, S_OR = 44, 48, 64, 68, 12, 16
sOK, sWOO, sORO, sPW, sPR, sD01, sD12, sMK1, sMK2 = 76, 80, 88, 96, 99, 30, 33, 42, 43
MK1 = [None, 42, 60, 61]
POFF, FOFF, TSOFF = 0x1500000, 0x2a00000, 0x3000000
vOD, vOL, vXW, vXR, vYW, vYR, vST, vFA, vPA, vDA = 54, 58, 62, 63, 48, 49, 50, 51, 28, 30
vRA = list(range(246, 254))
WOB = [131072, 0, 65536, 32768, 98304]
BADB = 98304 + 10240
BS = [[vACC + 8 * i for i in range(10)], [vACC + 8 * i for i in range(10, 20)], [hole(i) for i in range(10)]]
SPIN = 1 << 15

def stamp_ins():
    if not opt.stamps: return []
    return [I('s_memrealtime s[%d:%d]' % (sTSA, sTSA + 1)), I('s_memtime s[62:63]'), I('s_waitcnt lgkmcnt(0)'), I('v_mov_b32 v5, s%d' % sTSA), I('v_mov_b32 v6, s%d' % sTSN), I('v_mov_b32 v7, s62'),
            I('buffer_store_dword v5, v6, s[%d:%d], 0 offen' % (S_TS, S_TS + 3), 'stamp'), I('buffer_store_dword v7, v6, s[%d:%d], 0 offen offset:256' % (S_TS, S_TS + 3), 'stamp'), I('s_add_u32 s%d, s%d, 4' % (sTSN, sTSN))]
def stamp(b): b.extend(stamp_ins())
def stamp_setup(b, ws, w, off=TSOFF, first=False):
    if not opt.stamps: return
    b('''s_lshl_b32 s39, s2, 9
         s_add_u32 s39, s39, {off}
         s_add_u32 s{T}, s{ws}, s39
         s_addc_u32 s{T1}, s{ws1}, 0
         s_cmp_eq_u32 s{w}, 0
         s_cselect_b32 s{T2}, 512, 0
         s_mov_b32 s{T3}, 0x20000
         s_mov_b32 s{N}, 0'''.format(T=S_TS, T1=S_TS + 1, T2=S_TS + 2, T3=S_TS + 3, w=w, ws=ws, ws1=ws + 1, N=sTSN, off=off))
    if first:
        b('v_mov_b32 v5, s100\nv_mov_b32 v6, 0\nv_mov_b32 v7, s42')
        b('buffer_store_dword v5, v6, s[%d:%d], 0 offen\nbuffer_store_dword v7, v6, s[%d:%d], 0 offen offset:256\ns_mov_b32 s%d, 4' % (S_TS, S_TS + 3, S_TS, S_TS + 3, sTSN))
    stamp(b)

def srd(b, d, lo, off, num):
    b('s_add_u32 s%d, s%d, %s\ns_addc_u32 s%d, s%d, 0\n%s\ns_mov_b32 s%d, 0x20000' % (d, lo, off, d + 1, lo + 1,
      ('s_mov_b32 s%d, %d' % (d + 2, num)) if isinstance(num, int) else num % (d + 2), d + 3))

def off_calc(X):
    return ['s_add_u32 s38, s%d, %d' % (sC0, X), 's_and_b32 s38, s38, 7', 's_lshl_b32 s%d, s38, 19' % (sWO + 2 * X),
            's_add_u32 s%d, s%d, 262144' % (sWO + 2 * X + 1, sWO + 2 * X)]
def dma_wq(c):
    G = [[I('s_add_u32 m0, s%d, %d' % (sW4, WBUF[c % 3]))]]
    for n in range(4):
        G.append([I('buffer_load_dwordx4 v%d, s[%d:%d], s%d offen offset:%d%s lds' % (vWD + n, S_WQ, S_WQ + 3, sWO + c, 1024 * n, opt.w_pol), 'wq%d' % c)])
    return G
def dma_x(X):
    G = [[I('s_lshr_b32 s39, s%d, 12' % (sWO + 2 * X))], [I('s_add_u32 m0, s%d, %d' % (sW4, XBUF[X % 2]))]]
    for n in range(4):
        G.append([I('buffer_load_dwordx4 v%d, s[%d:%d], s%d offen offset:%d%s lds' % (vXD + n, S_X, S_X + 3, 39, 1024 * n, opt.x_pol), 'x%d' % X)])
    G.append([I('s_add_u32 m0, s%d, %d' % (sM0B, XBUF[X % 2] + 16384))])
    G.append([I('buffer_load_dwordx4 v%d, s[%d:%d], s%d offen%s lds' % (vXD + 4, S_X, S_X + 3, 39, opt.x_pol), 'x%d' % X)])
    return G
def stash_load(which, slot):
    K = which == 'K'; srd_, so = (S_K, sKO) if K else (S_V, sVO); r = STASH['%s%d' % (which, slot)]
    G = [[I('buffer_load_dwordx4 %s, v%d, s[%d:%d], s%d offen offset:%d%s' % (vr(r + 4 * m, 4), vKD + m if K else vVD + m % 2, srd_, srd_ + 3, so, 1024 * m, opt.kv_pol), 'st')] for m in range(4)]
    G[3].append(I('s_add_u32 s%d, s%d, 8192' % (so, so)))
    return G
def stash_flush(which, slot):
    r = STASH['%s%d' % (which, slot)]; base = (KS0 if which == 'K' else VS0) + 16384 * slot
    return [I('ds_write_b128 v%d, %s offset:%d' % (vSW + base // 65536, vr(r + 4 * m, 4), base % 65536 + 1024 * m)) for m in range(4)]
def dma_kv(which, slot, m0each=False):
    G = []; K = which == 'K'
    srd_, so = (S_K, sKO) if K else (S_V, sVO)
    for m in range(4):
        g = []
        if m == 0 or m0each: g.append(I('s_add_u32 m0, s%d, %d' % (sW4, (KS0 if K else VS0) + 16384 * slot)))
        g.append(I('buffer_load_dwordx4 v%d, s[%d:%d], s%d offen offset:%d%s lds' % (vKD + m if K else vVD + m % 2, srd_, srd_ + 3, so, 1024 * m, opt.kv_pol), '%s%d' % (which, slot)))
        if m == 3: g.append(I('s_add_u32 s%d, s%d, 8192' % (so, so)))
        G.append(g)
    return G

def dma_wo(c):
    buf = WOB[c % 5]; G = []
    for m in range(8):
        g = []
        if m == 4: g.append(I('s_add_u32 s2, s%d, 16384' % (sWOO + c)))
        if m % 4 == 0: g.append(I('s_add_u32 m0, s%d, %d' % (sM0B, buf + 4096 * (m // 4))))
        g.append(I('buffer_load_dwordx4 v%d, s[%d:%d], s%d offen offset:%d%s lds' % (vOD + m % 4, S_WO, S_WO + 3, sWOO + c if m < 4 else 2, 1024 * (m % 4), opt.wo_pol), 'wo%d' % c))
        G.append(g)
    return G

def peer(p):
    if not opt.asym: return 's_add_u32 s38, s%d, %d\ns_and_b32 s38, s38, 3' % (sJP, p)
    if p == 0: return 's_mov_b32 s38, s%d' % sJP
    return 's_cmp_lt_u32 s%d, 2\ns_cselect_b32 s38, %d, %d\ns_xor_b32 s38, s38, s%d' % (sJP, p, p % 3 + 1, sJP)

def page_touch():
    return ['v_mov_b32 v1, 0'] + ['buffer_load_dword v%d, v1, s[%d:%d], 0 offen' % (253 + i, d, d + 3) for i, d in enumerate((S_O, S_P, S_OUT))]
def tail_setup_a(b):
    b('s_mov_b32 s72, s92\ns_mov_b32 s73, s93')
    b('''s_and_b32 s98, s{w}, 1
         s_lshr_b32 s99, s{w}, 1
         s_lshl_b32 s96, s{B}, 1
         s_add_u32 s96, s96, s98
         s_mul_i32 s96, s96, 163840
         s_lshl_b32 s97, s{BR}, 2
         s_add_u32 s97, s97, s{JP}
         s_lshl_b32 s97, s97, 1
         s_add_u32 s97, s97, s99
         s_lshl_b32 s97, s97, 2
         s_add_u32 s97, s97, s{KQ}
         s_lshl_b32 s97, s97, 5
         s_add_u32 s96, s96, s97'''.format(w=sW, B=sB, BR=sBR, JP=sJP, KQ=sKQ))
    srd(b, S_OUT, 94, 's96', 's_sub_u32 s%d, 2621440, s96')
    for p in (1, 2, 3): b(peer(p) + '\ns_lshl_b32 s38, s38, 2\ns_add_u32 s38, s38, s98\ns_lshl_b32 s%d, 5, s38' % MK1[p])
    b('s_lshl_b32 s38, 0x1111, s%d\ns_lshl_b32 s39, s%d, 2\ns_lshl_b32 s39, 15, s39\ns_andn2_b32 s%d, s38, s39' % (sW, sKQ, sMK2))
    b('s_lshl_b32 s38, s%d, 3\ns_add_u32 s38, s38, s%d\ns_lshl_b32 s38, s38, 2\ns_add_u32 s38, s38, s%d\ns_mul_i32 s38, s38, 327680\ns_mul_i32 s39, s%d, 5120\ns_add_u32 s38, s38, s39\ns_add_u32 s38, s38, 0x%x' % (sBR, sB, sJP, sW, POFF))
    srd(b, S_P, 74, 's38', 's_sub_u32 s%d, 327680, s39')
    for j in (1, 2, 3):
        b('s_xor_b32 s38, s%d, %d\ns_lshl_b32 s39, s38, 2\ns_add_u32 s39, s39, s%d\ns_mul_i32 s%d, s39, 20480' % (sKQ, j, sKQ, sPW + j - 1))
        b('s_lshl_b32 s39, s%d, 2\ns_add_u32 s39, s39, s38\ns_mul_i32 s%d, s39, 20480' % (sKQ, sPR + j - 1))

def wo_srd(b, S_WO=S_WO):
    b('s_lshl_b32 s38, s%d, 20\ns_lshl_b32 s39, s%d, 8\ns_add_u32 s38, s38, s39' % (sKQ, sJP))
    srd(b, S_WO, 72, 's38', 's_sub_u32 s%d, 4194304, s38')
def wo_touch(b, S_WO=S_WO):
    b('s_lshl_b32 s38, s%d, 2\ns_add_u32 s38, s38, s%d\ns_lshl_b32 s38, s38, 15\nv_lshrrev_b32 v4, 1, v%d\nv_and_b32 v5, 1, v%d\nv_lshlrev_b32 v5, 7, v5\nv_lshl_add_u32 v4, v4, 10, v5' % (sB, sW, vLANE, vLANE))
    b('buffer_load_dword v31, v4, s[%d:%d], s38 offen' % (S_WO, S_WO + 3))
def tail_setup_b(b):
    L = vLANE
    b('s_and_b32 s78, s%d, 1\ns_lshr_b32 s79, s%d, 1' % (sW, sW))
    b('''s_lshl_b32 s38, s{BR}, 3
         s_add_u32 s38, s38, s{B}
         s_lshl_b32 s38, s38, 2
         s_add_u32 s38, s38, s{KQ}
         s_mul_i32 s38, s38, 327680
         s_mul_i32 s39, s79, 20480
         s_mul_i32 s40, s78, 5120
         s_add_u32 s39, s39, s40
         s_add_u32 s38, s38, s39'''.format(B=sB, BR=sBR, KQ=sKQ))
    srd(b, S_OR, 74, 's38', 's_sub_u32 s%d, 327680, s39')
    b('s_lshl_b32 s40, s%d, 15\ns_lshl_b32 s%d, s%d, 13' % (sW, sM0B, sW))
    for c in range(8):
        b(peer(c // 2) + '\ns_lshl_b32 s38, s38, 1\ns_add_u32 s38, s38, %d\n%s\ns_mul_i32 s%d, s39, 40960\ns_lshl_b32 s38, s38, 17\ns_add_u32 s%d, s38, s40' % (c & 1, 's_xor_b32 s39, s38, s79' if opt.early else 's_mov_b32 s39, s38', sORO + c, sWOO + c))
    if opt.sent:
        b('v_mov_b32 v27, 0x100000')
        for j in range(3): b('s_add_u32 s38, s%d, 2048\nv_writelane_b32 v27, s38, %d' % (sPR + j, j))
    b('v_lshrrev_b32 v4, 4, v%d\nv_and_b32 v5, 15, v%d' % (L, L))
    for m in range(4):
        b('v_add_u32 v6, %d, v4\nv_lshlrev_b32 v6, 1, v6\nv_xor_b32 v6, v6, v5\nv_lshlrev_b32 v6, 4, v6\nv_lshl_add_u32 v6, v4, 10, v6\nv_add_u32 v%d, %d, v6' % (4 * (m % 2), vOD + m, 3072 * m))
    b('v_lshlrev_b32 v%d, 4, v%d' % (vOL, L))
    for i, o in ((1, 4096), (2, 10240), (3, 14336)): b('v_add_u32 v%d, %d, v%d' % (vOL + i, o, vOL))
    b('v_lshlrev_b32 v5, 11, v5\nv_lshl_add_u32 v%d, v4, 3, v5' % vST)
    for (reg, wsel, step, lo, hi) in ((vXW, sW, 10240, 32768, 98304), (vXR, 41, 10240, 32768, 98304), (vYW, sW, 20480, 98304, 32768), (vYR, 41, 20480, 98304, 32768)):
        b('s_xor_b32 s41, s%d, 2\ns_mul_i32 s38, s%d, %d\ns_add_u32 s38, s38, %d\ns_cmp_eq_u32 s%d, 3\ns_cselect_b32 s38, %d, s38\nv_add_u32 v%d, s38, v%d' % (sW, wsel, step, lo, wsel, hi, reg, vOL))
    b('''v_lshrrev_b32 v6, 4, v{L}
          v_bfe_u32 v4, v{L}, 2, 2
          v_lshl_add_u32 v6, v6, 2, v4
          v_and_b32 v4, 3, v{L}
          v_lshlrev_b32 v4, 3, v4
          v_lshl_add_u32 v4, v6, 8, v4
          s_lshr_b32 s38, s{w}, 1
          s_lshl_b32 s39, s38, 2
          s_add_u32 s39, s39, s{KQ}
          s_mul_i32 s38, s38, {x}
          s_add_u32 s38, s38, 131072
          v_add_u32 v4, s38, v4
          v_and_b32 v6, 7, v6
          v_xor_b32 v6, s39, v6'''.format(L=L, w=sW, KQ=sKQ, x=(16384 - 131072) & 0xffffffff))
    for n in range(8): b('v_xor_b32 v5, %d, v6\nv_lshl_add_u32 v%d, v5, 5, v4' % (n, vRA[n]))
    b('s_lshl_b32 s38, s%d, 2\ns_add_u32 s38, s38, s%d\ns_lshl_b32 s38, s38, 2\nv_readfirstlane_b32 s39, v%d\ns_add_u32 s38, s38, s39\nv_lshl_add_u32 v%d, v%d, 16, s38' % (sJP, sW, vPA, vFA, L))
    b('s_lshl_b32 s38, s%d, 2\ns_add_u32 s38, s38, s%d\ns_lshl_b32 s38, s38, 2\nv_readfirstlane_b32 s39, v%d\ns_add_u32 s38, s38, s39\nv_lshl_add_u32 v%d, v%d, 16, s38' % (sKQ, sW, vPA + 1, vFA + 1, L))
    for kl in range(4): b('s_lshl_b32 s38, s79, 1\ns_xor_b32 s38, s38, %d\ns_mul_i32 s%d, s38, 10240' % (kl, 38 if kl == 3 else sOK + kl))
    b('s_mov_b32 s%d, s38' % (sOK + 3))

def k1_setup():
    b = Block('setup'); L = vLANE; T = vT2
    b('s_cmp_ge_u32 s2, 256\ns_cbranch_scc1 L_k1_end')
    if opt.stamps: b('s_memrealtime s[100:101]\ns_memtime s[42:43]')
    if opt.warm: b('s_getpc_b64 s[96:97]')
    b('''s_and_b32 s38, s2, 7
         s_lshr_b32 s{BR}, s38, 2
         s_and_b32 s{KQ}, s38, 3
         s_lshr_b32 s39, s2, 3
         s_and_b32 s{B}, s39, 7
         s_lshr_b32 s{JP}, s39, 3
         s_lshl_b32 s38, s{KQ}, 3
         s_lshl_b32 s40, s{JP}, 1
         s_add_u32 s{H}, s38, s40
         s_add_u32 s{C}, s{B}, s40
         s_and_b32 s{C}, s{C}, 7
         s_mul_i32 s38, s{BR}, 40
         s_add_u32 s60, s0, s38
         s_addc_u32 s61, s1, 0
         s_load_dwordx8 s[64:71], s[60:61], 0
         s_load_dwordx4 s[72:75], s[0:1], 88
         s_load_dwordx2 s[92:93], s[60:61], 32
         s_load_dwordx2 s[94:95], s[0:1], 80
         v_lshrrev_b32 v1, 6, v0
         v_and_b32 v{L}, 63, v0
         v_readfirstlane_b32 s{W}, v1
         v_and_b32 v1, 31, v{L}
         v_lshrrev_b32 v2, 5, v{L}
         v_lshrrev_b32 v3, 4, v{L}
         v_and_b32 v4, 15, v{L}
         s_lshl_b32 s{W4}, s{W}, 12
         s_lshl_b32 s{M}, s{W}, 10'''.format(BR=sBR, B=sB, H=sH1, C=sC0, L=L, W=sW, W4=sW4, M=sM0B, KQ=sKQ, JP=sJP))
    b('s_lshl_b32 s39, s%d, 16' % sW)
    for n in range(4):
        b('''v_add_u32 v{a}, {n2}, v2
             v_and_b32 v{c}, 3, v{a}
             v_lshlrev_b32 v{c}, 2, v{c}
             v_xor_b32 v{c}, v{c}, v1
             v_lshlrev_b32 v{c}, 4, v{c}
             v_lshl_add_u32 v{c}, v{a}, 13, v{c}
             v_add_u32 v{c}, s39, v{c}
             v_subrev_u32 v{d}, {sub}, v{c}'''.format(a=T, c=T + 1, n2=2 * n, d=vWD + n, sub=1024 * n))
    b('s_lshl_b32 s39, s%d, 15\nv_lshrrev_b32 v%d, 3, v%d\nv_and_b32 v%d, 7, v%d\ns_lshl_b32 s38, s%d, 2' % (sW, T + 3, L, T + 4, L, sW))
    for n in range(4):
        b('''v_add_u32 v{a}, {n4}, v3
             v_and_b32 v{a}, 7, v{a}
             v_xor_b32 v{a}, v{a}, v{p}
             v_lshlrev_b32 v{a}, 4, v{a}
             v_lshl_add_u32 v{a}, v{r}, 10, v{a}
             v_add_u32 v{a}, {add}, v{a}
             v_add_u32 v{d}, s39, v{a}'''.format(a=T, n4=4 * n, p=T + 4, r=T + 3, add=7 * 1024 * n, d=vXD + n))
    b('''s_lshl_b32 s39, s{w}, 13
         s_add_u32 s39, s39, 131072
         v_add_u32 v{a}, s38, v3
         v_and_b32 v{a}, 7, v{a}
         v_xor_b32 v{a}, v{a}, v{p}
         v_lshlrev_b32 v{a}, 4, v{a}
         v_lshl_add_u32 v{a}, v{r}, 10, v{a}
         v_add_u32 v{d}, s39, v{a}'''.format(w=sW, a=T, p=T + 4, r=T + 3, d=vXD + 4))
    b('s_waitcnt lgkmcnt(0)')
    b('s_mul_i32 s39, s%d, 163840' % sB); srd(b, S_X, 64, 's39', 163840)
    b('s_lshl_b32 s39, s%d, 8' % sH1); srd(b, S_WQ, 70, 's39', 's_sub_u32 s%d, 4194304, s39')
    if opt.nox: b('s_mov_b32 s%d, 0' % (S_X + 2))
    if opt.noxq: b('s_mov_b32 s%d, 0' % (S_WQ + 2))
    b.extend(off_calc(0) + off_calc(1))
    for g in dma_wq(0) + dma_x(0) + (dma_wq(1) + dma_x(1) + dma_wq(2) if opt.upfront == 2 else []): b.extend(g)
    if opt.warm:
        n8 = (opt.warm + 7) // 8
        b('s_lshr_b32 s38, s2, 3\ns_and_b32 s38, s38, 7\ns_mul_i32 s38, s38, %d\nv_min_u32 v6, %d, v%d\nv_add_u32 v6, s38, v6\nv_lshlrev_b32 v6, 7, v6\nv_mov_b32 v7, s97' % (n8, n8 - 1, L))
        b('v_add_co_u32 v6, vcc, s96, v6\nv_addc_co_u32 v7, vcc, 0, v7, vcc\nglobal_load_dword v63, v[6:7], off')
    for X in range(2, 8): b.extend(off_calc(X))
    b('s_lshr_b32 s41, s%d, 1\ns_lshl_b32 s38, s%d, 5\ns_add_u32 s38, s38, s%d\ns_add_u32 s38, s38, s41\ns_lshl_b32 s39, s38, 18' % (sW, sB, sH1))
    srd(b, S_K, 66, 's39', 0 if opt.nokv else 262144); srd(b, S_V, 68, 's39', 0 if opt.nokv else 262144)
    b('s_lshl_b32 s39, s%d, 8\ns_add_u32 s38, s38, s39\ns_mul_i32 s39, s38, 40960\ns_and_b32 s40, s%d, 1\ns_mul_i32 s38, s40, 5120\ns_add_u32 s39, s39, s38' % (sBR, sW))
    srd(b, S_O, 74, 's39', 's_sub_u32 s%d, 40960, s38')
    b('s_lshl_b32 s%d, s40, 12\ns_mov_b32 s%d, s%d' % (sKO, sVO, sKO))
    stamp_setup(b, 74, sW, first=True)
    srd(b, S_F, 74, '0x%x' % FOFF, 32768); srd(b, S_D, 72, '0', 256)
    b('''s_and_b32 s38, s2, 7
         s_lshl_b32 s38, s38, 3
         s_add_u32 s38, s38, s{B}
         s_lshl_b32 s39, s{BR}, 3
         s_add_u32 s39, s39, s{B}
         s_lshl_b32 s39, s39, 2
         s_add_u32 s39, s39, s{JP}
         v_and_b32 v5, 1, v{L}
         v_mov_b32 v6, s38
         v_mov_b32 v7, s39
         v_cmp_eq_u32 vcc, 0, v5
         v_cndmask_b32 v6, v7, v6, vcc
         v_lshlrev_b32 v{DA}, 2, v6
         s_lshl_b32 s38, s38, 7
         s_lshl_b32 s39, s39, 7
         s_add_u32 s39, s39, 8192
         v_lshl_add_u32 v{PA}, v4, 2, s38
         v_lshl_add_u32 v{PB}, v4, 2, s39
         s_lshl_b32 s41, s{JP}, 4
         s_add_u32 s38, s38, s41
         s_lshl_b32 s41, s{KQ}, 4
         s_add_u32 s39, s39, s41
         v_mov_b32 v6, s38
         v_mov_b32 v7, s39
         v_cndmask_b32 v6, v7, v6, vcc
         v_lshrrev_b32 v7, 1, v0
         v_lshl_add_u32 v6, v7, 16, v6
         v_mov_b32 v{T}, 0
         v_mov_b32 v{T1}, 0
         v_mov_b32 v{T2}, 0
         v_mov_b32 v{T3}, 0'''.format(B=sB, BR=sBR, JP=sJP, KQ=sKQ, L=L, DA=vDA, PA=vPA, PB=vPA + 1, T=T, T1=T + 1, T2=T + 2, T3=T + 3))
    b('buffer_store_dwordx4 %s, v6, s[%d:%d], 0 offen sc1' % (vr(T, 4), S_F, S_F + 3), 'fz')
    if opt.fbk:
        b('''v_readfirstlane_b32 s38, v{PA}
             v_readfirstlane_b32 s39, v{PB}
             v_and_b32 v5, 3, v{L}
             v_lshlrev_b32 v5, 2, v5
             v_and_b32 v6, 4, v{L}
             v_cmp_eq_u32 vcc, 0, v6
             s_add_u32 s38, s38, 16384
             s_add_u32 s39, s39, 16384
             v_add_u32 v6, s38, v5
             v_add_u32 v7, s39, v5
             v_cndmask_b32 v249, v7, v6, vcc
             s_lshl_b32 s41, s{JP}, 2
             s_add_u32 s38, s38, s41
             s_lshl_b32 s41, s{KQ}, 2
             s_add_u32 s39, s39, s41
             v_and_b32 v5, 1, v{L}
             v_cmp_eq_u32 vcc, 0, v5
             v_mov_b32 v6, s38
             v_mov_b32 v7, s39
             v_cndmask_b32 v6, v7, v6, vcc
             v_lshrrev_b32 v7, 1, v0
             v_lshl_add_u32 v250, v7, 16, v6
             v_mov_b32 v251, 0'''.format(PA=vPA, PB=vPA + 1, L=L, JP=sJP, KQ=sKQ))
        b('buffer_store_dword v251, v250, s[%d:%d], 0 offen sc1' % (S_F, S_F + 3))
    tail_setup_a(b)
    if opt.ptouch == 1: b.extend(page_touch())
    b('s_lshr_b32 s41, s%d, 1' % sW)
    b('v_bfe_u32 v5, v%d, 2, 2\nv_and_b32 v6, 3, v%d' % (L, L))
    for m in range(4):
        b('v_add_u32 v%d, %d, v3\nv_xor_b32 v%d, v%d, v4\nv_lshlrev_b32 v%d, 4, v%d\nv_lshl_add_u32 v%d, v3, 8, v%d' % (T, 4 * m, T, T, T, T, vKD + m, T))
    for m in range(2):
        b('v_add_u32 v%d, %d, v3\nv_lshlrev_b32 v%d, 1, v%d\nv_xor_b32 v%d, v%d, v4\nv_lshlrev_b32 v%d, 4, v%d\nv_lshl_add_u32 v%d, v3, 8, v%d' % (T, 4 * m, T, T, T, T, T, T, vVD + m, T))
    b('s_lshl_b32 s41, s41, 13\nv_xor_b32 v%d, v3, v4\nv_lshlrev_b32 v%d, 8, v4\nv_add_u32 v%d, s41, v%d' % (T, T + 1, T + 1, T + 1))
    for k in range(4): b('v_xor_b32 v%d, %d, v%d\nv_lshl_add_u32 v%d, v%d, 4, v%d' % (T + 2, 4 * k, T, vKA + k, T + 2, T + 1))
    b('''v_lshl_add_u32 v{a}, v3, 2, v5
         v_lshlrev_b32 v{c}, 8, v{a}
         v_lshl_add_u32 v{c}, v6, 3, v{c}
         s_add_u32 s41, s41, {vs}
         v_add_u32 v{c}, s41, v{c}
         v_and_b32 v{a}, 7, v{a}
         s_and_b32 s38, s{w}, 2
         s_lshl_b32 s38, s38, 1
         v_xor_b32 v{a}, s38, v{a}'''.format(a=T, c=T + 1, vs=VS0, w=sW))
    for dt in range(8): b('v_xor_b32 v%d, %d, v%d\nv_lshl_add_u32 v%d, v%d, 5, v%d' % (T + 2, dt, T, vVA + dt, T + 2, T + 1))
    b('''v_lshl_add_u32 v{c}, v3, 3, v5
         v_lshlrev_b32 v{c}, 9, v{c}
         s_lshr_b32 s41, s{w}, 1
         s_lshl_b32 s41, s41, 8
         v_add_u32 v{c}, s41, v{c}
         v_lshl_add_u32 v{a}, v5, 2, v6'''.format(a=T, c=T + 1, w=sW))
    for k in range(4): b('v_xor_b32 v%d, %d, v%d\nv_lshl_add_u32 v%d, v%d, 4, v%d' % (T + 2, 4 * k, T, vWA + k, T + 2, T + 1))
    b('''v_lshrrev_b32 v{a}, 1, v4
         v_xor_b32 v{a}, v{a}, v3
         s_mul_i32 s41, s40, 10240
         s_add_u32 s41, s41, {xb}
         v_lshlrev_b32 v{c}, 7, v4
         v_add_u32 v{c}, s41, v{c}'''.format(a=T, c=T + 1, xb=XBUF[0]))
    for k in range(2): b('v_xor_b32 v%d, %d, v%d\nv_lshl_add_u32 v%d, v%d, 4, v%d' % (T + 2, 4 * k, T, vXA + k, T + 2, T + 1))
    c = math.log2(math.e) / math.sqrt(128.0)
    b('s_mov_b32 s%d, 0x%08x\ns_mov_b32 s%d, 0x%08x\ns_mov_b32 s%d, 0x%08x\ns_mov_b32 s%d, 0' % (sSC, f32bits(c), sSC + 1, f32bits(c), sTH, f32bits(2.0 ** 30), sEX))
    b('v_lshl_add_u32 v%d, v%d, 4, s%d\nv_add_u32 v%d, 0x10000, v%d' % (vSW, L, sW4, vSW + 1, vSW))
    b('v_mov_b32 v%d, 0x3f803f80' % T)
    for i in range(4): b('v_accvgpr_write_b32 a%d, v%d' % (aONE + i, T))
    if opt.upfront != 2:
        for g in dma_wq(1) + (dma_x(1) if opt.upfront == 3 else []): b.extend(g)
    if opt.touchc < 0: wo_srd(b, 92); wo_touch(b, 92)
    return b

def zero_acc():
    return ['v_accvgpr_write_b32 a%d, 0' % i for i in range(180 if opt.ones else 160)] + ([] if opt.ones else ['v_mov_b32 v%d, 0' % (vL + i) for i in range(5)])

def conv(k):
    L = []
    for qs in range(5):
        d = rQ(k, qs)
        if opt.fs: pass
        elif opt.pk: L += ['v_pk_mul_f32 %s, %s, s[%d:%d]' % (vr(d + 2 * i, 2), vr(d + 2 * i, 2), sSC, sSC + 1) for i in range(4)]
        else: L += ['v_mul_f32 v%d, s%d, v%d' % (d + i, sSC, d + i) for i in range(8)]
        L += ['v_cvt_pk_bf16_f32 v%d, v%d, v%d' % (d + i, d + 2 * i, d + 2 * i + 1) for i in range(4)]
    return L
def qk0_mfmas():
    bb = []
    for f in range(8):
        k, kt = divmod(f, 2)
        for qs in range(5):
            s = rS(kt, qs)
            bb.append(I('%s %s, %s, %s, %s' % (MF, vr(s, 4), vr(vF + 4 * (f % NB), 4), vr(rQ(k, qs), 4), '0' if k == 0 else vr(s, 4))))
    return bb
def kread0(f):
    k, kt = divmod(f, 2)
    return [I('ds_read_b128 %s, v%d offset:%d' % (vr(vF + 4 * (f % NB), 4), vKA + k, kt * 4096), 'g%d' % f)]

def k1_qproj():
    b = Block('qproj')
    bb = []
    for c in range(16):
        for t in range(8):
            for qs in range(5):
                d = rQ(t // 2, qs) + 4 * (t % 2)
                bb.append(I('%s %s, %s, %s, %s' % (MF, vr(d, 4), ar(aFA + 4 * (t % 4), 4), ar(aFB + 20 * (c % 2) + 4 * qs, 4), '0' if c == 0 else vr(d, 4))))
    G = Gaps(bb, 8)
    def ybar(c): return -1 if c == 0 else 40 * c - 14
    cur = [0] * 4
    def wq_read(c, t):
        k, bsel = divmod(t, 2)
        want = 0 if WBUF[c % 3] < 65536 else 131072
        off = WBUF[c % 3] - want + 8 * bsel
        r = aFA + 4 * (t % 4)
        L = []
        if bsel == 0 and want != cur[k]:
            L.append(I('v_add_u32 v%d, 0x%x, v%d' % (vWA + k, (want - cur[k]) & 0xffffffff, vWA + k))); cur[k] = want
        return L, [I('ds_read_b64_tr_b16 %s, v%d offset:%d' % (ar(r, 2), vWA + k, off), 'fa'), I('ds_read_b64_tr_b16 %s, v%d offset:%d' % (ar(r + 2, 2), vWA + k, off + 2048), 'fa%d_%d' % (c, t))]
    kvq = dma_kv('K', 0, True) + dma_kv('K', 1, True) + dma_kv('V', 0, True) + dma_kv('V', 1, True) + stash_load('K', 2) + stash_load('V', 2) + stash_load('K', 3)
    nkv = opt.kvend
    bursts = dict(tuple(int(v) for v in x.split(':')) for x in opt.burst.split())
    nst = sum(bursts.values()) - 4
    assert 0 <= nst <= 3
    if bursts: kvq = dma_kv('K', 0) + dma_kv('K', 1) + dma_kv('V', 0) + dma_kv('V', 1) + kvq[16:]
    for c in range(16):
        y = ybar(c); base = 40 * c
        G.put(y, I('@waitlgkm *'), I('@waitvm wq%d' % c + (',x%d' % (c // 2) if c % 2 == 0 else '') + (',K0' if c == 15 else '')), I('s_barrier'))
        if opt.qstamps and c % opt.qevery == 0: G.put(y, *stamp_ins())
        if c == 3:
            G.put(y + 9, I('v_and_b32 v4, 1, v%d' % vLANE)); G.put(y + 10, I('v_lshlrev_b32 v4, 4, v4')); G.put(y + 11, I('v_lshlrev_b32 v4, v4, 1'))
            G.put(y + 12, I('v_lshrrev_b32 v1, 1, v0')); G.put(y + 13, I('v_lshl_add_u32 v1, v1, 16, v%d' % vDA))
            G.put(y + 14, I('@waitvm fz'), I('buffer_atomic_add v4, v1, s[%d:%d], 0 offen sc1' % (S_D, S_D + 3)))
        xr = [I('ds_read_b128 %s, v%d offset:%d' % (ar(aFB + 20 * (c % 2) + 4 * qs, 4), vXA + c % 2, (c // 2 % 2) * 20480 + 2048 * qs), 'xr%d_%d' % (c, qs)) for qs in range(5)]
        for t in range(8):
            g = max(base + 5 * (t - 3) - 1, y + 1 if c else y)
            pre, rd = wq_read(c, t)
            G.put(max(g - 1, -1), *pre); G.put(g, *rd)
            if t == 0:
                for qs in range(5): G.put(y + ((2, 4, 5, 6, 7)[qs] if c else 0), xr[qs])
                G.put(base - 1, I('@waitlgkm fa%d_1,xr%d_4' % (c, c)))
            if t % 2 == 0 and t: G.put(base + 5 * t - 1, I('@waitlgkm fa%d_%d' % (c, t + 1)))
        d = []
        if c == 0 and opt.upfront != 2: d += (dma_x(1) if opt.upfront == 1 else []) + dma_wq(2)
        if 1 <= c < 14: d += dma_wq(c + 2)
        if c % 2 == 0 and 2 <= c < 14: d += dma_x(c // 2 + 1)
        if not bursts and c < nkv: d += kvq[(c * len(kvq)) // nkv:((c + 1) * len(kvq)) // nkv]
        flat = [x for g in d for x in g]
        if c in bursts:
            if flat: G.spread2(flat, y + 1 if c else 0, y + 14)
            flat = [x for g in kvq[:4 * bursts[c]] for x in g]; kvq = kvq[4 * bursts[c]:]
            G.spread2(flat, y + 15, y + 15 + len(flat) // 2); flat = []
        late = lambda w, sl, k: stash_flush(w, sl) if nst > k else [x for g in dma_kv(w, sl) for x in g]
        if c == 14: flat += late('K', 2, 0) + late('V', 2, 1)
        if c == 15: flat += late('K', 3, 2)
        if opt.ptouch > 1 and c == opt.ptouch: flat += [I(x) for x in page_touch()]
        if c == opt.touchc:
            tb = Block('x'); q = 92 if c < 13 else S_WO; wo_srd(tb, q); wo_touch(tb, q); flat += tb.ins
        if flat: G.spread2(flat, y + 1 if c else 0, 25 if c == 0 else y + (39 if c < 14 else 20), opt.qcl)
    G.spread2(zero_acc(), 20, 580)
    for f in range(3): G.put(624 + 5 * f, *kread0(f))
    G.spread2(conv(0), 613, 626); G.spread2(conv(1), 627, 639)
    em = G.emit()
    if 'd' in opt.qf: em = [x for x in em if x.cls not in ('dma', 'vld') and 'm0' not in x.w]
    if 'b' in opt.qf: em = [x for x in em if x.op != 's_barrier']
    if 'h' in opt.qf:
        k = [0]
        def keep(x):
            if x.op != 's_barrier': return True
            k[0] += 1; return k[0] % 2 == 1
        em = [x for x in em if keep(x)]
    if 'w' in opt.qf: em = [x for x in em if not (x.op == '@waitlgkm' and x.wait == ['*'])]
    if 'r' in opt.qf: em = [x for x in em if x.cls != 'dsr']
    if 'z' in opt.qf: em = [x for x in em if x.op != 'v_accvgpr_write_b32']
    if 'x' in opt.qf: em = [x for x in em if x.op != 'ds_read_b128']
    if 't' in opt.qf: em = [x for x in em if x.op != 'ds_read_b64_tr_b16']
    b.extend(em)
    print('qproj est cycles', G.est_cycles(16), file=sys.stderr)
    G = Gaps(qk0_mfmas(), 8)
    for f in range(3, 8): G.put(5 * (f - 3) - 1, *kread0(f))
    G.spread2(conv(2), -1, 17); G.spread2(conv(3), 18, 27)
    b.extend(G.emit())
    stamp(b)
    return b

XBAR = 66
aK = 184
def kread(f, slot):
    kt, k = divmod(f, 4)
    return [I('ds_read_b128 %s, v%d offset:%d' % (ar(aK + 4 * f, 4) if opt.chain else vr(vF + 4 * (f % NB), 4), vKA + k, slot * 16384 + kt * 4096), 'f%d' % f)]
def vread(f, slot):
    dt = f - 8; r = vF + 4 * (f % NB)
    return [I('ds_read_b64_tr_b16 %s, v%d offset:%d' % (vr(r, 2), vVA + dt, slot * 16384), 'fx'),
            I('ds_read_b64_tr_b16 %s, v%d offset:%d' % (vr(r + 2, 2), vVA + dt, slot * 16384 + 4096), 'f%d' % f)]
def neg_adds(kt): return ['v_add_f32 v%d, v%d, v%d' % (rS(kt, qs) + i, rS(kt, qs) + i, vN + 4 * qs) for qs in range(5) for i in range(4)]
def sm_chain(par):
    C = []; pend = []
    for kt in range(2):
        for qs in range(5):
            s = rS(kt, qs); p = rP(par, qs) + 2 * kt
            e = ['v_exp_f32 v%d, v%d' % (s + i, s + i) for i in range(4)]
            a = ['v_add_f32 v%d, v%d, v%d' % (vL + qs, vL + qs, s + i) for i in range(4)]
            cv = ['v_cvt_pk_bf16_f32 v%d, v%d, v%d' % (p + i, s + 2 * i, s + 2 * i + 1) for i in range(2)]
            if opt.fs: C += [('v_mul_f32 v%d, s%d, v%d' % (s + i, sSC, s + i), kt, qs) for i in range(4)]
            C.append((e[0], kt, qs)); C += pend
            if opt.ones: C += [(x, kt, qs) for x in (e[1], e[2], cv[0], e[3])]; pend = [(cv[1], kt, qs)]
            else: C += [(x, kt, qs) for x in (e[1], a[0], e[2], a[1], cv[0], e[3], a[2])]; pend = [(a[3], kt, qs), (cv[1], kt, qs)]
    return C + pend
def qk_mfmas(first):
    bb = []
    if opt.chain and not first:
        for kt in range(2):
            for qs in range(5):
                s = rS(kt, qs)
                for k in range(4): bb.append(I('%s %s, %s, %s, %s' % (MF, vr(s, 4), ar(aK + 16 * kt + 4 * k, 4), vr(rQ(k, qs), 4), vr(vN + 4 * qs, 4) if k == 0 else vr(s, 4))))
        return bb
    for f in range(8):
        kt, k = divmod(f, 4)
        for qs in range(5):
            s = rS(kt, qs)
            c = ('0' if first else vr(vN + 4 * qs, 4)) if k == 0 else vr(s, 4)
            bb.append(I('%s %s, %s, %s, %s' % (MF, vr(s, 4), vr(vF + 4 * (f % NB), 4), vr(rQ(k, qs), 4), c)))
    return bb
def pv_mfmas(par):
    bb = []
    for f in range(8, 16):
        for qs in range(5):
            bb.append(I('%s %s, %s, %s, %s' % (MF, ar(aO(f - 8, qs), 4), vr(vF + 4 * (f % NB), 4), vr(rP(par, qs), 4), ar(aO(f - 8, qs), 4))))
    return bb
def ones_mfmas(par): return [I('%s %s, %s, %s, %s' % (MF, ar(aL + 4 * qs, 4), ar(aONE, 4), vr(rP(par, qs), 4), ar(aL + 4 * qs, 4))) for qs in range(5)]
SPLIT = [None]; SMPOS = [None]
def period(j, peel=False):
    pu, pn = j % 2, (j + 1) % 2
    ks, vs = (j + 1) % 4, j
    lg = qk_mfmas(False) + pv_mfmas(pu)
    bb = []; ix = {-1: -1}
    on = ones_mfmas(pu) if opt.ones else []
    for i, x in enumerate(lg):
        bb.append(x); ix[i] = len(bb) - 1
        if on and i in ((40, 46, 52, 58, 64) if opt.onesadj else (44, 49, 54, 59, 64)): bb.append(on.pop(0))
    G = Gaps(bb, 8); N = len(bb)
    for f in range(4 if opt.chain else 3, 16):
        if opt.chain and f < 8: G.put(3 * (f - 4), *kread(f, ks)); continue
        G.put(ix[5 * (f - 3) - 1] if f > 3 else 0, *(kread(f, ks) if f < 8 else vread(f, vs)))
        if f % 2 == 0 and f < 15: G.put(ix[5 * f] - 1, I('@waitlgkm f%d' % (f + 1)))
    if opt.chain: G.put(19, I('@waitlgkm f7'))
    G.put(ix[XBAR], I('@waitlgkm *'), I('@waitvm K%d,V%d' % ((j + 2) % 4, (j + 1) % 4)), I('s_barrier'))
    if peel and j == 2:
        for f, g in ((8, XBAR + 1), (9, 69), (10, 74)): G.put(ix[g], *vread(f, 3))
    else:
        for f, g in ((0, XBAR + 1), (1, 69), (2, 71), (3, 73)) if opt.chain else ((0, XBAR + 1), (1, 69), (2, 74)): G.put(ix[g], *kread(f, (j + 2) % 4))
        G.put(N - 1, I('@waitlgkm f3' if opt.chain else '@waitlgkm f1'))
    if not opt.chain: G.put(9, I('@waitlgkm f3'))
    slots = [2, 7, 12, 17, 22, 27, 32, 37, 42, 47, 52, 57, 62] if opt.dsp == 5 else [2 + opt.dsp * m for m in range(8)]
    dl = dma_kv('K', j) + dma_kv('V', (j + 3) % 4)
    if peel: dl = dma_kv('V', 3) if j == 0 else dma_wo(j)
    extra = []
    if peel and opt.sb == 1 and j < 2:
        tb = Block('x'); tail_setup_b(tb)
        cut = [k for k, x in enumerate(tb.ins) if x.w == {'v%d' % (vOD + 3)}][0] + 1
        extra = tb.ins[:cut] if j == 0 else tb.ins[cut:]
    if peel and j == 0: extra = extra + [x for g in dma_wo(0) for x in g]
    if not peel and opt.sb == 2 and j < 3:
        tb = Block('x'); tail_setup_b(tb); n3 = len(tb.ins) // 3
        cuts = [0] + [next(k for k in range(n3 * q, len(tb.ins)) if tb.ins[k].op not in ('s_addc_u32', 's_cselect_b32')) for q in (1, 2)] + [len(tb.ins)]
        inloop = tb.ins[cuts[j]:cuts[j + 1]]
    for m, g in enumerate(dl):
        p = ix[slots[m]]
        if not peel:
            ce, cl = opt.cape.strip()[m], opt.capl.strip()[m]
            if ce != 'x': G.put(p - 1, I('@raw s_waitcnt vmcnt(%s)' % ce))
            if cl != ce: G.put(p - 1, I('s_cbranch_vccnz L_t%d_%d' % (j, m)), I('@raw s_waitcnt vmcnt(%s)' % cl), I('L_t%d_%d:' % (j, m)))
        if len(g) == 2 and g[0].cls == 'salu': G.put(p - 1, g[0]); G.put(p, g[1])
        elif len(g) == 2: G.put(p, g[0]); G.put(p + 1, g[1])
        elif len(g) == 3: G.put(p - 2, g[0]); G.put(p - 1, g[1]); G.put(p, g[2])
        else: G.put(p, *g)
    if j == 3:
        G.put(ix[71], I('s_sub_u32 s%d, s%d, 1' % (sCNT, sCNT))); G.put(ix[77], I('s_cmp_lg_u32 s%d, 0' % sCNT))
        if opt.ramp: G.put(ix[74], I('s_cmp_le_u32 s%d, s37' % sCNT), I('s_cselect_b64 vcc, 1, vcc'))
        elif opt.rel: G.put(ix[74], I('s_cmp_le_u32 s%d, %d' % (sCNT, opt.rel)), I('s_cselect_b64 vcc, 1, vcc'))
    if opt.fbk and not peel and (j + 1) % opt.fbk == 0:
        G.put(ix[74], I('s_add_u32 s37, s37, 1')); G.put(ix[75], I('v_mov_b32 v251, s37'))
        G.put(ix[76], I('buffer_store_dword v251, v250, s[%d:%d], 0 offen sc1' % (S_F, S_F + 3)))
        G.put(ix[76], I('buffer_load_dword v252, v249, s[%d:%d], 0 offen sc1' % (S_F, S_F + 3)))
    if opt.fbk and not peel and j % opt.fbk == 0:
        G.put(ix[opt.fbpos], I('v_cmp_le_u32 vcc, s37, v252'))
        G.put(ix[opt.fbpos + 1], I('s_and_b32 vcc_lo, vcc_lo, s36'), I('s_bcnt1_i32_b32 vcc_lo, vcc_lo'))
        G.put(ix[opt.fbpos + 2], I('s_cmp_ge_u32 vcc_lo, %d' % opt.fbn), I('s_cselect_b64 vcc, 1, 0'))
    if peel and j == 0: G.put(ix[40], I('buffer_load_dword v244, v%d, s[%d:%d], 0 offen sc1' % (vDA, S_D, S_D + 3)))
    chn, chu = sm_chain(pn), sm_chain(pu)
    if SMPOS[0] is None:
        s0 = 18; gaps = list(range(s0, N)) + list(range(0, s0))
        gaps += list(range(s0, 24))
        lo = [ix[15 + 20 * kt + qs] + 4 - s0 for (_, kt, qs) in chn]
        hi = [(N - s0 + qs - 1) if kt == 0 else (N - s0 + 19 + qs) for (_, kt, qs) in chn]
        if opt.chain:
            s0 = 7; gaps = list(range(s0, N)) + list(range(0, s0))
            lo = [ix[20 * kt + 4 * qs + 3] + 4 - s0 for (_, kt, qs) in chn]
            hi = [N - s0 + 20 * kt + 4 * qs - 1 for (_, kt, qs) in chn]
        hi = [min(h, N - 1) for h in hi]
        _, pos = G.dp([x for x, _, _ in chn], gaps, lo, hi)
        SMPOS[0] = [gaps[p] for p in pos]; SPLIT[0] = sum(p < N - s0 for p in pos)
    for k, (x, _, _) in enumerate(chu):
        if k >= SPLIT[0]: G.put(SMPOS[0][k], I(x))
    for k, (x, _, _) in enumerate(chn):
        if k < SPLIT[0]: G.put(SMPOS[0][k], I(x))
    if not peel and opt.sb == 2 and j < 3: G.spread2(inloop, 0, N - 1)
    if extra and j == 0: G.spread2(extra, ix[slots[3]] + 2, N - 1)
    if extra and j == 1: G.spread2(extra, ix[slots[4]] + 1, N - 1)
    if j == 3 or opt.pstamps: G.put(ix[XBAR], *stamp_ins())
    return G

def k1_attention():
    P = [period(j) for j in range(4)]
    print('period est cycles', [g.est_cycles(16) for g in P], [P[0].used(i) for i in range(len(P[0].bb))], file=sys.stderr)
    pro = Block('pro'); T = vT
    pro('L_start:')
    pro('@waitlgkm *\n@waitvm K1,V0\ns_barrier')
    for f in range(4 if opt.chain else 3): pro.extend(kread(f, 1))
    if opt.fallback: pro('s_cmp_lg_u32 s%d, 0\ns_cbranch_scc1 L_nomax' % sEX)
    mx = Block('pro_max')
    for qs in range(5):
        a, c = rS(0, qs), rS(1, qs); t = T + 2 * qs
        mx('v_max3_f32 v%d, v%d, v%d, v%d\nv_max3_f32 v%d, v%d, v%d, v%d' % (t, a, a + 1, a + 2, t + 1, c, c + 1, c + 2))
        mx('v_max3_f32 v%d, v%d, v%d, v%d\nv_max_f32 v%d, v%d, v%d' % (t, t, a + 3, c + 3, t, t, t + 1))
    max_finish(mx, T)
    p2 = Block('pro2'); p2('L_nomax:')
    p2.extend(neg_adds(0) + neg_adds(1) + [x for x, _, _ in sm_chain(0)[:SPLIT[0]]])
    if opt.touchc > 15 or opt.touchc < 13: wo_srd(p2)
    if opt.touchc > 15: wo_touch(p2)
    if opt.sb == 0: tail_setup_b(p2)
    p2('@waitlgkm f3' if opt.chain else '@waitlgkm f1')
    p2('s_mov_b32 s%d, 7' % sCNT)
    if opt.asym and not opt.ramp: p2('s_cmp_lt_u32 s%d, 2\ns_cselect_b64 vcc, 1, 0' % sJP)
    elif opt.ramp: p2('s_mov_b64 vcc, 0\ns_cmp_lt_u32 s%d, 2\ns_cselect_b32 s37, %d, %d' % (sJP, 7 - opt.ramp, opt.rel))
    elif opt.rel: p2('s_mov_b64 vcc, 0')
    if opt.thre and not opt.fbk and not opt.asym: p2('s_getreg_b32 s38, hwreg(HW_REG_XCC_ID, 0, 1)\ns_mov_b32 vcc_lo, s38\ns_mov_b32 vcc_hi, 0')
    if opt.fbk:
        p2('s_lshl_b32 s38, 1, s%d\ns_lshl_b32 s39, 16, s%d\ns_or_b32 s38, s38, s39\ns_andn2_b32 s36, 0xff, s38\ns_mov_b32 s37, 0\ns_mov_b64 vcc, 0\nv_mov_b32 v252, 0' % (sJP, sKQ))
    stamp(p2)
    lp = [Block('per%d' % j) for j in range(4)]
    lp[0]('L_loop:')
    for j in range(4): lp[j].extend(P[j].emit())
    lp[3]('s_cbranch_scc1 L_loop')
    pe = [Block('pe%d' % j) for j in range(4)]
    pe[0].extend(period(0, True).emit()); pe[1].extend(period(1, True).emit())
    pe[1]('v_readlane_b32 s38, v244, 0\nv_readlane_b32 s39, v244, 1\ns_and_b32 s38, s38, 0xffff\ns_lshr_b32 s39, s39, 16\ns_min_u32 s38, s38, s39\ns_cmp_lt_u32 s38, 4\ns_cbranch_scc1 L_spin_d')
    pe[2]('L_back_d:')
    pe[2].extend(period(2, True).emit())
    sp = pe[3]; sp.name = 'spin_d'
    sp('L_spin_d:\ns_mov_b32 s40, %d\nL_spin_d2:\ns_sleep 4\nbuffer_load_dword v244, v%d, s[%d:%d], 0 offen sc1\ns_waitcnt vmcnt(0)' % (opt.spin, vDA, S_D, S_D + 3))
    sp('v_readlane_b32 s38, v244, 0\nv_readlane_b32 s39, v244, 1\ns_and_b32 s38, s38, 0xffff\ns_lshr_b32 s39, s39, 16\ns_min_u32 s38, s38, s39\ns_cmp_ge_u32 s38, 4\ns_cbranch_scc1 L_back_d')
    sp('s_sub_u32 s40, s40, 1\ns_cmp_lg_u32 s40, 0\ns_cbranch_scc1 L_spin_d2\ns_branch L_back_d')
    return pro, mx, p2, lp, pe

def max_finish(b, T):
    for qs in range(5): b('v_mov_b32 v%d, v%d' % (T + 2 * qs + 1, T + 2 * qs))
    for qs in range(5): b('v_permlane16_swap_b32 v%d, v%d' % (T + 2 * qs, T + 2 * qs + 1))
    for qs in range(5): b('v_max_f32 v%d, v%d, v%d' % (T + 2 * qs, T + 2 * qs, T + 2 * qs + 1))
    for qs in range(5): b('v_mov_b32 v%d, v%d' % (T + 2 * qs + 1, T + 2 * qs))
    for qs in range(5): b('v_permlane32_swap_b32 v%d, v%d' % (T + 2 * qs, T + 2 * qs + 1))
    for qs in range(5): b('v_max_f32 v%d, v%d, v%d' % (T + 2 * qs, T + 2 * qs, T + 2 * qs + 1))
    for qs in range(5):
        for i in range(4): b('v_sub_f32 v%d, 0, v%d' % (vN + 4 * qs + i, T + 2 * qs))

def poll_test(reg, mask, thr=1): return ['v_cmp_le_u32 vcc, %d, v%d' % (thr, reg), 's_and_b32 s38, vcc_lo, s%d' % mask, 's_cmp_lg_u32 s38, s%d' % mask]
def spin_block(name, addr, mask, thr=1):
    sp = Block('spin_' + name)
    sp('L_spin_%s:\ns_mov_b32 s40, %d\nL_spin_%s2:\ns_sleep 1\nbuffer_load_dword v244, v%d, s[%d:%d], 0 offen sc1\ns_waitcnt vmcnt(0)' % (name, opt.spin, name, addr, S_F, S_F + 3))
    sp.extend(poll_test(244, mask, thr))
    sp('s_cbranch_scc0 L_back_%s\ns_sub_u32 s40, s40, 1\ns_cmp_lg_u32 s40, 0\ns_cbranch_scc1 L_spin_%s2\ns_branch L_back_%s' % (name, name, name))
    return sp

def k1_tail():
    t1 = Block('tail1'); t2 = Block('tail2'); L = vLANE
    t1.extend([x for x, _, _ in sm_chain(1)[SPLIT[0]:]])
    t1.extend(ones_mfmas(1))
    G = Gaps(pv_mfmas(1), 8)
    for f in range(11, 16): G.put(5 * (f - 11) + 4, *vread(f, 3))
    R = vN + 9
    rc = ['v_accvgpr_read_b32 v%d, a%d' % (R + qs, aL + 4 * qs) for qs in range(5)]
    rc += ['v_add_f32 v%d, v%d, v%d' % (R + 5, R, R + 1), 'v_add_f32 v%d, v%d, v%d' % (R + 6, R + 2, R + 3), 'v_add_f32 v%d, v%d, v%d' % (R + 5, R + 5, R + 4), 'v_add_f32 v%d, v%d, v%d' % (R + 5, R + 5, R + 6)]
    if opt.fallback:
        rc += ['v_cmp_ngt_f32 vcc, s%d, v%d' % (sTH, R + 5), 's_lshl_b32 s39, s%d, 2' % sW, 's_add_u32 s39, s39, %d' % BADB, 'v_mov_b32 v%d, s39' % (R + 6),
               's_cmp_lg_u64 vcc, 0', 's_cselect_b32 s38, 1, 0', 'v_mov_b32 v%d, s38' % (R + 5), I('ds_write_b32 v%d, v%d' % (R + 6, R + 5), 'bad'), 'v_mov_b32 v%d, %d' % (R + 6, BADB)]
    rc += ['v_rcp_f32 v%d, v%d' % (vN + 2 * i, R + i) for i in range(5)]
    G.spread2(rc, 2, 11)
    if opt.fallback:
        G.put(12, I('@waitlgkm bad'), I('@waitvm wo0,wo1'), I('s_barrier'), I('ds_read_b128 %s, v%d' % (vr(R + 7, 4), R + 6)))
        G.put(16, I('v_or_b32 v%d, v%d, v%d' % (R + 5, R + 7, R + 8)), I('v_or3_b32 v%d, v%d, v%d, v%d' % (R + 5, R + 5, R + 9, R + 10)))
        G.put(17, I('v_readfirstlane_b32 s38, v%d' % (R + 5)))
        G.put(18, I('s_cmp_lg_u32 s%d, 0' % sEX), I('s_cselect_b32 s38, 0, s38'), I('s_cmp_lg_u32 s38, 0'), I('s_cbranch_scc1 L_fallback'))
    def out(kl):
        Lst = []
        for qs in range(5):
            idx = 5 * kl + qs
            d = BS[0][idx] if kl < 2 else hole(idx % 10); e = hole(10 + idx % 5)
            src = [aO(2 * kl, qs) + i for i in range(4)] + [aO(2 * kl + 1, qs) + i for i in range(4)]
            tmp = [d + i for i in range(4)] + [e + i for i in range(4)]
            Lst += ['v_accvgpr_read_b32 v%d, a%d' % (tmp[i], src[i]) for i in range(8)]
            if kl and opt.pk2: Lst += ['v_pk_mul_f32 %s, %s, %s op_sel_hi:[1,0]' % (vr(tmp[i], 2), vr(tmp[i], 2), vr(vN + 2 * qs, 2)) for i in range(0, 8, 2)]
            else: Lst += ['v_mul_f32 v%d, v%d, v%d' % (tmp[i], vN + 2 * qs, tmp[i]) for i in range(8)]
            Lst += ['v_cvt_pk_bf16_f32 v%d, v%d, v%d' % (d + i, tmp[2 * i], tmp[2 * i + 1]) for i in range(4)]
            if opt.stcap: Lst += [I('@raw s_waitcnt vmcnt(%d)' % opt.stcap)]
            Lst += [I('buffer_store_dwordx4 %s, v%d, s[%d:%d], s%d offen offset:%d%s' % (vr(d, 4), vOL + qs // 4, S_O, S_O + 3, sOK + kl, 1024 * (qs % 4), opt.o_st_pol), 'Oa' if kl < 2 else 'O')]
            if kl >= 2: Lst += [I('ds_write_b128 v%d, %s offset:%d' % (vXW, vr(d, 4), 1024 * (idx - 10)))]
        return Lst
    sDL = [30, 33, 28, 36, 37, 34, 29]
    b0 = [WOB[c % 5] for c in range(8)]; b1 = [WOB[(c ^ 1) % 5] if c < 2 or opt.early else WOB[c % 5] for c in range(8)]
    sc = ['s_lshr_b32 s41, s%d, 1' % sW]
    for c in range(7):
        d0, d1 = b0[c + 1] - b0[c], b1[c + 1] - b1[c]
        sc += ['s_mul_i32 s%d, s41, 0x%x' % (sDL[c], (d1 - d0) & 0xffffffff), 's_add_u32 s%d, s%d, 0x%x' % (sDL[c], sDL[c], d0 & 0xffffffff)] if d0 != d1 else ['s_mov_b32 s%d, 0x%x' % (sDL[c], d0 & 0xffffffff)]
    if opt.early: sc += ['s_lshl_b32 s26, 0x1111, s%d' % sW, 's_and_b32 s26, s26, s%d' % MK1[1], 's_xor_b32 s27, s26, s%d' % MK1[1]]
    G.spread2(out(0) + sc, 19, 39)
    t1.extend(G.emit(-1, 18)); t2.extend(G.emit(19, 39))
    for kl in (2, 3, 1) if not opt.early else (1, 2, 3):
        mark = len(t2.ins) + 40; t2.extend(out(kl))
    t2('v_mov_b32 v245, 1\nv_mov_b32 v254, 2')
    if opt.early: t2('@waitvm Oa\nbuffer_store_dword v245, v%d, s[%d:%d], 0 offen sc1' % (vFA, S_F, S_F + 3))
    stamp(t2)
    bb = []; frs = []; first = []; last = []
    AR = [32, 36, 40, 44, 8, 12] if opt.t2ch else [32, 36, 40, 44]; NA = len(AR)
    def mf(c, kp, n, f, fi):
        a = 4 * (5 * n + f)
        bb.append(I('%s %s, %s, %s, %s' % (MF, ar(a, 4), vr(AR[fi % NA], 4), vr(BS[c % 3][5 * kp + f], 4), '0' if (c, kp) == (0, 0) else ar(a, 4))))
    for c in range(8):
        if opt.t2ch:
            for n in range(8) if c < 7 else (4, 5, 6, 7, 1, 2, 3, 0):
                fi = len(frs); frs += [(c, 0, n), (c, 1, n)]; first += [len(bb), len(bb) + 1]
                for f in range(5): mf(c, 0, n, f, fi); mf(c, 1, n, f, fi + 1)
                last += [len(bb) - 2, len(bb) - 1]
            continue
        seq = [(kp, n) for kp in range(2) for n in range(8)]
        if c == 7: seq = [(kp, n) for kp in range(2) for n in (4, 5, 6, 7)] + [(kp, n) for kp in range(2) for n in (1, 2, 3, 0)]
        for kp, n in seq:
            fi = len(frs); frs.append((c, kp, n)); first.append(len(bb))
            for f in range(5): mf(c, kp, n, f, fi)
            last.append(len(bb) - 1)
    G = Gaps(bb, 8)
    bars = {0: 'wo0,wo1,wo2', 2: '', 3: 'wo3,wo4', 5: 'wo5,wo6', 7: 'wo7'}
    if opt.early: bars = {0: 'wo0,wo1,wo2', 2: 'wo3', 4: 'wo4,wo5', 6: 'wo6,wo7'}
    if opt.fallback: bars[0] = 'wo2'
    for c, tg in bars.items():
        G.put(80 * c - 14 if c or not opt.fallback else opt.z0pos, *([I('@waitlgkm *')] + ([I('@waitvm ' + tg)] if tg else []) + [I('s_barrier')]))
    for fi, (c, kp, n) in enumerate(frs):
        g = max(last[fi - NA] if fi >= NA else -1, first[fi] - (18 if opt.t2ch else 16), -1)
        if c in bars and c: g = max(g, 80 * c - 13 + (fi % 2 if opt.t2ch else 0))
        r = AR[fi % NA]
        G.put(g, I('ds_read_b64_tr_b16 %s, v%d offset:%d' % (vr(r, 2), vRA[n], kp * 8192), 'wx'), I('ds_read_b64_tr_b16 %s, v%d offset:%d' % (vr(r + 2, 2), vRA[n], kp * 8192 + 4096), 'w%d' % fi))
        if kp == 1 and c < 7:
            G.put(g + 1, I('v_add_u32 v%d, s%d, v%d' % (vRA[n], sDL[c], vRA[n])))
        if fi % 2 == 0 and fi: G.put(first[fi] - 1, I('@waitlgkm w%d' % (fi + 1)))
    z0 = opt.z0pos + 1 if opt.fallback else 0
    for i in range(10): G.put(z0 + i // 2 + (i >= 8), I('ds_read_b128 %s, v%d offset:%d' % (vr(BS[1][i], 4), vXR, 1024 * i), 'xr'))
    G.put(opt.flagpos, I('@waitvm O,Oa'), I('buffer_store_dword v254, v%d, s[%d:%d], 0 offen sc1' % (vFA, S_F, S_F + 3)))
    G.put(z0 + 13, I('@waitlgkm xr'), I('s_barrier'))
    flat = lambda d: [x for g in d for x in g]
    def oload(c):
        return [I('buffer_load_dwordx4 %s, v%d, s[%d:%d], s%d offen offset:%d%s' % (vr(BS[c % 3][5 * kp + f], 4), vOL + 2 * kp + f // 4, S_OR, S_OR + 3, sORO + c, 1024 * (f % 4), opt.o_ld_pol)) for kp in range(2) for f in range(5)]
    G.spread2(flat(dma_wo(3) + dma_wo(4)), z0 + 15, z0 + 62)
    ck = opt.chkpos
    checks = [('o1', opt.pollpos, ck, 26 if opt.early else MK1[1], 1 if opt.early else 2)]
    if opt.early: checks.append(('ob', opt.chkb - opt.pleadb, opt.chkb, 27, 2))
    checks += [('o2', opt.chk2 - opt.plead, opt.chk2, MK1[2], 2), ('o3', opt.chk3 - opt.plead, opt.chk3, MK1[3], 2)]
    for name, pp, cp, mk, thr in checks:
        G.put(pp, I('buffer_load_dword v244, v%d, s[%d:%d], 0 offen sc1' % (vPA, S_F, S_F + 3)))
        G.put(cp, *[I(x) for x in poll_test(244, mk, thr) + ['s_cbranch_scc1 L_spin_' + name]])
    def even(lst, lo, hi):
        mem = [x for x in lst if x.cls in ('dma', 'vld')]; k = 0; pend = []
        for x in lst:
            if x.cls in ('dma', 'vld'):
                g = lo + (k * (hi - lo)) // max(len(mem) - 1, 1); k += 1
                for j, y in enumerate(pend): G.put(g - len(pend) + j, y)
                G.put(g, x); pend = []
            else: pend.append(x)
    c2, c3 = opt.chk2, opt.chk3
    G.spread2(oload(2), ck + 1, ck + 8)
    if opt.early:
        even(oload(3), opt.chkb + 1, opt.chkb + 24); even(flat(dma_wo(5)), opt.chkb + 29, c2 - 3)
        even(oload(4), c2 + 1, c2 + 36); even(flat(dma_wo(6)), c2 + 41, c2 + 66)
        even(oload(5), c2 + 70, c3 - 3); even(flat(dma_wo(7)), c3 + 3, c3 + 32); even(oload(6), c3 + 36, c3 + 70)
        even(oload(7), max(c3 + 74, 401), c3 + 115)
    else:
        even(oload(3), ck + 14, c2 - 42); even(flat(dma_wo(5)), max(c2 - 38, 150), c2 - 3)
        even(oload(4), c2 + 1, c2 + 40); even(flat(dma_wo(6)), c2 + 45, c3 - 48)
        even(oload(5), c3 - 44, c3 - 3); even(oload(6), c3 + 1, c3 + 42)
        even(flat(dma_wo(7)), c3 + 47, c3 + 80); even(oload(7), max(c3 + 84, 401), c3 + 125)
    if opt.sent:
        G.spread2(['v_mov_b32 v%d, -1' % (vN + i) for i in range(4)], 63, 66)
        G.spread2([I('buffer_store_dwordx4 %s, v%d, s[%d:%d], s%d offen offset:%d sc1' % (vr(vN, 4), vOL, S_P, S_P + 3, sPW + j, 1024 * k), 'pf') for j in range(3) for k in range(3)], 67, 88)
        G.put(300, I('@waitvm pf'), I('buffer_store_dword v245, v%d, s[%d:%d], 0 offen sc1' % (vFA + 1, S_F, S_F + 3)))
        G.put(575, I('buffer_load_dword v244, v%d, s[%d:%d], 0 offen sc1' % (vPA + 1, S_F, S_F + 3)))
    RG = BS[0] + BS[2]
    order = [5 * nl + f for nl in (1, 2, 3, 0) for f in range(5)]
    for i in range(20): G.put(574 + 2 * i + (i % 5 + 1) // 2 * 0 if opt.t2ch else 585 + (3 * i) // 2, I('ds_write_b128 v%d, %s offset:%d' % (vYW, ar(80 + 4 * i, 4), 1024 * i), 'yw'))
    G.put(619, I('@waitlgkm yw'), I('s_barrier'))
    for k, i in enumerate(order): G.put(620 + k, I('ds_read_b128 %s, v%d offset:%d' % (vr(RG[i], 4), vYR, 1024 * i)))
    if opt.tstamps:
        for g in (opt.flagpos + 1, 79, opt.chkpos - 1, opt.chkpos + 1, 159, 164, opt.chk2 - 1, opt.chk2 + 1, 239, opt.chk3 - 1, opt.chk3 + 1, 399, 479, 559): G.put(g, *stamp_ins())
    print('oproj est cycles', G.est_cycles(16), file=sys.stderr)
    if opt.fallback: t2.ins[mark:mark] = G.g[-1]; G.g[-1] = []
    blks = [t2]; lo = -1
    for name, pp, cp, mk, thr in checks:
        blks[-1].extend(G.emit(lo, cp)); lo = cp + 1
        blks.append(Block('t_' + name)); blks[-1]('L_back_%s:' % name)
    t3 = blks[-1]
    t3.extend(G.emit(lo, 639))
    stamp(t3)
    for k, i in enumerate(order):
        tm = BS[1][k % 10]
        for e in range(4): t3('v_accvgpr_read_b32 v%d, a%d' % (tm + e, 4 * i + e))
        for e in range(4): t3('v_add_f32 v%d, v%d, v%d' % (RG[i] + e, RG[i] + e, tm + e))
        nl, f = divmod(i, 5)
        if nl and not opt.pbf: t3('buffer_store_dwordx4 %s, v%d, s[%d:%d], s%d offen offset:%d%s' % (vr(RG[i], 4), vOL + f // 4, S_P, S_P + 3, sPW + nl - 1, 1024 * (f % 4), opt.p_st_pol), 'P')
        if nl and opt.pbf:
            d = RG[5 * nl + f // 2 * 2] + 2 * (f % 2)
            t3('v_cvt_pk_bf16_f32 v%d, v%d, v%d\nv_cvt_pk_bf16_f32 v%d, v%d, v%d' % (d, RG[i], RG[i] + 1, d + 1, RG[i] + 2, RG[i] + 3))
            if f % 2 or f == 4: t3('buffer_store_dwordx%d %s, v%d, s[%d:%d], s%d offen offset:%d%s' % (2 if f == 4 and opt.sent else 4, vr(RG[5 * nl + f // 2 * 2], 2 if f == 4 and opt.sent else 4), vOL, S_P, S_P + 3, sPW + nl - 1, 1024 * (f // 2), opt.p_st_pol), 'P')
    if not opt.sent:
        t3('@waitvm P\nbuffer_store_dword v245, v%d, s[%d:%d], 0 offen sc1' % (vFA + 1, S_F, S_F + 3))
        stamp(t3)
        t3('buffer_load_dword v244, v%d, s[%d:%d], 0 offen sc1' % (vPA + 1, S_F, S_F + 3))
    else: stamp(t3)
    t3.extend(poll_test(244, sMK2) + ['s_cbranch_scc1 L_spin_p'])
    t4 = Block('tail4'); t4('L_back_p:')
    spins = [spin_block(name, vPA, mk, thr) for name, pp, cp, mk, thr in checks] + [spin_block('p', vPA + 1, sMK2)]
    LD = [BS[1][3 * (f // 2) + j] for j in (1, 2, 3) for f in (0, 2, 4)] if opt.sent else None
    def preg(j, f): return LD[3 * (j - 1) + f // 2] if opt.sent else RG[5 * j + f]
    if opt.sent:
        blks.append(t4); t4('s_mov_b32 s41, %d' % opt.spin)
        t4 = Block('try'); t4('L_try:')
    else: stamp(t4)
    for f in range(0, 5, 2 if opt.pbf else 1):
        for j in (1, 2, 3):
            if opt.pbf: t4('buffer_load_dwordx%d %s, v%d, s[%d:%d], s%d offen offset:%d%s' % (2 if f == 4 and opt.sent else 4, vr(preg(j, f), 2 if f == 4 and opt.sent else 4), vOL, S_P, S_P + 3, sPR + j - 1, 1024 * (f // 2), opt.p_ld_pol))
            else: t4('buffer_load_dwordx4 %s, v%d, s[%d:%d], s%d offen offset:%d%s' % (vr(RG[5 * j + f], 4), vOL + f // 4, S_P, S_P + 3, sPR + j - 1, 1024 * (f % 4), opt.p_ld_pol))
    if opt.sent:
        regs = [preg(j, f) + e for f in (0, 2, 4) for j in (1, 2, 3) for e in range(2 if f == 4 else 4)]
        t4('v_max_u32 v244, v%d, v%d' % (regs[0], regs[1]))
        for k in range(2, len(regs), 2): t4('v_max3_u32 v244, v244, v%d, v%d' % (regs[k], regs[k + 1]))
        t4('v_cmp_eq_u32 vcc, -1, v244\ns_cbranch_vccnz L_spin_s')
        blks.append(t4); t4 = Block('fin'); t4('L_fin:'); stamp(t4)
        sp = Block('spin_s')
        sp('L_spin_s:\ns_sub_u32 s41, s41, 1\ns_cmp_eq_u32 s41, 0\ns_cbranch_scc1 L_fin\ns_sleep 1\nbuffer_load_dword v244, v27, s[%d:%d], 0 offen sc1\ns_waitcnt vmcnt(0)' % (S_P, S_P + 3))
        sp('v_cmp_eq_u32 vcc, -1, v244\ns_cbranch_vccnz L_spin_s\ns_branch L_try')
        spins.append(sp)
    blks.append(t4)
    if opt.pbf: t4('s_mov_b32 s39, 0xffff0000')
    for f in range(5):
        a, b1, b2, b3 = RG[f], RG[5 + f], RG[10 + f], RG[15 + f]
        if opt.pbf:
            for j in (1, 2, 3):
                src = preg(j, f // 2 * 2) + 2 * (f % 2); tm = RG[5 * j + 1]
                t4('v_lshlrev_b32 v%d, 16, v%d\nv_and_b32 v%d, s39, v%d\nv_lshlrev_b32 v%d, 16, v%d\nv_and_b32 v%d, s39, v%d' % (tm, src, tm + 1, src, tm + 2, src + 1, tm + 3, src + 1))
            b1, b2, b3 = RG[6], RG[11], RG[16]
        for e in range(4): t4('v_add_f32 v%d, v%d, v%d\nv_add_f32 v%d, v%d, v%d' % (a + e, a + e, b1 + e, b2 + e, b2 + e, b3 + e))
        for e in range(4): t4('v_add_f32 v%d, v%d, v%d' % (a + e, a + e, b2 + e))
        t4('v_cvt_pk_bf16_f32 v%d, v%d, v%d\nv_cvt_pk_bf16_f32 v%d, v%d, v%d\ns_mov_b32 s38, %d' % (a, a, a + 1, a + 1, a + 2, a + 3, 32768 * f))
        t4('buffer_store_dwordx2 %s, v%d, s[%d:%d], s38 offen%s' % (vr(a, 2), vST, S_OUT, S_OUT + 3, opt.out_pol))
    if opt.stamps: t4('s_waitcnt vmcnt(0)')
    stamp(t4)
    if opt.twice: t4('s_add_u32 s63, s3, 0\ns_cmp_lt_u32 s%d, 100\ns_cbranch_scc1 L_again' % sTSN)
    t4('s_endpgm')
    for b in blks:
        if 'c' in opt.t2x: b.ins = [x for x in b.ins if not (x.op == 's_cbranch_scc1' and 'spin_o' in x.text)]
        if 'p' in opt.t2x: b.ins = [x for x in b.ins if not (x.op == 's_cbranch_scc1' and 'spin_p' in x.text)]
        if 'o' in opt.t2x: b.ins = [x for x in b.ins if not (x.cls == 'vld' and 's[16:19]' in x.text)]
        if 'w' in opt.t2x: b.ins = [x for x in b.ins if x.cls != 'dma']
        if 's' in opt.t2x: b.ins = [x for x in b.ins if x.tag not in ('O', 'Oa')]
    return t1, blks, spins

def k1_fallback():
    b = Block('fb'); T = vT
    b('L_fallback:')
    b('s_waitcnt vmcnt(0) lgkmcnt(0)\ns_nop 15\ns_barrier')
    b('v_and_b32 v1, 15, v%d\nv_lshrrev_b32 v2, 4, v%d\nv_lshlrev_b32 v2, 4, v2\nv_lshl_add_u32 v%d, v1, 8, v2' % (vLANE, vLANE, T + 10))
    for qs in range(5): b('v_mov_b32 v%d, 0xff800000' % (T + 2 * qs))
    b('s_mov_b32 s39, 0')
    lp = Block('fbl'); lp('L_fb_loop:')
    for k in range(4): lp('buffer_load_dwordx4 %s, v%d, s[%d:%d], s39 offen offset:%d' % (vr(vF + 4 * k, 4), T + 10, S_K, S_K + 3, 64 * k))
    lp('s_waitcnt vmcnt(0)')
    lp.extend(qk_mfmas(True)[:20])
    lp('s_nop 15')
    for qs in range(5):
        s = rS(0, qs); t = T + 2 * qs
        lp('v_max3_f32 v%d, v%d, v%d, v%d\nv_max3_f32 v%d, v%d, v%d, v%d' % (t, t, s, s + 1, t, t, s + 2, s + 3))
    lp('s_add_u32 s39, s39, 4096\ns_cmp_lt_u32 s39, 262144\ns_cbranch_scc1 L_fb_loop')
    e = Block('fbe')
    if opt.twice: e('L_again:\ns_waitcnt vmcnt(0) lgkmcnt(0)\ns_barrier\ns_mov_b32 s34, 0x7f800000\ns_mov_b32 s36, 0x3e000000')
    max_finish(e, T)
    e.extend(zero_acc())
    e('s_and_b32 s40, s%d, 1\ns_lshl_b32 s%d, s40, 12\ns_mov_b32 s%d, s%d' % (sW, sKO, sVO, sKO))
    for g in dma_kv('K', 0) + dma_kv('K', 1) + dma_kv('K', 2) + dma_kv('K', 3) + dma_kv('V', 0) + dma_kv('V', 1) + dma_kv('V', 2): e.extend(g)
    e('s_mov_b32 s%d, 1\ns_waitcnt vmcnt(0)\ns_barrier' % sEX)
    G = Gaps(qk0_mfmas(), 8)
    for f in range(8): G.put(max(5 * (f - 3) - 1, -1), *kread0(f))
    e.extend(G.emit())
    e('s_nop 7\ns_branch L_start')
    return b, lp, e

def kernel_text(kname, blocks, traces, vgpr, accum, sgpr=102):
    d = {b.name: b for b in blocks}
    assert len(d) == len(blocks)
    place_waits(d, traces)
    n = place_nops(d, traces)
    print(kname[:12], 'nop states inserted', n, 'instructions', {b.name: len(b.ins) for b in blocks}, file=sys.stderr)
    t = '.text\n.globl %s\n.p2align 8\n.type %s,@function\n%s:\n' % (kname, kname, kname) + render(blocks)
    t += '.section .rodata,"a"\n.p2align 6\n.amdhsa_kernel %s\n' % kname
    t += '  .amdhsa_next_free_vgpr %d\n  .amdhsa_next_free_sgpr %d\n  .amdhsa_accum_offset %d\n' % (vgpr, sgpr, accum)
    t += '  .amdhsa_group_segment_fixed_size 0\n  .amdhsa_kernarg_size 104\n  .amdhsa_user_sgpr_count 2\n'
    t += '  .amdhsa_user_sgpr_kernarg_segment_ptr 1\n  .amdhsa_system_sgpr_workgroup_id_x 1\n.end_amdhsa_kernel\n'
    return t

def gen_k1(kname):
    setup = k1_setup(); qp = k1_qproj()
    pro, mx, p2, lp, pe = k1_attention(); t1, tb, spins = k1_tail()
    end = Block('end'); end('L_k1_end:\ns_endpgm')
    blocks = [setup, qp, pro, mx, p2] + lp + pe[:3] + [t1] + tb + spins + [pe[3]]
    loop = ['per0', 'per1', 'per2', 'per3'] * 3 + ['pe0', 'pe1', 'pe2', 'tail1']
    head = ['setup', 'qproj', 'pro', 'pro_max', 'pro2']
    rest = [b.name for b in tb]
    slow = []
    for b in tb:
        if b.name.startswith('t_'): slow += ['spin_' + b.name[2:]] * 2
        if b.name == 'tail4': slow += ['spin_p'] * 2
        if b.name == 'fin': slow += ['spin_s', 'spin_s', 'try', 'spin_s']
        slow.append(b.name)
    traces = [head + loop + rest, head + loop[:-2] + ['spin_d', 'spin_d', 'pe2', 'tail1'] + slow]
    if opt.fallback:
        fb, fbl, fbe = k1_fallback(); blocks += [fb, fbl, fbe]
        traces.append(head + loop + ['fb', 'fbl', 'fbl', 'fbe', 'pro', 'pro2'] + loop + rest)
    blocks.append(end)
    return kernel_text(kname, blocks, traces, 512, 256)

def gen_diag(kname):
    a, b_, gain = [int(x, 0) for x in opt.diag.split()]
    b = Block('dg')
    b('''s_cmp_ge_u32 s2, 1
         s_cbranch_scc1 L_dg_end
         s_load_dwordx2 s[4:5], s[0:1], 96
         s_waitcnt lgkmcnt(0)
         s_add_u32 s4, s4, 0x3000000
         s_addc_u32 s5, s5, 0
         s_load_dword s6, s[4:5], %d
         s_load_dword s7, s[4:5], %d
         s_memrealtime s[8:9]
         s_waitcnt lgkmcnt(0)
         s_sub_u32 s6, s7, s6
         s_min_u32 s6, s6, 20000
         s_mul_i32 s6, s6, %d
         L_dg:
         s_memrealtime s[10:11]
         s_waitcnt lgkmcnt(0)
         s_sub_u32 s10, s10, s8
         s_cmp_lt_u32 s10, s6
         s_cbranch_scc1 L_dg
         L_dg_end:
         s_endpgm''' % (a, b_, gain))
    return kernel_text(kname, [b], [['dg']], 8, 8, 16)

def main(out, only=None):
    t = open('cdna_kernels/%s.s.ref' % NAME).read().split('; Override launch')[0]
    k1 = NAME + '_kernel'
    if opt.diag.strip():
        t += '; @launch kernel=%s grid=(256,1,1) block=(256,1,1) lds=163840\n; @launch kernel=diag_kernel grid=(1,1,1) block=(64,1,1) lds=0\n' % k1
    else: t += '; @launch grid=(256,1,1) block=(256,1,1) lds=163840\n'
    t += '''; Generated by a script (software-pipelined instruction placement, s_waitcnt counts and wait states are computed).
;     reaches 2^30 (or is not finite) the workgroup computes the true maximum over all keys and redoes both heads.
'''
    t += '.amdgcn_target "amdgcn-amd-amdhsa--gfx950"\n'
    t += gen_k1(k1)
    if opt.diag.strip(): t += gen_diag('diag_kernel')
    open(out, 'w').write(t)

if __name__ == '__main__':
    out = sys.argv[1]; only = None
    for a in sys.argv[2:]:
        k, v = a.split('=')
        if k == 'only': only = int(v)
        elif isinstance(getattr(opt, k), bool): setattr(opt, k, v == '1')
        elif isinstance(getattr(opt, k), int): setattr(opt, k, int(v))
        else: setattr(opt, k, (' ' + v.replace('+', ' ')) if v else '')
    main(out, only)
```

```python
import sys, math, struct
from asmlib import *

NAME = "concat_heads__gqa_block_cached__gqa_block_cached__near_ridge"
def f32bits(x): return struct.unpack('<I', struct.pack('<f', x))[0]
MF = 'v_mfma_f32_16x16x32_bf16'
def vr(b, n=1, k='v'): return '%s%d' % (k, b) if n == 1 else '%s[%d:%d]' % (k, b, b + n - 1)
def ar(b, n=1): return vr(b, n, 'a')

class Opt:
    kv_pol = ' nt'; w_pol = ''; x_pol = ''; o_st_pol = ' sc1'; o_ld_pol = ' sc1'; wo_pol = ''; out_pol = ''; p_st_pol = ' sc1'; p_ld_pol = ' sc1'
    stamps = False; fallback = True; ones = True; nokv = False; nox = False; noxq = False; qstamps = False
    dsp = 10; kvend = 13; burst = ' 10:2 12:2'; k2stag = 1; qevery = 4; warm = 336; qf = ' '; pk = False; upfront = 3; diag = ' '; spin = 524288; peel0 = False; pfper = 2; chain = True; asym = 1; rel = 1; ramp = 1; t2ch = True; onesadj = True; cape = ' 4x4x4x4x'; capl = ' 44444444'; twice = False; z0pos = 3; stcap = 0; pecap = False; fs = False; t2x = ' '; early = False; sent = False; chkb = 168; pleadb = 30; qcl = 1; fbk = 0; fbn = 4; fbpos = 56; sb = 1; t2mode = 0; o3n = 10; pstamps = False; tstamps = False; thre = 0; thro = 4; thrn = 2; ptouch = 0; touchc = 8; flagpos = 12; pollpos = 105; chkpos = 140; chk2 = 270; chk3 = 390; plead = 40; pbf = True; pk2 = True
opt = Opt()

S_K, S_V, S_X, S_WQ, S_O = 4, 8, 12, 16, 20
sW, sW4, sKO, sVO, sCNT, sEX, sC0, sB, sBR, sH1, sTH, sM0B = 24, 25, 26, 27, 28, 29, 30, 31, 32, 33, 34, 35
sSC = 36
S_TS, sTSA, sTSN = 52, 56, 58
sWO, sXO = 76, 92
STASH = {'K2': 32, 'V2': 224, 'K3': 240}
vSW = 2
vKA, vVA, vKD, vVD, vLANE, vL = 8, 12, 20, 24, 26, 59
vF = 32; NB = 4
vWA, vXA, vWD, vXD = 48, 52, 54, 58
vACC = 64
def rQ(k, qs): return vACC + 8 * (5 * k + qs)
def hole(i): return vACC + 8 * i + 4
def rS(kt, qs): return hole(5 * kt + qs)
def rP(par, qs): return hole(10 + 5 * par + qs)
vN = 224
vT = 48; vT2 = 244
def aO(dt, qs): return 4 * (5 * dt + qs)
aL, aONE, aFA, aFB = 160, 180, 184, 200
KS0, VS0 = 0, 65536
WBUF = [139264, 32768, 49152]
XBUF = [98304, 118784]
sJP, sKQ = 3, 59
S_F, S_D, S_P, S_OUT, S_WO, S_OR = 44, 48, 64, 68, 12, 16
sOK, sWOO, sORO, sPW, sPR, sD01, sD12, sMK1, sMK2 = 76, 80, 88, 96, 99, 30, 33, 42, 43
MK1 = [None, 42, 60, 61]
POFF, FOFF, TSOFF = 0x1500000, 0x2a00000, 0x3000000
vOD, vOL, vXW, vXR, vYW, vYR, vST, vFA, vPA, vDA = 54, 58, 62, 63, 48, 49, 50, 51, 28, 30
vRA = list(range(246, 254))
WOB = [131072, 0, 65536, 32768, 98304]
BADB = 98304 + 10240
BS = [[vACC + 8 * i for i in range(10)], [vACC + 8 * i for i in range(10, 20)], [hole(i) for i in range(10)]]
SPIN = 1 << 15

def stamp_ins():
    if not opt.stamps: return []
    return [I('s_memrealtime s[%d:%d]' % (sTSA, sTSA + 1)), I('s_memtime s[62:63]'), I('s_waitcnt lgkmcnt(0)'), I('v_mov_b32 v5, s%d' % sTSA), I('v_mov_b32 v6, s%d' % sTSN), I('v_mov_b32 v7, s62'),
            I('buffer_store_dword v5, v6, s[%d:%d], 0 offen' % (S_TS, S_TS + 3), 'stamp'), I('buffer_store_dword v7, v6, s[%d:%d], 0 offen offset:256' % (S_TS, S_TS + 3), 'stamp'), I('s_add_u32 s%d, s%d, 4' % (sTSN, sTSN))]
def stamp(b): b.extend(stamp_ins())
def stamp_setup(b, ws, w, off=TSOFF, first=False):
    if not opt.stamps: return
    b('''s_lshl_b32 s39, s2, 9
         s_add_u32 s39, s39, {off}
         s_add_u32 s{T}, s{ws}, s39
         s_addc_u32 s{T1}, s{ws1}, 0
         s_cmp_eq_u32 s{w}, 0
         s_cselect_b32 s{T2}, 512, 0
         s_mov_b32 s{T3}, 0x20000
         s_mov_b32 s{N}, 0'''.format(T=S_TS, T1=S_TS + 1, T2=S_TS + 2, T3=S_TS + 3, w=w, ws=ws, ws1=ws + 1, N=sTSN, off=off))
    if first:
        b('v_mov_b32 v5, s100\nv_mov_b32 v6, 0\nv_mov_b32 v7, s42')
        b('buffer_store_dword v5, v6, s[%d:%d], 0 offen\nbuffer_store_dword v7, v6, s[%d:%d], 0 offen offset:256\ns_mov_b32 s%d, 4' % (S_TS, S_TS + 3, S_TS, S_TS + 3, sTSN))
    stamp(b)

def srd(b, d, lo, off, num):
    b('s_add_u32 s%d, s%d, %s\ns_addc_u32 s%d, s%d, 0\n%s\ns_mov_b32 s%d, 0x20000' % (d, lo, off, d + 1, lo + 1,
      ('s_mov_b32 s%d, %d' % (d + 2, num)) if isinstance(num, int) else num % (d + 2), d + 3))

def off_calc(X):
    return ['s_add_u32 s38, s%d, %d' % (sC0, X), 's_and_b32 s38, s38, 7', 's_lshl_b32 s%d, s38, 19' % (sWO + 2 * X),
            's_add_u32 s%d, s%d, 262144' % (sWO + 2 * X + 1, sWO + 2 * X)]
def dma_wq(c):
    G = [[I('s_add_u32 m0, s%d, %d' % (sW4, WBUF[c % 3]))]]
    for n in range(4):
        G.append([I('buffer_load_dwordx4 v%d, s[%d:%d], s%d offen offset:%d%s lds' % (vWD + n, S_WQ, S_WQ + 3, sWO + c, 1024 * n, opt.w_pol), 'wq%d' % c)])
    return G
def dma_x(X):
    G = [[I('s_lshr_b32 s39, s%d, 12' % (sWO + 2 * X))], [I('s_add_u32 m0, s%d, %d' % (sW4, XBUF[X % 2]))]]
    for n in range(4):
        G.append([I('buffer_load_dwordx4 v%d, s[%d:%d], s%d offen offset:%d%s lds' % (vXD + n, S_X, S_X + 3, 39, 1024 * n, opt.x_pol), 'x%d' % X)])
    G.append([I('s_add_u32 m0, s%d, %d' % (sM0B, XBUF[X % 2] + 16384))])
    G.append([I('buffer_load_dwordx4 v%d, s[%d:%d], s%d offen%s lds' % (vXD + 4, S_X, S_X + 3, 39, opt.x_pol), 'x%d' % X)])
    return G
def stash_load(which, slot):
    K = which == 'K'; srd_, so = (S_K, sKO) if K else (S_V, sVO); r = STASH['%s%d' % (which, slot)]
    G = [[I('buffer_load_dwordx4 %s, v%d, s[%d:%d], s%d offen offset:%d%s' % (vr(r + 4 * m, 4), vKD + m if K else vVD + m % 2, srd_, srd_ + 3, so, 1024 * m, opt.kv_pol), 'st')] for m in range(4)]
    G[3].append(I('s_add_u32 s%d, s%d, 8192' % (so, so)))
    return G
def stash_flush(which, slot):
    r = STASH['%s%d' % (which, slot)]; base = (KS0 if which == 'K' else VS0) + 16384 * slot
    return [I('ds_write_b128 v%d, %s offset:%d' % (vSW + base // 65536, vr(r + 4 * m, 4), base % 65536 + 1024 * m)) for m in range(4)]
def dma_kv(which, slot, m0each=False):
    G = []; K = which == 'K'
    srd_, so = (S_K, sKO) if K else (S_V, sVO)
    for m in range(4):
        g = []
        if m == 0 or m0each: g.append(I('s_add_u32 m0, s%d, %d' % (sW4, (KS0 if K else VS0) + 16384 * slot)))
        g.append(I('buffer_load_dwordx4 v%d, s[%d:%d], s%d offen offset:%d%s lds' % (vKD + m if K else vVD + m % 2, srd_, srd_ + 3, so, 1024 * m, opt.kv_pol), '%s%d' % (which, slot)))
        if m == 3: g.append(I('s_add_u32 s%d, s%d, 8192' % (so, so)))
        G.append(g)
    return G

def dma_wo(c):
    buf = WOB[c % 5]; G = []
    for m in range(8):
        g = []
        if m == 4: g.append(I('s_add_u32 s2, s%d, 16384' % (sWOO + c)))
        if m % 4 == 0: g.append(I('s_add_u32 m0, s%d, %d' % (sM0B, buf + 4096 * (m // 4))))
        g.append(I('buffer_load_dwordx4 v%d, s[%d:%d], s%d offen offset:%d%s lds' % (vOD + m % 4, S_WO, S_WO + 3, sWOO + c if m < 4 else 2, 1024 * (m % 4), opt.wo_pol), 'wo%d' % c))
        G.append(g)
    return G

def peer(p):
    if not opt.asym: return 's_add_u32 s38, s%d, %d\ns_and_b32 s38, s38, 3' % (sJP, p)
    if p == 0: return 's_mov_b32 s38, s%d' % sJP
    return 's_cmp_lt_u32 s%d, 2\ns_cselect_b32 s38, %d, %d\ns_xor_b32 s38, s38, s%d' % (sJP, p, p % 3 + 1, sJP)

def page_touch():
    return ['v_mov_b32 v1, 0'] + ['buffer_load_dword v%d, v1, s[%d:%d], 0 offen' % (253 + i, d, d + 3) for i, d in enumerate((S_O, S_P, S_OUT))]
def tail_setup_a(b):
    b('s_mov_b32 s72, s92\ns_mov_b32 s73, s93')
    b('''s_and_b32 s98, s{w}, 1
         s_lshr_b32 s99, s{w}, 1
         s_lshl_b32 s96, s{B}, 1
         s_add_u32 s96, s96, s98
         s_mul_i32 s96, s96, 163840
         s_lshl_b32 s97, s{BR}, 2
         s_add_u32 s97, s97, s{JP}
         s_lshl_b32 s97, s97, 1
         s_add_u32 s97, s97, s99
         s_lshl_b32 s97, s97, 2
         s_add_u32 s97, s97, s{KQ}
         s_lshl_b32 s97, s97, 5
         s_add_u32 s96, s96, s97'''.format(w=sW, B=sB, BR=sBR, JP=sJP, KQ=sKQ))
    srd(b, S_OUT, 94, 's96', 's_sub_u32 s%d, 2621440, s96')
    for p in (1, 2, 3): b(peer(p) + '\ns_lshl_b32 s38, s38, 2\ns_add_u32 s38, s38, s98\ns_lshl_b32 s%d, 5, s38' % MK1[p])
    b('s_lshl_b32 s38, 0x1111, s%d\ns_lshl_b32 s39, s%d, 2\ns_lshl_b32 s39, 15, s39\ns_andn2_b32 s%d, s38, s39' % (sW, sKQ, sMK2))
    b('s_lshl_b32 s38, s%d, 3\ns_add_u32 s38, s38, s%d\ns_lshl_b32 s38, s38, 2\ns_add_u32 s38, s38, s%d\ns_mul_i32 s38, s38, 327680\ns_mul_i32 s39, s%d, 5120\ns_add_u32 s38, s38, s39\ns_add_u32 s38, s38, 0x%x' % (sBR, sB, sJP, sW, POFF))
    srd(b, S_P, 74, 's38', 's_sub_u32 s%d, 327680, s39')
    for j in (1, 2, 3):
        b('s_xor_b32 s38, s%d, %d\ns_lshl_b32 s39, s38, 2\ns_add_u32 s39, s39, s%d\ns_mul_i32 s%d, s39, 20480' % (sKQ, j, sKQ, sPW + j - 1))
        b('s_lshl_b32 s39, s%d, 2\ns_add_u32 s39, s39, s38\ns_mul_i32 s%d, s39, 20480' % (sKQ, sPR + j - 1))

def wo_srd(b, S_WO=S_WO):
    b('s_lshl_b32 s38, s%d, 20\ns_lshl_b32 s39, s%d, 8\ns_add_u32 s38, s38, s39' % (sKQ, sJP))
    srd(b, S_WO, 72, 's38', 's_sub_u32 s%d, 4194304, s38')
def wo_touch(b, S_WO=S_WO):
    b('s_lshl_b32 s38, s%d, 2\ns_add_u32 s38, s38, s%d\ns_lshl_b32 s38, s38, 15\nv_lshrrev_b32 v4, 1, v%d\nv_and_b32 v5, 1, v%d\nv_lshlrev_b32 v5, 7, v5\nv_lshl_add_u32 v4, v4, 10, v5' % (sB, sW, vLANE, vLANE))
    b('buffer_load_dword v31, v4, s[%d:%d], s38 offen' % (S_WO, S_WO + 3))
def tail_setup_b(b):
    L = vLANE
    b('s_and_b32 s78, s%d, 1\ns_lshr_b32 s79, s%d, 1' % (sW, sW))
    b('''s_lshl_b32 s38, s{BR}, 3
         s_add_u32 s38, s38, s{B}
         s_lshl_b32 s38, s38, 2
         s_add_u32 s38, s38, s{KQ}
         s_mul_i32 s38, s38, 327680
         s_mul_i32 s39, s79, 20480
         s_mul_i32 s40, s78, 5120
         s_add_u32 s39, s39, s40
         s_add_u32 s38, s38, s39'''.format(B=sB, BR=sBR, KQ=sKQ))
    srd(b, S_OR, 74, 's38', 's_sub_u32 s%d, 327680, s39')
    b('s_lshl_b32 s40, s%d, 15\ns_lshl_b32 s%d, s%d, 13' % (sW, sM0B, sW))
    for c in range(8):
        b(peer(c // 2) + '\ns_lshl_b32 s38, s38, 1\ns_add_u32 s38, s38, %d\n%s\ns_mul_i32 s%d, s39, 40960\ns_lshl_b32 s38, s38, 17\ns_add_u32 s%d, s38, s40' % (c & 1, 's_xor_b32 s39, s38, s79' if opt.early else 's_mov_b32 s39, s38', sORO + c, sWOO + c))
    if opt.sent:
        b('v_mov_b32 v27, 0x100000')
        for j in range(3): b('s_add_u32 s38, s%d, 2048\nv_writelane_b32 v27, s38, %d' % (sPR + j, j))
    b('v_lshrrev_b32 v4, 4, v%d\nv_and_b32 v5, 15, v%d' % (L, L))
    for m in range(4):
        b('v_add_u32 v6, %d, v4\nv_lshlrev_b32 v6, 1, v6\nv_xor_b32 v6, v6, v5\nv_lshlrev_b32 v6, 4, v6\nv_lshl_add_u32 v6, v4, 10, v6\nv_add_u32 v%d, %d, v6' % (4 * (m % 2), vOD + m, 3072 * m))
    b('v_lshlrev_b32 v%d, 4, v%d' % (vOL, L))
    for i, o in ((1, 4096), (2, 10240), (3, 14336)): b('v_add_u32 v%d, %d, v%d' % (vOL + i, o, vOL))
    b('v_lshlrev_b32 v5, 11, v5\nv_lshl_add_u32 v%d, v4, 3, v5' % vST)
    for (reg, wsel, step, lo, hi) in ((vXW, sW, 10240, 32768, 98304), (vXR, 41, 10240, 32768, 98304), (vYW, sW, 20480, 98304, 32768), (vYR, 41, 20480, 98304, 32768)):
        b('s_xor_b32 s41, s%d, 2\ns_mul_i32 s38, s%d, %d\ns_add_u32 s38, s38, %d\ns_cmp_eq_u32 s%d, 3\ns_cselect_b32 s38, %d, s38\nv_add_u32 v%d, s38, v%d' % (sW, wsel, step, lo, wsel, hi, reg, vOL))
    b('''v_lshrrev_b32 v6, 4, v{L}
          v_bfe_u32 v4, v{L}, 2, 2
          v_lshl_add_u32 v6, v6, 2, v4
          v_and_b32 v4, 3, v{L}
          v_lshlrev_b32 v4, 3, v4
          v_lshl_add_u32 v4, v6, 8, v4
          s_lshr_b32 s38, s{w}, 1
          s_lshl_b32 s39, s38, 2
          s_add_u32 s39, s39, s{KQ}
          s_mul_i32 s38, s38, {x}
          s_add_u32 s38, s38, 131072
          v_add_u32 v4, s38, v4
          v_and_b32 v6, 7, v6
          v_xor_b32 v6, s39, v6'''.format(L=L, w=sW, KQ=sKQ, x=(16384 - 131072) & 0xffffffff))
    for n in range(8): b('v_xor_b32 v5, %d, v6\nv_lshl_add_u32 v%d, v5, 5, v4' % (n, vRA[n]))
    b('s_lshl_b32 s38, s%d, 2\ns_add_u32 s38, s38, s%d\ns_lshl_b32 s38, s38, 2\nv_readfirstlane_b32 s39, v%d\ns_add_u32 s38, s38, s39\nv_lshl_add_u32 v%d, v%d, 16, s38' % (sJP, sW, vPA, vFA, L))
    b('s_lshl_b32 s38, s%d, 2\ns_add_u32 s38, s38, s%d\ns_lshl_b32 s38, s38, 2\nv_readfirstlane_b32 s39, v%d\ns_add_u32 s38, s38, s39\nv_lshl_add_u32 v%d, v%d, 16, s38' % (sKQ, sW, vPA + 1, vFA + 1, L))
    for kl in range(4): b('s_lshl_b32 s38, s79, 1\ns_xor_b32 s38, s38, %d\ns_mul_i32 s%d, s38, 10240' % (kl, 38 if kl == 3 else sOK + kl))
    b('s_mov_b32 s%d, s38' % (sOK + 3))

def k1_setup():
    b = Block('setup'); L = vLANE; T = vT2
    b('s_cmp_ge_u32 s2, 256\ns_cbranch_scc1 L_k1_end')
    if opt.stamps: b('s_memrealtime s[100:101]\ns_memtime s[42:43]')
    if opt.warm: b('s_getpc_b64 s[96:97]')
    b('''s_and_b32 s38, s2, 7
         s_lshr_b32 s{BR}, s38, 2
         s_and_b32 s{KQ}, s38, 3
         s_lshr_b32 s39, s2, 3
         s_and_b32 s{B}, s39, 7
         s_lshr_b32 s{JP}, s39, 3
         s_lshl_b32 s38, s{KQ}, 3
         s_lshl_b32 s40, s{JP}, 1
         s_add_u32 s{H}, s38, s40
         s_add_u32 s{C}, s{B}, s40
         s_and_b32 s{C}, s{C}, 7
         s_mul_i32 s38, s{BR}, 40
         s_add_u32 s60, s0, s38
         s_addc_u32 s61, s1, 0
         s_load_dwordx8 s[64:71], s[60:61], 0
         s_load_dwordx4 s[72:75], s[0:1], 88
         s_load_dwordx2 s[92:93], s[60:61], 32
         s_load_dwordx2 s[94:95], s[0:1], 80
         v_lshrrev_b32 v1, 6, v0
         v_and_b32 v{L}, 63, v0
         v_readfirstlane_b32 s{W}, v1
         v_and_b32 v1, 31, v{L}
         v_lshrrev_b32 v2, 5, v{L}
         v_lshrrev_b32 v3, 4, v{L}
         v_and_b32 v4, 15, v{L}
         s_lshl_b32 s{W4}, s{W}, 12
         s_lshl_b32 s{M}, s{W}, 10'''.format(BR=sBR, B=sB, H=sH1, C=sC0, L=L, W=sW, W4=sW4, M=sM0B, KQ=sKQ, JP=sJP))
    b('s_lshl_b32 s39, s%d, 16' % sW)
    for n in range(4):
        b('''v_add_u32 v{a}, {n2}, v2
             v_and_b32 v{c}, 3, v{a}
             v_lshlrev_b32 v{c}, 2, v{c}
             v_xor_b32 v{c}, v{c}, v1
             v_lshlrev_b32 v{c}, 4, v{c}
             v_lshl_add_u32 v{c}, v{a}, 13, v{c}
             v_add_u32 v{c}, s39, v{c}
             v_subrev_u32 v{d}, {sub}, v{c}'''.format(a=T, c=T + 1, n2=2 * n, d=vWD + n, sub=1024 * n))
    b('s_lshl_b32 s39, s%d, 15\nv_lshrrev_b32 v%d, 3, v%d\nv_and_b32 v%d, 7, v%d\ns_lshl_b32 s38, s%d, 2' % (sW, T + 3, L, T + 4, L, sW))
    for n in range(4):
        b('''v_add_u32 v{a}, {n4}, v3
             v_and_b32 v{a}, 7, v{a}
             v_xor_b32 v{a}, v{a}, v{p}
             v_lshlrev_b32 v{a}, 4, v{a}
             v_lshl_add_u32 v{a}, v{r}, 10, v{a}
             v_add_u32 v{a}, {add}, v{a}
             v_add_u32 v{d}, s39, v{a}'''.format(a=T, n4=4 * n, p=T + 4, r=T + 3, add=7 * 1024 * n, d=vXD + n))
    b('''s_lshl_b32 s39, s{w}, 13
         s_add_u32 s39, s39, 131072
         v_add_u32 v{a}, s38, v3
         v_and_b32 v{a}, 7, v{a}
         v_xor_b32 v{a}, v{a}, v{p}
         v_lshlrev_b32 v{a}, 4, v{a}
         v_lshl_add_u32 v{a}, v{r}, 10, v{a}
         v_add_u32 v{d}, s39, v{a}'''.format(w=sW, a=T, p=T + 4, r=T + 3, d=vXD + 4))
    b('s_waitcnt lgkmcnt(0)')
    b('s_mul_i32 s39, s%d, 163840' % sB); srd(b, S_X, 64, 's39', 163840)
    b('s_lshl_b32 s39, s%d, 8' % sH1); srd(b, S_WQ, 70, 's39', 's_sub_u32 s%d, 4194304, s39')
    if opt.nox: b('s_mov_b32 s%d, 0' % (S_X + 2))
    if opt.noxq: b('s_mov_b32 s%d, 0' % (S_WQ + 2))
    b.extend(off_calc(0) + off_calc(1))
    for g in dma_wq(0) + dma_x(0) + (dma_wq(1) + dma_x(1) + dma_wq(2) if opt.upfront == 2 else []): b.extend(g)
    if opt.warm:
        n8 = (opt.warm + 7) // 8
        b('s_lshr_b32 s38, s2, 3\ns_and_b32 s38, s38, 7\ns_mul_i32 s38, s38, %d\nv_min_u32 v6, %d, v%d\nv_add_u32 v6, s38, v6\nv_lshlrev_b32 v6, 7, v6\nv_mov_b32 v7, s97' % (n8, n8 - 1, L))
        b('v_add_co_u32 v6, vcc, s96, v6\nv_addc_co_u32 v7, vcc, 0, v7, vcc\nglobal_load_dword v63, v[6:7], off')
    for X in range(2, 8): b.extend(off_calc(X))
    b('s_lshr_b32 s41, s%d, 1\ns_lshl_b32 s38, s%d, 5\ns_add_u32 s38, s38, s%d\ns_add_u32 s38, s38, s41\ns_lshl_b32 s39, s38, 18' % (sW, sB, sH1))
    srd(b, S_K, 66, 's39', 0 if opt.nokv else 262144); srd(b, S_V, 68, 's39', 0 if opt.nokv else 262144)
    b('s_lshl_b32 s39, s%d, 8\ns_add_u32 s38, s38, s39\ns_mul_i32 s39, s38, 40960\ns_and_b32 s40, s%d, 1\ns_mul_i32 s38, s40, 5120\ns_add_u32 s39, s39, s38' % (sBR, sW))
    srd(b, S_O, 74, 's39', 's_sub_u32 s%d, 40960, s38')
    b('s_lshl_b32 s%d, s40, 12\ns_mov_b32 s%d, s%d' % (sKO, sVO, sKO))
    stamp_setup(b, 74, sW, first=True)
    srd(b, S_F, 74, '0x%x' % FOFF, 32768); srd(b, S_D, 72, '0', 256)
    b('''s_and_b32 s38, s2, 7
         s_lshl_b32 s38, s38, 3
         s_add_u32 s38, s38, s{B}
         s_lshl_b32 s39, s{BR}, 3
         s_add_u32 s39, s39, s{B}
         s_lshl_b32 s39, s39, 2
         s_add_u32 s39, s39, s{JP}
         v_and_b32 v5, 1, v{L}
         v_mov_b32 v6, s38
         v_mov_b32 v7, s39
         v_cmp_eq_u32 vcc, 0, v5
         v_cndmask_b32 v6, v7, v6, vcc
         v_lshlrev_b32 v{DA}, 2, v6
         s_lshl_b32 s38, s38, 7
         s_lshl_b32 s39, s39, 7
         s_add_u32 s39, s39, 8192
         v_lshl_add_u32 v{PA}, v4, 2, s38
         v_lshl_add_u32 v{PB}, v4, 2, s39
         s_lshl_b32 s41, s{JP}, 4
         s_add_u32 s38, s38, s41
         s_lshl_b32 s41, s{KQ}, 4
         s_add_u32 s39, s39, s41
         v_mov_b32 v6, s38
         v_mov_b32 v7, s39
         v_cndmask_b32 v6, v7, v6, vcc
         v_lshrrev_b32 v7, 1, v0
         v_lshl_add_u32 v6, v7, 16, v6
         v_mov_b32 v{T}, 0
         v_mov_b32 v{T1}, 0
         v_mov_b32 v{T2}, 0
         v_mov_b32 v{T3}, 0'''.format(B=sB, BR=sBR, JP=sJP, KQ=sKQ, L=L, DA=vDA, PA=vPA, PB=vPA + 1, T=T, T1=T + 1, T2=T + 2, T3=T + 3))
    b('buffer_store_dwordx4 %s, v6, s[%d:%d], 0 offen sc1' % (vr(T, 4), S_F, S_F + 3), 'fz')
    if opt.fbk:
        b('''v_readfirstlane_b32 s38, v{PA}
             v_readfirstlane_b32 s39, v{PB}
             v_and_b32 v5, 3, v{L}
             v_lshlrev_b32 v5, 2, v5
             v_and_b32 v6, 4, v{L}
             v_cmp_eq_u32 vcc, 0, v6
             s_add_u32 s38, s38, 16384
             s_add_u32 s39, s39, 16384
             v_add_u32 v6, s38, v5
             v_add_u32 v7, s39, v5
             v_cndmask_b32 v249, v7, v6, vcc
             s_lshl_b32 s41, s{JP}, 2
             s_add_u32 s38, s38, s41
             s_lshl_b32 s41, s{KQ}, 2
             s_add_u32 s39, s39, s41
             v_and_b32 v5, 1, v{L}
             v_cmp_eq_u32 vcc, 0, v5
             v_mov_b32 v6, s38
             v_mov_b32 v7, s39
             v_cndmask_b32 v6, v7, v6, vcc
             v_lshrrev_b32 v7, 1, v0
             v_lshl_add_u32 v250, v7, 16, v6
             v_mov_b32 v251, 0'''.format(PA=vPA, PB=vPA + 1, L=L, JP=sJP, KQ=sKQ))
        b('buffer_store_dword v251, v250, s[%d:%d], 0 offen sc1' % (S_F, S_F + 3))
    tail_setup_a(b)
    if opt.ptouch == 1: b.extend(page_touch())
    b('s_lshr_b32 s41, s%d, 1' % sW)
    b('v_bfe_u32 v5, v%d, 2, 2\nv_and_b32 v6, 3, v%d' % (L, L))
    for m in range(4):
        b('v_add_u32 v%d, %d, v3\nv_xor_b32 v%d, v%d, v4\nv_lshlrev_b32 v%d, 4, v%d\nv_lshl_add_u32 v%d, v3, 8, v%d' % (T, 4 * m, T, T, T, T, vKD + m, T))
    for m in range(2):
        b('v_add_u32 v%d, %d, v3\nv_lshlrev_b32 v%d, 1, v%d\nv_xor_b32 v%d, v%d, v4\nv_lshlrev_b32 v%d, 4, v%d\nv_lshl_add_u32 v%d, v3, 8, v%d' % (T, 4 * m, T, T, T, T, T, T, vVD + m, T))
    b('s_lshl_b32 s41, s41, 13\nv_xor_b32 v%d, v3, v4\nv_lshlrev_b32 v%d, 8, v4\nv_add_u32 v%d, s41, v%d' % (T, T + 1, T + 1, T + 1))
    for k in range(4): b('v_xor_b32 v%d, %d, v%d\nv_lshl_add_u32 v%d, v%d, 4, v%d' % (T + 2, 4 * k, T, vKA + k, T + 2, T + 1))
    b('''v_lshl_add_u32 v{a}, v3, 2, v5
         v_lshlrev_b32 v{c}, 8, v{a}
         v_lshl_add_u32 v{c}, v6, 3, v{c}
         s_add_u32 s41, s41, {vs}
         v_add_u32 v{c}, s41, v{c}
         v_and_b32 v{a}, 7, v{a}
         s_and_b32 s38, s{w}, 2
         s_lshl_b32 s38, s38, 1
         v_xor_b32 v{a}, s38, v{a}'''.format(a=T, c=T + 1, vs=VS0, w=sW))
    for dt in range(8): b('v_xor_b32 v%d, %d, v%d\nv_lshl_add_u32 v%d, v%d, 5, v%d' % (T + 2, dt, T, vVA + dt, T + 2, T + 1))
    b('''v_lshl_add_u32 v{c}, v3, 3, v5
         v_lshlrev_b32 v{c}, 9, v{c}
         s_lshr_b32 s41, s{w}, 1
         s_lshl_b32 s41, s41, 8
         v_add_u32 v{c}, s41, v{c}
         v_lshl_add_u32 v{a}, v5, 2, v6'''.format(a=T, c=T + 1, w=sW))
    for k in range(4): b('v_xor_b32 v%d, %d, v%d\nv_lshl_add_u32 v%d, v%d, 4, v%d' % (T + 2, 4 * k, T, vWA + k, T + 2, T + 1))
    b('''v_lshrrev_b32 v{a}, 1, v4
         v_xor_b32 v{a}, v{a}, v3
         s_mul_i32 s41, s40, 10240
         s_add_u32 s41, s41, {xb}
         v_lshlrev_b32 v{c}, 7, v4
         v_add_u32 v{c}, s41, v{c}'''.format(a=T, c=T + 1, xb=XBUF[0]))
    for k in range(2): b('v_xor_b32 v%d, %d, v%d\nv_lshl_add_u32 v%d, v%d, 4, v%d' % (T + 2, 4 * k, T, vXA + k, T + 2, T + 1))
    c = math.log2(math.e) / math.sqrt(128.0)
    b('s_mov_b32 s%d, 0x%08x\ns_mov_b32 s%d, 0x%08x\ns_mov_b32 s%d, 0x%08x\ns_mov_b32 s%d, 0' % (sSC, f32bits(c), sSC + 1, f32bits(c), sTH, f32bits(2.0 ** 30), sEX))
    b('v_lshl_add_u32 v%d, v%d, 4, s%d\nv_add_u32 v%d, 0x10000, v%d' % (vSW, L, sW4, vSW + 1, vSW))
    b('v_mov_b32 v%d, 0x3f803f80' % T)
    for i in range(4): b('v_accvgpr_write_b32 a%d, v%d' % (aONE + i, T))
    if opt.upfront != 2:
        for g in dma_wq(1) + (dma_x(1) if opt.upfront == 3 else []): b.extend(g)
    if opt.touchc < 0: wo_srd(b, 92); wo_touch(b, 92)
    return b

def zero_acc():
    return ['v_accvgpr_write_b32 a%d, 0' % i for i in range(180 if opt.ones else 160)] + ([] if opt.ones else ['v_mov_b32 v%d, 0' % (vL + i) for i in range(5)])

def conv(k):
    L = []
    for qs in range(5):
        d = rQ(k, qs)
        if opt.fs: pass
        elif opt.pk: L += ['v_pk_mul_f32 %s, %s, s[%d:%d]' % (vr(d + 2 * i, 2), vr(d + 2 * i, 2), sSC, sSC + 1) for i in range(4)]
        else: L += ['v_mul_f32 v%d, s%d, v%d' % (d + i, sSC, d + i) for i in range(8)]
        L += ['v_cvt_pk_bf16_f32 v%d, v%d, v%d' % (d + i, d + 2 * i, d + 2 * i + 1) for i in range(4)]
    return L
def qk0_mfmas():
    bb = []
    for f in range(8):
        k, kt = divmod(f, 2)
        for qs in range(5):
            s = rS(kt, qs)
            bb.append(I('%s %s, %s, %s, %s' % (MF, vr(s, 4), vr(vF + 4 * (f % NB), 4), vr(rQ(k, qs), 4), '0' if k == 0 else vr(s, 4))))
    return bb
def kread0(f):
    k, kt = divmod(f, 2)
    return [I('ds_read_b128 %s, v%d offset:%d' % (vr(vF + 4 * (f % NB), 4), vKA + k, kt * 4096), 'g%d' % f)]

def k1_qproj():
    b = Block('qproj')
    bb = []
    for c in range(16):
        for t in range(8):
            for qs in range(5):
                d = rQ(t // 2, qs) + 4 * (t % 2)
                bb.append(I('%s %s, %s, %s, %s' % (MF, vr(d, 4), ar(aFA + 4 * (t % 4), 4), ar(aFB + 20 * (c % 2) + 4 * qs, 4), '0' if c == 0 else vr(d, 4))))
    G = Gaps(bb, 8)
    def ybar(c): return -1 if c == 0 else 40 * c - 14
    cur = [0] * 4
    def wq_read(c, t):
        k, bsel = divmod(t, 2)
        want = 0 if WBUF[c % 3] < 65536 else 131072
        off = WBUF[c % 3] - want + 8 * bsel
        r = aFA + 4 * (t % 4)
        L = []
        if bsel == 0 and want != cur[k]:
            L.append(I('v_add_u32 v%d, 0x%x, v%d' % (vWA + k, (want - cur[k]) & 0xffffffff, vWA + k))); cur[k] = want
        return L, [I('ds_read_b64_tr_b16 %s, v%d offset:%d' % (ar(r, 2), vWA + k, off), 'fa'), I('ds_read_b64_tr_b16 %s, v%d offset:%d' % (ar(r + 2, 2), vWA + k, off + 2048), 'fa%d_%d' % (c, t))]
    kvq = dma_kv('K', 0, True) + dma_kv('K', 1, True) + dma_kv('V', 0, True) + dma_kv('V', 1, True) + stash_load('K', 2) + stash_load('V', 2) + stash_load('K', 3)
    nkv = opt.kvend
    bursts = dict(tuple(int(v) for v in x.split(':')) for x in opt.burst.split())
    nst = sum(bursts.values()) - 4
    assert 0 <= nst <= 3
    if bursts: kvq = dma_kv('K', 0) + dma_kv('K', 1) + dma_kv('V', 0) + dma_kv('V', 1) + kvq[16:]
    for c in range(16):
        y = ybar(c); base = 40 * c
        G.put(y, I('@waitlgkm *'), I('@waitvm wq%d' % c + (',x%d' % (c // 2) if c % 2 == 0 else '') + (',K0' if c == 15 else '')), I('s_barrier'))
        if opt.qstamps and c % opt.qevery == 0: G.put(y, *stamp_ins())
        if c == 3:
            G.put(y + 9, I('v_and_b32 v4, 1, v%d' % vLANE)); G.put(y + 10, I('v_lshlrev_b32 v4, 4, v4')); G.put(y + 11, I('v_lshlrev_b32 v4, v4, 1'))
            G.put(y + 12, I('v_lshrrev_b32 v1, 1, v0')); G.put(y + 13, I('v_lshl_add_u32 v1, v1, 16, v%d' % vDA))
            G.put(y + 14, I('@waitvm fz'), I('buffer_atomic_add v4, v1, s[%d:%d], 0 offen sc1' % (S_D, S_D + 3)))
        xr = [I('ds_read_b128 %s, v%d offset:%d' % (ar(aFB + 20 * (c % 2) + 4 * qs, 4), vXA + c % 2, (c // 2 % 2) * 20480 + 2048 * qs), 'xr%d_%d' % (c, qs)) for qs in range(5)]
        for t in range(8):
            g = max(base + 5 * (t - 3) - 1, y + 1 if c else y)
            pre, rd = wq_read(c, t)
            G.put(max(g - 1, -1), *pre); G.put(g, *rd)
            if t == 0:
                for qs in range(5): G.put(y + ((2, 4, 5, 6, 7)[qs] if c else 0), xr[qs])
                G.put(base - 1, I('@waitlgkm fa%d_1,xr%d_4' % (c, c)))
            if t % 2 == 0 and t: G.put(base + 5 * t - 1, I('@waitlgkm fa%d_%d' % (c, t + 1)))
        d = []
        if c == 0 and opt.upfront != 2: d += (dma_x(1) if opt.upfront == 1 else []) + dma_wq(2)
        if 1 <= c < 14: d += dma_wq(c + 2)
        if c % 2 == 0 and 2 <= c < 14: d += dma_x(c // 2 + 1)
        if not bursts and c < nkv: d += kvq[(c * len(kvq)) // nkv:((c + 1) * len(kvq)) // nkv]
        flat = [x for g in d for x in g]
        if c in bursts:
            if flat: G.spread2(flat, y + 1 if c else 0, y + 14)
            flat = [x for g in kvq[:4 * bursts[c]] for x in g]; kvq = kvq[4 * bursts[c]:]
            G.spread2(flat, y + 15, y + 15 + len(flat) // 2); flat = []
        late = lambda w, sl, k: stash_flush(w, sl) if nst > k else [x for g in dma_kv(w, sl) for x in g]
        if c == 14: flat += late('K', 2, 0) + late('V', 2, 1)
        if c == 15: flat += late('K', 3, 2)
        if opt.ptouch > 1 and c == opt.ptouch: flat += [I(x) for x in page_touch()]
        if c == opt.touchc:
            tb = Block('x'); q = 92 if c < 13 else S_WO; wo_srd(tb, q); wo_touch(tb, q); flat += tb.ins
        if flat: G.spread2(flat, y + 1 if c else 0, 25 if c == 0 else y + (39 if c < 14 else 20), opt.qcl)
    G.spread2(zero_acc(), 20, 580)
    for f in range(3): G.put(624 + 5 * f, *kread0(f))
    G.spread2(conv(0), 613, 626); G.spread2(conv(1), 627, 639)
    em = G.emit()
    if 'd' in opt.qf: em = [x for x in em if x.cls not in ('dma', 'vld') and 'm0' not in x.w]
    if 'b' in opt.qf: em = [x for x in em if x.op != 's_barrier']
    if 'h' in opt.qf:
        k = [0]
        def keep(x):
            if x.op != 's_barrier': return True
            k[0] += 1; return k[0] % 2 == 1
        em = [x for x in em if keep(x)]
    if 'w' in opt.qf: em = [x for x in em if not (x.op == '@waitlgkm' and x.wait == ['*'])]
    if 'r' in opt.qf: em = [x for x in em if x.cls != 'dsr']
    if 'z' in opt.qf: em = [x for x in em if x.op != 'v_accvgpr_write_b32']
    if 'x' in opt.qf: em = [x for x in em if x.op != 'ds_read_b128']
    if 't' in opt.qf: em = [x for x in em if x.op != 'ds_read_b64_tr_b16']
    b.extend(em)
    print('qproj est cycles', G.est_cycles(16), file=sys.stderr)
    G = Gaps(qk0_mfmas(), 8)
    for f in range(3, 8): G.put(5 * (f - 3) - 1, *kread0(f))
    G.spread2(conv(2), -1, 17); G.spread2(conv(3), 18, 27)
    b.extend(G.emit())
    stamp(b)
    return b

XBAR = 66
aK = 184
def kread(f, slot):
    kt, k = divmod(f, 4)
    return [I('ds_read_b128 %s, v%d offset:%d' % (ar(aK + 4 * f, 4) if opt.chain else vr(vF + 4 * (f % NB), 4), vKA + k, slot * 16384 + kt * 4096), 'f%d' % f)]
def vread(f, slot):
    dt = f - 8; r = vF + 4 * (f % NB)
    return [I('ds_read_b64_tr_b16 %s, v%d offset:%d' % (vr(r, 2), vVA + dt, slot * 16384), 'fx'),
            I('ds_read_b64_tr_b16 %s, v%d offset:%d' % (vr(r + 2, 2), vVA + dt, slot * 16384 + 4096), 'f%d' % f)]
def neg_adds(kt): return ['v_add_f32 v%d, v%d, v%d' % (rS(kt, qs) + i, rS(kt, qs) + i, vN + 4 * qs) for qs in range(5) for i in range(4)]
def sm_chain(par):
    C = []; pend = []
    for kt in range(2):
        for qs in range(5):
            s = rS(kt, qs); p = rP(par, qs) + 2 * kt
            e = ['v_exp_f32 v%d, v%d' % (s + i, s + i) for i in range(4)]
            a = ['v_add_f32 v%d, v%d, v%d' % (vL + qs, vL + qs, s + i) for i in range(4)]
            cv = ['v_cvt_pk_bf16_f32 v%d, v%d, v%d' % (p + i, s + 2 * i, s + 2 * i + 1) for i in range(2)]
            if opt.fs: C += [('v_mul_f32 v%d, s%d, v%d' % (s + i, sSC, s + i), kt, qs) for i in range(4)]
            C.append((e[0], kt, qs)); C += pend
            if opt.ones: C += [(x, kt, qs) for x in (e[1], e[2], cv[0], e[3])]; pend = [(cv[1], kt, qs)]
            else: C += [(x, kt, qs) for x in (e[1], a[0], e[2], a[1], cv[0], e[3], a[2])]; pend = [(a[3], kt, qs), (cv[1], kt, qs)]
    return C + pend
def qk_mfmas(first):
    bb = []
    if opt.chain and not first:
        for kt in range(2):
            for qs in range(5):
                s = rS(kt, qs)
                for k in range(4): bb.append(I('%s %s, %s, %s, %s' % (MF, vr(s, 4), ar(aK + 16 * kt + 4 * k, 4), vr(rQ(k, qs), 4), vr(vN + 4 * qs, 4) if k == 0 else vr(s, 4))))
        return bb
    for f in range(8):
        kt, k = divmod(f, 4)
        for qs in range(5):
            s = rS(kt, qs)
            c = ('0' if first else vr(vN + 4 * qs, 4)) if k == 0 else vr(s, 4)
            bb.append(I('%s %s, %s, %s, %s' % (MF, vr(s, 4), vr(vF + 4 * (f % NB), 4), vr(rQ(k, qs), 4), c)))
    return bb
def pv_mfmas(par):
    bb = []
    for f in range(8, 16):
        for qs in range(5):
            bb.append(I('%s %s, %s, %s, %s' % (MF, ar(aO(f - 8, qs), 4), vr(vF + 4 * (f % NB), 4), vr(rP(par, qs), 4), ar(aO(f - 8, qs), 4))))
    return bb
def ones_mfmas(par): return [I('%s %s, %s, %s, %s' % (MF, ar(aL + 4 * qs, 4), ar(aONE, 4), vr(rP(par, qs), 4), ar(aL + 4 * qs, 4))) for qs in range(5)]
SPLIT = [None]; SMPOS = [None]
def period(j, peel=False, nodma=False):
    pu, pn = j % 2, (j + 1) % 2
    ks, vs = (j + 1) % 4, j
    lg = qk_mfmas(False) + pv_mfmas(pu)
    bb = []; ix = {-1: -1}
    on = ones_mfmas(pu) if opt.ones else []
    for i, x in enumerate(lg):
        bb.append(x); ix[i] = len(bb) - 1
        if on and i in ((40, 46, 52, 58, 64) if opt.onesadj else (44, 49, 54, 59, 64)): bb.append(on.pop(0))
    G = Gaps(bb, 8); N = len(bb)
    for f in range(4 if opt.chain else 3, 16):
        if opt.chain and f < 8: G.put(3 * (f - 4), *kread(f, ks)); continue
        G.put(ix[5 * (f - 3) - 1] if f > 3 else 0, *(kread(f, ks) if f < 8 else vread(f, vs)))
        if f % 2 == 0 and f < 15: G.put(ix[5 * f] - 1, I('@waitlgkm f%d' % (f + 1)))
    if opt.chain: G.put(19, I('@waitlgkm f7'))
    G.put(ix[XBAR], I('@waitlgkm *'), I('@waitvm K%d,V%d' % ((j + 2) % 4, (j + 1) % 4)), I('s_barrier'))
    if peel and j == 2:
        for f, g in ((8, XBAR + 1), (9, 69), (10, 74)): G.put(ix[g], *vread(f, 3))
    else:
        for f, g in ((0, XBAR + 1), (1, 69), (2, 71), (3, 73)) if opt.chain else ((0, XBAR + 1), (1, 69), (2, 74)): G.put(ix[g], *kread(f, (j + 2) % 4))
        G.put(N - 1, I('@waitlgkm f3' if opt.chain else '@waitlgkm f1'))
    if not opt.chain: G.put(9, I('@waitlgkm f3'))
    slots = [2, 7, 12, 17, 22, 27, 32, 37, 42, 47, 52, 57, 62] if opt.dsp == 5 else [2 + opt.dsp * m for m in range(8)]
    dl = dma_kv('K', j) + dma_kv('V', (j + 3) % 4)
    if peel: dl = dma_kv('V', 3) if j == 0 else dma_wo(j)
    if nodma: dl = []
    extra = []
    if peel and opt.sb == 1 and j < 2:
        tb = Block('x'); tail_setup_b(tb)
        cut = [k for k, x in enumerate(tb.ins) if x.w == {'v%d' % (vOD + 3)}][0] + 1
        extra = tb.ins[:cut] if j == 0 else tb.ins[cut:]
    if peel and j == 0: extra = extra + [x for g in dma_wo(0) for x in g]
    if not peel and opt.sb == 2 and j < 3 and not nodma:
        tb = Block('x'); tail_setup_b(tb); n3 = len(tb.ins) // 3
        cuts = [0] + [next(k for k in range(n3 * q, len(tb.ins)) if tb.ins[k].op not in ('s_addc_u32', 's_cselect_b32')) for q in (1, 2)] + [len(tb.ins)]
        inloop = tb.ins[cuts[j]:cuts[j + 1]]
    for m, g in enumerate(dl):
        p = ix[slots[m]]
        if not peel:
            ce, cl = opt.cape.strip()[m], opt.capl.strip()[m]
            if ce != 'x': G.put(p - 1, I('@raw s_waitcnt vmcnt(%s)' % ce))
            if cl != ce: G.put(p - 1, I('s_cbranch_vccnz L_t%d_%d' % (j, m)), I('@raw s_waitcnt vmcnt(%s)' % cl), I('L_t%d_%d:' % (j, m)))
        if len(g) == 2 and g[0].cls == 'salu': G.put(p - 1, g[0]); G.put(p, g[1])
        elif len(g) == 2: G.put(p, g[0]); G.put(p + 1, g[1])
        elif len(g) == 3: G.put(p - 2, g[0]); G.put(p - 1, g[1]); G.put(p, g[2])
        else: G.put(p, *g)
    if j == 3:
        G.put(ix[71], I('s_sub_u32 s%d, s%d, 1' % (sCNT, sCNT))); G.put(ix[77], I('s_cmp_lg_u32 s%d, 0' % sCNT))
        if opt.ramp: G.put(ix[74], I('s_cmp_le_u32 s%d, s37' % sCNT), I('s_cselect_b64 vcc, 1, vcc'))
        elif opt.rel: G.put(ix[74], I('s_cmp_le_u32 s%d, %d' % (sCNT, opt.rel)), I('s_cselect_b64 vcc, 1, vcc'))
    if opt.fbk and not peel and (j + 1) % opt.fbk == 0:
        G.put(ix[74], I('s_add_u32 s37, s37, 1')); G.put(ix[75], I('v_mov_b32 v251, s37'))
        G.put(ix[76], I('buffer_store_dword v251, v250, s[%d:%d], 0 offen sc1' % (S_F, S_F + 3)))
        G.put(ix[76], I('buffer_load_dword v252, v249, s[%d:%d], 0 offen sc1' % (S_F, S_F + 3)))
    if opt.fbk and not peel and j % opt.fbk == 0:
        G.put(ix[opt.fbpos], I('v_cmp_le_u32 vcc, s37, v252'))
        G.put(ix[opt.fbpos + 1], I('s_and_b32 vcc_lo, vcc_lo, s36'), I('s_bcnt1_i32_b32 vcc_lo, vcc_lo'))
        G.put(ix[opt.fbpos + 2], I('s_cmp_ge_u32 vcc_lo, %d' % opt.fbn), I('s_cselect_b64 vcc, 1, 0'))
    if peel and j == 0: G.put(ix[40], I('buffer_load_dword v244, v%d, s[%d:%d], 0 offen sc1' % (vDA, S_D, S_D + 3)))
    chn, chu = sm_chain(pn), sm_chain(pu)
    if SMPOS[0] is None:
        s0 = 18; gaps = list(range(s0, N)) + list(range(0, s0))
        gaps += list(range(s0, 24))
        lo = [ix[15 + 20 * kt + qs] + 4 - s0 for (_, kt, qs) in chn]
        hi = [(N - s0 + qs - 1) if kt == 0 else (N - s0 + 19 + qs) for (_, kt, qs) in chn]
        if opt.chain:
            s0 = 7; gaps = list(range(s0, N)) + list(range(0, s0))
            lo = [ix[20 * kt + 4 * qs + 3] + 4 - s0 for (_, kt, qs) in chn]
            hi = [N - s0 + 20 * kt + 4 * qs - 1 for (_, kt, qs) in chn]
        hi = [min(h, N - 1) for h in hi]
        _, pos = G.dp([x for x, _, _ in chn], gaps, lo, hi)
        SMPOS[0] = [gaps[p] for p in pos]; SPLIT[0] = sum(p < N - s0 for p in pos)
    for k, (x, _, _) in enumerate(chu):
        if k >= SPLIT[0]: G.put(SMPOS[0][k], I(x))
    for k, (x, _, _) in enumerate(chn):
        if k < SPLIT[0]: G.put(SMPOS[0][k], I(x))
    if not peel and opt.sb == 2 and j < 3 and not nodma: G.spread2(inloop, 0, N - 1)
    if peel and opt.sent and j == opt.pfper:
        pf = ['v_accvgpr_write_b32 a%d, -1' % (216 + i) for i in range(4)] + [I('buffer_store_dwordx4 a[216:219], v%d, s[%d:%d], s%d offen offset:%d sc1' % (vOL, S_P, S_P + 3, sPW + q, 1024 * k), 'pf') for q in range(3) for k in range(3)]
        if j == 2: G.spread2(pf, 0, 60)
        else: extra = extra + [x if isinstance(x, Ins) else I(x) for x in pf]
    if extra and j == 0: G.spread2(extra, ix[slots[3]] + 2, N - 1)
    if extra and j == 1: G.spread2(extra, ix[slots[4]] + 1, N - 1)
    if j == 3 or opt.pstamps: G.put(ix[XBAR], *stamp_ins())
    return G

def k1_attention():
    P = [period(j) for j in range(4)]
    print('period est cycles', [g.est_cycles(16) for g in P], [P[0].used(i) for i in range(len(P[0].bb))], file=sys.stderr)
    pro = Block('pro'); T = vT
    pro('L_start:')
    pro('@waitlgkm *\n@waitvm K1,V0\ns_barrier')
    for f in range(4 if opt.chain else 3): pro.extend(kread(f, 1))
    if opt.peel0:
        for g in dma_kv('K', 0) + dma_kv('V', 3): pro.extend(g)
    if opt.fallback: pro('s_cmp_lg_u32 s%d, 0\ns_cbranch_scc1 L_nomax' % sEX)
    mx = Block('pro_max')
    for qs in range(5):
        a, c = rS(0, qs), rS(1, qs); t = T + 2 * qs
        mx('v_max3_f32 v%d, v%d, v%d, v%d\nv_max3_f32 v%d, v%d, v%d, v%d' % (t, a, a + 1, a + 2, t + 1, c, c + 1, c + 2))
        mx('v_max3_f32 v%d, v%d, v%d, v%d\nv_max_f32 v%d, v%d, v%d' % (t, t, a + 3, c + 3, t, t, t + 1))
    max_finish(mx, T)
    p2 = Block('pro2'); p2('L_nomax:')
    p2.extend(neg_adds(0) + neg_adds(1) + [x for x, _, _ in sm_chain(0)[:SPLIT[0]]])
    if opt.touchc > 15 or opt.touchc < 13: wo_srd(p2)
    if opt.touchc > 15: wo_touch(p2)
    if opt.sb == 0: tail_setup_b(p2)
    p2('@waitlgkm f3' if opt.chain else '@waitlgkm f1')
    p2('s_mov_b32 s%d, 7' % sCNT)
    if opt.asym and not opt.ramp: p2('s_cmp_lt_u32 s%d, 2\ns_cselect_b64 vcc, 1, 0' % sJP)
    elif opt.ramp: p2('s_mov_b64 vcc, 0\ns_cmp_lt_u32 s%d, 2\ns_cselect_b32 s37, %d, %d' % (sJP, 7 - opt.ramp, opt.rel))
    elif opt.rel: p2('s_mov_b64 vcc, 0')
    if opt.thre and not opt.fbk and not opt.asym: p2('s_getreg_b32 s38, hwreg(HW_REG_XCC_ID, 0, 1)\ns_mov_b32 vcc_lo, s38\ns_mov_b32 vcc_hi, 0')
    if opt.fbk:
        p2('s_lshl_b32 s38, 1, s%d\ns_lshl_b32 s39, 16, s%d\ns_or_b32 s38, s38, s39\ns_andn2_b32 s36, 0xff, s38\ns_mov_b32 s37, 0\ns_mov_b64 vcc, 0\nv_mov_b32 v252, 0' % (sJP, sKQ))
    stamp(p2)
    if opt.peel0:
        p2.extend(period(0, nodma=True).emit()); p2('s_branch L_loop1')
    lp = [Block('per%d' % j) for j in range(4)]
    lp[0]('L_loop:'); lp[1]('L_loop1:')
    for j in range(4): lp[j].extend(P[j].emit())
    lp[3]('s_cbranch_scc1 L_loop')
    pe = [Block('pe%d' % j) for j in range(4)]
    pe[0].extend(period(0, True).emit()); pe[1].extend(period(1, True).emit())
    pe[1]('v_readlane_b32 s38, v244, 0\nv_readlane_b32 s39, v244, 1\ns_and_b32 s38, s38, 0xffff\ns_lshr_b32 s39, s39, 16\ns_min_u32 s38, s38, s39\ns_cmp_lt_u32 s38, 4\ns_cbranch_scc1 L_spin_d')
    pe[2]('L_back_d:')
    pe[2].extend(period(2, True).emit())
    sp = pe[3]; sp.name = 'spin_d'
    sp('L_spin_d:\ns_mov_b32 s40, %d\nL_spin_d2:\ns_sleep 4\nbuffer_load_dword v244, v%d, s[%d:%d], 0 offen sc1\ns_waitcnt vmcnt(0)' % (opt.spin, vDA, S_D, S_D + 3))
    sp('v_readlane_b32 s38, v244, 0\nv_readlane_b32 s39, v244, 1\ns_and_b32 s38, s38, 0xffff\ns_lshr_b32 s39, s39, 16\ns_min_u32 s38, s38, s39\ns_cmp_ge_u32 s38, 4\ns_cbranch_scc1 L_back_d')
    sp('s_sub_u32 s40, s40, 1\ns_cmp_lg_u32 s40, 0\ns_cbranch_scc1 L_spin_d2\ns_branch L_back_d')
    return pro, mx, p2, lp, pe

def max_finish(b, T):
    for qs in range(5): b('v_mov_b32 v%d, v%d' % (T + 2 * qs + 1, T + 2 * qs))
    for qs in range(5): b('v_permlane16_swap_b32 v%d, v%d' % (T + 2 * qs, T + 2 * qs + 1))
    for qs in range(5): b('v_max_f32 v%d, v%d, v%d' % (T + 2 * qs, T + 2 * qs, T + 2 * qs + 1))
    for qs in range(5): b('v_mov_b32 v%d, v%d' % (T + 2 * qs + 1, T + 2 * qs))
    for qs in range(5): b('v_permlane32_swap_b32 v%d, v%d' % (T + 2 * qs, T + 2 * qs + 1))
    for qs in range(5): b('v_max_f32 v%d, v%d, v%d' % (T + 2 * qs, T + 2 * qs, T + 2 * qs + 1))
    for qs in range(5):
        for i in range(4): b('v_sub_f32 v%d, 0, v%d' % (vN + 4 * qs + i, T + 2 * qs))

def poll_test(reg, mask, thr=1): return ['v_cmp_le_u32 vcc, %d, v%d' % (thr, reg), 's_and_b32 s38, vcc_lo, s%d' % mask, 's_cmp_lg_u32 s38, s%d' % mask]
def spin_block(name, addr, mask, thr=1):
    sp = Block('spin_' + name)
    sp('L_spin_%s:\ns_mov_b32 s40, %d\nL_spin_%s2:\ns_sleep 1\nbuffer_load_dword v244, v%d, s[%d:%d], 0 offen sc1\ns_waitcnt vmcnt(0)' % (name, opt.spin, name, addr, S_F, S_F + 3))
    sp.extend(poll_test(244, mask, thr))
    sp('s_cbranch_scc0 L_back_%s\ns_sub_u32 s40, s40, 1\ns_cmp_lg_u32 s40, 0\ns_cbranch_scc1 L_spin_%s2\ns_branch L_back_%s' % (name, name, name))
    return sp

def k1_tail():
    t1 = Block('tail1'); t2 = Block('tail2'); L = vLANE
    t1.extend([x for x, _, _ in sm_chain(1)[SPLIT[0]:]])
    t1.extend(ones_mfmas(1))
    G = Gaps(pv_mfmas(1), 8)
    for f in range(11, 16): G.put(5 * (f - 11) + 4, *vread(f, 3))
    R = vN + 9
    rc = ['v_accvgpr_read_b32 v%d, a%d' % (R + qs, aL + 4 * qs) for qs in range(5)]
    rc += ['v_add_f32 v%d, v%d, v%d' % (R + 5, R, R + 1), 'v_add_f32 v%d, v%d, v%d' % (R + 6, R + 2, R + 3), 'v_add_f32 v%d, v%d, v%d' % (R + 5, R + 5, R + 4), 'v_add_f32 v%d, v%d, v%d' % (R + 5, R + 5, R + 6)]
    if opt.fallback:
        rc += ['v_cmp_ngt_f32 vcc, s%d, v%d' % (sTH, R + 5), 's_lshl_b32 s39, s%d, 2' % sW, 's_add_u32 s39, s39, %d' % BADB, 'v_mov_b32 v%d, s39' % (R + 6),
               's_cmp_lg_u64 vcc, 0', 's_cselect_b32 s38, 1, 0', 'v_mov_b32 v%d, s38' % (R + 5), I('ds_write_b32 v%d, v%d' % (R + 6, R + 5), 'bad'), 'v_mov_b32 v%d, %d' % (R + 6, BADB)]
    rc += ['v_rcp_f32 v%d, v%d' % (vN + 2 * i, R + i) for i in range(5)]
    G.spread2(rc, 2, 11)
    if opt.fallback:
        G.put(12, I('@waitlgkm bad'), I('@waitvm wo0,wo1'), I('s_barrier'), I('ds_read_b128 %s, v%d' % (vr(R + 7, 4), R + 6)))
        G.put(16, I('v_or_b32 v%d, v%d, v%d' % (R + 5, R + 7, R + 8)), I('v_or3_b32 v%d, v%d, v%d, v%d' % (R + 5, R + 5, R + 9, R + 10)))
        G.put(17, I('v_readfirstlane_b32 s38, v%d' % (R + 5)))
        G.put(18, I('s_cmp_lg_u32 s%d, 0' % sEX), I('s_cselect_b32 s38, 0, s38'), I('s_cmp_lg_u32 s38, 0'), I('s_cbranch_scc1 L_fallback'))
    def out(kl):
        Lst = []
        for qs in range(5):
            idx = 5 * kl + qs
            d = BS[0][idx] if kl < 2 else hole(idx % 10); e = hole(10 + idx % 5)
            src = [aO(2 * kl, qs) + i for i in range(4)] + [aO(2 * kl + 1, qs) + i for i in range(4)]
            tmp = [d + i for i in range(4)] + [e + i for i in range(4)]
            Lst += ['v_accvgpr_read_b32 v%d, a%d' % (tmp[i], src[i]) for i in range(8)]
            if kl and opt.pk2: Lst += ['v_pk_mul_f32 %s, %s, %s op_sel_hi:[1,0]' % (vr(tmp[i], 2), vr(tmp[i], 2), vr(vN + 2 * qs, 2)) for i in range(0, 8, 2)]
            else: Lst += ['v_mul_f32 v%d, v%d, v%d' % (tmp[i], vN + 2 * qs, tmp[i]) for i in range(8)]
            Lst += ['v_cvt_pk_bf16_f32 v%d, v%d, v%d' % (d + i, tmp[2 * i], tmp[2 * i + 1]) for i in range(4)]
            if opt.stcap: Lst += [I('@raw s_waitcnt vmcnt(%d)' % opt.stcap)]
            Lst += [I('buffer_store_dwordx4 %s, v%d, s[%d:%d], s%d offen offset:%d%s' % (vr(d, 4), vOL + qs // 4, S_O, S_O + 3, sOK + kl, 1024 * (qs % 4), opt.o_st_pol), 'Oa' if kl < 2 else 'O')]
            if kl >= 2: Lst += [I('ds_write_b128 v%d, %s offset:%d' % (vXW, vr(d, 4), 1024 * (idx - 10)))]
        return Lst
    sDL = [30, 33, 28, 36, 37, 34, 29]
    b0 = [WOB[c % 5] for c in range(8)]; b1 = [WOB[(c ^ 1) % 5] if c < 2 or opt.early else WOB[c % 5] for c in range(8)]
    sc = ['s_lshr_b32 s41, s%d, 1' % sW]
    for c in range(7):
        d0, d1 = b0[c + 1] - b0[c], b1[c + 1] - b1[c]
        sc += ['s_mul_i32 s%d, s41, 0x%x' % (sDL[c], (d1 - d0) & 0xffffffff), 's_add_u32 s%d, s%d, 0x%x' % (sDL[c], sDL[c], d0 & 0xffffffff)] if d0 != d1 else ['s_mov_b32 s%d, 0x%x' % (sDL[c], d0 & 0xffffffff)]
    if opt.early: sc += ['s_lshl_b32 s26, 0x1111, s%d' % sW, 's_and_b32 s26, s26, s%d' % MK1[1], 's_xor_b32 s27, s26, s%d' % MK1[1]]
    G.spread2(out(0) + sc, 19, 39)
    t1.extend(G.emit(-1, 18)); t2.extend(G.emit(19, 39))
    for kl in (2, 3, 1) if not opt.early else (1, 2, 3):
        mark = len(t2.ins) + 40; t2.extend(out(kl))
    t2('v_mov_b32 v245, 1\nv_mov_b32 v254, 2')
    if opt.early: t2('@waitvm Oa\nbuffer_store_dword v245, v%d, s[%d:%d], 0 offen sc1' % (vFA, S_F, S_F + 3))
    stamp(t2)
    bb = []; frs = []; first = []; last = []
    AR = [32, 36, 40, 44, 8, 12] if opt.t2ch else [32, 36, 40, 44]; NA = len(AR)
    def mf(c, kp, n, f, fi):
        a = 4 * (5 * n + f)
        bb.append(I('%s %s, %s, %s, %s' % (MF, ar(a, 4), vr(AR[fi % NA], 4), vr(BS[c % 3][5 * kp + f], 4), '0' if (c, kp) == (0, 0) else ar(a, 4))))
    for c in range(8):
        if opt.t2ch:
            for n in range(8) if c < 7 else (4, 5, 6, 7, 1, 2, 3, 0):
                fi = len(frs); frs += [(c, 0, n), (c, 1, n)]; first += [len(bb), len(bb) + 1]
                for f in range(5): mf(c, 0, n, f, fi); mf(c, 1, n, f, fi + 1)
                last += [len(bb) - 2, len(bb) - 1]
            continue
        seq = [(kp, n) for kp in range(2) for n in range(8)]
        if c == 7: seq = [(kp, n) for kp in range(2) for n in (4, 5, 6, 7)] + [(kp, n) for kp in range(2) for n in (1, 2, 3, 0)]
        for kp, n in seq:
            fi = len(frs); frs.append((c, kp, n)); first.append(len(bb))
            for f in range(5): mf(c, kp, n, f, fi)
            last.append(len(bb) - 1)
    G = Gaps(bb, 8)
    bars = {0: 'wo0,wo1,wo2', 2: '', 3: 'wo3,wo4', 5: 'wo5,wo6', 7: 'wo7'}
    if opt.early: bars = {0: 'wo0,wo1,wo2', 2: 'wo3', 4: 'wo4,wo5', 6: 'wo6,wo7'}
    if opt.fallback: bars[0] = 'wo2'
    for c, tg in bars.items():
        G.put(80 * c - 14 if c or not opt.fallback else opt.z0pos, *([I('@waitlgkm *')] + ([I('@waitvm ' + tg)] if tg else []) + [I('s_barrier')]))
    for fi, (c, kp, n) in enumerate(frs):
        g = max(last[fi - NA] if fi >= NA else -1, first[fi] - (18 if opt.t2ch else 16), -1)
        if c in bars and c: g = max(g, 80 * c - 13 + (fi % 2 if opt.t2ch else 0))
        r = AR[fi % NA]
        G.put(g, I('ds_read_b64_tr_b16 %s, v%d offset:%d' % (vr(r, 2), vRA[n], kp * 8192), 'wx'), I('ds_read_b64_tr_b16 %s, v%d offset:%d' % (vr(r + 2, 2), vRA[n], kp * 8192 + 4096), 'w%d' % fi))
        if kp == 1 and c < 7:
            G.put(g + 1, I('v_add_u32 v%d, s%d, v%d' % (vRA[n], sDL[c], vRA[n])))
        if fi % 2 == 0 and fi: G.put(first[fi] - 1, I('@waitlgkm w%d' % (fi + 1)))
    z0 = opt.z0pos + 1 if opt.fallback else 0
    for i in range(10): G.put(z0 + i // 2 + (i >= 8), I('ds_read_b128 %s, v%d offset:%d' % (vr(BS[1][i], 4), vXR, 1024 * i), 'xr'))
    G.put(opt.flagpos, I('@waitvm O,Oa'), I('buffer_store_dword v254, v%d, s[%d:%d], 0 offen sc1' % (vFA, S_F, S_F + 3)))
    G.put(z0 + 13, I('@waitlgkm xr'), I('s_barrier'))
    flat = lambda d: [x for g in d for x in g]
    def oload(c):
        return [I('buffer_load_dwordx4 %s, v%d, s[%d:%d], s%d offen offset:%d%s' % (vr(BS[c % 3][5 * kp + f], 4), vOL + 2 * kp + f // 4, S_OR, S_OR + 3, sORO + c, 1024 * (f % 4), opt.o_ld_pol)) for kp in range(2) for f in range(5)]
    G.spread2(flat(dma_wo(3) + dma_wo(4)), z0 + 15, z0 + 62)
    ck = opt.chkpos
    checks = [('o1', opt.pollpos, ck, 26 if opt.early else MK1[1], 1 if opt.early else 2)]
    if opt.early: checks.append(('ob', opt.chkb - opt.pleadb, opt.chkb, 27, 2))
    checks += [('o2', opt.chk2 - opt.plead, opt.chk2, MK1[2], 2), ('o3', opt.chk3 - opt.plead, opt.chk3, MK1[3], 2)]
    for name, pp, cp, mk, thr in checks:
        G.put(pp, I('buffer_load_dword v244, v%d, s[%d:%d], 0 offen sc1' % (vPA, S_F, S_F + 3)))
        G.put(cp, *[I(x) for x in poll_test(244, mk, thr) + ['s_cbranch_scc1 L_spin_' + name]])
    def even(lst, lo, hi):
        mem = [x for x in lst if x.cls in ('dma', 'vld')]; k = 0; pend = []
        for x in lst:
            if x.cls in ('dma', 'vld'):
                g = lo + (k * (hi - lo)) // max(len(mem) - 1, 1); k += 1
                for j, y in enumerate(pend): G.put(g - len(pend) + j, y)
                G.put(g, x); pend = []
            else: pend.append(x)
    c2, c3 = opt.chk2, opt.chk3
    G.spread2(oload(2), ck + 1, ck + 8)
    if opt.early:
        even(oload(3), opt.chkb + 1, opt.chkb + 24); even(flat(dma_wo(5)), opt.chkb + 29, c2 - 3)
        even(oload(4), c2 + 1, c2 + 36); even(flat(dma_wo(6)), c2 + 41, c2 + 66)
        even(oload(5), c2 + 70, c3 - 3); even(flat(dma_wo(7)), c3 + 3, c3 + 32); even(oload(6), c3 + 36, c3 + 70)
        even(oload(7), max(c3 + 74, 401), c3 + 115)
    else:
        even(oload(3), ck + 14, c2 - 42); even(flat(dma_wo(5)), max(c2 - 38, 150), c2 - 3)
        even(oload(4), c2 + 1, c2 + 40); even(flat(dma_wo(6)), c2 + 45, c3 - 48)
        even(oload(5), c3 - 44, c3 - 3); even(oload(6), c3 + 1, c3 + 42)
        even(flat(dma_wo(7)), c3 + 47, c3 + 80); even(oload(7), max(c3 + 84, 401), c3 + 125)
    if opt.sent:
        G.put(opt.flagpos + 1, I('@waitvm pf'), I('buffer_store_dword v245, v%d, s[%d:%d], 0 offen sc1' % (vFA + 1, S_F, S_F + 3)))
        G.put(575, I('buffer_load_dword v244, v%d, s[%d:%d], 0 offen sc1' % (vPA + 1, S_F, S_F + 3)))
    RG = BS[0] + BS[2]
    order = [5 * nl + f for nl in (1, 2, 3, 0) for f in range(5)]
    for i in range(20): G.put(574 + 2 * i + (i % 5 + 1) // 2 * 0 if opt.t2ch else 585 + (3 * i) // 2, I('ds_write_b128 v%d, %s offset:%d' % (vYW, ar(80 + 4 * i, 4), 1024 * i), 'yw'))
    G.put(619, I('@waitlgkm yw'), I('s_barrier'))
    for k, i in enumerate(order): G.put(620 + k, I('ds_read_b128 %s, v%d offset:%d' % (vr(RG[i], 4), vYR, 1024 * i)))
    if opt.tstamps:
        for g in (opt.flagpos + 1, 79, opt.chkpos - 1, opt.chkpos + 1, 159, 164, opt.chk2 - 1, opt.chk2 + 1, 239, opt.chk3 - 1, opt.chk3 + 1, 399, 479, 559): G.put(g, *stamp_ins())
    print('oproj est cycles', G.est_cycles(16), file=sys.stderr)
    if opt.fallback: t2.ins[mark:mark] = G.g[-1]; G.g[-1] = []
    blks = [t2]; lo = -1
    for name, pp, cp, mk, thr in checks:
        blks[-1].extend(G.emit(lo, cp)); lo = cp + 1
        blks.append(Block('t_' + name)); blks[-1]('L_back_%s:' % name)
    t3 = blks[-1]
    t3.extend(G.emit(lo, 639))
    stamp(t3)
    for k, i in enumerate(order):
        tm = BS[1][k % 10]
        for e in range(4): t3('v_accvgpr_read_b32 v%d, a%d' % (tm + e, 4 * i + e))
        for e in range(4): t3('v_add_f32 v%d, v%d, v%d' % (RG[i] + e, RG[i] + e, tm + e))
        nl, f = divmod(i, 5)
        if nl and not opt.pbf: t3('buffer_store_dwordx4 %s, v%d, s[%d:%d], s%d offen offset:%d%s' % (vr(RG[i], 4), vOL + f // 4, S_P, S_P + 3, sPW + nl - 1, 1024 * (f % 4), opt.p_st_pol), 'P')
        if nl and opt.pbf:
            d = RG[5 * nl + f // 2 * 2] + 2 * (f % 2)
            t3('v_cvt_pk_bf16_f32 v%d, v%d, v%d\nv_cvt_pk_bf16_f32 v%d, v%d, v%d' % (d, RG[i], RG[i] + 1, d + 1, RG[i] + 2, RG[i] + 3))
            if f % 2 or f == 4: t3('buffer_store_dwordx%d %s, v%d, s[%d:%d], s%d offen offset:%d%s' % (2 if f == 4 and opt.sent else 4, vr(RG[5 * nl + f // 2 * 2], 2 if f == 4 and opt.sent else 4), vOL, S_P, S_P + 3, sPW + nl - 1, 1024 * (f // 2), opt.p_st_pol), 'P')
    if not opt.sent:
        t3('@waitvm P\nbuffer_store_dword v245, v%d, s[%d:%d], 0 offen sc1' % (vFA + 1, S_F, S_F + 3))
        stamp(t3)
        t3('buffer_load_dword v244, v%d, s[%d:%d], 0 offen sc1' % (vPA + 1, S_F, S_F + 3))
    else: stamp(t3)
    t3.extend(poll_test(244, sMK2) + ['s_cbranch_scc1 L_spin_p'])
    t4 = Block('tail4'); t4('L_back_p:')
    spins = [spin_block(name, vPA, mk, thr) for name, pp, cp, mk, thr in checks] + [spin_block('p', vPA + 1, sMK2)]
    LD = [BS[1][3 * (f // 2) + j] for j in (1, 2, 3) for f in (0, 2, 4)] if opt.sent else None
    def preg(j, f): return LD[3 * (j - 1) + f // 2] if opt.sent else RG[5 * j + f]
    if opt.sent:
        blks.append(t4); t4('s_mov_b32 s41, %d' % opt.spin)
        t4 = Block('try'); t4('L_try:')
    else: stamp(t4)
    for f in range(0, 5, 2 if opt.pbf else 1):
        for j in (1, 2, 3):
            if opt.pbf: t4('buffer_load_dwordx%d %s, v%d, s[%d:%d], s%d offen offset:%d%s' % (2 if f == 4 and opt.sent else 4, vr(preg(j, f), 2 if f == 4 and opt.sent else 4), vOL, S_P, S_P + 3, sPR + j - 1, 1024 * (f // 2), opt.p_ld_pol))
            else: t4('buffer_load_dwordx4 %s, v%d, s[%d:%d], s%d offen offset:%d%s' % (vr(RG[5 * j + f], 4), vOL + f // 4, S_P, S_P + 3, sPR + j - 1, 1024 * (f % 4), opt.p_ld_pol))
    if opt.sent:
        regs = [preg(j, f) + e for f in (0, 2, 4) for j in (1, 2, 3) for e in range(2 if f == 4 else 4)]
        t4('v_max_u32 v244, v%d, v%d' % (regs[0], regs[1]))
        for k in range(2, len(regs), 2): t4('v_max3_u32 v244, v244, v%d, v%d' % (regs[k], regs[k + 1]))
        t4('v_cmp_eq_u32 vcc, -1, v244\ns_cbranch_vccnz L_spin_s')
        blks.append(t4); t4 = Block('fin'); t4('L_fin:'); stamp(t4)
        sp = Block('spin_s')
        sp('L_spin_s:\ns_sub_u32 s41, s41, 1\ns_cmp_eq_u32 s41, 0\ns_cbranch_scc1 L_fin\ns_sleep 1\nbuffer_load_dword v244, v27, s[%d:%d], 0 offen sc1\ns_waitcnt vmcnt(0)' % (S_P, S_P + 3))
        sp('v_cmp_eq_u32 vcc, -1, v244\ns_cbranch_vccnz L_spin_s\ns_branch L_try')
        spins.append(sp)
    blks.append(t4)
    if opt.pbf: t4('s_mov_b32 s39, 0xffff0000')
    for f in range(5):
        a, b1, b2, b3 = RG[f], RG[5 + f], RG[10 + f], RG[15 + f]
        if opt.pbf:
            for j in (1, 2, 3):
                src = preg(j, f // 2 * 2) + 2 * (f % 2); tm = RG[5 * j + 1]
                t4('v_lshlrev_b32 v%d, 16, v%d\nv_and_b32 v%d, s39, v%d\nv_lshlrev_b32 v%d, 16, v%d\nv_and_b32 v%d, s39, v%d' % (tm, src, tm + 1, src, tm + 2, src + 1, tm + 3, src + 1))
            b1, b2, b3 = RG[6], RG[11], RG[16]
        for e in range(4): t4('v_add_f32 v%d, v%d, v%d\nv_add_f32 v%d, v%d, v%d' % (a + e, a + e, b1 + e, b2 + e, b2 + e, b3 + e))
        for e in range(4): t4('v_add_f32 v%d, v%d, v%d' % (a + e, a + e, b2 + e))
        t4('v_cvt_pk_bf16_f32 v%d, v%d, v%d\nv_cvt_pk_bf16_f32 v%d, v%d, v%d\ns_mov_b32 s38, %d' % (a, a, a + 1, a + 1, a + 2, a + 3, 32768 * f))
        t4('buffer_store_dwordx2 %s, v%d, s[%d:%d], s38 offen%s' % (vr(a, 2), vST, S_OUT, S_OUT + 3, opt.out_pol))
    if opt.stamps: t4('s_waitcnt vmcnt(0)')
    stamp(t4)
    if opt.twice: t4('s_add_u32 s63, s3, 0\ns_cmp_lt_u32 s%d, 100\ns_cbranch_scc1 L_again' % sTSN)
    t4('s_endpgm')
    for b in blks:
        if 'c' in opt.t2x: b.ins = [x for x in b.ins if not (x.op == 's_cbranch_scc1' and 'spin_o' in x.text)]
        if 'p' in opt.t2x: b.ins = [x for x in b.ins if not (x.op == 's_cbranch_scc1' and 'spin_p' in x.text)]
        if 'o' in opt.t2x: b.ins = [x for x in b.ins if not (x.cls == 'vld' and 's[16:19]' in x.text)]
        if 'w' in opt.t2x: b.ins = [x for x in b.ins if x.cls != 'dma']
        if 's' in opt.t2x: b.ins = [x for x in b.ins if x.tag not in ('O', 'Oa')]
    return t1, blks, spins

def k1_fallback():
    b = Block('fb'); T = vT
    b('L_fallback:')
    b('s_waitcnt vmcnt(0) lgkmcnt(0)\ns_nop 15\ns_barrier')
    b('v_and_b32 v1, 15, v%d\nv_lshrrev_b32 v2, 4, v%d\nv_lshlrev_b32 v2, 4, v2\nv_lshl_add_u32 v%d, v1, 8, v2' % (vLANE, vLANE, T + 10))
    for qs in range(5): b('v_mov_b32 v%d, 0xff800000' % (T + 2 * qs))
    b('s_mov_b32 s39, 0')
    lp = Block('fbl'); lp('L_fb_loop:')
    for k in range(4): lp('buffer_load_dwordx4 %s, v%d, s[%d:%d], s39 offen offset:%d' % (vr(vF + 4 * k, 4), T + 10, S_K, S_K + 3, 64 * k))
    lp('s_waitcnt vmcnt(0)')
    lp.extend(qk_mfmas(True)[:20])
    lp('s_nop 15')
    for qs in range(5):
        s = rS(0, qs); t = T + 2 * qs
        lp('v_max3_f32 v%d, v%d, v%d, v%d\nv_max3_f32 v%d, v%d, v%d, v%d' % (t, t, s, s + 1, t, t, s + 2, s + 3))
    lp('s_add_u32 s39, s39, 4096\ns_cmp_lt_u32 s39, 262144\ns_cbranch_scc1 L_fb_loop')
    e = Block('fbe')
    if opt.twice: e('L_again:\ns_waitcnt vmcnt(0) lgkmcnt(0)\ns_barrier\ns_mov_b32 s34, 0x7f800000\ns_mov_b32 s36, 0x3e000000')
    max_finish(e, T)
    e.extend(zero_acc())
    e('s_and_b32 s40, s%d, 1\ns_lshl_b32 s%d, s40, 12\ns_mov_b32 s%d, s%d' % (sW, sKO, sVO, sKO))
    for g in dma_kv('K', 0) + dma_kv('K', 1) + dma_kv('K', 2) + dma_kv('K', 3) + dma_kv('V', 0) + dma_kv('V', 1) + dma_kv('V', 2): e.extend(g)
    e('s_mov_b32 s%d, 1\ns_waitcnt vmcnt(0)\ns_barrier' % sEX)
    G = Gaps(qk0_mfmas(), 8)
    for f in range(8): G.put(max(5 * (f - 3) - 1, -1), *kread0(f))
    e.extend(G.emit())
    e('s_nop 7\ns_branch L_start')
    return b, lp, e

def kernel_text(kname, blocks, traces, vgpr, accum, sgpr=102):
    d = {b.name: b for b in blocks}
    assert len(d) == len(blocks)
    place_waits(d, traces)
    n = place_nops(d, traces)
    print(kname[:12], 'nop states inserted', n, 'instructions', {b.name: len(b.ins) for b in blocks}, file=sys.stderr)
    t = '.text\n.globl %s\n.p2align 8\n.type %s,@function\n%s:\n' % (kname, kname, kname) + render(blocks)
    t += '.section .rodata,"a"\n.p2align 6\n.amdhsa_kernel %s\n' % kname
    t += '  .amdhsa_next_free_vgpr %d\n  .amdhsa_next_free_sgpr %d\n  .amdhsa_accum_offset %d\n' % (vgpr, sgpr, accum)
    t += '  .amdhsa_group_segment_fixed_size 0\n  .amdhsa_kernarg_size 104\n  .amdhsa_user_sgpr_count 2\n'
    t += '  .amdhsa_user_sgpr_kernarg_segment_ptr 1\n  .amdhsa_system_sgpr_workgroup_id_x 1\n.end_amdhsa_kernel\n'
    return t

def gen_k1(kname):
    setup = k1_setup(); qp = k1_qproj()
    pro, mx, p2, lp, pe = k1_attention(); t1, tb, spins = k1_tail()
    end = Block('end'); end('L_k1_end:\ns_endpgm')
    blocks = [setup, qp, pro, mx, p2] + lp + pe[:3] + [t1] + tb + spins + [pe[3]]
    loop = (['per0', 'per1', 'per2', 'per3'] * 3)[1 if opt.peel0 else 0:] + ['pe0', 'pe1', 'pe2', 'tail1']
    head = ['setup', 'qproj', 'pro', 'pro_max', 'pro2']
    rest = [b.name for b in tb]
    slow = []
    for b in tb:
        if b.name.startswith('t_'): slow += ['spin_' + b.name[2:]] * 2
        if b.name == 'tail4': slow += ['spin_p'] * 2
        if b.name == 'fin': slow += ['spin_s', 'spin_s', 'try', 'spin_s']
        slow.append(b.name)
    traces = [head + loop + rest, head + loop[:-2] + ['spin_d', 'spin_d', 'pe2', 'tail1'] + slow]
    if opt.fallback:
        fb, fbl, fbe = k1_fallback(); blocks += [fb, fbl, fbe]
        traces.append(head + loop + ['fb', 'fbl', 'fbl', 'fbe', 'pro', 'pro2'] + loop + rest)
    blocks.append(end)
    return kernel_text(kname, blocks, traces, 512, 256)

def gen_diag(kname):
    a, b_, gain = [int(x, 0) for x in opt.diag.split()]
    b = Block('dg')
    b('''s_cmp_ge_u32 s2, 1
         s_cbranch_scc1 L_dg_end
         s_load_dwordx2 s[4:5], s[0:1], 96
         s_waitcnt lgkmcnt(0)
         s_add_u32 s4, s4, 0x3000000
         s_addc_u32 s5, s5, 0
         s_load_dword s6, s[4:5], %d
         s_load_dword s7, s[4:5], %d
         s_memrealtime s[8:9]
         s_waitcnt lgkmcnt(0)
         s_sub_u32 s6, s7, s6
         s_min_u32 s6, s6, 20000
         s_mul_i32 s6, s6, %d
         L_dg:
         s_memrealtime s[10:11]
         s_waitcnt lgkmcnt(0)
         s_sub_u32 s10, s10, s8
         s_cmp_lt_u32 s10, s6
         s_cbranch_scc1 L_dg
         L_dg_end:
         s_endpgm''' % (a, b_, gain))
    return kernel_text(kname, [b], [['dg']], 8, 8, 16)

def main(out, only=None):
    t = open('cdna_kernels/%s.s.ref' % NAME).read().split('; Override launch')[0]
    k1 = NAME + '_kernel'
    if opt.diag.strip():
        t += '; @launch kernel=%s grid=(256,1,1) block=(256,1,1) lds=163840\n; @launch kernel=diag_kernel grid=(1,1,1) block=(64,1,1) lds=0\n' % k1
    else: t += '; @launch grid=(256,1,1) block=(256,1,1) lds=163840\n'
    t += '''; Generated by a script (software-pipelined instruction placement, s_waitcnt counts and wait states are computed).
;     reaches 2^30 (or is not finite) the workgroup computes the true maximum over all keys and redoes both heads.
'''
    t += '.amdgcn_target "amdgcn-amd-amdhsa--gfx950"\n'
    t += gen_k1(k1)
    if opt.diag.strip(): t += gen_diag('diag_kernel')
    open(out, 'w').write(t)

if __name__ == '__main__':
    out = sys.argv[1]; only = None
    for a in sys.argv[2:]:
        k, v = a.split('=')
        if k == 'only': only = int(v)
        elif isinstance(getattr(opt, k), bool): setattr(opt, k, v == '1')
        elif isinstance(getattr(opt, k), int): setattr(opt, k, int(v))
        else: setattr(opt, k, (' ' + v.replace('+', ' ')) if v else '')
    main(out, only)
```

```python
import sys, math, struct
from asmlib import *

NAME = "concat_heads__gqa_block_cached__gqa_block_cached__near_ridge"
def f32bits(x): return struct.unpack('<I', struct.pack('<f', x))[0]
MF = 'v_mfma_f32_16x16x32_bf16'
def vr(b, n=1, k='v'): return '%s%d' % (k, b) if n == 1 else '%s[%d:%d]' % (k, b, b + n - 1)
def ar(b, n=1): return vr(b, n, 'a')

class Opt:
    kv_pol = ' nt'; w_pol = ''; x_pol = ''; o_st_pol = ' sc1'; o_ld_pol = ' sc1'; wo_pol = ''; out_pol = ''; p_st_pol = ' sc1'; p_ld_pol = ' sc1'
    stamps = False; fallback = True; ones = True; nokv = False; nox = False; noxq = False; qstamps = False
    dsp = 10; kvend = 13; burst = ' 10:2 12:2'; k2stag = 1; qevery = 4; warm = 336; qf = ' '; pk = False; upfront = 3; diag = ' '; spin = 524288; own = True; touch2 = False; peel0 = False; pfper = 2; chain = True; asym = 1; rel = 1; ramp = 1; t2ch = True; onesadj = True; cape = ' 4x4x4x4x'; capl = ' 44444444'; twice = False; z0pos = 3; stcap = 0; pecap = False; fs = False; t2x = ' '; early = False; sent = False; chkb = 168; pleadb = 30; qcl = 1; fbk = 0; fbn = 4; fbpos = 56; sb = 1; t2mode = 0; o3n = 10; pstamps = False; tstamps = False; thre = 0; thro = 4; thrn = 2; ptouch = 0; touchc = 8; flagpos = 12; pollpos = 105; chkpos = 140; chk2 = 270; chk3 = 390; plead = 40; pbf = True; pk2 = True
opt = Opt()

S_K, S_V, S_X, S_WQ, S_O = 4, 8, 12, 16, 20
sW, sW4, sKO, sVO, sCNT, sEX, sC0, sB, sBR, sH1, sTH, sM0B = 24, 25, 26, 27, 28, 29, 30, 31, 32, 33, 34, 35
sSC = 36
S_TS, sTSA, sTSN = 52, 56, 58
sWO, sXO = 76, 92
STASH = {'K2': 32, 'V2': 224, 'K3': 240}
vSW = 2
vKA, vVA, vKD, vVD, vLANE, vL = 8, 12, 20, 24, 26, 59
vF = 32; NB = 4
vWA, vXA, vWD, vXD = 48, 52, 54, 58
vACC = 64
def rQ(k, qs): return vACC + 8 * (5 * k + qs)
def hole(i): return vACC + 8 * i + 4
def rS(kt, qs): return hole(5 * kt + qs)
def rP(par, qs): return hole(10 + 5 * par + qs)
vN = 224
vT = 48; vT2 = 244
def aO(dt, qs): return 4 * (5 * dt + qs)
aL, aONE, aFA, aFB = 160, 180, 184, 200
KS0, VS0 = 0, 65536
WBUF = [139264, 32768, 49152]
XBUF = [98304, 118784]
sJP, sKQ = 3, 59
S_F, S_D, S_P, S_OUT, S_WO, S_OR = 44, 48, 64, 68, 12, 16
sOK, sWOO, sORO, sPW, sPR, sD01, sD12, sMK1, sMK2 = 76, 80, 88, 96, 99, 30, 33, 42, 43
MK1 = [None, 42, 60, 61]
POFF, FOFF, TSOFF = 0x1500000, 0x2a00000, 0x3000000
vOD, vOL, vXW, vXR, vYW, vYR, vST, vFA, vPA, vDA = 54, 58, 62, 63, 48, 49, 50, 51, 28, 30
vRA = list(range(246, 254))
WOB = [131072, 0, 65536, 32768, 98304]
BADB = 98304 + 10240
BS = [[vACC + 8 * i for i in range(10)], [vACC + 8 * i for i in range(10, 20)], [hole(i) for i in range(10)]]
SPIN = 1 << 15

def stamp_ins():
    if not opt.stamps: return []
    return [I('s_memrealtime s[%d:%d]' % (sTSA, sTSA + 1)), I('s_memtime s[62:63]'), I('s_waitcnt lgkmcnt(0)'), I('v_mov_b32 v5, s%d' % sTSA), I('v_mov_b32 v6, s%d' % sTSN), I('v_mov_b32 v7, s62'),
            I('buffer_store_dword v5, v6, s[%d:%d], 0 offen' % (S_TS, S_TS + 3), 'stamp'), I('buffer_store_dword v7, v6, s[%d:%d], 0 offen offset:256' % (S_TS, S_TS + 3), 'stamp'), I('s_add_u32 s%d, s%d, 4' % (sTSN, sTSN))]
def stamp(b): b.extend(stamp_ins())
def stamp_setup(b, ws, w, off=TSOFF, first=False):
    if not opt.stamps: return
    b('''s_lshl_b32 s39, s2, 9
         s_add_u32 s39, s39, {off}
         s_add_u32 s{T}, s{ws}, s39
         s_addc_u32 s{T1}, s{ws1}, 0
         s_cmp_eq_u32 s{w}, 0
         s_cselect_b32 s{T2}, 512, 0
         s_mov_b32 s{T3}, 0x20000
         s_mov_b32 s{N}, 0'''.format(T=S_TS, T1=S_TS + 1, T2=S_TS + 2, T3=S_TS + 3, w=w, ws=ws, ws1=ws + 1, N=sTSN, off=off))
    if first:
        b('v_mov_b32 v5, s100\nv_mov_b32 v6, 0\nv_mov_b32 v7, s42')
        b('buffer_store_dword v5, v6, s[%d:%d], 0 offen\nbuffer_store_dword v7, v6, s[%d:%d], 0 offen offset:256\ns_mov_b32 s%d, 4' % (S_TS, S_TS + 3, S_TS, S_TS + 3, sTSN))
    stamp(b)

def srd(b, d, lo, off, num):
    b('s_add_u32 s%d, s%d, %s\ns_addc_u32 s%d, s%d, 0\n%s\ns_mov_b32 s%d, 0x20000' % (d, lo, off, d + 1, lo + 1,
      ('s_mov_b32 s%d, %d' % (d + 2, num)) if isinstance(num, int) else num % (d + 2), d + 3))

def off_calc(X):
    return ['s_add_u32 s38, s%d, %d' % (sC0, X), 's_and_b32 s38, s38, 7', 's_lshl_b32 s%d, s38, 19' % (sWO + 2 * X),
            's_add_u32 s%d, s%d, 262144' % (sWO + 2 * X + 1, sWO + 2 * X)]
def dma_wq(c):
    G = [[I('s_add_u32 m0, s%d, %d' % (sW4, WBUF[c % 3]))]]
    for n in range(4):
        G.append([I('buffer_load_dwordx4 v%d, s[%d:%d], s%d offen offset:%d%s lds' % (vWD + n, S_WQ, S_WQ + 3, sWO + c, 1024 * n, opt.w_pol), 'wq%d' % c)])
    return G
def dma_x(X):
    G = [[I('s_lshr_b32 s39, s%d, 12' % (sWO + 2 * X))], [I('s_add_u32 m0, s%d, %d' % (sW4, XBUF[X % 2]))]]
    for n in range(4):
        G.append([I('buffer_load_dwordx4 v%d, s[%d:%d], s%d offen offset:%d%s lds' % (vXD + n, S_X, S_X + 3, 39, 1024 * n, opt.x_pol), 'x%d' % X)])
    G.append([I('s_add_u32 m0, s%d, %d' % (sM0B, XBUF[X % 2] + 16384))])
    G.append([I('buffer_load_dwordx4 v%d, s[%d:%d], s%d offen%s lds' % (vXD + 4, S_X, S_X + 3, 39, opt.x_pol), 'x%d' % X)])
    return G
def stash_load(which, slot):
    K = which == 'K'; srd_, so = (S_K, sKO) if K else (S_V, sVO); r = STASH['%s%d' % (which, slot)]
    G = [[I('buffer_load_dwordx4 %s, v%d, s[%d:%d], s%d offen offset:%d%s' % (vr(r + 4 * m, 4), vKD + m if K else vVD + m % 2, srd_, srd_ + 3, so, 1024 * m, opt.kv_pol), 'st')] for m in range(4)]
    G[3].append(I('s_add_u32 s%d, s%d, 8192' % (so, so)))
    return G
def stash_flush(which, slot):
    r = STASH['%s%d' % (which, slot)]; base = (KS0 if which == 'K' else VS0) + 16384 * slot
    return [I('ds_write_b128 v%d, %s offset:%d' % (vSW + base // 65536, vr(r + 4 * m, 4), base % 65536 + 1024 * m)) for m in range(4)]
def dma_kv(which, slot, m0each=False):
    G = []; K = which == 'K'
    srd_, so = (S_K, sKO) if K else (S_V, sVO)
    for m in range(4):
        g = []
        if m == 0 or m0each: g.append(I('s_add_u32 m0, s%d, %d' % (sW4, (KS0 if K else VS0) + 16384 * slot)))
        g.append(I('buffer_load_dwordx4 v%d, s[%d:%d], s%d offen offset:%d%s lds' % (vKD + m if K else vVD + m % 2, srd_, srd_ + 3, so, 1024 * m, opt.kv_pol), '%s%d' % (which, slot)))
        if m == 3: g.append(I('s_add_u32 s%d, s%d, 8192' % (so, so)))
        G.append(g)
    return G

def dma_wo(c):
    buf = WOB[c % 5]; G = []
    for m in range(8):
        g = []
        if m == 4: g.append(I('s_add_u32 s2, s%d, 16384' % (sWOO + c)))
        if m % 4 == 0: g.append(I('s_add_u32 m0, s%d, %d' % (sM0B, buf + 4096 * (m // 4))))
        g.append(I('buffer_load_dwordx4 v%d, s[%d:%d], s%d offen offset:%d%s lds' % (vOD + m % 4, S_WO, S_WO + 3, sWOO + c if m < 4 else 2, 1024 * (m % 4), opt.wo_pol), 'wo%d' % c))
        G.append(g)
    return G

def peer(p):
    if not opt.asym: return 's_add_u32 s38, s%d, %d\ns_and_b32 s38, s38, 3' % (sJP, p)
    if p == 0: return 's_mov_b32 s38, s%d' % sJP
    return 's_cmp_lt_u32 s%d, 2\ns_cselect_b32 s38, %d, %d\ns_xor_b32 s38, s38, s%d' % (sJP, p, p % 3 + 1, sJP)

def page_touch():
    return ['v_mov_b32 v1, 0'] + ['buffer_load_dword v%d, v1, s[%d:%d], 0 offen' % (253 + i, d, d + 3) for i, d in enumerate((S_O, S_P, S_OUT))]
def tail_setup_a(b):
    b('s_mov_b32 s72, s92\ns_mov_b32 s73, s93')
    b('''s_and_b32 s98, s{w}, 1
         s_lshr_b32 s99, s{w}, 1
         s_lshl_b32 s96, s{B}, 1
         s_add_u32 s96, s96, s98
         s_mul_i32 s96, s96, 163840
         s_lshl_b32 s97, s{BR}, 2
         s_add_u32 s97, s97, s{JP}
         s_lshl_b32 s97, s97, 1
         s_add_u32 s97, s97, s99
         s_lshl_b32 s97, s97, 2
         s_add_u32 s97, s97, s{KQ}
         s_lshl_b32 s97, s97, 5
         s_add_u32 s96, s96, s97'''.format(w=sW, B=sB, BR=sBR, JP=sJP, KQ=sKQ))
    srd(b, S_OUT, 94, 's96', 's_sub_u32 s%d, 2621440, s96')
    for p in (1, 2, 3): b(peer(p) + '\ns_lshl_b32 s38, s38, 2\ns_add_u32 s38, s38, s98\ns_lshl_b32 s%d, 5, s38' % MK1[p])
    b('s_lshl_b32 s38, 0x1111, s%d\ns_lshl_b32 s39, s%d, 2\ns_lshl_b32 s39, 15, s39\ns_andn2_b32 s%d, s38, s39' % (sW, sKQ, sMK2))
    b('s_lshl_b32 s38, s%d, 3\ns_add_u32 s38, s38, s%d\ns_lshl_b32 s38, s38, 2\ns_add_u32 s38, s38, s%d\ns_mul_i32 s38, s38, 327680\ns_mul_i32 s39, s%d, 5120\ns_add_u32 s38, s38, s39\ns_add_u32 s38, s38, 0x%x' % (sBR, sB, sJP, sW, POFF))
    srd(b, S_P, 74, 's38', 's_sub_u32 s%d, 327680, s39')
    for j in (1, 2, 3):
        b('s_xor_b32 s38, s%d, %d\ns_lshl_b32 s39, s38, 2\ns_add_u32 s39, s39, s%d\ns_mul_i32 s%d, s39, 20480' % (sKQ, j, sKQ, sPW + j - 1))
        b('s_lshl_b32 s39, s%d, 2\ns_add_u32 s39, s39, s38\ns_mul_i32 s%d, s39, 20480' % (sKQ, sPR + j - 1))

def wo_srd(b, S_WO=S_WO):
    b('s_lshl_b32 s38, s%d, 20\ns_lshl_b32 s39, s%d, 8\ns_add_u32 s38, s38, s39' % (sKQ, sJP))
    srd(b, S_WO, 72, 's38', 's_sub_u32 s%d, 4194304, s38')
def wo_touch(b, S_WO=S_WO):
    b('s_lshl_b32 s38, s%d, 2\ns_add_u32 s38, s38, s%d\ns_lshl_b32 s38, s38, 15\nv_lshrrev_b32 v4, 1, v%d\nv_and_b32 v5, 1, v%d\nv_lshlrev_b32 v5, 7, v5\nv_lshl_add_u32 v4, v4, 10, v5' % (sB, sW, vLANE, vLANE))
    b('buffer_load_dword v31, v4, s[%d:%d], s38 offen' % (S_WO, S_WO + 3))
def tail_setup_b(b):
    L = vLANE
    b('s_and_b32 s78, s%d, 1\ns_lshr_b32 s79, s%d, 1' % (sW, sW))
    b('''s_lshl_b32 s38, s{BR}, 3
         s_add_u32 s38, s38, s{B}
         s_lshl_b32 s38, s38, 2
         s_add_u32 s38, s38, s{KQ}
         s_mul_i32 s38, s38, 327680
         s_mul_i32 s39, s79, 20480
         s_mul_i32 s40, s78, 5120
         s_add_u32 s39, s39, s40
         s_add_u32 s38, s38, s39'''.format(B=sB, BR=sBR, KQ=sKQ))
    srd(b, S_OR, 74, 's38', 's_sub_u32 s%d, 327680, s39')
    b('s_lshl_b32 s40, s%d, 15\ns_lshl_b32 s%d, s%d, 13' % (sW, sM0B, sW))
    for c in range(8):
        b(peer(c // 2) + '\ns_lshl_b32 s38, s38, 1\ns_add_u32 s38, s38, %d\n%s\ns_mul_i32 s%d, s39, 40960\ns_lshl_b32 s38, s38, 17\ns_add_u32 s%d, s38, s40' % (c & 1, 's_xor_b32 s39, s38, s79' if opt.early else 's_mov_b32 s39, s38', sORO + c, sWOO + c))
    if opt.sent:
        b('v_mov_b32 v27, 0x100000')
        for j in range(3): b('s_add_u32 s38, s%d, 2048\nv_writelane_b32 v27, s38, %d' % (sPR + j, j))
    b('v_lshrrev_b32 v4, 4, v%d\nv_and_b32 v5, 15, v%d' % (L, L))
    for m in range(4):
        b('v_add_u32 v6, %d, v4\nv_lshlrev_b32 v6, 1, v6\nv_xor_b32 v6, v6, v5\nv_lshlrev_b32 v6, 4, v6\nv_lshl_add_u32 v6, v4, 10, v6\nv_add_u32 v%d, %d, v6' % (4 * (m % 2), vOD + m, 3072 * m))
    b('v_lshlrev_b32 v%d, 4, v%d' % (vOL, L))
    for i, o in ((1, 4096), (2, 10240), (3, 14336)): b('v_add_u32 v%d, %d, v%d' % (vOL + i, o, vOL))
    b('v_lshlrev_b32 v5, 11, v5\nv_lshl_add_u32 v%d, v4, 3, v5' % vST)
    for (reg, wsel, step, lo, hi) in ((vXW, sW, 10240, 32768, 98304), (vXR, 41, 10240, 32768, 98304), (vYW, sW, 20480, 98304, 32768), (vYR, 41, 20480, 98304, 32768))[2 if opt.own else 0:]:
        b('s_xor_b32 s41, s%d, 2\ns_mul_i32 s38, s%d, %d\ns_add_u32 s38, s38, %d\ns_cmp_eq_u32 s%d, 3\ns_cselect_b32 s38, %d, s38\nv_add_u32 v%d, s38, v%d' % (sW, wsel, step, lo, wsel, hi, reg, vOL))
    b('''v_lshrrev_b32 v6, 4, v{L}
          v_bfe_u32 v4, v{L}, 2, 2
          v_lshl_add_u32 v6, v6, 2, v4
          v_and_b32 v4, 3, v{L}
          v_lshlrev_b32 v4, 3, v4
          v_lshl_add_u32 v4, v6, 8, v4
          s_lshr_b32 s38, s{w}, 1
          s_lshl_b32 s39, s38, 2
          s_add_u32 s39, s39, s{KQ}
          s_mul_i32 s38, s38, {x}
          s_add_u32 s38, s38, 131072
          v_add_u32 v4, s38, v4
          v_and_b32 v6, 7, v6
          v_xor_b32 v6, s39, v6'''.format(L=L, w=sW, KQ=sKQ, x=((0 if opt.own else 16384) - 131072) & 0xffffffff))
    for n in range(8): b('v_xor_b32 v5, %d, v6\nv_lshl_add_u32 v%d, v5, 5, v4' % (n, vRA[n]))
    b('s_lshl_b32 s38, s%d, 2\ns_add_u32 s38, s38, s%d\ns_lshl_b32 s38, s38, 2\nv_readfirstlane_b32 s39, v%d\ns_add_u32 s38, s38, s39\nv_lshl_add_u32 v%d, v%d, 16, s38' % (sJP, sW, vPA, vFA, L))
    b('s_lshl_b32 s38, s%d, 2\ns_add_u32 s38, s38, s%d\ns_lshl_b32 s38, s38, 2\nv_readfirstlane_b32 s39, v%d\ns_add_u32 s38, s38, s39\nv_lshl_add_u32 v%d, v%d, 16, s38' % (sKQ, sW, vPA + 1, vFA + 1, L))
    if opt.own:
        for kl in range(4): b('s_mov_b32 s%d, %d' % (sOK + kl, 10240 * kl))
        return
    for kl in range(4): b('s_lshl_b32 s38, s79, 1\ns_xor_b32 s38, s38, %d\ns_mul_i32 s%d, s38, 10240' % (kl, 38 if kl == 3 else sOK + kl))
    b('s_mov_b32 s%d, s38' % (sOK + 3))

def k1_setup():
    b = Block('setup'); L = vLANE; T = vT2
    b('s_cmp_ge_u32 s2, 256\ns_cbranch_scc1 L_k1_end')
    if opt.stamps: b('s_memrealtime s[100:101]\ns_memtime s[42:43]')
    if opt.warm: b('s_getpc_b64 s[96:97]')
    b('''s_and_b32 s38, s2, 7
         s_lshr_b32 s{BR}, s38, 2
         s_and_b32 s{KQ}, s38, 3
         s_lshr_b32 s39, s2, 3
         s_and_b32 s{B}, s39, 7
         s_lshr_b32 s{JP}, s39, 3
         s_lshl_b32 s38, s{KQ}, 3
         s_lshl_b32 s40, s{JP}, 1
         s_add_u32 s{H}, s38, s40
         s_add_u32 s{C}, s{B}, s40
         s_and_b32 s{C}, s{C}, 7
         s_mul_i32 s38, s{BR}, 40
         s_add_u32 s60, s0, s38
         s_addc_u32 s61, s1, 0
         s_load_dwordx8 s[64:71], s[60:61], 0
         s_load_dwordx4 s[72:75], s[0:1], 88
         s_load_dwordx2 s[92:93], s[60:61], 32
         s_load_dwordx2 s[94:95], s[0:1], 80
         v_lshrrev_b32 v1, 6, v0
         v_and_b32 v{L}, 63, v0
         v_readfirstlane_b32 s{W}, v1
         v_and_b32 v1, 31, v{L}
         v_lshrrev_b32 v2, 5, v{L}
         v_lshrrev_b32 v3, 4, v{L}
         v_and_b32 v4, 15, v{L}
         s_lshl_b32 s{W4}, s{W}, 12
         s_lshl_b32 s{M}, s{W}, 10'''.format(BR=sBR, B=sB, H=sH1, C=sC0, L=L, W=sW, W4=sW4, M=sM0B, KQ=sKQ, JP=sJP))
    b('s_lshl_b32 s39, s%d, 16' % sW)
    for n in range(4):
        b('''v_add_u32 v{a}, {n2}, v2
             v_and_b32 v{c}, 3, v{a}
             v_lshlrev_b32 v{c}, 2, v{c}
             v_xor_b32 v{c}, v{c}, v1
             v_lshlrev_b32 v{c}, 4, v{c}
             v_lshl_add_u32 v{c}, v{a}, 13, v{c}
             v_add_u32 v{c}, s39, v{c}
             v_subrev_u32 v{d}, {sub}, v{c}'''.format(a=T, c=T + 1, n2=2 * n, d=vWD + n, sub=1024 * n))
    b('s_lshl_b32 s39, s%d, 15\nv_lshrrev_b32 v%d, 3, v%d\nv_and_b32 v%d, 7, v%d\ns_lshl_b32 s38, s%d, 2' % (sW, T + 3, L, T + 4, L, sW))
    for n in range(4):
        b('''v_add_u32 v{a}, {n4}, v3
             v_and_b32 v{a}, 7, v{a}
             v_xor_b32 v{a}, v{a}, v{p}
             v_lshlrev_b32 v{a}, 4, v{a}
             v_lshl_add_u32 v{a}, v{r}, 10, v{a}
             v_add_u32 v{a}, {add}, v{a}
             v_add_u32 v{d}, s39, v{a}'''.format(a=T, n4=4 * n, p=T + 4, r=T + 3, add=7 * 1024 * n, d=vXD + n))
    b('''s_lshl_b32 s39, s{w}, 13
         s_add_u32 s39, s39, 131072
         v_add_u32 v{a}, s38, v3
         v_and_b32 v{a}, 7, v{a}
         v_xor_b32 v{a}, v{a}, v{p}
         v_lshlrev_b32 v{a}, 4, v{a}
         v_lshl_add_u32 v{a}, v{r}, 10, v{a}
         v_add_u32 v{d}, s39, v{a}'''.format(w=sW, a=T, p=T + 4, r=T + 3, d=vXD + 4))
    b('s_waitcnt lgkmcnt(0)')
    b('s_mul_i32 s39, s%d, 163840' % sB); srd(b, S_X, 64, 's39', 163840)
    b('s_lshl_b32 s39, s%d, 8' % sH1); srd(b, S_WQ, 70, 's39', 's_sub_u32 s%d, 4194304, s39')
    if opt.nox: b('s_mov_b32 s%d, 0' % (S_X + 2))
    if opt.noxq: b('s_mov_b32 s%d, 0' % (S_WQ + 2))
    b.extend(off_calc(0) + off_calc(1))
    for g in dma_wq(0) + dma_x(0) + (dma_wq(1) + dma_x(1) + dma_wq(2) if opt.upfront == 2 else []): b.extend(g)
    if opt.warm:
        n8 = (opt.warm + 7) // 8
        b('s_lshr_b32 s38, s2, 3\ns_and_b32 s38, s38, 7\ns_mul_i32 s38, s38, %d\nv_min_u32 v6, %d, v%d\nv_add_u32 v6, s38, v6\nv_lshlrev_b32 v6, 7, v6\nv_mov_b32 v7, s97' % (n8, n8 - 1, L))
        b('v_add_co_u32 v6, vcc, s96, v6\nv_addc_co_u32 v7, vcc, 0, v7, vcc\nglobal_load_dword v63, v[6:7], off')
    for X in range(2, 8): b.extend(off_calc(X))
    b('s_lshr_b32 s41, s%d, 1\ns_lshl_b32 s38, s%d, 5\ns_add_u32 s38, s38, s%d\ns_add_u32 s38, s38, s41\ns_lshl_b32 s39, s38, 18' % (sW, sB, sH1))
    srd(b, S_K, 66, 's39', 0 if opt.nokv else 262144); srd(b, S_V, 68, 's39', 0 if opt.nokv else 262144)
    b('s_lshl_b32 s39, s%d, 8\ns_add_u32 s38, s38, s39\ns_mul_i32 s39, s38, 40960\ns_and_b32 s40, s%d, 1\ns_mul_i32 s38, s40, 5120\ns_add_u32 s39, s39, s38' % (sBR, sW))
    srd(b, S_O, 74, 's39', 's_sub_u32 s%d, 40960, s38')
    b('s_lshl_b32 s%d, s40, 12\ns_mov_b32 s%d, s%d' % (sKO, sVO, sKO))
    stamp_setup(b, 74, sW, first=True)
    srd(b, S_F, 74, '0x%x' % FOFF, 32768); srd(b, S_D, 72, '0', 256)
    b('''s_and_b32 s38, s2, 7
         s_lshl_b32 s38, s38, 3
         s_add_u32 s38, s38, s{B}
         s_lshl_b32 s39, s{BR}, 3
         s_add_u32 s39, s39, s{B}
         s_lshl_b32 s39, s39, 2
         s_add_u32 s39, s39, s{JP}
         v_and_b32 v5, 1, v{L}
         v_mov_b32 v6, s38
         v_mov_b32 v7, s39
         v_cmp_eq_u32 vcc, 0, v5
         v_cndmask_b32 v6, v7, v6, vcc
         v_lshlrev_b32 v{DA}, 2, v6
         s_lshl_b32 s38, s38, 7
         s_lshl_b32 s39, s39, 7
         s_add_u32 s39, s39, 8192
         v_lshl_add_u32 v{PA}, v4, 2, s38
         v_lshl_add_u32 v{PB}, v4, 2, s39
         s_lshl_b32 s41, s{JP}, 4
         s_add_u32 s38, s38, s41
         s_lshl_b32 s41, s{KQ}, 4
         s_add_u32 s39, s39, s41
         v_mov_b32 v6, s38
         v_mov_b32 v7, s39
         v_cndmask_b32 v6, v7, v6, vcc
         v_lshrrev_b32 v7, 1, v0
         v_lshl_add_u32 v6, v7, 16, v6
         v_mov_b32 v{T}, 0
         v_mov_b32 v{T1}, 0
         v_mov_b32 v{T2}, 0
         v_mov_b32 v{T3}, 0'''.format(B=sB, BR=sBR, JP=sJP, KQ=sKQ, L=L, DA=vDA, PA=vPA, PB=vPA + 1, T=T, T1=T + 1, T2=T + 2, T3=T + 3))
    b('buffer_store_dwordx4 %s, v6, s[%d:%d], 0 offen sc1' % (vr(T, 4), S_F, S_F + 3), 'fz')
    if opt.fbk:
        b('''v_readfirstlane_b32 s38, v{PA}
             v_readfirstlane_b32 s39, v{PB}
             v_and_b32 v5, 3, v{L}
             v_lshlrev_b32 v5, 2, v5
             v_and_b32 v6, 4, v{L}
             v_cmp_eq_u32 vcc, 0, v6
             s_add_u32 s38, s38, 16384
             s_add_u32 s39, s39, 16384
             v_add_u32 v6, s38, v5
             v_add_u32 v7, s39, v5
             v_cndmask_b32 v249, v7, v6, vcc
             s_lshl_b32 s41, s{JP}, 2
             s_add_u32 s38, s38, s41
             s_lshl_b32 s41, s{KQ}, 2
             s_add_u32 s39, s39, s41
             v_and_b32 v5, 1, v{L}
             v_cmp_eq_u32 vcc, 0, v5
             v_mov_b32 v6, s38
             v_mov_b32 v7, s39
             v_cndmask_b32 v6, v7, v6, vcc
             v_lshrrev_b32 v7, 1, v0
             v_lshl_add_u32 v250, v7, 16, v6
             v_mov_b32 v251, 0'''.format(PA=vPA, PB=vPA + 1, L=L, JP=sJP, KQ=sKQ))
        b('buffer_store_dword v251, v250, s[%d:%d], 0 offen sc1' % (S_F, S_F + 3))
    tail_setup_a(b)
    if opt.ptouch == 1: b.extend(page_touch())
    b('s_lshr_b32 s41, s%d, 1' % sW)
    b('v_bfe_u32 v5, v%d, 2, 2\nv_and_b32 v6, 3, v%d' % (L, L))
    for m in range(4):
        b('v_add_u32 v%d, %d, v3\nv_xor_b32 v%d, v%d, v4\nv_lshlrev_b32 v%d, 4, v%d\nv_lshl_add_u32 v%d, v3, 8, v%d' % (T, 4 * m, T, T, T, T, vKD + m, T))
    for m in range(2):
        b('v_add_u32 v%d, %d, v3\nv_lshlrev_b32 v%d, 1, v%d\nv_xor_b32 v%d, v%d, v4\nv_lshlrev_b32 v%d, 4, v%d\nv_lshl_add_u32 v%d, v3, 8, v%d' % (T, 4 * m, T, T, T, T, T, T, vVD + m, T))
    b('s_lshl_b32 s41, s41, 13\nv_xor_b32 v%d, v3, v4\nv_lshlrev_b32 v%d, 8, v4\nv_add_u32 v%d, s41, v%d' % (T, T + 1, T + 1, T + 1))
    for k in range(4): b('v_xor_b32 v%d, %d, v%d\nv_lshl_add_u32 v%d, v%d, 4, v%d' % (T + 2, 4 * k, T, vKA + k, T + 2, T + 1))
    b('''v_lshl_add_u32 v{a}, v3, 2, v5
         v_lshlrev_b32 v{c}, 8, v{a}
         v_lshl_add_u32 v{c}, v6, 3, v{c}
         s_add_u32 s41, s41, {vs}
         v_add_u32 v{c}, s41, v{c}
         v_and_b32 v{a}, 7, v{a}
         s_and_b32 s38, s{w}, {rot}
         s_lshl_b32 s38, s38, 1
         v_xor_b32 v{a}, s38, v{a}'''.format(a=T, c=T + 1, vs=VS0, w=sW, rot=0 if opt.own else 2))
    for dt in range(8): b('v_xor_b32 v%d, %d, v%d\nv_lshl_add_u32 v%d, v%d, 5, v%d' % (T + 2, dt, T, vVA + dt, T + 2, T + 1))
    b('''v_lshl_add_u32 v{c}, v3, 3, v5
         v_lshlrev_b32 v{c}, 9, v{c}
         s_lshr_b32 s41, s{w}, 1
         s_lshl_b32 s41, s41, 8
         v_add_u32 v{c}, s41, v{c}
         v_lshl_add_u32 v{a}, v5, 2, v6'''.format(a=T, c=T + 1, w=sW))
    for k in range(4): b('v_xor_b32 v%d, %d, v%d\nv_lshl_add_u32 v%d, v%d, 4, v%d' % (T + 2, 4 * k, T, vWA + k, T + 2, T + 1))
    b('''v_lshrrev_b32 v{a}, 1, v4
         v_xor_b32 v{a}, v{a}, v3
         s_mul_i32 s41, s40, 10240
         s_add_u32 s41, s41, {xb}
         v_lshlrev_b32 v{c}, 7, v4
         v_add_u32 v{c}, s41, v{c}'''.format(a=T, c=T + 1, xb=XBUF[0]))
    for k in range(2): b('v_xor_b32 v%d, %d, v%d\nv_lshl_add_u32 v%d, v%d, 4, v%d' % (T + 2, 4 * k, T, vXA + k, T + 2, T + 1))
    c = math.log2(math.e) / math.sqrt(128.0)
    b('s_mov_b32 s%d, 0x%08x\ns_mov_b32 s%d, 0x%08x\ns_mov_b32 s%d, 0x%08x\ns_mov_b32 s%d, 0' % (sSC, f32bits(c), sSC + 1, f32bits(c), sTH, f32bits(2.0 ** 30), sEX))
    b('v_lshl_add_u32 v%d, v%d, 4, s%d\nv_add_u32 v%d, 0x10000, v%d' % (vSW, L, sW4, vSW + 1, vSW))
    b('v_mov_b32 v%d, 0x3f803f80' % T)
    for i in range(4): b('v_accvgpr_write_b32 a%d, v%d' % (aONE + i, T))
    if opt.upfront != 2:
        for g in dma_wq(1) + (dma_x(1) if opt.upfront == 3 else []): b.extend(g)
    if opt.touchc < 0: wo_srd(b, 92); wo_touch(b, 92)
    return b

def zero_acc():
    return ['v_accvgpr_write_b32 a%d, 0' % i for i in range(180 if opt.ones else 160)] + ([] if opt.ones else ['v_mov_b32 v%d, 0' % (vL + i) for i in range(5)])

def conv(k):
    L = []
    for qs in range(5):
        d = rQ(k, qs)
        if opt.fs: pass
        elif opt.pk: L += ['v_pk_mul_f32 %s, %s, s[%d:%d]' % (vr(d + 2 * i, 2), vr(d + 2 * i, 2), sSC, sSC + 1) for i in range(4)]
        else: L += ['v_mul_f32 v%d, s%d, v%d' % (d + i, sSC, d + i) for i in range(8)]
        L += ['v_cvt_pk_bf16_f32 v%d, v%d, v%d' % (d + i, d + 2 * i, d + 2 * i + 1) for i in range(4)]
    return L
def qk0_mfmas():
    bb = []
    for f in range(8):
        k, kt = divmod(f, 2)
        for qs in range(5):
            s = rS(kt, qs)
            bb.append(I('%s %s, %s, %s, %s' % (MF, vr(s, 4), vr(vF + 4 * (f % NB), 4), vr(rQ(k, qs), 4), '0' if k == 0 else vr(s, 4))))
    return bb
def kread0(f):
    k, kt = divmod(f, 2)
    return [I('ds_read_b128 %s, v%d offset:%d' % (vr(vF + 4 * (f % NB), 4), vKA + k, kt * 4096), 'g%d' % f)]

def k1_qproj():
    b = Block('qproj')
    bb = []
    for c in range(16):
        for t in range(8):
            for qs in range(5):
                d = rQ(t // 2, qs) + 4 * (t % 2)
                bb.append(I('%s %s, %s, %s, %s' % (MF, vr(d, 4), ar(aFA + 4 * (t % 4), 4), ar(aFB + 20 * (c % 2) + 4 * qs, 4), '0' if c == 0 else vr(d, 4))))
    G = Gaps(bb, 8)
    def ybar(c): return -1 if c == 0 else 40 * c - 14
    cur = [0] * 4
    def wq_read(c, t):
        k, bsel = divmod(t, 2)
        want = 0 if WBUF[c % 3] < 65536 else 131072
        off = WBUF[c % 3] - want + 8 * bsel
        r = aFA + 4 * (t % 4)
        L = []
        if bsel == 0 and want != cur[k]:
            L.append(I('v_add_u32 v%d, 0x%x, v%d' % (vWA + k, (want - cur[k]) & 0xffffffff, vWA + k))); cur[k] = want
        return L, [I('ds_read_b64_tr_b16 %s, v%d offset:%d' % (ar(r, 2), vWA + k, off), 'fa'), I('ds_read_b64_tr_b16 %s, v%d offset:%d' % (ar(r + 2, 2), vWA + k, off + 2048), 'fa%d_%d' % (c, t))]
    kvq = dma_kv('K', 0, True) + dma_kv('K', 1, True) + dma_kv('V', 0, True) + dma_kv('V', 1, True) + stash_load('K', 2) + stash_load('V', 2) + stash_load('K', 3)
    nkv = opt.kvend
    bursts = dict(tuple(int(v) for v in x.split(':')) for x in opt.burst.split())
    nst = sum(bursts.values()) - 4
    assert 0 <= nst <= 3
    if bursts: kvq = dma_kv('K', 0) + dma_kv('K', 1) + dma_kv('V', 0) + dma_kv('V', 1) + kvq[16:]
    for c in range(16):
        y = ybar(c); base = 40 * c
        G.put(y, I('@waitlgkm *'), I('@waitvm wq%d' % c + (',x%d' % (c // 2) if c % 2 == 0 else '') + (',K0' if c == 15 else '')), I('s_barrier'))
        if opt.qstamps and c % opt.qevery == 0: G.put(y, *stamp_ins())
        if c == 3:
            G.put(y + 9, I('v_and_b32 v4, 1, v%d' % vLANE)); G.put(y + 10, I('v_lshlrev_b32 v4, 4, v4')); G.put(y + 11, I('v_lshlrev_b32 v4, v4, 1'))
            G.put(y + 12, I('v_lshrrev_b32 v1, 1, v0')); G.put(y + 13, I('v_lshl_add_u32 v1, v1, 16, v%d' % vDA))
            G.put(y + 14, I('@waitvm fz'), I('buffer_atomic_add v4, v1, s[%d:%d], 0 offen sc1' % (S_D, S_D + 3)))
        xr = [I('ds_read_b128 %s, v%d offset:%d' % (ar(aFB + 20 * (c % 2) + 4 * qs, 4), vXA + c % 2, (c // 2 % 2) * 20480 + 2048 * qs), 'xr%d_%d' % (c, qs)) for qs in range(5)]
        for t in range(8):
            g = max(base + 5 * (t - 3) - 1, y + 1 if c else y)
            pre, rd = wq_read(c, t)
            G.put(max(g - 1, -1), *pre); G.put(g, *rd)
            if t == 0:
                for qs in range(5): G.put(y + ((2, 4, 5, 6, 7)[qs] if c else 0), xr[qs])
                G.put(base - 1, I('@waitlgkm fa%d_1,xr%d_4' % (c, c)))
            if t % 2 == 0 and t: G.put(base + 5 * t - 1, I('@waitlgkm fa%d_%d' % (c, t + 1)))
        d = []
        if c == 0 and opt.upfront != 2: d += (dma_x(1) if opt.upfront == 1 else []) + dma_wq(2)
        if 1 <= c < 14: d += dma_wq(c + 2)
        if c % 2 == 0 and 2 <= c < 14: d += dma_x(c // 2 + 1)
        if not bursts and c < nkv: d += kvq[(c * len(kvq)) // nkv:((c + 1) * len(kvq)) // nkv]
        flat = [x for g in d for x in g]
        if c in bursts:
            if flat: G.spread2(flat, y + 1 if c else 0, y + 14)
            flat = [x for g in kvq[:4 * bursts[c]] for x in g]; kvq = kvq[4 * bursts[c]:]
            G.spread2(flat, y + 15, y + 15 + len(flat) // 2); flat = []
        late = lambda w, sl, k: stash_flush(w, sl) if nst > k else [x for g in dma_kv(w, sl) for x in g]
        if c == 14: flat += late('K', 2, 0) + late('V', 2, 1)
        if c == 15: flat += late('K', 3, 2)
        if opt.ptouch > 1 and c == opt.ptouch: flat += [I(x) for x in page_touch()]
        if c == opt.touchc:
            tb = Block('x'); q = 92 if c < 13 else S_WO; wo_srd(tb, q); wo_touch(tb, q); flat += tb.ins
        if flat: G.spread2(flat, y + 1 if c else 0, 25 if c == 0 else y + (39 if c < 14 else 20), opt.qcl)
    G.spread2(zero_acc(), 20, 580)
    for f in range(3): G.put(624 + 5 * f, *kread0(f))
    G.spread2(conv(0), 613, 626); G.spread2(conv(1), 627, 639)
    em = G.emit()
    if 'd' in opt.qf: em = [x for x in em if x.cls not in ('dma', 'vld') and 'm0' not in x.w]
    if 'b' in opt.qf: em = [x for x in em if x.op != 's_barrier']
    if 'h' in opt.qf:
        k = [0]
        def keep(x):
            if x.op != 's_barrier': return True
            k[0] += 1; return k[0] % 2 == 1
        em = [x for x in em if keep(x)]
    if 'w' in opt.qf: em = [x for x in em if not (x.op == '@waitlgkm' and x.wait == ['*'])]
    if 'r' in opt.qf: em = [x for x in em if x.cls != 'dsr']
    if 'z' in opt.qf: em = [x for x in em if x.op != 'v_accvgpr_write_b32']
    if 'x' in opt.qf: em = [x for x in em if x.op != 'ds_read_b128']
    if 't' in opt.qf: em = [x for x in em if x.op != 'ds_read_b64_tr_b16']
    b.extend(em)
    print('qproj est cycles', G.est_cycles(16), file=sys.stderr)
    G = Gaps(qk0_mfmas(), 8)
    for f in range(3, 8): G.put(5 * (f - 3) - 1, *kread0(f))
    G.spread2(conv(2), -1, 17); G.spread2(conv(3), 18, 27)
    b.extend(G.emit())
    stamp(b)
    return b

XBAR = 66
aK = 184
def kread(f, slot):
    kt, k = divmod(f, 4)
    return [I('ds_read_b128 %s, v%d offset:%d' % (ar(aK + 4 * f, 4) if opt.chain else vr(vF + 4 * (f % NB), 4), vKA + k, slot * 16384 + kt * 4096), 'f%d' % f)]
def vread(f, slot):
    dt = f - 8; r = vF + 4 * (f % NB)
    return [I('ds_read_b64_tr_b16 %s, v%d offset:%d' % (vr(r, 2), vVA + dt, slot * 16384), 'fx'),
            I('ds_read_b64_tr_b16 %s, v%d offset:%d' % (vr(r + 2, 2), vVA + dt, slot * 16384 + 4096), 'f%d' % f)]
def neg_adds(kt): return ['v_add_f32 v%d, v%d, v%d' % (rS(kt, qs) + i, rS(kt, qs) + i, vN + 4 * qs) for qs in range(5) for i in range(4)]
def sm_chain(par):
    C = []; pend = []
    for kt in range(2):
        for qs in range(5):
            s = rS(kt, qs); p = rP(par, qs) + 2 * kt
            e = ['v_exp_f32 v%d, v%d' % (s + i, s + i) for i in range(4)]
            a = ['v_add_f32 v%d, v%d, v%d' % (vL + qs, vL + qs, s + i) for i in range(4)]
            cv = ['v_cvt_pk_bf16_f32 v%d, v%d, v%d' % (p + i, s + 2 * i, s + 2 * i + 1) for i in range(2)]
            if opt.fs: C += [('v_mul_f32 v%d, s%d, v%d' % (s + i, sSC, s + i), kt, qs) for i in range(4)]
            C.append((e[0], kt, qs)); C += pend
            if opt.ones: C += [(x, kt, qs) for x in (e[1], e[2], cv[0], e[3])]; pend = [(cv[1], kt, qs)]
            else: C += [(x, kt, qs) for x in (e[1], a[0], e[2], a[1], cv[0], e[3], a[2])]; pend = [(a[3], kt, qs), (cv[1], kt, qs)]
    return C + pend
def qk_mfmas(first):
    bb = []
    if opt.chain and not first:
        for kt in range(2):
            for qs in range(5):
                s = rS(kt, qs)
                for k in range(4): bb.append(I('%s %s, %s, %s, %s' % (MF, vr(s, 4), ar(aK + 16 * kt + 4 * k, 4), vr(rQ(k, qs), 4), vr(vN + 4 * qs, 4) if k == 0 else vr(s, 4))))
        return bb
    for f in range(8):
        kt, k = divmod(f, 4)
        for qs in range(5):
            s = rS(kt, qs)
            c = ('0' if first else vr(vN + 4 * qs, 4)) if k == 0 else vr(s, 4)
            bb.append(I('%s %s, %s, %s, %s' % (MF, vr(s, 4), vr(vF + 4 * (f % NB), 4), vr(rQ(k, qs), 4), c)))
    return bb
def pv_mfmas(par):
    bb = []
    for f in range(8, 16):
        for qs in range(5):
            bb.append(I('%s %s, %s, %s, %s' % (MF, ar(aO(f - 8, qs), 4), vr(vF + 4 * (f % NB), 4), vr(rP(par, qs), 4), ar(aO(f - 8, qs), 4))))
    return bb
def ones_mfmas(par): return [I('%s %s, %s, %s, %s' % (MF, ar(aL + 4 * qs, 4), ar(aONE, 4), vr(rP(par, qs), 4), ar(aL + 4 * qs, 4))) for qs in range(5)]
SPLIT = [None]; SMPOS = [None]
def period(j, peel=False, nodma=False):
    pu, pn = j % 2, (j + 1) % 2
    ks, vs = (j + 1) % 4, j
    lg = qk_mfmas(False) + pv_mfmas(pu)
    bb = []; ix = {-1: -1}
    on = ones_mfmas(pu) if opt.ones else []
    for i, x in enumerate(lg):
        bb.append(x); ix[i] = len(bb) - 1
        if on and i in ((40, 46, 52, 58, 64) if opt.onesadj else (44, 49, 54, 59, 64)): bb.append(on.pop(0))
    G = Gaps(bb, 8); N = len(bb)
    for f in range(4 if opt.chain else 3, 16):
        if opt.chain and f < 8: G.put(3 * (f - 4), *kread(f, ks)); continue
        G.put(ix[5 * (f - 3) - 1] if f > 3 else 0, *(kread(f, ks) if f < 8 else vread(f, vs)))
        if f % 2 == 0 and f < 15: G.put(ix[5 * f] - 1, I('@waitlgkm f%d' % (f + 1)))
    if opt.chain: G.put(19, I('@waitlgkm f7'))
    G.put(ix[XBAR], I('@waitlgkm *'), I('@waitvm K%d,V%d' % ((j + 2) % 4, (j + 1) % 4)), I('s_barrier'))
    if peel and j == 2:
        for f, g in ((8, XBAR + 1), (9, 69), (10, 74)): G.put(ix[g], *vread(f, 3))
    else:
        for f, g in ((0, XBAR + 1), (1, 69), (2, 71), (3, 73)) if opt.chain else ((0, XBAR + 1), (1, 69), (2, 74)): G.put(ix[g], *kread(f, (j + 2) % 4))
        G.put(N - 1, I('@waitlgkm f3' if opt.chain else '@waitlgkm f1'))
    if not opt.chain: G.put(9, I('@waitlgkm f3'))
    slots = [2, 7, 12, 17, 22, 27, 32, 37, 42, 47, 52, 57, 62] if opt.dsp == 5 else [2 + opt.dsp * m for m in range(8)]
    dl = dma_kv('K', j) + dma_kv('V', (j + 3) % 4)
    if peel: dl = dma_kv('V', 3) if j == 0 else dma_wo(j)
    if nodma: dl = []
    extra = []
    if peel and opt.sb == 1 and j < 2:
        tb = Block('x'); tail_setup_b(tb)
        cut = [k for k, x in enumerate(tb.ins) if x.w == {'v%d' % (vOD + 3)}][0] + 1
        extra = tb.ins[:cut] if j == 0 else tb.ins[cut:]
    if peel and j == 0: extra = extra + [x for g in dma_wo(0) for x in g]
    if not peel and opt.sb == 2 and j < 3 and not nodma:
        tb = Block('x'); tail_setup_b(tb); n3 = len(tb.ins) // 3
        cuts = [0] + [next(k for k in range(n3 * q, len(tb.ins)) if tb.ins[k].op not in ('s_addc_u32', 's_cselect_b32')) for q in (1, 2)] + [len(tb.ins)]
        inloop = tb.ins[cuts[j]:cuts[j + 1]]
    for m, g in enumerate(dl):
        p = ix[slots[m]]
        if not peel:
            ce, cl = opt.cape.strip()[m], opt.capl.strip()[m]
            if ce != 'x': G.put(p - 1, I('@raw s_waitcnt vmcnt(%s)' % ce))
            if cl != ce: G.put(p - 1, I('s_cbranch_vccnz L_t%d_%d' % (j, m)), I('@raw s_waitcnt vmcnt(%s)' % cl), I('L_t%d_%d:' % (j, m)))
        if len(g) == 2 and g[0].cls == 'salu': G.put(p - 1, g[0]); G.put(p, g[1])
        elif len(g) == 2: G.put(p, g[0]); G.put(p + 1, g[1])
        elif len(g) == 3: G.put(p - 2, g[0]); G.put(p - 1, g[1]); G.put(p, g[2])
        else: G.put(p, *g)
    if j == 3:
        G.put(ix[71], I('s_sub_u32 s%d, s%d, 1' % (sCNT, sCNT))); G.put(ix[77], I('s_cmp_lg_u32 s%d, 0' % sCNT))
        if opt.ramp: G.put(ix[74], I('s_cmp_le_u32 s%d, s37' % sCNT), I('s_cselect_b64 vcc, 1, vcc'))
        elif opt.rel: G.put(ix[74], I('s_cmp_le_u32 s%d, %d' % (sCNT, opt.rel)), I('s_cselect_b64 vcc, 1, vcc'))
    if opt.fbk and not peel and (j + 1) % opt.fbk == 0:
        G.put(ix[74], I('s_add_u32 s37, s37, 1')); G.put(ix[75], I('v_mov_b32 v251, s37'))
        G.put(ix[76], I('buffer_store_dword v251, v250, s[%d:%d], 0 offen sc1' % (S_F, S_F + 3)))
        G.put(ix[76], I('buffer_load_dword v252, v249, s[%d:%d], 0 offen sc1' % (S_F, S_F + 3)))
    if opt.fbk and not peel and j % opt.fbk == 0:
        G.put(ix[opt.fbpos], I('v_cmp_le_u32 vcc, s37, v252'))
        G.put(ix[opt.fbpos + 1], I('s_and_b32 vcc_lo, vcc_lo, s36'), I('s_bcnt1_i32_b32 vcc_lo, vcc_lo'))
        G.put(ix[opt.fbpos + 2], I('s_cmp_ge_u32 vcc_lo, %d' % opt.fbn), I('s_cselect_b64 vcc, 1, 0'))
    if peel and j == 0: G.put(ix[40], I('buffer_load_dword v244, v%d, s[%d:%d], 0 offen sc1' % (vDA, S_D, S_D + 3)))
    chn, chu = sm_chain(pn), sm_chain(pu)
    if SMPOS[0] is None:
        s0 = 18; gaps = list(range(s0, N)) + list(range(0, s0))
        gaps += list(range(s0, 24))
        lo = [ix[15 + 20 * kt + qs] + 4 - s0 for (_, kt, qs) in chn]
        hi = [(N - s0 + qs - 1) if kt == 0 else (N - s0 + 19 + qs) for (_, kt, qs) in chn]
        if opt.chain:
            s0 = 7; gaps = list(range(s0, N)) + list(range(0, s0))
            lo = [ix[20 * kt + 4 * qs + 3] + 4 - s0 for (_, kt, qs) in chn]
            hi = [N - s0 + 20 * kt + 4 * qs - 1 for (_, kt, qs) in chn]
        hi = [min(h, N - 1) for h in hi]
        _, pos = G.dp([x for x, _, _ in chn], gaps, lo, hi)
        SMPOS[0] = [gaps[p] for p in pos]; SPLIT[0] = sum(p < N - s0 for p in pos)
    for k, (x, _, _) in enumerate(chu):
        if k >= SPLIT[0]: G.put(SMPOS[0][k], I(x))
    for k, (x, _, _) in enumerate(chn):
        if k < SPLIT[0]: G.put(SMPOS[0][k], I(x))
    if not peel and opt.sb == 2 and j < 3 and not nodma: G.spread2(inloop, 0, N - 1)
    if peel and opt.sent and j == opt.pfper:
        pf = ['v_accvgpr_write_b32 a%d, -1' % (216 + i) for i in range(4)] + [I('buffer_store_dwordx4 a[216:219], v%d, s[%d:%d], s%d offen offset:%d sc1' % (vOL, S_P, S_P + 3, sPW + q, 1024 * k), 'pf') for q in range(3) for k in range(3)]
        if j == 2: G.spread2(pf, 0, 60)
        else: extra = extra + [x if isinstance(x, Ins) else I(x) for x in pf]
    if extra and j == 0: G.spread2(extra, ix[slots[3]] + 2, N - 1)
    if extra and j == 1: G.spread2(extra, ix[slots[4]] + 1, N - 1)
    if j == 3 or opt.pstamps: G.put(ix[XBAR], *stamp_ins())
    return G

def k1_attention():
    P = [period(j) for j in range(4)]
    print('period est cycles', [g.est_cycles(16) for g in P], [P[0].used(i) for i in range(len(P[0].bb))], file=sys.stderr)
    pro = Block('pro'); T = vT
    pro('L_start:')
    pro('@waitlgkm *\n@waitvm K1,V0\ns_barrier')
    for f in range(4 if opt.chain else 3): pro.extend(kread(f, 1))
    if opt.peel0:
        for g in dma_kv('K', 0) + dma_kv('V', 3): pro.extend(g)
    if opt.fallback: pro('s_cmp_lg_u32 s%d, 0\ns_cbranch_scc1 L_nomax' % sEX)
    mx = Block('pro_max')
    for qs in range(5):
        a, c = rS(0, qs), rS(1, qs); t = T + 2 * qs
        mx('v_max3_f32 v%d, v%d, v%d, v%d\nv_max3_f32 v%d, v%d, v%d, v%d' % (t, a, a + 1, a + 2, t + 1, c, c + 1, c + 2))
        mx('v_max3_f32 v%d, v%d, v%d, v%d\nv_max_f32 v%d, v%d, v%d' % (t, t, a + 3, c + 3, t, t, t + 1))
    max_finish(mx, T)
    p2 = Block('pro2'); p2('L_nomax:')
    p2.extend(neg_adds(0) + neg_adds(1) + [x for x, _, _ in sm_chain(0)[:SPLIT[0]]])
    if opt.touchc > 15 or opt.touchc < 13: wo_srd(p2)
    if opt.touchc > 15 or opt.touch2: wo_touch(p2)
    if opt.sb == 0: tail_setup_b(p2)
    p2('@waitlgkm f3' if opt.chain else '@waitlgkm f1')
    p2('s_mov_b32 s%d, 7' % sCNT)
    if opt.asym and not opt.ramp: p2('s_cmp_lt_u32 s%d, 2\ns_cselect_b64 vcc, 1, 0' % sJP)
    elif opt.ramp: p2('s_mov_b64 vcc, 0\ns_cmp_lt_u32 s%d, 2\ns_cselect_b32 s37, %d, %d' % (sJP, 7 - opt.ramp, opt.rel))
    elif opt.rel: p2('s_mov_b64 vcc, 0')
    if opt.thre and not opt.fbk and not opt.asym: p2('s_getreg_b32 s38, hwreg(HW_REG_XCC_ID, 0, 1)\ns_mov_b32 vcc_lo, s38\ns_mov_b32 vcc_hi, 0')
    if opt.fbk:
        p2('s_lshl_b32 s38, 1, s%d\ns_lshl_b32 s39, 16, s%d\ns_or_b32 s38, s38, s39\ns_andn2_b32 s36, 0xff, s38\ns_mov_b32 s37, 0\ns_mov_b64 vcc, 0\nv_mov_b32 v252, 0' % (sJP, sKQ))
    stamp(p2)
    if opt.peel0:
        p2.extend(period(0, nodma=True).emit()); p2('s_branch L_loop1')
    lp = [Block('per%d' % j) for j in range(4)]
    lp[0]('L_loop:'); lp[1]('L_loop1:')
    for j in range(4): lp[j].extend(P[j].emit())
    lp[3]('s_cbranch_scc1 L_loop')
    pe = [Block('pe%d' % j) for j in range(4)]
    pe[0].extend(period(0, True).emit()); pe[1].extend(period(1, True).emit())
    pe[1]('v_readlane_b32 s38, v244, 0\nv_readlane_b32 s39, v244, 1\ns_and_b32 s38, s38, 0xffff\ns_lshr_b32 s39, s39, 16\ns_min_u32 s38, s38, s39\ns_cmp_lt_u32 s38, 4\ns_cbranch_scc1 L_spin_d')
    pe[2]('L_back_d:')
    pe[2].extend(period(2, True).emit())
    sp = pe[3]; sp.name = 'spin_d'
    sp('L_spin_d:\ns_mov_b32 s40, %d\nL_spin_d2:\ns_sleep 4\nbuffer_load_dword v244, v%d, s[%d:%d], 0 offen sc1\ns_waitcnt vmcnt(0)' % (opt.spin, vDA, S_D, S_D + 3))
    sp('v_readlane_b32 s38, v244, 0\nv_readlane_b32 s39, v244, 1\ns_and_b32 s38, s38, 0xffff\ns_lshr_b32 s39, s39, 16\ns_min_u32 s38, s38, s39\ns_cmp_ge_u32 s38, 4\ns_cbranch_scc1 L_back_d')
    sp('s_sub_u32 s40, s40, 1\ns_cmp_lg_u32 s40, 0\ns_cbranch_scc1 L_spin_d2\ns_branch L_back_d')
    return pro, mx, p2, lp, pe

def max_finish(b, T):
    for qs in range(5): b('v_mov_b32 v%d, v%d' % (T + 2 * qs + 1, T + 2 * qs))
    for qs in range(5): b('v_permlane16_swap_b32 v%d, v%d' % (T + 2 * qs, T + 2 * qs + 1))
    for qs in range(5): b('v_max_f32 v%d, v%d, v%d' % (T + 2 * qs, T + 2 * qs, T + 2 * qs + 1))
    for qs in range(5): b('v_mov_b32 v%d, v%d' % (T + 2 * qs + 1, T + 2 * qs))
    for qs in range(5): b('v_permlane32_swap_b32 v%d, v%d' % (T + 2 * qs, T + 2 * qs + 1))
    for qs in range(5): b('v_max_f32 v%d, v%d, v%d' % (T + 2 * qs, T + 2 * qs, T + 2 * qs + 1))
    for qs in range(5):
        for i in range(4): b('v_sub_f32 v%d, 0, v%d' % (vN + 4 * qs + i, T + 2 * qs))

def poll_test(reg, mask, thr=1): return ['v_cmp_le_u32 vcc, %d, v%d' % (thr, reg), 's_and_b32 s38, vcc_lo, s%d' % mask, 's_cmp_lg_u32 s38, s%d' % mask]
def spin_block(name, addr, mask, thr=1):
    sp = Block('spin_' + name)
    sp('L_spin_%s:\ns_mov_b32 s40, %d\nL_spin_%s2:\ns_sleep 1\nbuffer_load_dword v244, v%d, s[%d:%d], 0 offen sc1\ns_waitcnt vmcnt(0)' % (name, opt.spin, name, addr, S_F, S_F + 3))
    sp.extend(poll_test(244, mask, thr))
    sp('s_cbranch_scc0 L_back_%s\ns_sub_u32 s40, s40, 1\ns_cmp_lg_u32 s40, 0\ns_cbranch_scc1 L_spin_%s2\ns_branch L_back_%s' % (name, name, name))
    return sp

def k1_tail():
    t1 = Block('tail1'); t2 = Block('tail2'); L = vLANE
    t1.extend([x for x, _, _ in sm_chain(1)[SPLIT[0]:]])
    t1.extend(ones_mfmas(1))
    G = Gaps(pv_mfmas(1), 8)
    for f in range(11, 16): G.put(5 * (f - 11) + 4, *vread(f, 3))
    R = vN + 9
    rc = ['v_accvgpr_read_b32 v%d, a%d' % (R + qs, aL + 4 * qs) for qs in range(5)]
    rc += ['v_add_f32 v%d, v%d, v%d' % (R + 5, R, R + 1), 'v_add_f32 v%d, v%d, v%d' % (R + 6, R + 2, R + 3), 'v_add_f32 v%d, v%d, v%d' % (R + 5, R + 5, R + 4), 'v_add_f32 v%d, v%d, v%d' % (R + 5, R + 5, R + 6)]
    if opt.fallback:
        rc += ['v_cmp_ngt_f32 vcc, s%d, v%d' % (sTH, R + 5), 's_lshl_b32 s39, s%d, 2' % sW, 's_add_u32 s39, s39, %d' % BADB, 'v_mov_b32 v%d, s39' % (R + 6),
               's_cmp_lg_u64 vcc, 0', 's_cselect_b32 s38, 1, 0', 'v_mov_b32 v%d, s38' % (R + 5), I('ds_write_b32 v%d, v%d' % (R + 6, R + 5), 'bad'), 'v_mov_b32 v%d, %d' % (R + 6, BADB)]
    rc += ['v_rcp_f32 v%d, v%d' % (vN + 2 * i, R + i) for i in range(5)]
    G.spread2(rc, 2, 11)
    if opt.fallback:
        G.put(12, I('@waitlgkm bad'), I('@waitvm wo0,wo1'), I('s_barrier'), I('ds_read_b128 %s, v%d' % (vr(R + 7, 4), R + 6)))
        G.put(16, I('v_or_b32 v%d, v%d, v%d' % (R + 5, R + 7, R + 8)), I('v_or3_b32 v%d, v%d, v%d, v%d' % (R + 5, R + 5, R + 9, R + 10)))
        G.put(17, I('v_readfirstlane_b32 s38, v%d' % (R + 5)))
        G.put(18, I('s_cmp_lg_u32 s%d, 0' % sEX), I('s_cselect_b32 s38, 0, s38'), I('s_cmp_lg_u32 s38, 0'), I('s_cbranch_scc1 L_fallback'))
    def out(kl):
        Lst = []
        for qs in range(5):
            idx = 5 * kl + qs
            d = BS[0][idx] if kl < 2 else BS[1][idx - 10] if opt.own else hole(idx % 10); e = hole(10 + idx % 5)
            src = [aO(2 * kl, qs) + i for i in range(4)] + [aO(2 * kl + 1, qs) + i for i in range(4)]
            tmp = [d + i for i in range(4)] + [e + i for i in range(4)]
            Lst += ['v_accvgpr_read_b32 v%d, a%d' % (tmp[i], src[i]) for i in range(8)]
            if kl and opt.pk2: Lst += ['v_pk_mul_f32 %s, %s, %s op_sel_hi:[1,0]' % (vr(tmp[i], 2), vr(tmp[i], 2), vr(vN + 2 * qs, 2)) for i in range(0, 8, 2)]
            else: Lst += ['v_mul_f32 v%d, v%d, v%d' % (tmp[i], vN + 2 * qs, tmp[i]) for i in range(8)]
            Lst += ['v_cvt_pk_bf16_f32 v%d, v%d, v%d' % (d + i, tmp[2 * i], tmp[2 * i + 1]) for i in range(4)]
            if opt.stcap: Lst += [I('@raw s_waitcnt vmcnt(%d)' % opt.stcap)]
            Lst += [I('buffer_store_dwordx4 %s, v%d, s[%d:%d], s%d offen offset:%d%s' % (vr(d, 4), vOL + qs // 4, S_O, S_O + 3, sOK + kl, 1024 * (qs % 4), opt.o_st_pol), 'Oa' if kl < 2 else 'O')]
            if kl >= 2 and not opt.own: Lst += [I('ds_write_b128 v%d, %s offset:%d' % (vXW, vr(d, 4), 1024 * (idx - 10)))]
        return Lst
    sDL = [30, 33, 28, 36, 37, 34, 29]
    b0 = [WOB[c % 5] for c in range(8)]; b1 = [WOB[(c ^ 1) % 5] if c < 2 or opt.early else WOB[c % 5] for c in range(8)]
    if opt.own:
        b0[1] = b0[0] + 16384; b1[0] -= 16384; b1[1] = b1[0] + 16384
    sc = ['s_lshr_b32 s41, s%d, 1' % sW]
    for c in range(7):
        d0, d1 = b0[c + 1] - b0[c], b1[c + 1] - b1[c]
        sc += ['s_mul_i32 s%d, s41, 0x%x' % (sDL[c], (d1 - d0) & 0xffffffff), 's_add_u32 s%d, s%d, 0x%x' % (sDL[c], sDL[c], d0 & 0xffffffff)] if d0 != d1 else ['s_mov_b32 s%d, 0x%x' % (sDL[c], d0 & 0xffffffff)]
    if opt.early: sc += ['s_lshl_b32 s26, 0x1111, s%d' % sW, 's_and_b32 s26, s26, s%d' % MK1[1], 's_xor_b32 s27, s26, s%d' % MK1[1]]
    G.spread2(out(0) + sc, 19, 39)
    t1.extend(G.emit(-1, 18)); t2.extend(G.emit(19, 39))
    for kl in (2, 3, 1) if not (opt.early or opt.own) else (1, 2, 3):
        mark = len(t2.ins) + 40; t2.extend(out(kl))
    t2('v_mov_b32 v245, 1\nv_mov_b32 v254, 2')
    if opt.early: t2('@waitvm Oa\nbuffer_store_dword v245, v%d, s[%d:%d], 0 offen sc1' % (vFA, S_F, S_F + 3))
    stamp(t2)
    bb = []; frs = []; first = []; last = []
    AR = [32, 36, 40, 44, 8, 12] if opt.t2ch else [32, 36, 40, 44]; NA = len(AR)
    def mf(c, kp, n, f, fi):
        a = 4 * (5 * n + f)
        bb.append(I('%s %s, %s, %s, %s' % (MF, ar(a, 4), vr(AR[fi % NA], 4), vr(BS[c % 3][5 * kp + f], 4), '0' if (c, kp) == (0, 0) else ar(a, 4))))
    for c in range(8):
        if opt.t2ch:
            for n in range(8) if c < 7 else (4, 5, 6, 7, 1, 2, 3, 0):
                fi = len(frs); frs += [(c, 0, n), (c, 1, n)]; first += [len(bb), len(bb) + 1]
                for f in range(5): mf(c, 0, n, f, fi); mf(c, 1, n, f, fi + 1)
                last += [len(bb) - 2, len(bb) - 1]
            continue
        seq = [(kp, n) for kp in range(2) for n in range(8)]
        if c == 7: seq = [(kp, n) for kp in range(2) for n in (4, 5, 6, 7)] + [(kp, n) for kp in range(2) for n in (1, 2, 3, 0)]
        for kp, n in seq:
            fi = len(frs); frs.append((c, kp, n)); first.append(len(bb))
            for f in range(5): mf(c, kp, n, f, fi)
            last.append(len(bb) - 1)
    G = Gaps(bb, 8)
    bars = {0: 'wo0,wo1,wo2', 2: '', 3: 'wo3,wo4', 5: 'wo5,wo6', 7: 'wo7'}
    if opt.early: bars = {0: 'wo0,wo1,wo2', 2: 'wo3', 4: 'wo4,wo5', 6: 'wo6,wo7'}
    if opt.fallback: bars[0] = 'wo2'
    for c, tg in bars.items():
        G.put(80 * c - 14 if c or not opt.fallback else opt.z0pos, *([I('@waitlgkm *')] + ([I('@waitvm ' + tg)] if tg else []) + [I('s_barrier')]))
    for fi, (c, kp, n) in enumerate(frs):
        g = max(last[fi - NA] if fi >= NA else -1, first[fi] - (18 if opt.t2ch else 16), -1)
        if c in bars and c: g = max(g, 80 * c - 13 + (fi % 2 if opt.t2ch else 0))
        r = AR[fi % NA]
        G.put(g, I('ds_read_b64_tr_b16 %s, v%d offset:%d' % (vr(r, 2), vRA[n], kp * 8192), 'wx'), I('ds_read_b64_tr_b16 %s, v%d offset:%d' % (vr(r + 2, 2), vRA[n], kp * 8192 + 4096), 'w%d' % fi))
        if kp == 1 and c < 7:
            G.put(g + 1, I('v_add_u32 v%d, s%d, v%d' % (vRA[n], sDL[c], vRA[n])))
        if fi % 2 == 0 and fi: G.put(first[fi] - 1, I('@waitlgkm w%d' % (fi + 1)))
    z0 = opt.z0pos + 1 if opt.fallback else 0
    for i in range(0 if opt.own else 10): G.put(z0 + i // 2 + (i >= 8), I('ds_read_b128 %s, v%d offset:%d' % (vr(BS[1][i], 4), vXR, 1024 * i), 'xr'))
    G.put(opt.flagpos, I('@waitvm O,Oa'), I('buffer_store_dword v254, v%d, s[%d:%d], 0 offen sc1' % (vFA, S_F, S_F + 3)))
    if not opt.own: G.put(z0 + 13, I('@waitlgkm xr'), I('s_barrier'))
    flat = lambda d: [x for g in d for x in g]
    def oload(c):
        return [I('buffer_load_dwordx4 %s, v%d, s[%d:%d], s%d offen offset:%d%s' % (vr(BS[c % 3][5 * kp + f], 4), vOL + 2 * kp + f // 4, S_OR, S_OR + 3, sORO + c, 1024 * (f % 4), opt.o_ld_pol)) for kp in range(2) for f in range(5)]
    G.spread2(flat(dma_wo(3) + dma_wo(4)), z0 + 15, z0 + 62)
    ck = opt.chkpos
    checks = [('o1', opt.pollpos, ck, 26 if opt.early else MK1[1], 1 if opt.early else 2)]
    if opt.early: checks.append(('ob', opt.chkb - opt.pleadb, opt.chkb, 27, 2))
    checks += [('o2', opt.chk2 - opt.plead, opt.chk2, MK1[2], 2), ('o3', opt.chk3 - opt.plead, opt.chk3, MK1[3], 2)]
    for name, pp, cp, mk, thr in checks:
        G.put(pp, I('buffer_load_dword v244, v%d, s[%d:%d], 0 offen sc1' % (vPA, S_F, S_F + 3)))
        G.put(cp, *[I(x) for x in poll_test(244, mk, thr) + ['s_cbranch_scc1 L_spin_' + name]])
    def even(lst, lo, hi):
        mem = [x for x in lst if x.cls in ('dma', 'vld')]; k = 0; pend = []
        for x in lst:
            if x.cls in ('dma', 'vld'):
                g = lo + (k * (hi - lo)) // max(len(mem) - 1, 1); k += 1
                for j, y in enumerate(pend): G.put(g - len(pend) + j, y)
                G.put(g, x); pend = []
            else: pend.append(x)
    c2, c3 = opt.chk2, opt.chk3
    G.spread2(oload(2), ck + 1, ck + 8)
    if opt.early:
        even(oload(3), opt.chkb + 1, opt.chkb + 24); even(flat(dma_wo(5)), opt.chkb + 29, c2 - 3)
        even(oload(4), c2 + 1, c2 + 36); even(flat(dma_wo(6)), c2 + 41, c2 + 66)
        even(oload(5), c2 + 70, c3 - 3); even(flat(dma_wo(7)), c3 + 3, c3 + 32); even(oload(6), c3 + 36, c3 + 70)
        even(oload(7), max(c3 + 74, 401), c3 + 115)
    else:
        even(oload(3), ck + 14, c2 - 42); even(flat(dma_wo(5)), max(c2 - 38, 150), c2 - 3)
        even(oload(4), c2 + 1, c2 + 40); even(flat(dma_wo(6)), c2 + 45, c3 - 48)
        even(oload(5), c3 - 44, c3 - 3); even(oload(6), c3 + 1, c3 + 42)
        even(flat(dma_wo(7)), c3 + 47, c3 + 80); even(oload(7), max(c3 + 84, 401), c3 + 125)
    if opt.sent:
        G.put(opt.flagpos + 1, I('@waitvm pf'), I('buffer_store_dword v245, v%d, s[%d:%d], 0 offen sc1' % (vFA + 1, S_F, S_F + 3)))
        G.put(575, I('buffer_load_dword v244, v%d, s[%d:%d], 0 offen sc1' % (vPA + 1, S_F, S_F + 3)))
    RG = BS[0] + BS[2]
    order = [5 * nl + f for nl in (1, 2, 3, 0) for f in range(5)]
    for i in range(20): G.put(574 + 2 * i + (i % 5 + 1) // 2 * 0 if opt.t2ch else 585 + (3 * i) // 2, I('ds_write_b128 v%d, %s offset:%d' % (vYW, ar(80 + 4 * i, 4), 1024 * i), 'yw'))
    G.put(619, I('@waitlgkm yw'), I('s_barrier'))
    for k, i in enumerate(order): G.put(620 + k, I('ds_read_b128 %s, v%d offset:%d' % (vr(RG[i], 4), vYR, 1024 * i)))
    if opt.tstamps:
        for g in (opt.flagpos + 1, 79, opt.chkpos - 1, opt.chkpos + 1, 159, 164, opt.chk2 - 1, opt.chk2 + 1, 239, opt.chk3 - 1, opt.chk3 + 1, 399, 479, 559): G.put(g, *stamp_ins())
    print('oproj est cycles', G.est_cycles(16), file=sys.stderr)
    if opt.fallback: t2.ins[mark:mark] = G.g[-1]; G.g[-1] = []
    blks = [t2]; lo = -1
    for name, pp, cp, mk, thr in checks:
        blks[-1].extend(G.emit(lo, cp)); lo = cp + 1
        blks.append(Block('t_' + name)); blks[-1]('L_back_%s:' % name)
    t3 = blks[-1]
    t3.extend(G.emit(lo, 639))
    stamp(t3)
    for k, i in enumerate(order):
        tm = BS[1][k % 10]
        for e in range(4): t3('v_accvgpr_read_b32 v%d, a%d' % (tm + e, 4 * i + e))
        for e in range(4): t3('v_add_f32 v%d, v%d, v%d' % (RG[i] + e, RG[i] + e, tm + e))
        nl, f = divmod(i, 5)
        if nl and not opt.pbf: t3('buffer_store_dwordx4 %s, v%d, s[%d:%d], s%d offen offset:%d%s' % (vr(RG[i], 4), vOL + f // 4, S_P, S_P + 3, sPW + nl - 1, 1024 * (f % 4), opt.p_st_pol), 'P')
        if nl and opt.pbf:
            d = RG[5 * nl + f // 2 * 2] + 2 * (f % 2)
            t3('v_cvt_pk_bf16_f32 v%d, v%d, v%d\nv_cvt_pk_bf16_f32 v%d, v%d, v%d' % (d, RG[i], RG[i] + 1, d + 1, RG[i] + 2, RG[i] + 3))
            if f % 2 or f == 4: t3('buffer_store_dwordx%d %s, v%d, s[%d:%d], s%d offen offset:%d%s' % (2 if f == 4 and opt.sent else 4, vr(RG[5 * nl + f // 2 * 2], 2 if f == 4 and opt.sent else 4), vOL, S_P, S_P + 3, sPW + nl - 1, 1024 * (f // 2), opt.p_st_pol), 'P')
    if not opt.sent:
        t3('@waitvm P\nbuffer_store_dword v245, v%d, s[%d:%d], 0 offen sc1' % (vFA + 1, S_F, S_F + 3))
        stamp(t3)
        t3('buffer_load_dword v244, v%d, s[%d:%d], 0 offen sc1' % (vPA + 1, S_F, S_F + 3))
    else: stamp(t3)
    t3.extend(poll_test(244, sMK2) + ['s_cbranch_scc1 L_spin_p'])
    t4 = Block('tail4'); t4('L_back_p:')
    spins = [spin_block(name, vPA, mk, thr) for name, pp, cp, mk, thr in checks] + [spin_block('p', vPA + 1, sMK2)]
    LD = [BS[1][3 * (f // 2) + j] for j in (1, 2, 3) for f in (0, 2, 4)] if opt.sent else None
    def preg(j, f): return LD[3 * (j - 1) + f // 2] if opt.sent else RG[5 * j + f]
    if opt.sent:
        blks.append(t4); t4('s_mov_b32 s41, %d' % opt.spin)
        t4 = Block('try'); t4('L_try:')
    else: stamp(t4)
    for f in range(0, 5, 2 if opt.pbf else 1):
        for j in (1, 2, 3):
            if opt.pbf: t4('buffer_load_dwordx%d %s, v%d, s[%d:%d], s%d offen offset:%d%s' % (2 if f == 4 and opt.sent else 4, vr(preg(j, f), 2 if f == 4 and opt.sent else 4), vOL, S_P, S_P + 3, sPR + j - 1, 1024 * (f // 2), opt.p_ld_pol))
            else: t4('buffer_load_dwordx4 %s, v%d, s[%d:%d], s%d offen offset:%d%s' % (vr(RG[5 * j + f], 4), vOL + f // 4, S_P, S_P + 3, sPR + j - 1, 1024 * (f % 4), opt.p_ld_pol))
    if opt.sent:
        regs = [preg(j, f) + e for f in (0, 2, 4) for j in (1, 2, 3) for e in range(2 if f == 4 else 4)]
        t4('v_max_u32 v244, v%d, v%d' % (regs[0], regs[1]))
        for k in range(2, len(regs), 2): t4('v_max3_u32 v244, v244, v%d, v%d' % (regs[k], regs[k + 1]))
        t4('v_cmp_eq_u32 vcc, -1, v244\ns_cbranch_vccnz L_spin_s')
        blks.append(t4); t4 = Block('fin'); t4('L_fin:'); stamp(t4)
        sp = Block('spin_s')
        sp('L_spin_s:\ns_sub_u32 s41, s41, 1\ns_cmp_eq_u32 s41, 0\ns_cbranch_scc1 L_fin\ns_sleep 1\nbuffer_load_dword v244, v27, s[%d:%d], 0 offen sc1\ns_waitcnt vmcnt(0)' % (S_P, S_P + 3))
        sp('v_cmp_eq_u32 vcc, -1, v244\ns_cbranch_vccnz L_spin_s\ns_branch L_try')
        spins.append(sp)
    blks.append(t4)
    if opt.pbf: t4('s_mov_b32 s39, 0xffff0000')
    for f in range(5):
        a, b1, b2, b3 = RG[f], RG[5 + f], RG[10 + f], RG[15 + f]
        if opt.pbf:
            for j in (1, 2, 3):
                src = preg(j, f // 2 * 2) + 2 * (f % 2); tm = RG[5 * j + 1]
                t4('v_lshlrev_b32 v%d, 16, v%d\nv_and_b32 v%d, s39, v%d\nv_lshlrev_b32 v%d, 16, v%d\nv_and_b32 v%d, s39, v%d' % (tm, src, tm + 1, src, tm + 2, src + 1, tm + 3, src + 1))
            b1, b2, b3 = RG[6], RG[11], RG[16]
        for e in range(4): t4('v_add_f32 v%d, v%d, v%d\nv_add_f32 v%d, v%d, v%d' % (a + e, a + e, b1 + e, b2 + e, b2 + e, b3 + e))
        for e in range(4): t4('v_add_f32 v%d, v%d, v%d' % (a + e, a + e, b2 + e))
        t4('v_cvt_pk_bf16_f32 v%d, v%d, v%d\nv_cvt_pk_bf16_f32 v%d, v%d, v%d\ns_mov_b32 s38, %d' % (a, a, a + 1, a + 1, a + 2, a + 3, 32768 * f))
        t4('buffer_store_dwordx2 %s, v%d, s[%d:%d], s38 offen%s' % (vr(a, 2), vST, S_OUT, S_OUT + 3, opt.out_pol))
    if opt.stamps: t4('s_waitcnt vmcnt(0)')
    stamp(t4)
    if opt.twice: t4('s_add_u32 s63, s3, 0\ns_cmp_lt_u32 s%d, 100\ns_cbranch_scc1 L_again' % sTSN)
    t4('s_endpgm')
    for b in blks:
        if 'c' in opt.t2x: b.ins = [x for x in b.ins if not (x.op == 's_cbranch_scc1' and 'spin_o' in x.text)]
        if 'p' in opt.t2x: b.ins = [x for x in b.ins if not (x.op == 's_cbranch_scc1' and 'spin_p' in x.text)]
        if 'o' in opt.t2x: b.ins = [x for x in b.ins if not (x.cls == 'vld' and 's[16:19]' in x.text)]
        if 'w' in opt.t2x: b.ins = [x for x in b.ins if x.cls != 'dma']
        if 's' in opt.t2x: b.ins = [x for x in b.ins if x.tag not in ('O', 'Oa')]
    return t1, blks, spins

def k1_fallback():
    b = Block('fb'); T = vT
    b('L_fallback:')
    b('s_waitcnt vmcnt(0) lgkmcnt(0)\ns_nop 15\ns_barrier')
    b('v_and_b32 v1, 15, v%d\nv_lshrrev_b32 v2, 4, v%d\nv_lshlrev_b32 v2, 4, v2\nv_lshl_add_u32 v%d, v1, 8, v2' % (vLANE, vLANE, T + 10))
    for qs in range(5): b('v_mov_b32 v%d, 0xff800000' % (T + 2 * qs))
    b('s_mov_b32 s39, 0')
    lp = Block('fbl'); lp('L_fb_loop:')
    for k in range(4): lp('buffer_load_dwordx4 %s, v%d, s[%d:%d], s39 offen offset:%d' % (vr(vF + 4 * k, 4), T + 10, S_K, S_K + 3, 64 * k))
    lp('s_waitcnt vmcnt(0)')
    lp.extend(qk_mfmas(True)[:20])
    lp('s_nop 15')
    for qs in range(5):
        s = rS(0, qs); t = T + 2 * qs
        lp('v_max3_f32 v%d, v%d, v%d, v%d\nv_max3_f32 v%d, v%d, v%d, v%d' % (t, t, s, s + 1, t, t, s + 2, s + 3))
    lp('s_add_u32 s39, s39, 4096\ns_cmp_lt_u32 s39, 262144\ns_cbranch_scc1 L_fb_loop')
    e = Block('fbe')
    if opt.twice: e('L_again:\ns_waitcnt vmcnt(0) lgkmcnt(0)\ns_barrier\ns_mov_b32 s34, 0x7f800000\ns_mov_b32 s36, 0x3e000000')
    max_finish(e, T)
    e.extend(zero_acc())
    e('s_and_b32 s40, s%d, 1\ns_lshl_b32 s%d, s40, 12\ns_mov_b32 s%d, s%d' % (sW, sKO, sVO, sKO))
    for g in dma_kv('K', 0) + dma_kv('K', 1) + dma_kv('K', 2) + dma_kv('K', 3) + dma_kv('V', 0) + dma_kv('V', 1) + dma_kv('V', 2): e.extend(g)
    e('s_mov_b32 s%d, 1\ns_waitcnt vmcnt(0)\ns_barrier' % sEX)
    G = Gaps(qk0_mfmas(), 8)
    for f in range(8): G.put(max(5 * (f - 3) - 1, -1), *kread0(f))
    e.extend(G.emit())
    e('s_nop 7\ns_branch L_start')
    return b, lp, e

def kernel_text(kname, blocks, traces, vgpr, accum, sgpr=102):
    d = {b.name: b for b in blocks}
    assert len(d) == len(blocks)
    place_waits(d, traces)
    n = place_nops(d, traces)
    print(kname[:12], 'nop states inserted', n, 'instructions', {b.name: len(b.ins) for b in blocks}, file=sys.stderr)
    t = '.text\n.globl %s\n.p2align 8\n.type %s,@function\n%s:\n' % (kname, kname, kname) + render(blocks)
    t += '.section .rodata,"a"\n.p2align 6\n.amdhsa_kernel %s\n' % kname
    t += '  .amdhsa_next_free_vgpr %d\n  .amdhsa_next_free_sgpr %d\n  .amdhsa_accum_offset %d\n' % (vgpr, sgpr, accum)
    t += '  .amdhsa_group_segment_fixed_size 0\n  .amdhsa_kernarg_size 104\n  .amdhsa_user_sgpr_count 2\n'
    t += '  .amdhsa_user_sgpr_kernarg_segment_ptr 1\n  .amdhsa_system_sgpr_workgroup_id_x 1\n.end_amdhsa_kernel\n'
    return t

def gen_k1(kname):
    setup = k1_setup(); qp = k1_qproj()
    pro, mx, p2, lp, pe = k1_attention(); t1, tb, spins = k1_tail()
    end = Block('end'); end('L_k1_end:\ns_endpgm')
    blocks = [setup, qp, pro, mx, p2] + lp + pe[:3] + [t1] + tb + spins + [pe[3]]
    loop = (['per0', 'per1', 'per2', 'per3'] * 3)[1 if opt.peel0 else 0:] + ['pe0', 'pe1', 'pe2', 'tail1']
    head = ['setup', 'qproj', 'pro', 'pro_max', 'pro2']
    rest = [b.name for b in tb]
    slow = []
    for b in tb:
        if b.name.startswith('t_'): slow += ['spin_' + b.name[2:]] * 2
        if b.name == 'tail4': slow += ['spin_p'] * 2
        if b.name == 'fin': slow += ['spin_s', 'spin_s', 'try', 'spin_s']
        slow.append(b.name)
    traces = [head + loop + rest, head + loop[:-2] + ['spin_d', 'spin_d', 'pe2', 'tail1'] + slow]
    if opt.fallback:
        fb, fbl, fbe = k1_fallback(); blocks += [fb, fbl, fbe]
        traces.append(head + loop + ['fb', 'fbl', 'fbl', 'fbe', 'pro', 'pro2'] + loop + rest)
    blocks.append(end)
    return kernel_text(kname, blocks, traces, 512, 256)

def gen_diag(kname):
    a, b_, gain = [int(x, 0) for x in opt.diag.split()]
    b = Block('dg')
    b('''s_cmp_ge_u32 s2, 1
         s_cbranch_scc1 L_dg_end
         s_load_dwordx2 s[4:5], s[0:1], 96
         s_waitcnt lgkmcnt(0)
         s_add_u32 s4, s4, 0x3000000
         s_addc_u32 s5, s5, 0
         s_load_dword s6, s[4:5], %d
         s_load_dword s7, s[4:5], %d
         s_memrealtime s[8:9]
         s_waitcnt lgkmcnt(0)
         s_sub_u32 s6, s7, s6
         s_min_u32 s6, s6, 20000
         s_mul_i32 s6, s6, %d
         L_dg:
         s_memrealtime s[10:11]
         s_waitcnt lgkmcnt(0)
         s_sub_u32 s10, s10, s8
         s_cmp_lt_u32 s10, s6
         s_cbranch_scc1 L_dg
         L_dg_end:
         s_endpgm''' % (a, b_, gain))
    return kernel_text(kname, [b], [['dg']], 8, 8, 16)

def main(out, only=None):
    t = open('cdna_kernels/%s.s.ref' % NAME).read().split('; Override launch')[0]
    k1 = NAME + '_kernel'
    if opt.diag.strip():
        t += '; @launch kernel=%s grid=(256,1,1) block=(256,1,1) lds=163840\n; @launch kernel=diag_kernel grid=(1,1,1) block=(64,1,1) lds=0\n' % k1
    else: t += '; @launch grid=(256,1,1) block=(256,1,1) lds=163840\n'
    t += '''; Generated by a script (software-pipelined instruction placement, s_waitcnt counts and wait states are computed).
;     reaches 2^30 (or is not finite) the workgroup computes the true maximum over all keys and redoes both heads.
'''
    t += '.amdgcn_target "amdgcn-amd-amdhsa--gfx950"\n'
    t += gen_k1(k1)
    if opt.diag.strip(): t += gen_diag('diag_kernel')
    open(out, 'w').write(t)

if __name__ == '__main__':
    out = sys.argv[1]; only = None
    for a in sys.argv[2:]:
        k, v = a.split('=')
        if k == 'only': only = int(v)
        elif isinstance(getattr(opt, k), bool): setattr(opt, k, v == '1')
        elif isinstance(getattr(opt, k), int): setattr(opt, k, int(v))
        else: setattr(opt, k, (' ' + v.replace('+', ' ')) if v else '')
    main(out, only)
```

```python
import sys, math, struct
from asmlib import *

NAME = "concat_heads__gqa_block_cached__gqa_block_cached__near_ridge"
def f32bits(x): return struct.unpack('<I', struct.pack('<f', x))[0]
MF = 'v_mfma_f32_16x16x32_bf16'
def vr(b, n=1, k='v'): return '%s%d' % (k, b) if n == 1 else '%s[%d:%d]' % (k, b, b + n - 1)
def ar(b, n=1): return vr(b, n, 'a')

class Opt:
    kv_pol = ' nt'; w_pol = ''; x_pol = ''; o_st_pol = ' sc1'; o_ld_pol = ' sc1'; wo_pol = ''; out_pol = ''; p_st_pol = ' sc1'; p_ld_pol = ' sc1'
    stamps = False; fallback = True; ones = True; nokv = False; nox = False; noxq = False; qstamps = False
    dsp = 10; kvend = 13; burst = ' 10:2 12:2'; k2stag = 1; qevery = 4; warm = 336; qf = ' '; pk = False; upfront = 3; diag = ' '; spin = 524288; joint = True; own = True; touch2 = False; peel0 = False; pfper = 2; chain = True; asym = 1; rel = 1; ramp = 1; t2ch = True; onesadj = True; cape = ' 4x4x4x4x'; capl = ' 44444444'; twice = False; z0pos = 3; stcap = 0; pecap = False; fs = False; t2x = ' '; early = False; sent = False; chkb = 168; pleadb = 30; qcl = 1; fbk = 0; fbn = 4; fbpos = 56; sb = 1; t2mode = 0; o3n = 10; pstamps = False; tstamps = False; thre = 0; thro = 4; thrn = 2; ptouch = 0; touchc = 8; flagpos = 12; pollpos = 105; chkpos = 140; chk2 = 270; chk3 = 390; plead = 40; pbf = True; pk2 = True
opt = Opt()

S_K, S_V, S_X, S_WQ, S_O = 4, 8, 12, 16, 20
sW, sW4, sKO, sVO, sCNT, sEX, sC0, sB, sBR, sH1, sTH, sM0B = 24, 25, 26, 27, 28, 29, 30, 31, 32, 33, 34, 35
sSC = 36
S_TS, sTSA, sTSN = 52, 56, 58
sWO, sXO = 76, 92
STASH = {'K2': 32, 'V2': 224, 'K3': 240}
vSW = 2
vKA, vVA, vKD, vVD, vLANE, vL = 8, 12, 20, 24, 26, 59
vF = 32; NB = 4
vWA, vXA, vWD, vXD = 48, 52, 54, 58
vACC = 64
def rQ(k, qs): return vACC + 8 * (5 * k + qs)
def hole(i): return vACC + 8 * i + 4
def rS(kt, qs): return hole(5 * kt + qs)
def rP(par, qs): return hole(10 + 5 * par + qs)
vN = 224
vT = 48; vT2 = 244
def aO(dt, qs): return 4 * (5 * dt + qs)
aL, aONE, aFA, aFB = 160, 180, 184, 200
KS0, VS0 = 0, 65536
WBUF = [139264, 32768, 49152]
XBUF = [98304, 118784]
sJP, sKQ = 3, 59
S_F, S_D, S_P, S_OUT, S_WO, S_OR = 44, 48, 64, 68, 12, 16
sOK, sWOO, sORO, sPW, sPR, sD01, sD12, sMK1, sMK2 = 76, 80, 88, 96, 99, 30, 33, 42, 43
MK1 = [None, 42, 60, 61]
POFF, FOFF, TSOFF = 0x1500000, 0x2a00000, 0x3000000
vOD, vOL, vXW, vXR, vYW, vYR, vST, vFA, vPA, vDA = 54, 58, 62, 63, 48, 49, 50, 51, 28, 30
vRA = list(range(246, 254))
WOB = [131072, 0, 65536, 32768, 98304]
BADB = 98304 + 10240
BS = [[vACC + 8 * i for i in range(10)], [vACC + 8 * i for i in range(10, 20)], [hole(i) for i in range(10)]]
SPIN = 1 << 15

def stamp_ins():
    if not opt.stamps: return []
    return [I('s_memrealtime s[%d:%d]' % (sTSA, sTSA + 1)), I('s_memtime s[62:63]'), I('s_waitcnt lgkmcnt(0)'), I('v_mov_b32 v5, s%d' % sTSA), I('v_mov_b32 v6, s%d' % sTSN), I('v_mov_b32 v7, s62'),
            I('buffer_store_dword v5, v6, s[%d:%d], 0 offen' % (S_TS, S_TS + 3), 'stamp'), I('buffer_store_dword v7, v6, s[%d:%d], 0 offen offset:256' % (S_TS, S_TS + 3), 'stamp'), I('s_add_u32 s%d, s%d, 4' % (sTSN, sTSN))]
def stamp(b): b.extend(stamp_ins())
def stamp_setup(b, ws, w, off=TSOFF, first=False):
    if not opt.stamps: return
    b('''s_lshl_b32 s39, s2, 9
         s_add_u32 s39, s39, {off}
         s_add_u32 s{T}, s{ws}, s39
         s_addc_u32 s{T1}, s{ws1}, 0
         s_cmp_eq_u32 s{w}, 0
         s_cselect_b32 s{T2}, 512, 0
         s_mov_b32 s{T3}, 0x20000
         s_mov_b32 s{N}, 0'''.format(T=S_TS, T1=S_TS + 1, T2=S_TS + 2, T3=S_TS + 3, w=w, ws=ws, ws1=ws + 1, N=sTSN, off=off))
    if first:
        b('v_mov_b32 v5, s100\nv_mov_b32 v6, 0\nv_mov_b32 v7, s42')
        b('buffer_store_dword v5, v6, s[%d:%d], 0 offen\nbuffer_store_dword v7, v6, s[%d:%d], 0 offen offset:256\ns_mov_b32 s%d, 4' % (S_TS, S_TS + 3, S_TS, S_TS + 3, sTSN))
    stamp(b)

def srd(b, d, lo, off, num):
    b('s_add_u32 s%d, s%d, %s\ns_addc_u32 s%d, s%d, 0\n%s\ns_mov_b32 s%d, 0x20000' % (d, lo, off, d + 1, lo + 1,
      ('s_mov_b32 s%d, %d' % (d + 2, num)) if isinstance(num, int) else num % (d + 2), d + 3))

def off_calc(X):
    return ['s_add_u32 s38, s%d, %d' % (sC0, X), 's_and_b32 s38, s38, 7', 's_lshl_b32 s%d, s38, 19' % (sWO + 2 * X),
            's_add_u32 s%d, s%d, 262144' % (sWO + 2 * X + 1, sWO + 2 * X)]
def dma_wq(c):
    G = [[I('s_add_u32 m0, s%d, %d' % (sW4, WBUF[c % 3]))]]
    for n in range(4):
        G.append([I('buffer_load_dwordx4 v%d, s[%d:%d], s%d offen offset:%d%s lds' % (vWD + n, S_WQ, S_WQ + 3, sWO + c, 1024 * n, opt.w_pol), 'wq%d' % c)])
    return G
def dma_x(X):
    G = [[I('s_lshr_b32 s39, s%d, 12' % (sWO + 2 * X))], [I('s_add_u32 m0, s%d, %d' % (sW4, XBUF[X % 2]))]]
    for n in range(4):
        G.append([I('buffer_load_dwordx4 v%d, s[%d:%d], s%d offen offset:%d%s lds' % (vXD + n, S_X, S_X + 3, 39, 1024 * n, opt.x_pol), 'x%d' % X)])
    G.append([I('s_add_u32 m0, s%d, %d' % (sM0B, XBUF[X % 2] + 16384))])
    G.append([I('buffer_load_dwordx4 v%d, s[%d:%d], s%d offen%s lds' % (vXD + 4, S_X, S_X + 3, 39, opt.x_pol), 'x%d' % X)])
    return G
def stash_load(which, slot):
    K = which == 'K'; srd_, so = (S_K, sKO) if K else (S_V, sVO); r = STASH['%s%d' % (which, slot)]
    G = [[I('buffer_load_dwordx4 %s, v%d, s[%d:%d], s%d offen offset:%d%s' % (vr(r + 4 * m, 4), vKD + m if K else vVD + m % 2, srd_, srd_ + 3, so, 1024 * m, opt.kv_pol), 'st')] for m in range(4)]
    G[3].append(I('s_add_u32 s%d, s%d, 8192' % (so, so)))
    return G
def stash_flush(which, slot):
    r = STASH['%s%d' % (which, slot)]; base = (KS0 if which == 'K' else VS0) + 16384 * slot
    return [I('ds_write_b128 v%d, %s offset:%d' % (vSW + base // 65536, vr(r + 4 * m, 4), base % 65536 + 1024 * m)) for m in range(4)]
def dma_kv(which, slot, m0each=False):
    G = []; K = which == 'K'
    srd_, so = (S_K, sKO) if K else (S_V, sVO)
    for m in range(4):
        g = []
        if m == 0 or m0each: g.append(I('s_add_u32 m0, s%d, %d' % (sW4, (KS0 if K else VS0) + 16384 * slot)))
        g.append(I('buffer_load_dwordx4 v%d, s[%d:%d], s%d offen offset:%d%s lds' % (vKD + m if K else vVD + m % 2, srd_, srd_ + 3, so, 1024 * m, opt.kv_pol), '%s%d' % (which, slot)))
        if m == 3: g.append(I('s_add_u32 s%d, s%d, 8192' % (so, so)))
        G.append(g)
    return G

def dma_wo(c):
    buf = WOB[3 if c == 7 and opt.joint else c % 5]; G = []
    for m in range(8):
        g = []
        if m == 4: g.append(I('s_add_u32 s2, s%d, 16384' % (sWOO + c)))
        if m % 4 == 0: g.append(I('s_add_u32 m0, s%d, %d' % (sM0B, buf + 4096 * (m // 4))))
        g.append(I('buffer_load_dwordx4 v%d, s[%d:%d], s%d offen offset:%d%s lds' % (vOD + m % 4, S_WO, S_WO + 3, sWOO + c if m < 4 else 2, 1024 * (m % 4), opt.wo_pol), 'wo%d' % c))
        G.append(g)
    return G

def peer(p):
    if not opt.asym: return 's_add_u32 s38, s%d, %d\ns_and_b32 s38, s38, 3' % (sJP, p)
    if p == 0: return 's_mov_b32 s38, s%d' % sJP
    return 's_cmp_lt_u32 s%d, 2\ns_cselect_b32 s38, %d, %d\ns_xor_b32 s38, s38, s%d' % (sJP, p, p % 3 + 1, sJP)

def page_touch():
    return ['v_mov_b32 v1, 0'] + ['buffer_load_dword v%d, v1, s[%d:%d], 0 offen' % (253 + i, d, d + 3) for i, d in enumerate((S_O, S_P, S_OUT))]
def tail_setup_a(b):
    b('s_mov_b32 s72, s92\ns_mov_b32 s73, s93')
    b('''s_and_b32 s98, s{w}, 1
         s_lshr_b32 s99, s{w}, 1
         s_lshl_b32 s96, s{B}, 1
         s_add_u32 s96, s96, s98
         s_mul_i32 s96, s96, 163840
         s_lshl_b32 s97, s{BR}, 2
         s_add_u32 s97, s97, s{JP}
         s_lshl_b32 s97, s97, 1
         s_add_u32 s97, s97, s99
         s_lshl_b32 s97, s97, 2
         s_add_u32 s97, s97, s{KQ}
         s_lshl_b32 s97, s97, 5
         s_add_u32 s96, s96, s97'''.format(w=sW, B=sB, BR=sBR, JP=sJP, KQ=sKQ))
    srd(b, S_OUT, 94, 's96', 's_sub_u32 s%d, 2621440, s96')
    for p in (1, 2, 3): b(peer(p) + '\ns_lshl_b32 s38, s38, 2\ns_add_u32 s38, s38, s98\ns_lshl_b32 s%d, 5, s38' % MK1[p])
    b('s_lshl_b32 s38, 0x1111, s%d\ns_lshl_b32 s39, s%d, 2\ns_lshl_b32 s39, 15, s39\ns_andn2_b32 s%d, s38, s39' % (sW, sKQ, sMK2))
    b('s_lshl_b32 s38, s%d, 3\ns_add_u32 s38, s38, s%d\ns_lshl_b32 s38, s38, 2\ns_add_u32 s38, s38, s%d\ns_mul_i32 s38, s38, 327680\ns_mul_i32 s39, s%d, 5120\ns_add_u32 s38, s38, s39\ns_add_u32 s38, s38, 0x%x' % (sBR, sB, sJP, sW, POFF))
    srd(b, S_P, 74, 's38', 's_sub_u32 s%d, 327680, s39')
    for j in (1, 2, 3):
        b('s_xor_b32 s38, s%d, %d\ns_lshl_b32 s39, s38, 2\ns_add_u32 s39, s39, s%d\ns_mul_i32 s%d, s39, 20480' % (sKQ, j, sKQ, sPW + j - 1))
        b('s_lshl_b32 s39, s%d, 2\ns_add_u32 s39, s39, s38\ns_mul_i32 s%d, s39, 20480' % (sKQ, sPR + j - 1))

def wo_srd(b, S_WO=S_WO):
    b('s_lshl_b32 s38, s%d, 20\ns_lshl_b32 s39, s%d, 8\ns_add_u32 s38, s38, s39' % (sKQ, sJP))
    srd(b, S_WO, 72, 's38', 's_sub_u32 s%d, 4194304, s38')
def wo_touch(b, S_WO=S_WO):
    b('s_lshl_b32 s38, s%d, 2\ns_add_u32 s38, s38, s%d\ns_lshl_b32 s38, s38, 15\nv_lshrrev_b32 v4, 1, v%d\nv_and_b32 v5, 1, v%d\nv_lshlrev_b32 v5, 7, v5\nv_lshl_add_u32 v4, v4, 10, v5' % (sB, sW, vLANE, vLANE))
    b('buffer_load_dword v31, v4, s[%d:%d], s38 offen' % (S_WO, S_WO + 3))
def tail_setup_b(b):
    L = vLANE
    b('s_and_b32 s78, s%d, 1\ns_lshr_b32 s79, s%d, 1' % (sW, sW))
    b('''s_lshl_b32 s38, s{BR}, 3
         s_add_u32 s38, s38, s{B}
         s_lshl_b32 s38, s38, 2
         s_add_u32 s38, s38, s{KQ}
         s_mul_i32 s38, s38, 327680
         s_mul_i32 s39, s79, 20480
         s_mul_i32 s40, s78, 5120
         s_add_u32 s39, s39, s40
         s_add_u32 s38, s38, s39'''.format(B=sB, BR=sBR, KQ=sKQ))
    srd(b, S_OR, 74, 's38', 's_sub_u32 s%d, 327680, s39')
    b('s_lshl_b32 s40, s%d, 15\ns_lshl_b32 s%d, s%d, 13' % (sW, sM0B, sW))
    for c in range(8):
        b(peer(c // 2) + '\ns_lshl_b32 s38, s38, 1\ns_add_u32 s38, s38, %d\n%s\ns_mul_i32 s%d, s39, 40960\ns_lshl_b32 s38, s38, 17\ns_add_u32 s%d, s38, s40' % (c & 1, 's_xor_b32 s39, s38, s79' if opt.early else 's_mov_b32 s39, s38', sORO + c, sWOO + c))
    if opt.sent:
        b('v_mov_b32 v27, 0x100000')
        for j in range(3): b('s_add_u32 s38, s%d, 2048\nv_writelane_b32 v27, s38, %d' % (sPR + j, j))
    b('v_lshrrev_b32 v4, 4, v%d\nv_and_b32 v5, 15, v%d' % (L, L))
    for m in range(4):
        b('v_add_u32 v6, %d, v4\nv_lshlrev_b32 v6, 1, v6\nv_xor_b32 v6, v6, v5\nv_lshlrev_b32 v6, 4, v6\nv_lshl_add_u32 v6, v4, 10, v6\nv_add_u32 v%d, %d, v6' % (4 * (m % 2), vOD + m, 3072 * m))
    b('v_lshlrev_b32 v%d, 4, v%d' % (vOL, L))
    for i, o in ((1, 4096), (2, 10240), (3, 14336)): b('v_add_u32 v%d, %d, v%d' % (vOL + i, o, vOL))
    b('v_lshlrev_b32 v5, 11, v5\nv_lshl_add_u32 v%d, v4, 3, v5' % vST)
    y0, y3 = (65536, 65536 + 61440) if opt.joint else (98304, 32768)
    for (reg, wsel, step, lo, hi) in ((vXW, sW, 10240, 32768, 98304), (vXR, 41, 10240, 32768, 98304), (vYW, sW, 20480, y0, y3), (vYR, 41, 20480, y0, y3))[2 if opt.own else 0:]:
        b('s_xor_b32 s41, s%d, 2\ns_mul_i32 s38, s%d, %d\ns_add_u32 s38, s38, %d\ns_cmp_eq_u32 s%d, 3\ns_cselect_b32 s38, %d, s38\nv_add_u32 v%d, s38, v%d' % (sW, wsel, step, lo, wsel, hi, reg, vOL))
    b('''v_lshrrev_b32 v6, 4, v{L}
          v_bfe_u32 v4, v{L}, 2, 2
          v_lshl_add_u32 v6, v6, 2, v4
          v_and_b32 v4, 3, v{L}
          v_lshlrev_b32 v4, 3, v4
          v_lshl_add_u32 v4, v6, 8, v4
          s_lshr_b32 s38, s{w}, 1
          s_lshl_b32 s39, s38, 2
          s_add_u32 s39, s39, s{KQ}
          s_mul_i32 s38, s38, {x}
          s_add_u32 s38, s38, 131072
          v_add_u32 v4, s38, v4
          v_and_b32 v6, 7, v6
          v_xor_b32 v6, s39, v6'''.format(L=L, w=sW, KQ=sKQ, x=((0 if opt.own else 16384) - 131072) & 0xffffffff))
    for n in range(8): b('v_xor_b32 v5, %d, v6\nv_lshl_add_u32 v%d, v5, 5, v4' % (n, vRA[n]))
    b('s_lshl_b32 s38, s%d, 2\ns_add_u32 s38, s38, s%d\ns_lshl_b32 s38, s38, 2\nv_readfirstlane_b32 s39, v%d\ns_add_u32 s38, s38, s39\nv_lshl_add_u32 v%d, v%d, 16, s38' % (sJP, sW, vPA, vFA, L))
    b('s_lshl_b32 s38, s%d, 2\ns_add_u32 s38, s38, s%d\ns_lshl_b32 s38, s38, 2\nv_readfirstlane_b32 s39, v%d\ns_add_u32 s38, s38, s39\nv_lshl_add_u32 v%d, v%d, 16, s38' % (sKQ, sW, vPA + 1, vFA + 1, L))
    if opt.own:
        for kl in range(4): b('s_mov_b32 s%d, %d' % (sOK + kl, 10240 * kl))
        return
    for kl in range(4): b('s_lshl_b32 s38, s79, 1\ns_xor_b32 s38, s38, %d\ns_mul_i32 s%d, s38, 10240' % (kl, 38 if kl == 3 else sOK + kl))
    b('s_mov_b32 s%d, s38' % (sOK + 3))

def k1_setup():
    b = Block('setup'); L = vLANE; T = vT2
    b('s_cmp_ge_u32 s2, 256\ns_cbranch_scc1 L_k1_end')
    if opt.stamps: b('s_memrealtime s[100:101]\ns_memtime s[42:43]')
    if opt.warm: b('s_getpc_b64 s[96:97]')
    b('''s_and_b32 s38, s2, 7
         s_lshr_b32 s{BR}, s38, 2
         s_and_b32 s{KQ}, s38, 3
         s_lshr_b32 s39, s2, 3
         s_and_b32 s{B}, s39, 7
         s_lshr_b32 s{JP}, s39, 3
         s_lshl_b32 s38, s{KQ}, 3
         s_lshl_b32 s40, s{JP}, 1
         s_add_u32 s{H}, s38, s40
         s_add_u32 s{C}, s{B}, s40
         s_and_b32 s{C}, s{C}, 7
         s_mul_i32 s38, s{BR}, 40
         s_add_u32 s60, s0, s38
         s_addc_u32 s61, s1, 0
         s_load_dwordx8 s[64:71], s[60:61], 0
         s_load_dwordx4 s[72:75], s[0:1], 88
         s_load_dwordx2 s[92:93], s[60:61], 32
         s_load_dwordx2 s[94:95], s[0:1], 80
         v_lshrrev_b32 v1, 6, v0
         v_and_b32 v{L}, 63, v0
         v_readfirstlane_b32 s{W}, v1
         v_and_b32 v1, 31, v{L}
         v_lshrrev_b32 v2, 5, v{L}
         v_lshrrev_b32 v3, 4, v{L}
         v_and_b32 v4, 15, v{L}
         s_lshl_b32 s{W4}, s{W}, 12
         s_lshl_b32 s{M}, s{W}, 10'''.format(BR=sBR, B=sB, H=sH1, C=sC0, L=L, W=sW, W4=sW4, M=sM0B, KQ=sKQ, JP=sJP))
    b('s_lshl_b32 s39, s%d, 16' % sW)
    for n in range(4):
        b('''v_add_u32 v{a}, {n2}, v2
             v_and_b32 v{c}, 3, v{a}
             v_lshlrev_b32 v{c}, 2, v{c}
             v_xor_b32 v{c}, v{c}, v1
             v_lshlrev_b32 v{c}, 4, v{c}
             v_lshl_add_u32 v{c}, v{a}, 13, v{c}
             v_add_u32 v{c}, s39, v{c}
             v_subrev_u32 v{d}, {sub}, v{c}'''.format(a=T, c=T + 1, n2=2 * n, d=vWD + n, sub=1024 * n))
    b('s_lshl_b32 s39, s%d, 15\nv_lshrrev_b32 v%d, 3, v%d\nv_and_b32 v%d, 7, v%d\ns_lshl_b32 s38, s%d, 2' % (sW, T + 3, L, T + 4, L, sW))
    for n in range(4):
        b('''v_add_u32 v{a}, {n4}, v3
             v_and_b32 v{a}, 7, v{a}
             v_xor_b32 v{a}, v{a}, v{p}
             v_lshlrev_b32 v{a}, 4, v{a}
             v_lshl_add_u32 v{a}, v{r}, 10, v{a}
             v_add_u32 v{a}, {add}, v{a}
             v_add_u32 v{d}, s39, v{a}'''.format(a=T, n4=4 * n, p=T + 4, r=T + 3, add=7 * 1024 * n, d=vXD + n))
    b('''s_lshl_b32 s39, s{w}, 13
         s_add_u32 s39, s39, 131072
         v_add_u32 v{a}, s38, v3
         v_and_b32 v{a}, 7, v{a}
         v_xor_b32 v{a}, v{a}, v{p}
         v_lshlrev_b32 v{a}, 4, v{a}
         v_lshl_add_u32 v{a}, v{r}, 10, v{a}
         v_add_u32 v{d}, s39, v{a}'''.format(w=sW, a=T, p=T + 4, r=T + 3, d=vXD + 4))
    b('s_waitcnt lgkmcnt(0)')
    b('s_mul_i32 s39, s%d, 163840' % sB); srd(b, S_X, 64, 's39', 163840)
    b('s_lshl_b32 s39, s%d, 8' % sH1); srd(b, S_WQ, 70, 's39', 's_sub_u32 s%d, 4194304, s39')
    if opt.nox: b('s_mov_b32 s%d, 0' % (S_X + 2))
    if opt.noxq: b('s_mov_b32 s%d, 0' % (S_WQ + 2))
    b.extend(off_calc(0) + off_calc(1))
    for g in dma_wq(0) + dma_x(0) + (dma_wq(1) + dma_x(1) + dma_wq(2) if opt.upfront == 2 else []): b.extend(g)
    if opt.warm:
        n8 = (opt.warm + 7) // 8
        b('s_lshr_b32 s38, s2, 3\ns_and_b32 s38, s38, 7\ns_mul_i32 s38, s38, %d\nv_min_u32 v6, %d, v%d\nv_add_u32 v6, s38, v6\nv_lshlrev_b32 v6, 7, v6\nv_mov_b32 v7, s97' % (n8, n8 - 1, L))
        b('v_add_co_u32 v6, vcc, s96, v6\nv_addc_co_u32 v7, vcc, 0, v7, vcc\nglobal_load_dword v63, v[6:7], off')
    for X in range(2, 8): b.extend(off_calc(X))
    b('s_lshr_b32 s41, s%d, 1\ns_lshl_b32 s38, s%d, 5\ns_add_u32 s38, s38, s%d\ns_add_u32 s38, s38, s41\ns_lshl_b32 s39, s38, 18' % (sW, sB, sH1))
    srd(b, S_K, 66, 's39', 0 if opt.nokv else 262144); srd(b, S_V, 68, 's39', 0 if opt.nokv else 262144)
    b('s_lshl_b32 s39, s%d, 8\ns_add_u32 s38, s38, s39\ns_mul_i32 s39, s38, 40960\ns_and_b32 s40, s%d, 1\ns_mul_i32 s38, s40, 5120\ns_add_u32 s39, s39, s38' % (sBR, sW))
    srd(b, S_O, 74, 's39', 's_sub_u32 s%d, 40960, s38')
    b('s_lshl_b32 s%d, s40, 12\ns_mov_b32 s%d, s%d' % (sKO, sVO, sKO))
    stamp_setup(b, 74, sW, first=True)
    srd(b, S_F, 74, '0x%x' % FOFF, 32768); srd(b, S_D, 72, '0', 256)
    b('''s_and_b32 s38, s2, 7
         s_lshl_b32 s38, s38, 3
         s_add_u32 s38, s38, s{B}
         s_lshl_b32 s39, s{BR}, 3
         s_add_u32 s39, s39, s{B}
         s_lshl_b32 s39, s39, 2
         s_add_u32 s39, s39, s{JP}
         v_and_b32 v5, 1, v{L}
         v_mov_b32 v6, s38
         v_mov_b32 v7, s39
         v_cmp_eq_u32 vcc, 0, v5
         v_cndmask_b32 v6, v7, v6, vcc
         v_lshlrev_b32 v{DA}, 2, v6
         s_lshl_b32 s38, s38, 7
         s_lshl_b32 s39, s39, 7
         s_add_u32 s39, s39, 8192
         v_lshl_add_u32 v{PA}, v4, 2, s38
         v_lshl_add_u32 v{PB}, v4, 2, s39
         s_lshl_b32 s41, s{JP}, 4
         s_add_u32 s38, s38, s41
         s_lshl_b32 s41, s{KQ}, 4
         s_add_u32 s39, s39, s41
         v_mov_b32 v6, s38
         v_mov_b32 v7, s39
         v_cndmask_b32 v6, v7, v6, vcc
         v_lshrrev_b32 v7, 1, v0
         v_lshl_add_u32 v6, v7, 16, v6
         v_mov_b32 v{T}, 0
         v_mov_b32 v{T1}, 0
         v_mov_b32 v{T2}, 0
         v_mov_b32 v{T3}, 0'''.format(B=sB, BR=sBR, JP=sJP, KQ=sKQ, L=L, DA=vDA, PA=vPA, PB=vPA + 1, T=T, T1=T + 1, T2=T + 2, T3=T + 3))
    b('buffer_store_dwordx4 %s, v6, s[%d:%d], 0 offen sc1' % (vr(T, 4), S_F, S_F + 3), 'fz')
    if opt.fbk:
        b('''v_readfirstlane_b32 s38, v{PA}
             v_readfirstlane_b32 s39, v{PB}
             v_and_b32 v5, 3, v{L}
             v_lshlrev_b32 v5, 2, v5
             v_and_b32 v6, 4, v{L}
             v_cmp_eq_u32 vcc, 0, v6
             s_add_u32 s38, s38, 16384
             s_add_u32 s39, s39, 16384
             v_add_u32 v6, s38, v5
             v_add_u32 v7, s39, v5
             v_cndmask_b32 v249, v7, v6, vcc
             s_lshl_b32 s41, s{JP}, 2
             s_add_u32 s38, s38, s41
             s_lshl_b32 s41, s{KQ}, 2
             s_add_u32 s39, s39, s41
             v_and_b32 v5, 1, v{L}
             v_cmp_eq_u32 vcc, 0, v5
             v_mov_b32 v6, s38
             v_mov_b32 v7, s39
             v_cndmask_b32 v6, v7, v6, vcc
             v_lshrrev_b32 v7, 1, v0
             v_lshl_add_u32 v250, v7, 16, v6
             v_mov_b32 v251, 0'''.format(PA=vPA, PB=vPA + 1, L=L, JP=sJP, KQ=sKQ))
        b('buffer_store_dword v251, v250, s[%d:%d], 0 offen sc1' % (S_F, S_F + 3))
    tail_setup_a(b)
    if opt.ptouch == 1: b.extend(page_touch())
    b('s_lshr_b32 s41, s%d, 1' % sW)
    b('v_bfe_u32 v5, v%d, 2, 2\nv_and_b32 v6, 3, v%d' % (L, L))
    for m in range(4):
        b('v_add_u32 v%d, %d, v3\nv_xor_b32 v%d, v%d, v4\nv_lshlrev_b32 v%d, 4, v%d\nv_lshl_add_u32 v%d, v3, 8, v%d' % (T, 4 * m, T, T, T, T, vKD + m, T))
    for m in range(2):
        b('v_add_u32 v%d, %d, v3\nv_lshlrev_b32 v%d, 1, v%d\nv_xor_b32 v%d, v%d, v4\nv_lshlrev_b32 v%d, 4, v%d\nv_lshl_add_u32 v%d, v3, 8, v%d' % (T, 4 * m, T, T, T, T, T, T, vVD + m, T))
    b('s_lshl_b32 s41, s41, 13\nv_xor_b32 v%d, v3, v4\nv_lshlrev_b32 v%d, 8, v4\nv_add_u32 v%d, s41, v%d' % (T, T + 1, T + 1, T + 1))
    for k in range(4): b('v_xor_b32 v%d, %d, v%d\nv_lshl_add_u32 v%d, v%d, 4, v%d' % (T + 2, 4 * k, T, vKA + k, T + 2, T + 1))
    b('''v_lshl_add_u32 v{a}, v3, 2, v5
         v_lshlrev_b32 v{c}, 8, v{a}
         v_lshl_add_u32 v{c}, v6, 3, v{c}
         s_add_u32 s41, s41, {vs}
         v_add_u32 v{c}, s41, v{c}
         v_and_b32 v{a}, 7, v{a}
         s_and_b32 s38, s{w}, {rot}
         s_lshl_b32 s38, s38, 1
         v_xor_b32 v{a}, s38, v{a}'''.format(a=T, c=T + 1, vs=VS0, w=sW, rot=0 if opt.own else 2))
    for dt in range(8): b('v_xor_b32 v%d, %d, v%d\nv_lshl_add_u32 v%d, v%d, 5, v%d' % (T + 2, dt, T, vVA + dt, T + 2, T + 1))
    b('''v_lshl_add_u32 v{c}, v3, 3, v5
         v_lshlrev_b32 v{c}, 9, v{c}
         s_lshr_b32 s41, s{w}, 1
         s_lshl_b32 s41, s41, 8
         v_add_u32 v{c}, s41, v{c}
         v_lshl_add_u32 v{a}, v5, 2, v6'''.format(a=T, c=T + 1, w=sW))
    for k in range(4): b('v_xor_b32 v%d, %d, v%d\nv_lshl_add_u32 v%d, v%d, 4, v%d' % (T + 2, 4 * k, T, vWA + k, T + 2, T + 1))
    b('''v_lshrrev_b32 v{a}, 1, v4
         v_xor_b32 v{a}, v{a}, v3
         s_mul_i32 s41, s40, 10240
         s_add_u32 s41, s41, {xb}
         v_lshlrev_b32 v{c}, 7, v4
         v_add_u32 v{c}, s41, v{c}'''.format(a=T, c=T + 1, xb=XBUF[0]))
    for k in range(2): b('v_xor_b32 v%d, %d, v%d\nv_lshl_add_u32 v%d, v%d, 4, v%d' % (T + 2, 4 * k, T, vXA + k, T + 2, T + 1))
    c = math.log2(math.e) / math.sqrt(128.0)
    b('s_mov_b32 s%d, 0x%08x\ns_mov_b32 s%d, 0x%08x\ns_mov_b32 s%d, 0x%08x\ns_mov_b32 s%d, 0' % (sSC, f32bits(c), sSC + 1, f32bits(c), sTH, f32bits(2.0 ** 30), sEX))
    b('v_lshl_add_u32 v%d, v%d, 4, s%d\nv_add_u32 v%d, 0x10000, v%d' % (vSW, L, sW4, vSW + 1, vSW))
    b('v_mov_b32 v%d, 0x3f803f80' % T)
    for i in range(4): b('v_accvgpr_write_b32 a%d, v%d' % (aONE + i, T))
    if opt.upfront != 2:
        for g in dma_wq(1) + (dma_x(1) if opt.upfront == 3 else []): b.extend(g)
    if opt.touchc < 0: wo_srd(b, 92); wo_touch(b, 92)
    return b

def zero_acc():
    return ['v_accvgpr_write_b32 a%d, 0' % i for i in range(180 if opt.ones else 160)] + ([] if opt.ones else ['v_mov_b32 v%d, 0' % (vL + i) for i in range(5)])

def conv(k):
    L = []
    for qs in range(5):
        d = rQ(k, qs)
        if opt.fs: pass
        elif opt.pk: L += ['v_pk_mul_f32 %s, %s, s[%d:%d]' % (vr(d + 2 * i, 2), vr(d + 2 * i, 2), sSC, sSC + 1) for i in range(4)]
        else: L += ['v_mul_f32 v%d, s%d, v%d' % (d + i, sSC, d + i) for i in range(8)]
        L += ['v_cvt_pk_bf16_f32 v%d, v%d, v%d' % (d + i, d + 2 * i, d + 2 * i + 1) for i in range(4)]
    return L
def qk0_mfmas():
    bb = []
    for f in range(8):
        k, kt = divmod(f, 2)
        for qs in range(5):
            s = rS(kt, qs)
            bb.append(I('%s %s, %s, %s, %s' % (MF, vr(s, 4), vr(vF + 4 * (f % NB), 4), vr(rQ(k, qs), 4), '0' if k == 0 else vr(s, 4))))
    return bb
def kread0(f):
    k, kt = divmod(f, 2)
    return [I('ds_read_b128 %s, v%d offset:%d' % (vr(vF + 4 * (f % NB), 4), vKA + k, kt * 4096), 'g%d' % f)]

def k1_qproj():
    b = Block('qproj')
    bb = []
    for c in range(16):
        for t in range(8):
            for qs in range(5):
                d = rQ(t // 2, qs) + 4 * (t % 2)
                bb.append(I('%s %s, %s, %s, %s' % (MF, vr(d, 4), ar(aFA + 4 * (t % 4), 4), ar(aFB + 20 * (c % 2) + 4 * qs, 4), '0' if c == 0 else vr(d, 4))))
    G = Gaps(bb, 8)
    def ybar(c): return -1 if c == 0 else 40 * c - 14
    cur = [0] * 4
    def wq_read(c, t):
        k, bsel = divmod(t, 2)
        want = 0 if WBUF[c % 3] < 65536 else 131072
        off = WBUF[c % 3] - want + 8 * bsel
        r = aFA + 4 * (t % 4)
        L = []
        if bsel == 0 and want != cur[k]:
            L.append(I('v_add_u32 v%d, 0x%x, v%d' % (vWA + k, (want - cur[k]) & 0xffffffff, vWA + k))); cur[k] = want
        return L, [I('ds_read_b64_tr_b16 %s, v%d offset:%d' % (ar(r, 2), vWA + k, off), 'fa'), I('ds_read_b64_tr_b16 %s, v%d offset:%d' % (ar(r + 2, 2), vWA + k, off + 2048), 'fa%d_%d' % (c, t))]
    kvq = dma_kv('K', 0, True) + dma_kv('K', 1, True) + dma_kv('V', 0, True) + dma_kv('V', 1, True) + stash_load('K', 2) + stash_load('V', 2) + stash_load('K', 3)
    nkv = opt.kvend
    bursts = dict(tuple(int(v) for v in x.split(':')) for x in opt.burst.split())
    nst = sum(bursts.values()) - 4
    assert 0 <= nst <= 3
    if bursts: kvq = dma_kv('K', 0) + dma_kv('K', 1) + dma_kv('V', 0) + dma_kv('V', 1) + kvq[16:]
    for c in range(16):
        y = ybar(c); base = 40 * c
        G.put(y, I('@waitlgkm *'), I('@waitvm wq%d' % c + (',x%d' % (c // 2) if c % 2 == 0 else '') + (',K0' if c == 15 else '')), I('s_barrier'))
        if opt.qstamps and c % opt.qevery == 0: G.put(y, *stamp_ins())
        if c == 3:
            G.put(y + 9, I('v_and_b32 v4, 1, v%d' % vLANE)); G.put(y + 10, I('v_lshlrev_b32 v4, 4, v4')); G.put(y + 11, I('v_lshlrev_b32 v4, v4, 1'))
            G.put(y + 12, I('v_lshrrev_b32 v1, 1, v0')); G.put(y + 13, I('v_lshl_add_u32 v1, v1, 16, v%d' % vDA))
            G.put(y + 14, I('@waitvm fz'), I('buffer_atomic_add v4, v1, s[%d:%d], 0 offen sc1' % (S_D, S_D + 3)))
        xr = [I('ds_read_b128 %s, v%d offset:%d' % (ar(aFB + 20 * (c % 2) + 4 * qs, 4), vXA + c % 2, (c // 2 % 2) * 20480 + 2048 * qs), 'xr%d_%d' % (c, qs)) for qs in range(5)]
        for t in range(8):
            g = max(base + 5 * (t - 3) - 1, y + 1 if c else y)
            pre, rd = wq_read(c, t)
            G.put(max(g - 1, -1), *pre); G.put(g, *rd)
            if t == 0:
                for qs in range(5): G.put(y + ((2, 4, 5, 6, 7)[qs] if c else 0), xr[qs])
                G.put(base - 1, I('@waitlgkm fa%d_1,xr%d_4' % (c, c)))
            if t % 2 == 0 and t: G.put(base + 5 * t - 1, I('@waitlgkm fa%d_%d' % (c, t + 1)))
        d = []
        if c == 0 and opt.upfront != 2: d += (dma_x(1) if opt.upfront == 1 else []) + dma_wq(2)
        if 1 <= c < 14: d += dma_wq(c + 2)
        if c % 2 == 0 and 2 <= c < 14: d += dma_x(c // 2 + 1)
        if not bursts and c < nkv: d += kvq[(c * len(kvq)) // nkv:((c + 1) * len(kvq)) // nkv]
        flat = [x for g in d for x in g]
        if c in bursts:
            if flat: G.spread2(flat, y + 1 if c else 0, y + 14)
            flat = [x for g in kvq[:4 * bursts[c]] for x in g]; kvq = kvq[4 * bursts[c]:]
            G.spread2(flat, y + 15, y + 15 + len(flat) // 2); flat = []
        late = lambda w, sl, k: stash_flush(w, sl) if nst > k else [x for g in dma_kv(w, sl) for x in g]
        if c == 14: flat += late('K', 2, 0) + late('V', 2, 1)
        if c == 15: flat += late('K', 3, 2)
        if opt.ptouch > 1 and c == opt.ptouch: flat += [I(x) for x in page_touch()]
        if c == opt.touchc:
            tb = Block('x'); q = 92 if c < 13 else S_WO; wo_srd(tb, q); wo_touch(tb, q); flat += tb.ins
        if flat: G.spread2(flat, y + 1 if c else 0, 25 if c == 0 else y + (39 if c < 14 else 20), opt.qcl)
    G.spread2(zero_acc(), 20, 580)
    for f in range(3): G.put(624 + 5 * f, *kread0(f))
    G.spread2(conv(0), 613, 626); G.spread2(conv(1), 627, 639)
    em = G.emit()
    if 'd' in opt.qf: em = [x for x in em if x.cls not in ('dma', 'vld') and 'm0' not in x.w]
    if 'b' in opt.qf: em = [x for x in em if x.op != 's_barrier']
    if 'h' in opt.qf:
        k = [0]
        def keep(x):
            if x.op != 's_barrier': return True
            k[0] += 1; return k[0] % 2 == 1
        em = [x for x in em if keep(x)]
    if 'w' in opt.qf: em = [x for x in em if not (x.op == '@waitlgkm' and x.wait == ['*'])]
    if 'r' in opt.qf: em = [x for x in em if x.cls != 'dsr']
    if 'z' in opt.qf: em = [x for x in em if x.op != 'v_accvgpr_write_b32']
    if 'x' in opt.qf: em = [x for x in em if x.op != 'ds_read_b128']
    if 't' in opt.qf: em = [x for x in em if x.op != 'ds_read_b64_tr_b16']
    b.extend(em)
    print('qproj est cycles', G.est_cycles(16), file=sys.stderr)
    G = Gaps(qk0_mfmas(), 8)
    for f in range(3, 8): G.put(5 * (f - 3) - 1, *kread0(f))
    G.spread2(conv(2), -1, 17); G.spread2(conv(3), 18, 27)
    b.extend(G.emit())
    stamp(b)
    return b

XBAR = 66
aK = 184
def kread(f, slot):
    kt, k = divmod(f, 4)
    return [I('ds_read_b128 %s, v%d offset:%d' % (ar(aK + 4 * f, 4) if opt.chain else vr(vF + 4 * (f % NB), 4), vKA + k, slot * 16384 + kt * 4096), 'f%d' % f)]
def vread(f, slot):
    dt = f - 8; r = vF + 4 * (f % NB)
    return [I('ds_read_b64_tr_b16 %s, v%d offset:%d' % (vr(r, 2), vVA + dt, slot * 16384), 'fx'),
            I('ds_read_b64_tr_b16 %s, v%d offset:%d' % (vr(r + 2, 2), vVA + dt, slot * 16384 + 4096), 'f%d' % f)]
def neg_adds(kt): return ['v_add_f32 v%d, v%d, v%d' % (rS(kt, qs) + i, rS(kt, qs) + i, vN + 4 * qs) for qs in range(5) for i in range(4)]
def sm_chain(par):
    C = []; pend = []
    for kt in range(2):
        for qs in range(5):
            s = rS(kt, qs); p = rP(par, qs) + 2 * kt
            e = ['v_exp_f32 v%d, v%d' % (s + i, s + i) for i in range(4)]
            a = ['v_add_f32 v%d, v%d, v%d' % (vL + qs, vL + qs, s + i) for i in range(4)]
            cv = ['v_cvt_pk_bf16_f32 v%d, v%d, v%d' % (p + i, s + 2 * i, s + 2 * i + 1) for i in range(2)]
            if opt.fs: C += [('v_mul_f32 v%d, s%d, v%d' % (s + i, sSC, s + i), kt, qs) for i in range(4)]
            C.append((e[0], kt, qs)); C += pend
            if opt.ones: C += [(x, kt, qs) for x in (e[1], e[2], cv[0], e[3])]; pend = [(cv[1], kt, qs)]
            else: C += [(x, kt, qs) for x in (e[1], a[0], e[2], a[1], cv[0], e[3], a[2])]; pend = [(a[3], kt, qs), (cv[1], kt, qs)]
    return C + pend
def qk_mfmas(first):
    bb = []
    if opt.chain and not first:
        for kt in range(2):
            for qs in range(5):
                s = rS(kt, qs)
                for k in range(4): bb.append(I('%s %s, %s, %s, %s' % (MF, vr(s, 4), ar(aK + 16 * kt + 4 * k, 4), vr(rQ(k, qs), 4), vr(vN + 4 * qs, 4) if k == 0 else vr(s, 4))))
        return bb
    for f in range(8):
        kt, k = divmod(f, 4)
        for qs in range(5):
            s = rS(kt, qs)
            c = ('0' if first else vr(vN + 4 * qs, 4)) if k == 0 else vr(s, 4)
            bb.append(I('%s %s, %s, %s, %s' % (MF, vr(s, 4), vr(vF + 4 * (f % NB), 4), vr(rQ(k, qs), 4), c)))
    return bb
def pv_mfmas(par):
    bb = []
    for f in range(8, 16):
        for qs in range(5):
            bb.append(I('%s %s, %s, %s, %s' % (MF, ar(aO(f - 8, qs), 4), vr(vF + 4 * (f % NB), 4), vr(rP(par, qs), 4), ar(aO(f - 8, qs), 4))))
    return bb
def ones_mfmas(par): return [I('%s %s, %s, %s, %s' % (MF, ar(aL + 4 * qs, 4), ar(aONE, 4), vr(rP(par, qs), 4), ar(aL + 4 * qs, 4))) for qs in range(5)]
SPLIT = [None]; SMPOS = [None]
def period(j, peel=False, nodma=False):
    pu, pn = j % 2, (j + 1) % 2
    ks, vs = (j + 1) % 4, j
    lg = qk_mfmas(False) + pv_mfmas(pu)
    bb = []; ix = {-1: -1}
    on = ones_mfmas(pu) if opt.ones else []
    for i, x in enumerate(lg):
        bb.append(x); ix[i] = len(bb) - 1
        if on and i in ((40, 46, 52, 58, 64) if opt.onesadj else (44, 49, 54, 59, 64)): bb.append(on.pop(0))
    G = Gaps(bb, 8); N = len(bb)
    for f in range(4 if opt.chain else 3, 16):
        if opt.chain and f < 8: G.put(3 * (f - 4), *kread(f, ks)); continue
        G.put(ix[5 * (f - 3) - 1] if f > 3 else 0, *(kread(f, ks) if f < 8 else vread(f, vs)))
        if f % 2 == 0 and f < 15: G.put(ix[5 * f] - 1, I('@waitlgkm f%d' % (f + 1)))
    if opt.chain: G.put(19, I('@waitlgkm f7'))
    G.put(ix[XBAR], I('@waitlgkm *'), I('@waitvm K%d,V%d' % ((j + 2) % 4, (j + 1) % 4)), I('s_barrier'))
    if peel and j == 2:
        for f, g in ((8, XBAR + 1), (9, 69), (10, 74)): G.put(ix[g], *vread(f, 3))
    else:
        for f, g in ((0, XBAR + 1), (1, 69), (2, 71), (3, 73)) if opt.chain else ((0, XBAR + 1), (1, 69), (2, 74)): G.put(ix[g], *kread(f, (j + 2) % 4))
        G.put(N - 1, I('@waitlgkm f3' if opt.chain else '@waitlgkm f1'))
    if not opt.chain: G.put(9, I('@waitlgkm f3'))
    slots = [2, 7, 12, 17, 22, 27, 32, 37, 42, 47, 52, 57, 62] if opt.dsp == 5 else [2 + opt.dsp * m for m in range(8)]
    dl = dma_kv('K', j) + dma_kv('V', (j + 3) % 4)
    if peel: dl = dma_kv('V', 3) if j == 0 else dma_wo(j)
    if nodma: dl = []
    extra = []
    if peel and opt.sb == 1 and j < 2:
        tb = Block('x'); tail_setup_b(tb)
        cut = [k for k, x in enumerate(tb.ins) if x.w == {'v%d' % (vOD + 3)}][0] + 1
        extra = tb.ins[:cut] if j == 0 else tb.ins[cut:]
    if peel and j == 0: extra = extra + [x for g in dma_wo(0) for x in g]
    if not peel and opt.sb == 2 and j < 3 and not nodma:
        tb = Block('x'); tail_setup_b(tb); n3 = len(tb.ins) // 3
        cuts = [0] + [next(k for k in range(n3 * q, len(tb.ins)) if tb.ins[k].op not in ('s_addc_u32', 's_cselect_b32')) for q in (1, 2)] + [len(tb.ins)]
        inloop = tb.ins[cuts[j]:cuts[j + 1]]
    for m, g in enumerate(dl):
        p = ix[slots[m]]
        if not peel:
            ce, cl = opt.cape.strip()[m], opt.capl.strip()[m]
            if ce != 'x': G.put(p - 1, I('@raw s_waitcnt vmcnt(%s)' % ce))
            if cl != ce: G.put(p - 1, I('s_cbranch_vccnz L_t%d_%d' % (j, m)), I('@raw s_waitcnt vmcnt(%s)' % cl), I('L_t%d_%d:' % (j, m)))
        if len(g) == 2 and g[0].cls == 'salu': G.put(p - 1, g[0]); G.put(p, g[1])
        elif len(g) == 2: G.put(p, g[0]); G.put(p + 1, g[1])
        elif len(g) == 3: G.put(p - 2, g[0]); G.put(p - 1, g[1]); G.put(p, g[2])
        else: G.put(p, *g)
    if j == 3:
        G.put(ix[71], I('s_sub_u32 s%d, s%d, 1' % (sCNT, sCNT))); G.put(ix[77], I('s_cmp_lg_u32 s%d, 0' % sCNT))
        if opt.ramp: G.put(ix[74], I('s_cmp_le_u32 s%d, s37' % sCNT), I('s_cselect_b64 vcc, 1, vcc'))
        elif opt.rel: G.put(ix[74], I('s_cmp_le_u32 s%d, %d' % (sCNT, opt.rel)), I('s_cselect_b64 vcc, 1, vcc'))
    if opt.fbk and not peel and (j + 1) % opt.fbk == 0:
        G.put(ix[74], I('s_add_u32 s37, s37, 1')); G.put(ix[75], I('v_mov_b32 v251, s37'))
        G.put(ix[76], I('buffer_store_dword v251, v250, s[%d:%d], 0 offen sc1' % (S_F, S_F + 3)))
        G.put(ix[76], I('buffer_load_dword v252, v249, s[%d:%d], 0 offen sc1' % (S_F, S_F + 3)))
    if opt.fbk and not peel and j % opt.fbk == 0:
        G.put(ix[opt.fbpos], I('v_cmp_le_u32 vcc, s37, v252'))
        G.put(ix[opt.fbpos + 1], I('s_and_b32 vcc_lo, vcc_lo, s36'), I('s_bcnt1_i32_b32 vcc_lo, vcc_lo'))
        G.put(ix[opt.fbpos + 2], I('s_cmp_ge_u32 vcc_lo, %d' % opt.fbn), I('s_cselect_b64 vcc, 1, 0'))
    if peel and j == 0: G.put(ix[40], I('buffer_load_dword v244, v%d, s[%d:%d], 0 offen sc1' % (vDA, S_D, S_D + 3)))
    chn, chu = sm_chain(pn), sm_chain(pu)
    if SMPOS[0] is None:
        s0 = 18; gaps = list(range(s0, N)) + list(range(0, s0))
        gaps += list(range(s0, 24))
        lo = [ix[15 + 20 * kt + qs] + 4 - s0 for (_, kt, qs) in chn]
        hi = [(N - s0 + qs - 1) if kt == 0 else (N - s0 + 19 + qs) for (_, kt, qs) in chn]
        if opt.chain:
            s0 = 7; gaps = list(range(s0, N)) + list(range(0, s0))
            lo = [ix[20 * kt + 4 * qs + 3] + 4 - s0 for (_, kt, qs) in chn]
            hi = [N - s0 + 20 * kt + 4 * qs - 1 for (_, kt, qs) in chn]
        hi = [min(h, N - 1) for h in hi]
        _, pos = G.dp([x for x, _, _ in chn], gaps, lo, hi)
        SMPOS[0] = [gaps[p] for p in pos]; SPLIT[0] = sum(p < N - s0 for p in pos)
    for k, (x, _, _) in enumerate(chu):
        if k >= SPLIT[0]: G.put(SMPOS[0][k], I(x))
    for k, (x, _, _) in enumerate(chn):
        if k < SPLIT[0]: G.put(SMPOS[0][k], I(x))
    if not peel and opt.sb == 2 and j < 3 and not nodma: G.spread2(inloop, 0, N - 1)
    if peel and opt.sent and j == opt.pfper:
        pf = ['v_accvgpr_write_b32 a%d, -1' % (216 + i) for i in range(4)] + [I('buffer_store_dwordx4 a[216:219], v%d, s[%d:%d], s%d offen offset:%d sc1' % (vOL, S_P, S_P + 3, sPW + q, 1024 * k), 'pf') for q in range(3) for k in range(3)]
        if j == 2: G.spread2(pf, 0, 60)
        else: extra = extra + [x if isinstance(x, Ins) else I(x) for x in pf]
    if extra and j == 0: G.spread2(extra, ix[slots[3]] + 2, N - 1)
    if extra and j == 1: G.spread2(extra, ix[slots[4]] + 1, N - 1)
    if j == 3 or opt.pstamps: G.put(ix[XBAR], *stamp_ins())
    return G

def k1_attention():
    P = [period(j) for j in range(4)]
    print('period est cycles', [g.est_cycles(16) for g in P], [P[0].used(i) for i in range(len(P[0].bb))], file=sys.stderr)
    pro = Block('pro'); T = vT
    pro('L_start:')
    pro('@waitlgkm *\n@waitvm K1,V0\ns_barrier')
    for f in range(4 if opt.chain else 3): pro.extend(kread(f, 1))
    if opt.peel0:
        for g in dma_kv('K', 0) + dma_kv('V', 3): pro.extend(g)
    if opt.fallback: pro('s_cmp_lg_u32 s%d, 0\ns_cbranch_scc1 L_nomax' % sEX)
    mx = Block('pro_max')
    for qs in range(5):
        a, c = rS(0, qs), rS(1, qs); t = T + 2 * qs
        mx('v_max3_f32 v%d, v%d, v%d, v%d\nv_max3_f32 v%d, v%d, v%d, v%d' % (t, a, a + 1, a + 2, t + 1, c, c + 1, c + 2))
        mx('v_max3_f32 v%d, v%d, v%d, v%d\nv_max_f32 v%d, v%d, v%d' % (t, t, a + 3, c + 3, t, t, t + 1))
    max_finish(mx, T)
    p2 = Block('pro2'); p2('L_nomax:')
    p2.extend(neg_adds(0) + neg_adds(1) + [x for x, _, _ in sm_chain(0)[:SPLIT[0]]])
    if opt.touchc > 15 or opt.touchc < 13: wo_srd(p2)
    if opt.touchc > 15 or opt.touch2: wo_touch(p2)
    if opt.sb == 0: tail_setup_b(p2)
    p2('@waitlgkm f3' if opt.chain else '@waitlgkm f1')
    p2('s_mov_b32 s%d, 7' % sCNT)
    if opt.asym and not opt.ramp: p2('s_cmp_lt_u32 s%d, 2\ns_cselect_b64 vcc, 1, 0' % sJP)
    elif opt.ramp: p2('s_mov_b64 vcc, 0\ns_cmp_lt_u32 s%d, 2\ns_cselect_b32 s37, %d, %d' % (sJP, 7 - opt.ramp, opt.rel))
    elif opt.rel: p2('s_mov_b64 vcc, 0')
    if opt.thre and not opt.fbk and not opt.asym: p2('s_getreg_b32 s38, hwreg(HW_REG_XCC_ID, 0, 1)\ns_mov_b32 vcc_lo, s38\ns_mov_b32 vcc_hi, 0')
    if opt.fbk:
        p2('s_lshl_b32 s38, 1, s%d\ns_lshl_b32 s39, 16, s%d\ns_or_b32 s38, s38, s39\ns_andn2_b32 s36, 0xff, s38\ns_mov_b32 s37, 0\ns_mov_b64 vcc, 0\nv_mov_b32 v252, 0' % (sJP, sKQ))
    stamp(p2)
    if opt.peel0:
        p2.extend(period(0, nodma=True).emit()); p2('s_branch L_loop1')
    lp = [Block('per%d' % j) for j in range(4)]
    lp[0]('L_loop:'); lp[1]('L_loop1:')
    for j in range(4): lp[j].extend(P[j].emit())
    lp[3]('s_cbranch_scc1 L_loop')
    pe = [Block('pe%d' % j) for j in range(4)]
    pe[0].extend(period(0, True).emit()); pe[1].extend(period(1, True).emit())
    pe[1]('v_readlane_b32 s38, v244, 0\nv_readlane_b32 s39, v244, 1\ns_and_b32 s38, s38, 0xffff\ns_lshr_b32 s39, s39, 16\ns_min_u32 s38, s38, s39\ns_cmp_lt_u32 s38, 4\ns_cbranch_scc1 L_spin_d')
    pe[2]('L_back_d:')
    pe[2].extend(period(2, True).emit())
    sp = pe[3]; sp.name = 'spin_d'
    sp('L_spin_d:\ns_mov_b32 s40, %d\nL_spin_d2:\ns_sleep 4\nbuffer_load_dword v244, v%d, s[%d:%d], 0 offen sc1\ns_waitcnt vmcnt(0)' % (opt.spin, vDA, S_D, S_D + 3))
    sp('v_readlane_b32 s38, v244, 0\nv_readlane_b32 s39, v244, 1\ns_and_b32 s38, s38, 0xffff\ns_lshr_b32 s39, s39, 16\ns_min_u32 s38, s38, s39\ns_cmp_ge_u32 s38, 4\ns_cbranch_scc1 L_back_d')
    sp('s_sub_u32 s40, s40, 1\ns_cmp_lg_u32 s40, 0\ns_cbranch_scc1 L_spin_d2\ns_branch L_back_d')
    return pro, mx, p2, lp, pe

def max_finish(b, T):
    for qs in range(5): b('v_mov_b32 v%d, v%d' % (T + 2 * qs + 1, T + 2 * qs))
    for qs in range(5): b('v_permlane16_swap_b32 v%d, v%d' % (T + 2 * qs, T + 2 * qs + 1))
    for qs in range(5): b('v_max_f32 v%d, v%d, v%d' % (T + 2 * qs, T + 2 * qs, T + 2 * qs + 1))
    for qs in range(5): b('v_mov_b32 v%d, v%d' % (T + 2 * qs + 1, T + 2 * qs))
    for qs in range(5): b('v_permlane32_swap_b32 v%d, v%d' % (T + 2 * qs, T + 2 * qs + 1))
    for qs in range(5): b('v_max_f32 v%d, v%d, v%d' % (T + 2 * qs, T + 2 * qs, T + 2 * qs + 1))
    for qs in range(5):
        for i in range(4): b('v_sub_f32 v%d, 0, v%d' % (vN + 4 * qs + i, T + 2 * qs))

def poll_test(reg, mask, thr=1): return ['v_cmp_le_u32 vcc, %d, v%d' % (thr, reg), 's_and_b32 s38, vcc_lo, s%d' % mask, 's_cmp_lg_u32 s38, s%d' % mask]
def spin_block(name, addr, mask, thr=1):
    sp = Block('spin_' + name)
    sp('L_spin_%s:\ns_mov_b32 s40, %d\nL_spin_%s2:\ns_sleep 1\nbuffer_load_dword v244, v%d, s[%d:%d], 0 offen sc1\ns_waitcnt vmcnt(0)' % (name, opt.spin, name, addr, S_F, S_F + 3))
    sp.extend(poll_test(244, mask, thr))
    sp('s_cbranch_scc0 L_back_%s\ns_sub_u32 s40, s40, 1\ns_cmp_lg_u32 s40, 0\ns_cbranch_scc1 L_spin_%s2\ns_branch L_back_%s' % (name, name, name))
    return sp

def k1_tail():
    t1 = Block('tail1'); t2 = Block('tail2'); L = vLANE
    t1.extend([x for x, _, _ in sm_chain(1)[SPLIT[0]:]])
    t1.extend(ones_mfmas(1))
    G = Gaps(pv_mfmas(1), 8)
    for f in range(11, 16): G.put(5 * (f - 11) + 4, *vread(f, 3))
    R = vN + 9
    rc = ['v_accvgpr_read_b32 v%d, a%d' % (R + qs, aL + 4 * qs) for qs in range(5)]
    rc += ['v_add_f32 v%d, v%d, v%d' % (R + 5, R, R + 1), 'v_add_f32 v%d, v%d, v%d' % (R + 6, R + 2, R + 3), 'v_add_f32 v%d, v%d, v%d' % (R + 5, R + 5, R + 4), 'v_add_f32 v%d, v%d, v%d' % (R + 5, R + 5, R + 6)]
    if opt.fallback:
        rc += ['v_cmp_ngt_f32 vcc, s%d, v%d' % (sTH, R + 5), 's_lshl_b32 s39, s%d, 2' % sW, 's_add_u32 s39, s39, %d' % BADB, 'v_mov_b32 v%d, s39' % (R + 6),
               's_cmp_lg_u64 vcc, 0', 's_cselect_b32 s38, 1, 0', 'v_mov_b32 v%d, s38' % (R + 5), I('ds_write_b32 v%d, v%d' % (R + 6, R + 5), 'bad'), 'v_mov_b32 v%d, %d' % (R + 6, BADB)]
    rc += ['v_rcp_f32 v%d, v%d' % (vN + 2 * i, R + i) for i in range(5)]
    G.spread2(rc, 2, 11)
    if opt.fallback:
        G.put(12, I('@waitlgkm bad'), I('@waitvm wo0,wo1'), I('s_barrier'), I('ds_read_b128 %s, v%d' % (vr(R + 7, 4), R + 6)))
        G.put(16, I('v_or_b32 v%d, v%d, v%d' % (R + 5, R + 7, R + 8)), I('v_or3_b32 v%d, v%d, v%d, v%d' % (R + 5, R + 5, R + 9, R + 10)))
        G.put(17, I('v_readfirstlane_b32 s38, v%d' % (R + 5)))
        G.put(18, I('s_cmp_lg_u32 s%d, 0' % sEX), I('s_cselect_b32 s38, 0, s38'), I('s_cmp_lg_u32 s38, 0'), I('s_cbranch_scc1 L_fallback'))
    def out(kl):
        Lst = []
        for qs in range(5):
            idx = 5 * kl + qs
            d = BS[0][idx] if kl < 2 else BS[1][idx - 10] if opt.own else hole(idx % 10); e = hole(10 + idx % 5)
            src = [aO(2 * kl, qs) + i for i in range(4)] + [aO(2 * kl + 1, qs) + i for i in range(4)]
            tmp = [d + i for i in range(4)] + [e + i for i in range(4)]
            Lst += ['v_accvgpr_read_b32 v%d, a%d' % (tmp[i], src[i]) for i in range(8)]
            if kl and opt.pk2: Lst += ['v_pk_mul_f32 %s, %s, %s op_sel_hi:[1,0]' % (vr(tmp[i], 2), vr(tmp[i], 2), vr(vN + 2 * qs, 2)) for i in range(0, 8, 2)]
            else: Lst += ['v_mul_f32 v%d, v%d, v%d' % (tmp[i], vN + 2 * qs, tmp[i]) for i in range(8)]
            Lst += ['v_cvt_pk_bf16_f32 v%d, v%d, v%d' % (d + i, tmp[2 * i], tmp[2 * i + 1]) for i in range(4)]
            if opt.stcap: Lst += [I('@raw s_waitcnt vmcnt(%d)' % opt.stcap)]
            Lst += [I('buffer_store_dwordx4 %s, v%d, s[%d:%d], s%d offen offset:%d%s' % (vr(d, 4), vOL + qs // 4, S_O, S_O + 3, sOK + kl, 1024 * (qs % 4), opt.o_st_pol), 'Oa' if kl < 2 else 'O')]
            if kl >= 2 and not opt.own: Lst += [I('ds_write_b128 v%d, %s offset:%d' % (vXW, vr(d, 4), 1024 * (idx - 10)))]
        return Lst
    sDL = [30, 33, 28, 36, 37, 34, 29]
    b0 = [WOB[c % 5] for c in range(8)]; b1 = [WOB[(c ^ 1) % 5] if c < 2 or opt.early else WOB[c % 5] for c in range(8)]
    if opt.own:
        b0[1] = b0[0] + 16384; b1[0] -= 16384; b1[1] = b1[0] + 16384
    sc = ['s_lshr_b32 s41, s%d, 1' % sW]
    for c in range(7):
        d0, d1 = b0[c + 1] - b0[c], b1[c + 1] - b1[c]
        sc += ['s_mul_i32 s%d, s41, 0x%x' % (sDL[c], (d1 - d0) & 0xffffffff), 's_add_u32 s%d, s%d, 0x%x' % (sDL[c], sDL[c], d0 & 0xffffffff)] if d0 != d1 else ['s_mov_b32 s%d, 0x%x' % (sDL[c], d0 & 0xffffffff)]
    if opt.early: sc += ['s_lshl_b32 s26, 0x1111, s%d' % sW, 's_and_b32 s26, s26, s%d' % MK1[1], 's_xor_b32 s27, s26, s%d' % MK1[1]]
    G.spread2(out(0) + sc, 19, 39)
    t1.extend(G.emit(-1, 18)); t2.extend(G.emit(19, 39))
    for kl in (2, 3, 1) if not (opt.early or opt.own) else (1, 2, 3):
        mark = len(t2.ins) + 40; t2.extend(out(kl))
    t2('v_mov_b32 v245, 1\nv_mov_b32 v254, 2')
    if opt.early: t2('@waitvm Oa\nbuffer_store_dword v245, v%d, s[%d:%d], 0 offen sc1' % (vFA, S_F, S_F + 3))
    stamp(t2)
    bb = []; frs = []; first = []; last = []
    AR = [32, 36, 40, 44, 8, 12, 16, 20] if opt.joint else [32, 36, 40, 44, 8, 12] if opt.t2ch else [32, 36, 40, 44]; NA = len(AR)
    done = {}
    def mf(c, kp, n, f, fi):
        a = 4 * (5 * n + f)
        bb.append(I('%s %s, %s, %s, %s' % (MF, ar(a, 4), vr(AR[fi % NA], 4), vr(BS[c % 3][5 * kp + f], 4), '0' if (c, kp) == (0, 0) else ar(a, 4))))
    for c in range(8):
        if opt.joint and c >= 6:
            for n in (4, 5, 6, 7, 1, 2, 3, 0) if c == 6 else ():
                fi = len(frs); frs += [(6, 0, n), (6, 1, n), (7, 0, n), (7, 1, n)]; first += [len(bb) + k for k in range(4)]
                for f in range(5):
                    for k in range(4): mf(6 + k // 2, k % 2, n, f, fi + k)
                    done[5 * n + f] = len(bb) - 1
                last += [len(bb) - 4 + k for k in range(4)]
            continue
        if opt.t2ch:
            for n in range(8) if c < 7 else (4, 5, 6, 7, 1, 2, 3, 0):
                fi = len(frs); frs += [(c, 0, n), (c, 1, n)]; first += [len(bb), len(bb) + 1]
                for f in range(5): mf(c, 0, n, f, fi); mf(c, 1, n, f, fi + 1)
                last += [len(bb) - 2, len(bb) - 1]
            continue
        seq = [(kp, n) for kp in range(2) for n in range(8)]
        if c == 7: seq = [(kp, n) for kp in range(2) for n in (4, 5, 6, 7)] + [(kp, n) for kp in range(2) for n in (1, 2, 3, 0)]
        for kp, n in seq:
            fi = len(frs); frs.append((c, kp, n)); first.append(len(bb))
            for f in range(5): mf(c, kp, n, f, fi)
            last.append(len(bb) - 1)
    G = Gaps(bb, 8)
    bars = {0: 'wo0,wo1,wo2', 2: '', 3: 'wo3,wo4', 5: 'wo5,wo6', 7: 'wo7'}
    if opt.early: bars = {0: 'wo0,wo1,wo2', 2: 'wo3', 4: 'wo4,wo5', 6: 'wo6,wo7'}
    if opt.joint: bars = {0: 'wo0,wo1,wo2', 2: 'wo3,wo4', 4: 'wo5', 6: 'wo6,wo7'}
    if opt.fallback: bars[0] = 'wo2'
    for c, tg in bars.items():
        G.put(80 * c - 14 if c or not opt.fallback else opt.z0pos, *([I('@waitlgkm *')] + ([I('@waitvm ' + tg)] if tg else []) + [I('s_barrier')]))
    for fi, (c, kp, n) in enumerate(frs):
        g = max(last[fi - NA] if fi >= NA else -1, first[fi] - (18 if opt.t2ch else 16), -1)
        if c in bars and c: g = max(g, 80 * c - 13 + (fi % 2 if opt.t2ch else 0))
        if opt.joint and c >= 6: g = max(last[fi - NA], first[fi] - 22 + 3 * (fi % 4), 467 + fi % 4)
        xo = 32768 if opt.joint and c == 7 else 0
        r = AR[fi % NA]
        G.put(g, I('ds_read_b64_tr_b16 %s, v%d offset:%d' % (vr(r, 2), vRA[n], kp * 8192 + xo), 'wx'), I('ds_read_b64_tr_b16 %s, v%d offset:%d' % (vr(r + 2, 2), vRA[n], kp * 8192 + 4096 + xo), 'w%d' % fi))
        if kp == 1 and c < (6 if opt.joint else 7):
            G.put(g + 1, I('v_add_u32 v%d, s%d, v%d' % (vRA[n], sDL[c], vRA[n])))
        if opt.joint and c >= 6:
            if fi % 4 == 0: G.put(first[fi] - 1, I('@waitlgkm w%d' % (fi + 3)))
        elif fi % 2 == 0 and fi: G.put(first[fi] - 1, I('@waitlgkm w%d' % (fi + 1)))
    z0 = opt.z0pos + 1 if opt.fallback else 0
    for i in range(0 if opt.own else 10): G.put(z0 + i // 2 + (i >= 8), I('ds_read_b128 %s, v%d offset:%d' % (vr(BS[1][i], 4), vXR, 1024 * i), 'xr'))
    G.put(opt.flagpos, I('@waitvm O,Oa'), I('buffer_store_dword v254, v%d, s[%d:%d], 0 offen sc1' % (vFA, S_F, S_F + 3)))
    if not opt.own: G.put(z0 + 13, I('@waitlgkm xr'), I('s_barrier'))
    flat = lambda d: [x for g in d for x in g]
    def oload(c):
        return [I('buffer_load_dwordx4 %s, v%d, s[%d:%d], s%d offen offset:%d%s' % (vr(BS[c % 3][5 * kp + f], 4), vOL + 2 * kp + f // 4, S_OR, S_OR + 3, sORO + c, 1024 * (f % 4), opt.o_ld_pol)) for kp in range(2) for f in range(5)]
    G.spread2(flat(dma_wo(3) + dma_wo(4)), z0 + 15, z0 + 62)
    ck = opt.chkpos
    checks = [('o1', opt.pollpos, ck, 26 if opt.early else MK1[1], 1 if opt.early else 2)]
    if opt.early: checks.append(('ob', opt.chkb - opt.pleadb, opt.chkb, 27, 2))
    checks += [('o2', opt.chk2 - opt.plead, opt.chk2, MK1[2], 2), ('o3', opt.chk3 - opt.plead, opt.chk3, MK1[3], 2)]
    for name, pp, cp, mk, thr in checks:
        G.put(pp, I('buffer_load_dword v244, v%d, s[%d:%d], 0 offen sc1' % (vPA, S_F, S_F + 3)))
        G.put(cp, *[I(x) for x in poll_test(244, mk, thr) + ['s_cbranch_scc1 L_spin_' + name]])
    def even(lst, lo, hi):
        mem = [x for x in lst if x.cls in ('dma', 'vld')]; k = 0; pend = []
        for x in lst:
            if x.cls in ('dma', 'vld'):
                g = lo + (k * (hi - lo)) // max(len(mem) - 1, 1); k += 1
                for j, y in enumerate(pend): G.put(g - len(pend) + j, y)
                G.put(g, x); pend = []
            else: pend.append(x)
    c2, c3 = opt.chk2, opt.chk3
    G.spread2(oload(2), ck + 1, ck + 8)
    if opt.early:
        even(oload(3), opt.chkb + 1, opt.chkb + 24); even(flat(dma_wo(5)), opt.chkb + 29, c2 - 3)
        even(oload(4), c2 + 1, c2 + 36); even(flat(dma_wo(6)), c2 + 41, c2 + 66)
        even(oload(5), c2 + 70, c3 - 3); even(flat(dma_wo(7)), c3 + 3, c3 + 32); even(oload(6), c3 + 36, c3 + 70)
        even(oload(7), max(c3 + 74, 401), c3 + 115)
    elif opt.joint:
        even(oload(3), ck + 14, c2 - 42); even(flat(dma_wo(5)), max(c2 - 38, 150), c2 - 3)
        even(oload(4), c2 + 1, c2 + 34); even(flat(dma_wo(6) + dma_wo(7)), max(c2 + 38, 309), c3 - 34)
        even(oload(5), c3 - 31, c3 - 3); even(oload(6), c3 + 1, c3 + 24); even(oload(7), max(c3 + 27, 401), max(c3 + 50, 424))
    else:
        even(oload(3), ck + 14, c2 - 42); even(flat(dma_wo(5)), max(c2 - 38, 150), c2 - 3)
        even(oload(4), c2 + 1, c2 + 40); even(flat(dma_wo(6)), c2 + 45, c3 - 48)
        even(oload(5), c3 - 44, c3 - 3); even(oload(6), c3 + 1, c3 + 42)
        even(flat(dma_wo(7)), c3 + 47, c3 + 80); even(oload(7), max(c3 + 84, 401), c3 + 125)
    if opt.sent:
        G.put(opt.flagpos + 1, I('@waitvm pf'), I('buffer_store_dword v245, v%d, s[%d:%d], 0 offen sc1' % (vFA + 1, S_F, S_F + 3)))
        G.put(575, I('buffer_load_dword v244, v%d, s[%d:%d], 0 offen sc1' % (vPA + 1, S_F, S_F + 3)))
    RG = BS[2] + [hole(i) for i in range(10, 20)] if opt.joint else BS[0] + BS[2]
    order = [5 * nl + f for nl in (1, 2, 3, 0) for f in range(5)]
    TM = [vN, vN + 4, vN + 8, vN + 12] if opt.joint else BS[1]
    def finish(k, i):
        tm = TM[k % len(TM)]; nl, f = divmod(i, 5)
        L = ['v_accvgpr_read_b32 v%d, a%d' % (tm + e, 4 * i + e) for e in range(4)] + ['v_add_f32 v%d, v%d, v%d' % (RG[i] + e, RG[i] + e, tm + e) for e in range(4)]
        if nl and not opt.pbf: L.append(I('buffer_store_dwordx4 %s, v%d, s[%d:%d], s%d offen offset:%d%s' % (vr(RG[i], 4), vOL + f // 4, S_P, S_P + 3, sPW + nl - 1, 1024 * (f % 4), opt.p_st_pol), 'P'))
        if nl and opt.pbf:
            d = RG[5 * nl + f // 2 * 2] + 2 * (f % 2); x2 = f == 4 and opt.sent
            L += ['v_cvt_pk_bf16_f32 v%d, v%d, v%d' % (d, RG[i], RG[i] + 1), 'v_cvt_pk_bf16_f32 v%d, v%d, v%d' % (d + 1, RG[i] + 2, RG[i] + 3)]
            if f % 2 or f == 4: L.append(I('buffer_store_dwordx%d %s, v%d, s[%d:%d], s%d offen offset:%d%s' % (2 if x2 else 4, vr(RG[5 * nl + f // 2 * 2], 2 if x2 else 4), vOL, S_P, S_P + 3, sPW + nl - 1, 1024 * (f // 2), opt.p_st_pol), 'P'))
        return L
    nfin = 0
    if opt.joint:
        for i in range(20): G.put(done[20 + i] + 4, I('ds_write_b128 v%d, %s offset:%d' % (vYW, ar(80 + 4 * i, 4), 1024 * i), 'yw'))
        G.put(570, I('@waitlgkm yw'), I('s_barrier'))
        for k, i in enumerate(order): G.put(571 + k, I('ds_read_b128 %s, v%d offset:%d' % (vr(RG[i], 4), vYR, 1024 * i)))
        nfin = 15; ch = []; lo = []
        for k, i in enumerate(order[:nfin]):
            L = finish(k, i); ch += L; lo += [max(done[i] + 4, 580 + k) - 580] * len(L)
        ch, pos = G.dp(ch, list(range(580, 640)), lo)
        for x, p in zip(ch, pos): G.put(580 + p, x)
    else:
        for i in range(20): G.put(574 + 2 * i if opt.t2ch else 585 + (3 * i) // 2, I('ds_write_b128 v%d, %s offset:%d' % (vYW, ar(80 + 4 * i, 4), 1024 * i), 'yw'))
        G.put(619, I('@waitlgkm yw'), I('s_barrier'))
        for k, i in enumerate(order): G.put(620 + k, I('ds_read_b128 %s, v%d offset:%d' % (vr(RG[i], 4), vYR, 1024 * i)))
    if opt.tstamps:
        for g in (opt.flagpos + 1, 79, opt.chkpos - 1, opt.chkpos + 1, 159, 164, opt.chk2 - 1, opt.chk2 + 1, 239, opt.chk3 - 1, opt.chk3 + 1, 399, 479, 559): G.put(g, *stamp_ins())
    print('oproj est cycles', G.est_cycles(16), file=sys.stderr)
    if opt.fallback: t2.ins[mark:mark] = G.g[-1]; G.g[-1] = []
    blks = [t2]; lo = -1
    for name, pp, cp, mk, thr in checks:
        blks[-1].extend(G.emit(lo, cp)); lo = cp + 1
        blks.append(Block('t_' + name)); blks[-1]('L_back_%s:' % name)
    t3 = blks[-1]
    t3.extend(G.emit(lo, 639))
    stamp(t3)
    for k, i in enumerate(order):
        if k >= nfin: t3.extend(finish(k, i))
    if not opt.sent:
        t3('@waitvm P\nbuffer_store_dword v245, v%d, s[%d:%d], 0 offen sc1' % (vFA + 1, S_F, S_F + 3))
        stamp(t3)
        t3('buffer_load_dword v244, v%d, s[%d:%d], 0 offen sc1' % (vPA + 1, S_F, S_F + 3))
    else: stamp(t3)
    t3.extend(poll_test(244, sMK2) + ['s_cbranch_scc1 L_spin_p'])
    t4 = Block('tail4'); t4('L_back_p:')
    spins = [spin_block(name, vPA, mk, thr) for name, pp, cp, mk, thr in checks] + [spin_block('p', vPA + 1, sMK2)]
    LD = [BS[1][3 * (f // 2) + j] for j in (1, 2, 3) for f in (0, 2, 4)] if opt.sent else None
    def preg(j, f): return LD[3 * (j - 1) + f // 2] if opt.sent else RG[5 * j + f]
    if opt.sent:
        blks.append(t4); t4('s_mov_b32 s41, %d' % opt.spin)
        t4 = Block('try'); t4('L_try:')
    else: stamp(t4)
    for f in range(0, 5, 2 if opt.pbf else 1):
        for j in (1, 2, 3):
            if opt.pbf: t4('buffer_load_dwordx%d %s, v%d, s[%d:%d], s%d offen offset:%d%s' % (2 if f == 4 and opt.sent else 4, vr(preg(j, f), 2 if f == 4 and opt.sent else 4), vOL, S_P, S_P + 3, sPR + j - 1, 1024 * (f // 2), opt.p_ld_pol))
            else: t4('buffer_load_dwordx4 %s, v%d, s[%d:%d], s%d offen offset:%d%s' % (vr(RG[5 * j + f], 4), vOL + f // 4, S_P, S_P + 3, sPR + j - 1, 1024 * (f % 4), opt.p_ld_pol))
    if opt.sent:
        regs = [preg(j, f) + e for f in (0, 2, 4) for j in (1, 2, 3) for e in range(2 if f == 4 else 4)]
        t4('v_max_u32 v244, v%d, v%d' % (regs[0], regs[1]))
        for k in range(2, len(regs), 2): t4('v_max3_u32 v244, v244, v%d, v%d' % (regs[k], regs[k + 1]))
        t4('v_cmp_eq_u32 vcc, -1, v244\ns_cbranch_vccnz L_spin_s')
        blks.append(t4); t4 = Block('fin'); t4('L_fin:'); stamp(t4)
        sp = Block('spin_s')
        sp('L_spin_s:\ns_sub_u32 s41, s41, 1\ns_cmp_eq_u32 s41, 0\ns_cbranch_scc1 L_fin\ns_sleep 1\nbuffer_load_dword v244, v27, s[%d:%d], 0 offen sc1\ns_waitcnt vmcnt(0)' % (S_P, S_P + 3))
        sp('v_cmp_eq_u32 vcc, -1, v244\ns_cbranch_vccnz L_spin_s\ns_branch L_try')
        spins.append(sp)
    blks.append(t4)
    if opt.pbf: t4('s_mov_b32 s39, 0xffff0000')
    for f in range(5):
        a, b1, b2, b3 = RG[f], RG[5 + f], RG[10 + f], RG[15 + f]
        if opt.pbf:
            for j in (1, 2, 3):
                src = preg(j, f // 2 * 2) + 2 * (f % 2); tm = RG[5 * j + 1]
                t4('v_lshlrev_b32 v%d, 16, v%d\nv_and_b32 v%d, s39, v%d\nv_lshlrev_b32 v%d, 16, v%d\nv_and_b32 v%d, s39, v%d' % (tm, src, tm + 1, src, tm + 2, src + 1, tm + 3, src + 1))
            b1, b2, b3 = RG[6], RG[11], RG[16]
        for e in range(4): t4('v_add_f32 v%d, v%d, v%d\nv_add_f32 v%d, v%d, v%d' % (a + e, a + e, b1 + e, b2 + e, b2 + e, b3 + e))
        for e in range(4): t4('v_add_f32 v%d, v%d, v%d' % (a + e, a + e, b2 + e))
        t4('v_cvt_pk_bf16_f32 v%d, v%d, v%d\nv_cvt_pk_bf16_f32 v%d, v%d, v%d\ns_mov_b32 s38, %d' % (a, a, a + 1, a + 1, a + 2, a + 3, 32768 * f))
        t4('buffer_store_dwordx2 %s, v%d, s[%d:%d], s38 offen%s' % (vr(a, 2), vST, S_OUT, S_OUT + 3, opt.out_pol))
    if opt.stamps: t4('s_waitcnt vmcnt(0)')
    stamp(t4)
    if opt.twice: t4('s_add_u32 s63, s3, 0\ns_cmp_lt_u32 s%d, 100\ns_cbranch_scc1 L_again' % sTSN)
    t4('s_endpgm')
    for b in blks:
        if 'c' in opt.t2x: b.ins = [x for x in b.ins if not (x.op == 's_cbranch_scc1' and 'spin_o' in x.text)]
        if 'p' in opt.t2x: b.ins = [x for x in b.ins if not (x.op == 's_cbranch_scc1' and 'spin_p' in x.text)]
        if 'o' in opt.t2x: b.ins = [x for x in b.ins if not (x.cls == 'vld' and 's[16:19]' in x.text)]
        if 'w' in opt.t2x: b.ins = [x for x in b.ins if x.cls != 'dma']
        if 's' in opt.t2x: b.ins = [x for x in b.ins if x.tag not in ('O', 'Oa')]
    return t1, blks, spins

def k1_fallback():
    b = Block('fb'); T = vT
    b('L_fallback:')
    b('s_waitcnt vmcnt(0) lgkmcnt(0)\ns_nop 15\ns_barrier')
    b('v_and_b32 v1, 15, v%d\nv_lshrrev_b32 v2, 4, v%d\nv_lshlrev_b32 v2, 4, v2\nv_lshl_add_u32 v%d, v1, 8, v2' % (vLANE, vLANE, T + 10))
    for qs in range(5): b('v_mov_b32 v%d, 0xff800000' % (T + 2 * qs))
    b('s_mov_b32 s39, 0')
    lp = Block('fbl'); lp('L_fb_loop:')
    for k in range(4): lp('buffer_load_dwordx4 %s, v%d, s[%d:%d], s39 offen offset:%d' % (vr(vF + 4 * k, 4), T + 10, S_K, S_K + 3, 64 * k))
    lp('s_waitcnt vmcnt(0)')
    lp.extend(qk_mfmas(True)[:20])
    lp('s_nop 15')
    for qs in range(5):
        s = rS(0, qs); t = T + 2 * qs
        lp('v_max3_f32 v%d, v%d, v%d, v%d\nv_max3_f32 v%d, v%d, v%d, v%d' % (t, t, s, s + 1, t, t, s + 2, s + 3))
    lp('s_add_u32 s39, s39, 4096\ns_cmp_lt_u32 s39, 262144\ns_cbranch_scc1 L_fb_loop')
    e = Block('fbe')
    if opt.twice: e('L_again:\ns_waitcnt vmcnt(0) lgkmcnt(0)\ns_barrier\ns_mov_b32 s34, 0x7f800000\ns_mov_b32 s36, 0x3e000000')
    max_finish(e, T)
    e.extend(zero_acc())
    e('s_and_b32 s40, s%d, 1\ns_lshl_b32 s%d, s40, 12\ns_mov_b32 s%d, s%d' % (sW, sKO, sVO, sKO))
    for g in dma_kv('K', 0) + dma_kv('K', 1) + dma_kv('K', 2) + dma_kv('K', 3) + dma_kv('V', 0) + dma_kv('V', 1) + dma_kv('V', 2): e.extend(g)
    e('s_mov_b32 s%d, 1\ns_waitcnt vmcnt(0)\ns_barrier' % sEX)
    G = Gaps(qk0_mfmas(), 8)
    for f in range(8): G.put(max(5 * (f - 3) - 1, -1), *kread0(f))
    e.extend(G.emit())
    e('s_nop 7\ns_branch L_start')
    return b, lp, e

def kernel_text(kname, blocks, traces, vgpr, accum, sgpr=102):
    d = {b.name: b for b in blocks}
    assert len(d) == len(blocks)
    place_waits(d, traces)
    n = place_nops(d, traces)
    print(kname[:12], 'nop states inserted', n, 'instructions', {b.name: len(b.ins) for b in blocks}, file=sys.stderr)
    t = '.text\n.globl %s\n.p2align 8\n.type %s,@function\n%s:\n' % (kname, kname, kname) + render(blocks)
    t += '.section .rodata,"a"\n.p2align 6\n.amdhsa_kernel %s\n' % kname
    t += '  .amdhsa_next_free_vgpr %d\n  .amdhsa_next_free_sgpr %d\n  .amdhsa_accum_offset %d\n' % (vgpr, sgpr, accum)
    t += '  .amdhsa_group_segment_fixed_size 0\n  .amdhsa_kernarg_size 104\n  .amdhsa_user_sgpr_count 2\n'
    t += '  .amdhsa_user_sgpr_kernarg_segment_ptr 1\n  .amdhsa_system_sgpr_workgroup_id_x 1\n.end_amdhsa_kernel\n'
    return t

def gen_k1(kname):
    setup = k1_setup(); qp = k1_qproj()
    pro, mx, p2, lp, pe = k1_attention(); t1, tb, spins = k1_tail()
    end = Block('end'); end('L_k1_end:\ns_endpgm')
    blocks = [setup, qp, pro, mx, p2] + lp + pe[:3] + [t1] + tb + spins + [pe[3]]
    loop = (['per0', 'per1', 'per2', 'per3'] * 3)[1 if opt.peel0 else 0:] + ['pe0', 'pe1', 'pe2', 'tail1']
    head = ['setup', 'qproj', 'pro', 'pro_max', 'pro2']
    rest = [b.name for b in tb]
    slow = []
    for b in tb:
        if b.name.startswith('t_'): slow += ['spin_' + b.name[2:]] * 2
        if b.name == 'tail4': slow += ['spin_p'] * 2
        if b.name == 'fin': slow += ['spin_s', 'spin_s', 'try', 'spin_s']
        slow.append(b.name)
    traces = [head + loop + rest, head + loop[:-2] + ['spin_d', 'spin_d', 'pe2', 'tail1'] + slow]
    if opt.fallback:
        fb, fbl, fbe = k1_fallback(); blocks += [fb, fbl, fbe]
        traces.append(head + loop + ['fb', 'fbl', 'fbl', 'fbe', 'pro', 'pro2'] + loop + rest)
    blocks.append(end)
    return kernel_text(kname, blocks, traces, 512, 256)

def gen_diag(kname):
    a, b_, gain = [int(x, 0) for x in opt.diag.split()]
    b = Block('dg')
    b('''s_cmp_ge_u32 s2, 1
         s_cbranch_scc1 L_dg_end
         s_load_dwordx2 s[4:5], s[0:1], 96
         s_waitcnt lgkmcnt(0)
         s_add_u32 s4, s4, 0x3000000
         s_addc_u32 s5, s5, 0
         s_load_dword s6, s[4:5], %d
         s_load_dword s7, s[4:5], %d
         s_memrealtime s[8:9]
         s_waitcnt lgkmcnt(0)
         s_sub_u32 s6, s7, s6
         s_min_u32 s6, s6, 20000
         s_mul_i32 s6, s6, %d
         L_dg:
         s_memrealtime s[10:11]
         s_waitcnt lgkmcnt(0)
         s_sub_u32 s10, s10, s8
         s_cmp_lt_u32 s10, s6
         s_cbranch_scc1 L_dg
         L_dg_end:
         s_endpgm''' % (a, b_, gain))
    return kernel_text(kname, [b], [['dg']], 8, 8, 16)

def main(out, only=None):
    t = open('cdna_kernels/%s.s.ref' % NAME).read().split('; Override launch')[0]
    k1 = NAME + '_kernel'
    if opt.diag.strip():
        t += '; @launch kernel=%s grid=(256,1,1) block=(256,1,1) lds=163840\n; @launch kernel=diag_kernel grid=(1,1,1) block=(64,1,1) lds=0\n' % k1
    else: t += '; @launch grid=(256,1,1) block=(256,1,1) lds=163840\n'
    t += '''; Generated by a script (software-pipelined instruction placement, s_waitcnt counts and wait states are computed).
;     reaches 2^30 (or is not finite) the workgroup computes the true maximum over all keys and redoes both heads.
'''
    t += '.amdgcn_target "amdgcn-amd-amdhsa--gfx950"\n'
    t += gen_k1(k1)
    if opt.diag.strip(): t += gen_diag('diag_kernel')
    open(out, 'w').write(t)

if __name__ == '__main__':
    out = sys.argv[1]; only = None
    for a in sys.argv[2:]:
        k, v = a.split('=')
        if k == 'only': only = int(v)
        elif isinstance(getattr(opt, k), bool): setattr(opt, k, v == '1')
        elif isinstance(getattr(opt, k), int): setattr(opt, k, int(v))
        else: setattr(opt, k, (' ' + v.replace('+', ' ')) if v else '')
    main(out, only)
```

```python
import sys, math, struct
from asmlib import *

NAME = "concat_heads__gqa_block_cached__gqa_block_cached__near_ridge"
def f32bits(x): return struct.unpack('<I', struct.pack('<f', x))[0]
MF = 'v_mfma_f32_16x16x32_bf16'
def vr(b, n=1, k='v'): return '%s%d' % (k, b) if n == 1 else '%s[%d:%d]' % (k, b, b + n - 1)
def ar(b, n=1): return vr(b, n, 'a')

class Opt:
    kv_pol = ' nt'; w_pol = ''; x_pol = ''; o_st_pol = ' sc1'; o_ld_pol = ' sc1'; wo_pol = ''; out_pol = ''; p_st_pol = ' sc1'; p_ld_pol = ' sc1'
    stamps = False; fallback = True; ones = True; nokv = False; nox = False; noxq = False; qstamps = False
    dsp = 10; kvend = 13; burst = ' 10:2 12:2'; k2stag = 1; qevery = 4; warm = 336; qf = ' '; pk = False; upfront = 3; diag = ' '; spin = 524288; poll2 = 0; joint = True; own = True; touch2 = False; peel0 = False; pfper = 2; chain = True; asym = 1; rel = 1; ramp = 1; t2ch = True; onesadj = True; cape = ' 4x4x4x4x'; capl = ' 44444444'; twice = False; z0pos = 3; stcap = 0; pecap = False; fs = False; t2x = ' '; early = False; sent = False; chkb = 168; pleadb = 30; qcl = 1; fbk = 0; fbn = 4; fbpos = 56; sb = 1; t2mode = 0; o3n = 10; pstamps = False; tstamps = False; thre = 0; thro = 4; thrn = 2; ptouch = 0; touchc = 8; flagpos = 12; pollpos = 105; chkpos = 140; chk2 = 270; chk3 = 390; plead = 40; pbf = True; pk2 = True
opt = Opt()

S_K, S_V, S_X, S_WQ, S_O = 4, 8, 12, 16, 20
sW, sW4, sKO, sVO, sCNT, sEX, sC0, sB, sBR, sH1, sTH, sM0B = 24, 25, 26, 27, 28, 29, 30, 31, 32, 33, 34, 35
sSC = 36
S_TS, sTSA, sTSN = 52, 56, 58
sWO, sXO = 76, 92
STASH = {'K2': 32, 'V2': 224, 'K3': 240}
vSW = 2
vKA, vVA, vKD, vVD, vLANE, vL = 8, 12, 20, 24, 26, 59
vF = 32; NB = 4
vWA, vXA, vWD, vXD = 48, 52, 54, 58
vACC = 64
def rQ(k, qs): return vACC + 8 * (5 * k + qs)
def hole(i): return vACC + 8 * i + 4
def rS(kt, qs): return hole(5 * kt + qs)
def rP(par, qs): return hole(10 + 5 * par + qs)
vN = 224
vT = 48; vT2 = 244
def aO(dt, qs): return 4 * (5 * dt + qs)
aL, aONE, aFA, aFB = 160, 180, 184, 200
KS0, VS0 = 0, 65536
WBUF = [139264, 32768, 49152]
XBUF = [98304, 118784]
sJP, sKQ = 3, 59
S_F, S_D, S_P, S_OUT, S_WO, S_OR = 44, 48, 64, 68, 12, 16
sOK, sWOO, sORO, sPW, sPR, sD01, sD12, sMK1, sMK2 = 76, 80, 88, 96, 99, 30, 33, 42, 43
MK1 = [None, 42, 60, 61]
POFF, FOFF, TSOFF = 0x1500000, 0x2a00000, 0x3000000
vOD, vOL, vXW, vXR, vYW, vYR, vST, vFA, vPA, vDA = 54, 58, 62, 63, 48, 49, 50, 51, 28, 30
vRA = list(range(246, 254))
WOB = [131072, 0, 65536, 32768, 98304]
BADB = 98304 + 10240
BS = [[vACC + 8 * i for i in range(10)], [vACC + 8 * i for i in range(10, 20)], [hole(i) for i in range(10)]]
SPIN = 1 << 15

def stamp_ins():
    if not opt.stamps: return []
    return [I('s_memrealtime s[%d:%d]' % (sTSA, sTSA + 1)), I('s_memtime s[62:63]'), I('s_waitcnt lgkmcnt(0)'), I('v_mov_b32 v5, s%d' % sTSA), I('v_mov_b32 v6, s%d' % sTSN), I('v_mov_b32 v7, s62'),
            I('buffer_store_dword v5, v6, s[%d:%d], 0 offen' % (S_TS, S_TS + 3), 'stamp'), I('buffer_store_dword v7, v6, s[%d:%d], 0 offen offset:256' % (S_TS, S_TS + 3), 'stamp'), I('s_add_u32 s%d, s%d, 4' % (sTSN, sTSN))]
def stamp(b): b.extend(stamp_ins())
def stamp_setup(b, ws, w, off=TSOFF, first=False):
    if not opt.stamps: return
    b('''s_lshl_b32 s39, s2, 9
         s_add_u32 s39, s39, {off}
         s_add_u32 s{T}, s{ws}, s39
         s_addc_u32 s{T1}, s{ws1}, 0
         s_cmp_eq_u32 s{w}, 0
         s_cselect_b32 s{T2}, 512, 0
         s_mov_b32 s{T3}, 0x20000
         s_mov_b32 s{N}, 0'''.format(T=S_TS, T1=S_TS + 1, T2=S_TS + 2, T3=S_TS + 3, w=w, ws=ws, ws1=ws + 1, N=sTSN, off=off))
    if first:
        b('v_mov_b32 v5, s100\nv_mov_b32 v6, 0\nv_mov_b32 v7, s42')
        b('buffer_store_dword v5, v6, s[%d:%d], 0 offen\nbuffer_store_dword v7, v6, s[%d:%d], 0 offen offset:256\ns_mov_b32 s%d, 4' % (S_TS, S_TS + 3, S_TS, S_TS + 3, sTSN))
    stamp(b)

def srd(b, d, lo, off, num):
    b('s_add_u32 s%d, s%d, %s\ns_addc_u32 s%d, s%d, 0\n%s\ns_mov_b32 s%d, 0x20000' % (d, lo, off, d + 1, lo + 1,
      ('s_mov_b32 s%d, %d' % (d + 2, num)) if isinstance(num, int) else num % (d + 2), d + 3))

def off_calc(X):
    return ['s_add_u32 s38, s%d, %d' % (sC0, X), 's_and_b32 s38, s38, 7', 's_lshl_b32 s%d, s38, 19' % (sWO + 2 * X),
            's_add_u32 s%d, s%d, 262144' % (sWO + 2 * X + 1, sWO + 2 * X)]
def dma_wq(c):
    G = [[I('s_add_u32 m0, s%d, %d' % (sW4, WBUF[c % 3]))]]
    for n in range(4):
        G.append([I('buffer_load_dwordx4 v%d, s[%d:%d], s%d offen offset:%d%s lds' % (vWD + n, S_WQ, S_WQ + 3, sWO + c, 1024 * n, opt.w_pol), 'wq%d' % c)])
    return G
def dma_x(X):
    G = [[I('s_lshr_b32 s39, s%d, 12' % (sWO + 2 * X))], [I('s_add_u32 m0, s%d, %d' % (sW4, XBUF[X % 2]))]]
    for n in range(4):
        G.append([I('buffer_load_dwordx4 v%d, s[%d:%d], s%d offen offset:%d%s lds' % (vXD + n, S_X, S_X + 3, 39, 1024 * n, opt.x_pol), 'x%d' % X)])
    G.append([I('s_add_u32 m0, s%d, %d' % (sM0B, XBUF[X % 2] + 16384))])
    G.append([I('buffer_load_dwordx4 v%d, s[%d:%d], s%d offen%s lds' % (vXD + 4, S_X, S_X + 3, 39, opt.x_pol), 'x%d' % X)])
    return G
def stash_load(which, slot):
    K = which == 'K'; srd_, so = (S_K, sKO) if K else (S_V, sVO); r = STASH['%s%d' % (which, slot)]
    G = [[I('buffer_load_dwordx4 %s, v%d, s[%d:%d], s%d offen offset:%d%s' % (vr(r + 4 * m, 4), vKD + m if K else vVD + m % 2, srd_, srd_ + 3, so, 1024 * m, opt.kv_pol), 'st')] for m in range(4)]
    G[3].append(I('s_add_u32 s%d, s%d, 8192' % (so, so)))
    return G
def stash_flush(which, slot):
    r = STASH['%s%d' % (which, slot)]; base = (KS0 if which == 'K' else VS0) + 16384 * slot
    return [I('ds_write_b128 v%d, %s offset:%d' % (vSW + base // 65536, vr(r + 4 * m, 4), base % 65536 + 1024 * m)) for m in range(4)]
def dma_kv(which, slot, m0each=False):
    G = []; K = which == 'K'
    srd_, so = (S_K, sKO) if K else (S_V, sVO)
    for m in range(4):
        g = []
        if m == 0 or m0each: g.append(I('s_add_u32 m0, s%d, %d' % (sW4, (KS0 if K else VS0) + 16384 * slot)))
        g.append(I('buffer_load_dwordx4 v%d, s[%d:%d], s%d offen offset:%d%s lds' % (vKD + m if K else vVD + m % 2, srd_, srd_ + 3, so, 1024 * m, opt.kv_pol), '%s%d' % (which, slot)))
        if m == 3: g.append(I('s_add_u32 s%d, s%d, 8192' % (so, so)))
        G.append(g)
    return G

def dma_wo(c):
    buf = WOB[3 if c == 7 and opt.joint else c % 5]; G = []
    for m in range(8):
        g = []
        if m == 4: g.append(I('s_add_u32 s2, s%d, 16384' % (sWOO + c)))
        if m % 4 == 0: g.append(I('s_add_u32 m0, s%d, %d' % (sM0B, buf + 4096 * (m // 4))))
        g.append(I('buffer_load_dwordx4 v%d, s[%d:%d], s%d offen offset:%d%s lds' % (vOD + m % 4, S_WO, S_WO + 3, sWOO + c if m < 4 else 2, 1024 * (m % 4), opt.wo_pol), 'wo%d' % c))
        G.append(g)
    return G

def peer(p):
    if not opt.asym: return 's_add_u32 s38, s%d, %d\ns_and_b32 s38, s38, 3' % (sJP, p)
    if p == 0: return 's_mov_b32 s38, s%d' % sJP
    if opt.asym == 5: return 's_cmp_le_u32 s%d, %d\ns_cselect_b32 s38, %d, %d' % (sJP, p - 1, p, p - 1)
    return 's_cmp_lt_u32 s%d, 2\ns_cselect_b32 s38, %d, %d\ns_xor_b32 s38, s38, s%d' % (sJP, p, p % 3 + 1, sJP)

def page_touch():
    return ['v_mov_b32 v1, 0'] + ['buffer_load_dword v%d, v1, s[%d:%d], 0 offen' % (253 + i, d, d + 3) for i, d in enumerate((S_O, S_P, S_OUT))]
def tail_setup_a(b):
    b('s_mov_b32 s72, s92\ns_mov_b32 s73, s93')
    b('''s_and_b32 s98, s{w}, 1
         s_lshr_b32 s99, s{w}, 1
         s_lshl_b32 s96, s{B}, 1
         s_add_u32 s96, s96, s98
         s_mul_i32 s96, s96, 163840
         s_lshl_b32 s97, s{BR}, 2
         s_add_u32 s97, s97, s{JP}
         s_lshl_b32 s97, s97, 1
         s_add_u32 s97, s97, s99
         s_lshl_b32 s97, s97, 2
         s_add_u32 s97, s97, s{KQ}
         s_lshl_b32 s97, s97, 5
         s_add_u32 s96, s96, s97'''.format(w=sW, B=sB, BR=sBR, JP=sJP, KQ=sKQ))
    srd(b, S_OUT, 94, 's96', 's_sub_u32 s%d, 2621440, s96')
    for p in (1, 2, 3): b(peer(p) + '\ns_lshl_b32 s38, s38, 2\ns_add_u32 s38, s38, s98\ns_lshl_b32 s%d, 5, s38' % MK1[p])
    b('s_lshl_b32 s38, 0x1111, s%d\ns_lshl_b32 s39, s%d, 2\ns_lshl_b32 s39, 15, s39\ns_andn2_b32 s%d, s38, s39' % (sW, sKQ, sMK2))
    b('s_lshl_b32 s38, s%d, 3\ns_add_u32 s38, s38, s%d\ns_lshl_b32 s38, s38, 2\ns_add_u32 s38, s38, s%d\ns_mul_i32 s38, s38, 327680\ns_mul_i32 s39, s%d, 5120\ns_add_u32 s38, s38, s39\ns_add_u32 s38, s38, 0x%x' % (sBR, sB, sJP, sW, POFF))
    srd(b, S_P, 74, 's38', 's_sub_u32 s%d, 327680, s39')
    for j in (1, 2, 3):
        b('s_xor_b32 s38, s%d, %d\ns_lshl_b32 s39, s38, 2\ns_add_u32 s39, s39, s%d\ns_mul_i32 s%d, s39, 20480' % (sKQ, j, sKQ, sPW + j - 1))
        b('s_lshl_b32 s39, s%d, 2\ns_add_u32 s39, s39, s38\ns_mul_i32 s%d, s39, 20480' % (sKQ, sPR + j - 1))

def wo_srd(b, S_WO=S_WO):
    b('s_lshl_b32 s38, s%d, 20\ns_lshl_b32 s39, s%d, 8\ns_add_u32 s38, s38, s39' % (sKQ, sJP))
    srd(b, S_WO, 72, 's38', 's_sub_u32 s%d, 4194304, s38')
def wo_touch(b, S_WO=S_WO):
    b('s_lshl_b32 s38, s%d, 2\ns_add_u32 s38, s38, s%d\ns_lshl_b32 s38, s38, 15\nv_lshrrev_b32 v4, 1, v%d\nv_and_b32 v5, 1, v%d\nv_lshlrev_b32 v5, 7, v5\nv_lshl_add_u32 v4, v4, 10, v5' % (sB, sW, vLANE, vLANE))
    b('buffer_load_dword v31, v4, s[%d:%d], s38 offen' % (S_WO, S_WO + 3))
def tail_setup_b(b):
    L = vLANE
    b('s_and_b32 s78, s%d, 1\ns_lshr_b32 s79, s%d, 1' % (sW, sW))
    b('''s_lshl_b32 s38, s{BR}, 3
         s_add_u32 s38, s38, s{B}
         s_lshl_b32 s38, s38, 2
         s_add_u32 s38, s38, s{KQ}
         s_mul_i32 s38, s38, 327680
         s_mul_i32 s39, s79, 20480
         s_mul_i32 s40, s78, 5120
         s_add_u32 s39, s39, s40
         s_add_u32 s38, s38, s39'''.format(B=sB, BR=sBR, KQ=sKQ))
    srd(b, S_OR, 74, 's38', 's_sub_u32 s%d, 327680, s39')
    b('s_lshl_b32 s40, s%d, 15\ns_lshl_b32 s%d, s%d, 13' % (sW, sM0B, sW))
    for c in range(8):
        b(peer(c // 2) + '\ns_lshl_b32 s38, s38, 1\ns_add_u32 s38, s38, %d\n%s\ns_mul_i32 s%d, s39, 40960\ns_lshl_b32 s38, s38, 17\ns_add_u32 s%d, s38, s40' % (c & 1, 's_xor_b32 s39, s38, s79' if opt.early else 's_mov_b32 s39, s38', sORO + c, sWOO + c))
    if opt.sent:
        b('v_mov_b32 v27, 0x100000')
        for j in range(3): b('s_add_u32 s38, s%d, 2048\nv_writelane_b32 v27, s38, %d' % (sPR + j, j))
    b('v_lshrrev_b32 v4, 4, v%d\nv_and_b32 v5, 15, v%d' % (L, L))
    for m in range(4):
        b('v_add_u32 v6, %d, v4\nv_lshlrev_b32 v6, 1, v6\nv_xor_b32 v6, v6, v5\nv_lshlrev_b32 v6, 4, v6\nv_lshl_add_u32 v6, v4, 10, v6\nv_add_u32 v%d, %d, v6' % (4 * (m % 2), vOD + m, 3072 * m))
    b('v_lshlrev_b32 v%d, 4, v%d' % (vOL, L))
    for i, o in ((1, 4096), (2, 10240), (3, 14336)): b('v_add_u32 v%d, %d, v%d' % (vOL + i, o, vOL))
    b('v_lshlrev_b32 v5, 11, v5\nv_lshl_add_u32 v%d, v4, 3, v5' % vST)
    y0, y3 = (65536, 65536 + 61440) if opt.joint else (98304, 32768)
    for (reg, wsel, step, lo, hi) in ((vXW, sW, 10240, 32768, 98304), (vXR, 41, 10240, 32768, 98304), (vYW, sW, 20480, y0, y3), (vYR, 41, 20480, y0, y3))[2 if opt.own else 0:]:
        b('s_xor_b32 s41, s%d, 2\ns_mul_i32 s38, s%d, %d\ns_add_u32 s38, s38, %d\ns_cmp_eq_u32 s%d, 3\ns_cselect_b32 s38, %d, s38\nv_add_u32 v%d, s38, v%d' % (sW, wsel, step, lo, wsel, hi, reg, vOL))
    b('''v_lshrrev_b32 v6, 4, v{L}
          v_bfe_u32 v4, v{L}, 2, 2
          v_lshl_add_u32 v6, v6, 2, v4
          v_and_b32 v4, 3, v{L}
          v_lshlrev_b32 v4, 3, v4
          v_lshl_add_u32 v4, v6, 8, v4
          s_lshr_b32 s38, s{w}, 1
          s_lshl_b32 s39, s38, 2
          s_add_u32 s39, s39, s{KQ}
          s_mul_i32 s38, s38, {x}
          s_add_u32 s38, s38, 131072
          v_add_u32 v4, s38, v4
          v_and_b32 v6, 7, v6
          v_xor_b32 v6, s39, v6'''.format(L=L, w=sW, KQ=sKQ, x=((0 if opt.own else 16384) - 131072) & 0xffffffff))
    for n in range(8): b('v_xor_b32 v5, %d, v6\nv_lshl_add_u32 v%d, v5, 5, v4' % (n, vRA[n]))
    b('s_lshl_b32 s38, s%d, 2\ns_add_u32 s38, s38, s%d\ns_lshl_b32 s38, s38, 2\nv_readfirstlane_b32 s39, v%d\ns_add_u32 s38, s38, s39\nv_lshl_add_u32 v%d, v%d, 16, s38' % (sJP, sW, vPA, vFA, L))
    b('s_lshl_b32 s38, s%d, 2\ns_add_u32 s38, s38, s%d\ns_lshl_b32 s38, s38, 2\nv_readfirstlane_b32 s39, v%d\ns_add_u32 s38, s38, s39\nv_lshl_add_u32 v%d, v%d, 16, s38' % (sKQ, sW, vPA + 1, vFA + 1, L))
    if opt.own:
        for kl in range(4): b('s_mov_b32 s%d, %d' % (sOK + kl, 10240 * kl))
        return
    for kl in range(4): b('s_lshl_b32 s38, s79, 1\ns_xor_b32 s38, s38, %d\ns_mul_i32 s%d, s38, 10240' % (kl, 38 if kl == 3 else sOK + kl))
    b('s_mov_b32 s%d, s38' % (sOK + 3))

def k1_setup():
    b = Block('setup'); L = vLANE; T = vT2
    b('s_cmp_ge_u32 s2, 256\ns_cbranch_scc1 L_k1_end')
    if opt.stamps: b('s_memrealtime s[100:101]\ns_memtime s[42:43]')
    if opt.warm: b('s_getpc_b64 s[96:97]')
    b('''s_and_b32 s38, s2, 7
         s_lshr_b32 s{BR}, s38, 2
         s_and_b32 s{KQ}, s38, 3
         s_lshr_b32 s39, s2, 3
         s_and_b32 s{B}, s39, 7
         s_lshr_b32 s{JP}, s39, 3
         s_lshl_b32 s38, s{KQ}, 3
         s_lshl_b32 s40, s{JP}, 1
         s_add_u32 s{H}, s38, s40
         s_add_u32 s{C}, s{B}, s40
         s_and_b32 s{C}, s{C}, 7
         s_mul_i32 s38, s{BR}, 40
         s_add_u32 s60, s0, s38
         s_addc_u32 s61, s1, 0
         s_load_dwordx8 s[64:71], s[60:61], 0
         s_load_dwordx4 s[72:75], s[0:1], 88
         s_load_dwordx2 s[92:93], s[60:61], 32
         s_load_dwordx2 s[94:95], s[0:1], 80
         v_lshrrev_b32 v1, 6, v0
         v_and_b32 v{L}, 63, v0
         v_readfirstlane_b32 s{W}, v1
         v_and_b32 v1, 31, v{L}
         v_lshrrev_b32 v2, 5, v{L}
         v_lshrrev_b32 v3, 4, v{L}
         v_and_b32 v4, 15, v{L}
         s_lshl_b32 s{W4}, s{W}, 12
         s_lshl_b32 s{M}, s{W}, 10'''.format(BR=sBR, B=sB, H=sH1, C=sC0, L=L, W=sW, W4=sW4, M=sM0B, KQ=sKQ, JP=sJP))
    b('s_lshl_b32 s39, s%d, 16' % sW)
    for n in range(4):
        b('''v_add_u32 v{a}, {n2}, v2
             v_and_b32 v{c}, 3, v{a}
             v_lshlrev_b32 v{c}, 2, v{c}
             v_xor_b32 v{c}, v{c}, v1
             v_lshlrev_b32 v{c}, 4, v{c}
             v_lshl_add_u32 v{c}, v{a}, 13, v{c}
             v_add_u32 v{c}, s39, v{c}
             v_subrev_u32 v{d}, {sub}, v{c}'''.format(a=T, c=T + 1, n2=2 * n, d=vWD + n, sub=1024 * n))
    b('s_lshl_b32 s39, s%d, 15\nv_lshrrev_b32 v%d, 3, v%d\nv_and_b32 v%d, 7, v%d\ns_lshl_b32 s38, s%d, 2' % (sW, T + 3, L, T + 4, L, sW))
    for n in range(4):
        b('''v_add_u32 v{a}, {n4}, v3
             v_and_b32 v{a}, 7, v{a}
             v_xor_b32 v{a}, v{a}, v{p}
             v_lshlrev_b32 v{a}, 4, v{a}
             v_lshl_add_u32 v{a}, v{r}, 10, v{a}
             v_add_u32 v{a}, {add}, v{a}
             v_add_u32 v{d}, s39, v{a}'''.format(a=T, n4=4 * n, p=T + 4, r=T + 3, add=7 * 1024 * n, d=vXD + n))
    b('''s_lshl_b32 s39, s{w}, 13
         s_add_u32 s39, s39, 131072
         v_add_u32 v{a}, s38, v3
         v_and_b32 v{a}, 7, v{a}
         v_xor_b32 v{a}, v{a}, v{p}
         v_lshlrev_b32 v{a}, 4, v{a}
         v_lshl_add_u32 v{a}, v{r}, 10, v{a}
         v_add_u32 v{d}, s39, v{a}'''.format(w=sW, a=T, p=T + 4, r=T + 3, d=vXD + 4))
    b('s_waitcnt lgkmcnt(0)')
    b('s_mul_i32 s39, s%d, 163840' % sB); srd(b, S_X, 64, 's39', 163840)
    b('s_lshl_b32 s39, s%d, 8' % sH1); srd(b, S_WQ, 70, 's39', 's_sub_u32 s%d, 4194304, s39')
    if opt.nox: b('s_mov_b32 s%d, 0' % (S_X + 2))
    if opt.noxq: b('s_mov_b32 s%d, 0' % (S_WQ + 2))
    b.extend(off_calc(0) + off_calc(1))
    for g in dma_wq(0) + dma_x(0) + (dma_wq(1) + dma_x(1) + dma_wq(2) if opt.upfront == 2 else []): b.extend(g)
    if opt.warm:
        n8 = (opt.warm + 7) // 8
        b('s_lshr_b32 s38, s2, 3\ns_and_b32 s38, s38, 7\ns_mul_i32 s38, s38, %d\nv_min_u32 v6, %d, v%d\nv_add_u32 v6, s38, v6\nv_lshlrev_b32 v6, 7, v6\nv_mov_b32 v7, s97' % (n8, n8 - 1, L))
        b('v_add_co_u32 v6, vcc, s96, v6\nv_addc_co_u32 v7, vcc, 0, v7, vcc\nglobal_load_dword v63, v[6:7], off')
    for X in range(2, 8): b.extend(off_calc(X))
    b('s_lshr_b32 s41, s%d, 1\ns_lshl_b32 s38, s%d, 5\ns_add_u32 s38, s38, s%d\ns_add_u32 s38, s38, s41\ns_lshl_b32 s39, s38, 18' % (sW, sB, sH1))
    srd(b, S_K, 66, 's39', 0 if opt.nokv else 262144); srd(b, S_V, 68, 's39', 0 if opt.nokv else 262144)
    b('s_lshl_b32 s39, s%d, 8\ns_add_u32 s38, s38, s39\ns_mul_i32 s39, s38, 40960\ns_and_b32 s40, s%d, 1\ns_mul_i32 s38, s40, 5120\ns_add_u32 s39, s39, s38' % (sBR, sW))
    srd(b, S_O, 74, 's39', 's_sub_u32 s%d, 40960, s38')
    b('s_lshl_b32 s%d, s40, 12\ns_mov_b32 s%d, s%d' % (sKO, sVO, sKO))
    stamp_setup(b, 74, sW, first=True)
    srd(b, S_F, 74, '0x%x' % FOFF, 32768); srd(b, S_D, 72, '0', 256)
    b('''s_and_b32 s38, s2, 7
         s_lshl_b32 s38, s38, 3
         s_add_u32 s38, s38, s{B}
         s_lshl_b32 s39, s{BR}, 3
         s_add_u32 s39, s39, s{B}
         s_lshl_b32 s39, s39, 2
         s_add_u32 s39, s39, s{JP}
         v_and_b32 v5, 1, v{L}
         v_mov_b32 v6, s38
         v_mov_b32 v7, s39
         v_cmp_eq_u32 vcc, 0, v5
         v_cndmask_b32 v6, v7, v6, vcc
         v_lshlrev_b32 v{DA}, 2, v6
         s_lshl_b32 s38, s38, 7
         s_lshl_b32 s39, s39, 7
         s_add_u32 s39, s39, 8192
         v_lshl_add_u32 v{PA}, v4, 2, s38
         v_lshl_add_u32 v{PB}, v4, 2, s39
         s_lshl_b32 s41, s{JP}, 4
         s_add_u32 s38, s38, s41
         s_lshl_b32 s41, s{KQ}, 4
         s_add_u32 s39, s39, s41
         v_mov_b32 v6, s38
         v_mov_b32 v7, s39
         v_cndmask_b32 v6, v7, v6, vcc
         v_lshrrev_b32 v7, 1, v0
         v_lshl_add_u32 v6, v7, 16, v6
         v_mov_b32 v{T}, 0
         v_mov_b32 v{T1}, 0
         v_mov_b32 v{T2}, 0
         v_mov_b32 v{T3}, 0'''.format(B=sB, BR=sBR, JP=sJP, KQ=sKQ, L=L, DA=vDA, PA=vPA, PB=vPA + 1, T=T, T1=T + 1, T2=T + 2, T3=T + 3))
    b('buffer_store_dwordx4 %s, v6, s[%d:%d], 0 offen sc1' % (vr(T, 4), S_F, S_F + 3), 'fz')
    if opt.fbk:
        b('''v_readfirstlane_b32 s38, v{PA}
             v_readfirstlane_b32 s39, v{PB}
             v_and_b32 v5, 3, v{L}
             v_lshlrev_b32 v5, 2, v5
             v_and_b32 v6, 4, v{L}
             v_cmp_eq_u32 vcc, 0, v6
             s_add_u32 s38, s38, 16384
             s_add_u32 s39, s39, 16384
             v_add_u32 v6, s38, v5
             v_add_u32 v7, s39, v5
             v_cndmask_b32 v249, v7, v6, vcc
             s_lshl_b32 s41, s{JP}, 2
             s_add_u32 s38, s38, s41
             s_lshl_b32 s41, s{KQ}, 2
             s_add_u32 s39, s39, s41
             v_and_b32 v5, 1, v{L}
             v_cmp_eq_u32 vcc, 0, v5
             v_mov_b32 v6, s38
             v_mov_b32 v7, s39
             v_cndmask_b32 v6, v7, v6, vcc
             v_lshrrev_b32 v7, 1, v0
             v_lshl_add_u32 v250, v7, 16, v6
             v_mov_b32 v251, 0'''.format(PA=vPA, PB=vPA + 1, L=L, JP=sJP, KQ=sKQ))
        b('buffer_store_dword v251, v250, s[%d:%d], 0 offen sc1' % (S_F, S_F + 3))
    tail_setup_a(b)
    if opt.ptouch == 1: b.extend(page_touch())
    b('s_lshr_b32 s41, s%d, 1' % sW)
    b('v_bfe_u32 v5, v%d, 2, 2\nv_and_b32 v6, 3, v%d' % (L, L))
    for m in range(4):
        b('v_add_u32 v%d, %d, v3\nv_xor_b32 v%d, v%d, v4\nv_lshlrev_b32 v%d, 4, v%d\nv_lshl_add_u32 v%d, v3, 8, v%d' % (T, 4 * m, T, T, T, T, vKD + m, T))
    for m in range(2):
        b('v_add_u32 v%d, %d, v3\nv_lshlrev_b32 v%d, 1, v%d\nv_xor_b32 v%d, v%d, v4\nv_lshlrev_b32 v%d, 4, v%d\nv_lshl_add_u32 v%d, v3, 8, v%d' % (T, 4 * m, T, T, T, T, T, T, vVD + m, T))
    b('s_lshl_b32 s41, s41, 13\nv_xor_b32 v%d, v3, v4\nv_lshlrev_b32 v%d, 8, v4\nv_add_u32 v%d, s41, v%d' % (T, T + 1, T + 1, T + 1))
    for k in range(4): b('v_xor_b32 v%d, %d, v%d\nv_lshl_add_u32 v%d, v%d, 4, v%d' % (T + 2, 4 * k, T, vKA + k, T + 2, T + 1))
    b('''v_lshl_add_u32 v{a}, v3, 2, v5
         v_lshlrev_b32 v{c}, 8, v{a}
         v_lshl_add_u32 v{c}, v6, 3, v{c}
         s_add_u32 s41, s41, {vs}
         v_add_u32 v{c}, s41, v{c}
         v_and_b32 v{a}, 7, v{a}
         s_and_b32 s38, s{w}, {rot}
         s_lshl_b32 s38, s38, 1
         v_xor_b32 v{a}, s38, v{a}'''.format(a=T, c=T + 1, vs=VS0, w=sW, rot=0 if opt.own else 2))
    for dt in range(8): b('v_xor_b32 v%d, %d, v%d\nv_lshl_add_u32 v%d, v%d, 5, v%d' % (T + 2, dt, T, vVA + dt, T + 2, T + 1))
    b('''v_lshl_add_u32 v{c}, v3, 3, v5
         v_lshlrev_b32 v{c}, 9, v{c}
         s_lshr_b32 s41, s{w}, 1
         s_lshl_b32 s41, s41, 8
         v_add_u32 v{c}, s41, v{c}
         v_lshl_add_u32 v{a}, v5, 2, v6'''.format(a=T, c=T + 1, w=sW))
    for k in range(4): b('v_xor_b32 v%d, %d, v%d\nv_lshl_add_u32 v%d, v%d, 4, v%d' % (T + 2, 4 * k, T, vWA + k, T + 2, T + 1))
    b('''v_lshrrev_b32 v{a}, 1, v4
         v_xor_b32 v{a}, v{a}, v3
         s_mul_i32 s41, s40, 10240
         s_add_u32 s41, s41, {xb}
         v_lshlrev_b32 v{c}, 7, v4
         v_add_u32 v{c}, s41, v{c}'''.format(a=T, c=T + 1, xb=XBUF[0]))
    for k in range(2): b('v_xor_b32 v%d, %d, v%d\nv_lshl_add_u32 v%d, v%d, 4, v%d' % (T + 2, 4 * k, T, vXA + k, T + 2, T + 1))
    c = math.log2(math.e) / math.sqrt(128.0)
    b('s_mov_b32 s%d, 0x%08x\ns_mov_b32 s%d, 0x%08x\ns_mov_b32 s%d, 0x%08x\ns_mov_b32 s%d, 0' % (sSC, f32bits(c), sSC + 1, f32bits(c), sTH, f32bits(2.0 ** 30), sEX))
    b('v_lshl_add_u32 v%d, v%d, 4, s%d\nv_add_u32 v%d, 0x10000, v%d' % (vSW, L, sW4, vSW + 1, vSW))
    b('v_mov_b32 v%d, 0x3f803f80' % T)
    for i in range(4): b('v_accvgpr_write_b32 a%d, v%d' % (aONE + i, T))
    if opt.upfront != 2:
        for g in dma_wq(1) + (dma_x(1) if opt.upfront == 3 else []): b.extend(g)
    if opt.touchc < 0: wo_srd(b, 92); wo_touch(b, 92)
    return b

def zero_acc():
    return ['v_accvgpr_write_b32 a%d, 0' % i for i in range(180 if opt.ones else 160)] + ([] if opt.ones else ['v_mov_b32 v%d, 0' % (vL + i) for i in range(5)])

def conv(k):
    L = []
    for qs in range(5):
        d = rQ(k, qs)
        if opt.fs: pass
        elif opt.pk: L += ['v_pk_mul_f32 %s, %s, s[%d:%d]' % (vr(d + 2 * i, 2), vr(d + 2 * i, 2), sSC, sSC + 1) for i in range(4)]
        else: L += ['v_mul_f32 v%d, s%d, v%d' % (d + i, sSC, d + i) for i in range(8)]
        L += ['v_cvt_pk_bf16_f32 v%d, v%d, v%d' % (d + i, d + 2 * i, d + 2 * i + 1) for i in range(4)]
    return L
def qk0_mfmas():
    bb = []
    for f in range(8):
        k, kt = divmod(f, 2)
        for qs in range(5):
            s = rS(kt, qs)
            bb.append(I('%s %s, %s, %s, %s' % (MF, vr(s, 4), vr(vF + 4 * (f % NB), 4), vr(rQ(k, qs), 4), '0' if k == 0 else vr(s, 4))))
    return bb
def kread0(f):
    k, kt = divmod(f, 2)
    return [I('ds_read_b128 %s, v%d offset:%d' % (vr(vF + 4 * (f % NB), 4), vKA + k, kt * 4096), 'g%d' % f)]

def k1_qproj():
    b = Block('qproj')
    bb = []
    for c in range(16):
        for t in range(8):
            for qs in range(5):
                d = rQ(t // 2, qs) + 4 * (t % 2)
                bb.append(I('%s %s, %s, %s, %s' % (MF, vr(d, 4), ar(aFA + 4 * (t % 4), 4), ar(aFB + 20 * (c % 2) + 4 * qs, 4), '0' if c == 0 else vr(d, 4))))
    G = Gaps(bb, 8)
    def ybar(c): return -1 if c == 0 else 40 * c - 14
    cur = [0] * 4
    def wq_read(c, t):
        k, bsel = divmod(t, 2)
        want = 0 if WBUF[c % 3] < 65536 else 131072
        off = WBUF[c % 3] - want + 8 * bsel
        r = aFA + 4 * (t % 4)
        L = []
        if bsel == 0 and want != cur[k]:
            L.append(I('v_add_u32 v%d, 0x%x, v%d' % (vWA + k, (want - cur[k]) & 0xffffffff, vWA + k))); cur[k] = want
        return L, [I('ds_read_b64_tr_b16 %s, v%d offset:%d' % (ar(r, 2), vWA + k, off), 'fa'), I('ds_read_b64_tr_b16 %s, v%d offset:%d' % (ar(r + 2, 2), vWA + k, off + 2048), 'fa%d_%d' % (c, t))]
    kvq = dma_kv('K', 0, True) + dma_kv('K', 1, True) + dma_kv('V', 0, True) + dma_kv('V', 1, True) + stash_load('K', 2) + stash_load('V', 2) + stash_load('K', 3)
    nkv = opt.kvend
    bursts = dict(tuple(int(v) for v in x.split(':')) for x in opt.burst.split())
    nst = sum(bursts.values()) - 4
    assert 0 <= nst <= 3
    if bursts: kvq = dma_kv('K', 0) + dma_kv('K', 1) + dma_kv('V', 0) + dma_kv('V', 1) + kvq[16:]
    for c in range(16):
        y = ybar(c); base = 40 * c
        G.put(y, I('@waitlgkm *'), I('@waitvm wq%d' % c + (',x%d' % (c // 2) if c % 2 == 0 else '') + (',K0' if c == 15 else '')), I('s_barrier'))
        if opt.qstamps and c % opt.qevery == 0: G.put(y, *stamp_ins())
        if c == 3:
            G.put(y + 9, I('v_and_b32 v4, 1, v%d' % vLANE)); G.put(y + 10, I('v_lshlrev_b32 v4, 4, v4')); G.put(y + 11, I('v_lshlrev_b32 v4, v4, 1'))
            G.put(y + 12, I('v_lshrrev_b32 v1, 1, v0')); G.put(y + 13, I('v_lshl_add_u32 v1, v1, 16, v%d' % vDA))
            G.put(y + 14, I('@waitvm fz'), I('buffer_atomic_add v4, v1, s[%d:%d], 0 offen sc1' % (S_D, S_D + 3)))
        xr = [I('ds_read_b128 %s, v%d offset:%d' % (ar(aFB + 20 * (c % 2) + 4 * qs, 4), vXA + c % 2, (c // 2 % 2) * 20480 + 2048 * qs), 'xr%d_%d' % (c, qs)) for qs in range(5)]
        for t in range(8):
            g = max(base + 5 * (t - 3) - 1, y + 1 if c else y)
            pre, rd = wq_read(c, t)
            G.put(max(g - 1, -1), *pre); G.put(g, *rd)
            if t == 0:
                for qs in range(5): G.put(y + ((2, 4, 5, 6, 7)[qs] if c else 0), xr[qs])
                G.put(base - 1, I('@waitlgkm fa%d_1,xr%d_4' % (c, c)))
            if t % 2 == 0 and t: G.put(base + 5 * t - 1, I('@waitlgkm fa%d_%d' % (c, t + 1)))
        d = []
        if c == 0 and opt.upfront != 2: d += (dma_x(1) if opt.upfront == 1 else []) + dma_wq(2)
        if 1 <= c < 14: d += dma_wq(c + 2)
        if c % 2 == 0 and 2 <= c < 14: d += dma_x(c // 2 + 1)
        if not bursts and c < nkv: d += kvq[(c * len(kvq)) // nkv:((c + 1) * len(kvq)) // nkv]
        flat = [x for g in d for x in g]
        if c in bursts:
            if flat: G.spread2(flat, y + 1 if c else 0, y + 14)
            flat = [x for g in kvq[:4 * bursts[c]] for x in g]; kvq = kvq[4 * bursts[c]:]
            G.spread2(flat, y + 15, y + 15 + len(flat) // 2); flat = []
        late = lambda w, sl, k: stash_flush(w, sl) if nst > k else [x for g in dma_kv(w, sl) for x in g]
        if c == 14: flat += late('K', 2, 0) + late('V', 2, 1)
        if c == 15: flat += late('K', 3, 2)
        if opt.ptouch > 1 and c == opt.ptouch: flat += [I(x) for x in page_touch()]
        if c == opt.touchc:
            tb = Block('x'); q = 92 if c < 13 else S_WO; wo_srd(tb, q); wo_touch(tb, q); flat += tb.ins
        if flat: G.spread2(flat, y + 1 if c else 0, 25 if c == 0 else y + (39 if c < 14 else 20), opt.qcl)
    G.spread2(zero_acc(), 20, 580)
    for f in range(3): G.put(624 + 5 * f, *kread0(f))
    G.spread2(conv(0), 613, 626); G.spread2(conv(1), 627, 639)
    em = G.emit()
    if 'd' in opt.qf: em = [x for x in em if x.cls not in ('dma', 'vld') and 'm0' not in x.w]
    if 'b' in opt.qf: em = [x for x in em if x.op != 's_barrier']
    if 'h' in opt.qf:
        k = [0]
        def keep(x):
            if x.op != 's_barrier': return True
            k[0] += 1; return k[0] % 2 == 1
        em = [x for x in em if keep(x)]
    if 'w' in opt.qf: em = [x for x in em if not (x.op == '@waitlgkm' and x.wait == ['*'])]
    if 'r' in opt.qf: em = [x for x in em if x.cls != 'dsr']
    if 'z' in opt.qf: em = [x for x in em if x.op != 'v_accvgpr_write_b32']
    if 'x' in opt.qf: em = [x for x in em if x.op != 'ds_read_b128']
    if 't' in opt.qf: em = [x for x in em if x.op != 'ds_read_b64_tr_b16']
    b.extend(em)
    print('qproj est cycles', G.est_cycles(16), file=sys.stderr)
    G = Gaps(qk0_mfmas(), 8)
    for f in range(3, 8): G.put(5 * (f - 3) - 1, *kread0(f))
    G.spread2(conv(2), -1, 17); G.spread2(conv(3), 18, 27)
    b.extend(G.emit())
    stamp(b)
    return b

XBAR = 66
aK = 184
def kread(f, slot):
    kt, k = divmod(f, 4)
    return [I('ds_read_b128 %s, v%d offset:%d' % (ar(aK + 4 * f, 4) if opt.chain else vr(vF + 4 * (f % NB), 4), vKA + k, slot * 16384 + kt * 4096), 'f%d' % f)]
def vread(f, slot):
    dt = f - 8; r = vF + 4 * (f % NB)
    return [I('ds_read_b64_tr_b16 %s, v%d offset:%d' % (vr(r, 2), vVA + dt, slot * 16384), 'fx'),
            I('ds_read_b64_tr_b16 %s, v%d offset:%d' % (vr(r + 2, 2), vVA + dt, slot * 16384 + 4096), 'f%d' % f)]
def neg_adds(kt): return ['v_add_f32 v%d, v%d, v%d' % (rS(kt, qs) + i, rS(kt, qs) + i, vN + 4 * qs) for qs in range(5) for i in range(4)]
def sm_chain(par):
    C = []; pend = []
    for kt in range(2):
        for qs in range(5):
            s = rS(kt, qs); p = rP(par, qs) + 2 * kt
            e = ['v_exp_f32 v%d, v%d' % (s + i, s + i) for i in range(4)]
            a = ['v_add_f32 v%d, v%d, v%d' % (vL + qs, vL + qs, s + i) for i in range(4)]
            cv = ['v_cvt_pk_bf16_f32 v%d, v%d, v%d' % (p + i, s + 2 * i, s + 2 * i + 1) for i in range(2)]
            if opt.fs: C += [('v_mul_f32 v%d, s%d, v%d' % (s + i, sSC, s + i), kt, qs) for i in range(4)]
            C.append((e[0], kt, qs)); C += pend
            if opt.ones: C += [(x, kt, qs) for x in (e[1], e[2], cv[0], e[3])]; pend = [(cv[1], kt, qs)]
            else: C += [(x, kt, qs) for x in (e[1], a[0], e[2], a[1], cv[0], e[3], a[2])]; pend = [(a[3], kt, qs), (cv[1], kt, qs)]
    return C + pend
def qk_mfmas(first):
    bb = []
    if opt.chain and not first:
        for kt in range(2):
            for qs in range(5):
                s = rS(kt, qs)
                for k in range(4): bb.append(I('%s %s, %s, %s, %s' % (MF, vr(s, 4), ar(aK + 16 * kt + 4 * k, 4), vr(rQ(k, qs), 4), vr(vN + 4 * qs, 4) if k == 0 else vr(s, 4))))
        return bb
    for f in range(8):
        kt, k = divmod(f, 4)
        for qs in range(5):
            s = rS(kt, qs)
            c = ('0' if first else vr(vN + 4 * qs, 4)) if k == 0 else vr(s, 4)
            bb.append(I('%s %s, %s, %s, %s' % (MF, vr(s, 4), vr(vF + 4 * (f % NB), 4), vr(rQ(k, qs), 4), c)))
    return bb
def pv_mfmas(par):
    bb = []
    for f in range(8, 16):
        for qs in range(5):
            bb.append(I('%s %s, %s, %s, %s' % (MF, ar(aO(f - 8, qs), 4), vr(vF + 4 * (f % NB), 4), vr(rP(par, qs), 4), ar(aO(f - 8, qs), 4))))
    return bb
def ones_mfmas(par): return [I('%s %s, %s, %s, %s' % (MF, ar(aL + 4 * qs, 4), ar(aONE, 4), vr(rP(par, qs), 4), ar(aL + 4 * qs, 4))) for qs in range(5)]
SPLIT = [None]; SMPOS = [None]
def period(j, peel=False, nodma=False):
    pu, pn = j % 2, (j + 1) % 2
    ks, vs = (j + 1) % 4, j
    lg = qk_mfmas(False) + pv_mfmas(pu)
    bb = []; ix = {-1: -1}
    on = ones_mfmas(pu) if opt.ones else []
    for i, x in enumerate(lg):
        bb.append(x); ix[i] = len(bb) - 1
        if on and i in ((40, 46, 52, 58, 64) if opt.onesadj else (44, 49, 54, 59, 64)): bb.append(on.pop(0))
    G = Gaps(bb, 8); N = len(bb)
    for f in range(4 if opt.chain else 3, 16):
        if opt.chain and f < 8: G.put(3 * (f - 4), *kread(f, ks)); continue
        G.put(ix[5 * (f - 3) - 1] if f > 3 else 0, *(kread(f, ks) if f < 8 else vread(f, vs)))
        if f % 2 == 0 and f < 15: G.put(ix[5 * f] - 1, I('@waitlgkm f%d' % (f + 1)))
    if opt.chain: G.put(19, I('@waitlgkm f7'))
    G.put(ix[XBAR], I('@waitlgkm *'), I('@waitvm K%d,V%d' % ((j + 2) % 4, (j + 1) % 4)), I('s_barrier'))
    if peel and j == 2:
        for f, g in ((8, XBAR + 1), (9, 69), (10, 74)): G.put(ix[g], *vread(f, 3))
    else:
        for f, g in ((0, XBAR + 1), (1, 69), (2, 71), (3, 73)) if opt.chain else ((0, XBAR + 1), (1, 69), (2, 74)): G.put(ix[g], *kread(f, (j + 2) % 4))
        G.put(N - 1, I('@waitlgkm f3' if opt.chain else '@waitlgkm f1'))
    if not opt.chain: G.put(9, I('@waitlgkm f3'))
    slots = [2, 7, 12, 17, 22, 27, 32, 37, 42, 47, 52, 57, 62] if opt.dsp == 5 else [2 + opt.dsp * m for m in range(8)]
    dl = dma_kv('K', j) + dma_kv('V', (j + 3) % 4)
    if peel: dl = dma_kv('V', 3) if j == 0 else dma_wo(j)
    if nodma: dl = []
    extra = []
    if peel and opt.sb == 1 and j < 2:
        tb = Block('x'); tail_setup_b(tb)
        cut = [k for k, x in enumerate(tb.ins) if x.w == {'v%d' % (vOD + 3)}][0] + 1
        extra = tb.ins[:cut] if j == 0 else tb.ins[cut:]
    if peel and j == 0: extra = extra + [x for g in dma_wo(0) for x in g]
    if not peel and opt.sb == 2 and j < 3 and not nodma:
        tb = Block('x'); tail_setup_b(tb); n3 = len(tb.ins) // 3
        cuts = [0] + [next(k for k in range(n3 * q, len(tb.ins)) if tb.ins[k].op not in ('s_addc_u32', 's_cselect_b32')) for q in (1, 2)] + [len(tb.ins)]
        inloop = tb.ins[cuts[j]:cuts[j + 1]]
    for m, g in enumerate(dl):
        p = ix[slots[m]]
        if not peel:
            ce, cl = opt.cape.strip()[m], opt.capl.strip()[m]
            if ce != 'x': G.put(p - 1, I('@raw s_waitcnt vmcnt(%s)' % ce))
            if cl != ce: G.put(p - 1, I('s_cbranch_vccnz L_t%d_%d' % (j, m)), I('@raw s_waitcnt vmcnt(%s)' % cl), I('L_t%d_%d:' % (j, m)))
        if len(g) == 2 and g[0].cls == 'salu': G.put(p - 1, g[0]); G.put(p, g[1])
        elif len(g) == 2: G.put(p, g[0]); G.put(p + 1, g[1])
        elif len(g) == 3: G.put(p - 2, g[0]); G.put(p - 1, g[1]); G.put(p, g[2])
        else: G.put(p, *g)
    if j == 3:
        G.put(ix[71], I('s_sub_u32 s%d, s%d, 1' % (sCNT, sCNT))); G.put(ix[77], I('s_cmp_lg_u32 s%d, 0' % sCNT))
        if opt.ramp: G.put(ix[74], I('s_cmp_le_u32 s%d, s37' % sCNT), I('s_cselect_b64 vcc, 1, vcc'))
        elif opt.rel: G.put(ix[74], I('s_cmp_le_u32 s%d, %d' % (sCNT, opt.rel)), I('s_cselect_b64 vcc, 1, vcc'))
    if opt.fbk and not peel and (j + 1) % opt.fbk == 0:
        G.put(ix[74], I('s_add_u32 s37, s37, 1')); G.put(ix[75], I('v_mov_b32 v251, s37'))
        G.put(ix[76], I('buffer_store_dword v251, v250, s[%d:%d], 0 offen sc1' % (S_F, S_F + 3)))
        G.put(ix[76], I('buffer_load_dword v252, v249, s[%d:%d], 0 offen sc1' % (S_F, S_F + 3)))
    if opt.fbk and not peel and j % opt.fbk == 0:
        G.put(ix[opt.fbpos], I('v_cmp_le_u32 vcc, s37, v252'))
        G.put(ix[opt.fbpos + 1], I('s_and_b32 vcc_lo, vcc_lo, s36'), I('s_bcnt1_i32_b32 vcc_lo, vcc_lo'))
        G.put(ix[opt.fbpos + 2], I('s_cmp_ge_u32 vcc_lo, %d' % opt.fbn), I('s_cselect_b64 vcc, 1, 0'))
    if peel and j == 0: G.put(ix[40], I('buffer_load_dword v244, v%d, s[%d:%d], 0 offen sc1' % (vDA, S_D, S_D + 3)))
    chn, chu = sm_chain(pn), sm_chain(pu)
    if SMPOS[0] is None:
        s0 = 18; gaps = list(range(s0, N)) + list(range(0, s0))
        gaps += list(range(s0, 24))
        lo = [ix[15 + 20 * kt + qs] + 4 - s0 for (_, kt, qs) in chn]
        hi = [(N - s0 + qs - 1) if kt == 0 else (N - s0 + 19 + qs) for (_, kt, qs) in chn]
        if opt.chain:
            s0 = 7; gaps = list(range(s0, N)) + list(range(0, s0))
            lo = [ix[20 * kt + 4 * qs + 3] + 4 - s0 for (_, kt, qs) in chn]
            hi = [N - s0 + 20 * kt + 4 * qs - 1 for (_, kt, qs) in chn]
        hi = [min(h, N - 1) for h in hi]
        _, pos = G.dp([x for x, _, _ in chn], gaps, lo, hi)
        SMPOS[0] = [gaps[p] for p in pos]; SPLIT[0] = sum(p < N - s0 for p in pos)
    for k, (x, _, _) in enumerate(chu):
        if k >= SPLIT[0]: G.put(SMPOS[0][k], I(x))
    for k, (x, _, _) in enumerate(chn):
        if k < SPLIT[0]: G.put(SMPOS[0][k], I(x))
    if not peel and opt.sb == 2 and j < 3 and not nodma: G.spread2(inloop, 0, N - 1)
    if peel and opt.sent and j == opt.pfper:
        pf = ['v_accvgpr_write_b32 a%d, -1' % (216 + i) for i in range(4)] + [I('buffer_store_dwordx4 a[216:219], v%d, s[%d:%d], s%d offen offset:%d sc1' % (vOL, S_P, S_P + 3, sPW + q, 1024 * k), 'pf') for q in range(3) for k in range(3)]
        if j == 2: G.spread2(pf, 0, 60)
        else: extra = extra + [x if isinstance(x, Ins) else I(x) for x in pf]
    if extra and j == 0: G.spread2(extra, ix[slots[3]] + 2, N - 1)
    if extra and j == 1: G.spread2(extra, ix[slots[4]] + 1, N - 1)
    if j == 3 or opt.pstamps: G.put(ix[XBAR], *stamp_ins())
    return G

def k1_attention():
    P = [period(j) for j in range(4)]
    print('period est cycles', [g.est_cycles(16) for g in P], [P[0].used(i) for i in range(len(P[0].bb))], file=sys.stderr)
    pro = Block('pro'); T = vT
    pro('L_start:')
    pro('@waitlgkm *\n@waitvm K1,V0\ns_barrier')
    for f in range(4 if opt.chain else 3): pro.extend(kread(f, 1))
    if opt.peel0:
        for g in dma_kv('K', 0) + dma_kv('V', 3): pro.extend(g)
    if opt.fallback: pro('s_cmp_lg_u32 s%d, 0\ns_cbranch_scc1 L_nomax' % sEX)
    mx = Block('pro_max')
    for qs in range(5):
        a, c = rS(0, qs), rS(1, qs); t = T + 2 * qs
        mx('v_max3_f32 v%d, v%d, v%d, v%d\nv_max3_f32 v%d, v%d, v%d, v%d' % (t, a, a + 1, a + 2, t + 1, c, c + 1, c + 2))
        mx('v_max3_f32 v%d, v%d, v%d, v%d\nv_max_f32 v%d, v%d, v%d' % (t, t, a + 3, c + 3, t, t, t + 1))
    max_finish(mx, T)
    p2 = Block('pro2'); p2('L_nomax:')
    p2.extend(neg_adds(0) + neg_adds(1) + [x for x, _, _ in sm_chain(0)[:SPLIT[0]]])
    if opt.touchc > 15 or opt.touchc < 13: wo_srd(p2)
    if opt.touchc > 15 or opt.touch2: wo_touch(p2)
    if opt.sb == 0: tail_setup_b(p2)
    p2('@waitlgkm f3' if opt.chain else '@waitlgkm f1')
    p2('s_mov_b32 s%d, 7' % sCNT)
    if opt.asym and not opt.ramp: p2('s_cmp_lt_u32 s%d, 2\ns_cselect_b64 vcc, 1, 0' % sJP)
    elif opt.ramp: p2('s_mov_b64 vcc, 0\ns_cmp_lt_u32 s%d, 2\ns_cselect_b32 s37, %d, %d' % (sJP, 7 - opt.ramp, opt.rel))
    elif opt.rel: p2('s_mov_b64 vcc, 0')
    if opt.thre and not opt.fbk and not opt.asym: p2('s_getreg_b32 s38, hwreg(HW_REG_XCC_ID, 0, 1)\ns_mov_b32 vcc_lo, s38\ns_mov_b32 vcc_hi, 0')
    if opt.fbk:
        p2('s_lshl_b32 s38, 1, s%d\ns_lshl_b32 s39, 16, s%d\ns_or_b32 s38, s38, s39\ns_andn2_b32 s36, 0xff, s38\ns_mov_b32 s37, 0\ns_mov_b64 vcc, 0\nv_mov_b32 v252, 0' % (sJP, sKQ))
    stamp(p2)
    if opt.peel0:
        p2.extend(period(0, nodma=True).emit()); p2('s_branch L_loop1')
    lp = [Block('per%d' % j) for j in range(4)]
    lp[0]('L_loop:'); lp[1]('L_loop1:')
    for j in range(4): lp[j].extend(P[j].emit())
    lp[3]('s_cbranch_scc1 L_loop')
    pe = [Block('pe%d' % j) for j in range(4)]
    pe[0].extend(period(0, True).emit()); pe[1].extend(period(1, True).emit())
    pe[1]('v_readlane_b32 s38, v244, 0\nv_readlane_b32 s39, v244, 1\ns_and_b32 s38, s38, 0xffff\ns_lshr_b32 s39, s39, 16\ns_min_u32 s38, s38, s39\ns_cmp_lt_u32 s38, 4\ns_cbranch_scc1 L_spin_d')
    pe[2]('L_back_d:')
    pe[2].extend(period(2, True).emit())
    sp = pe[3]; sp.name = 'spin_d'
    sp('L_spin_d:\ns_mov_b32 s40, %d\nL_spin_d2:\ns_sleep 4\nbuffer_load_dword v244, v%d, s[%d:%d], 0 offen sc1\ns_waitcnt vmcnt(0)' % (opt.spin, vDA, S_D, S_D + 3))
    sp('v_readlane_b32 s38, v244, 0\nv_readlane_b32 s39, v244, 1\ns_and_b32 s38, s38, 0xffff\ns_lshr_b32 s39, s39, 16\ns_min_u32 s38, s38, s39\ns_cmp_ge_u32 s38, 4\ns_cbranch_scc1 L_back_d')
    sp('s_sub_u32 s40, s40, 1\ns_cmp_lg_u32 s40, 0\ns_cbranch_scc1 L_spin_d2\ns_branch L_back_d')
    return pro, mx, p2, lp, pe

def max_finish(b, T):
    for qs in range(5): b('v_mov_b32 v%d, v%d' % (T + 2 * qs + 1, T + 2 * qs))
    for qs in range(5): b('v_permlane16_swap_b32 v%d, v%d' % (T + 2 * qs, T + 2 * qs + 1))
    for qs in range(5): b('v_max_f32 v%d, v%d, v%d' % (T + 2 * qs, T + 2 * qs, T + 2 * qs + 1))
    for qs in range(5): b('v_mov_b32 v%d, v%d' % (T + 2 * qs + 1, T + 2 * qs))
    for qs in range(5): b('v_permlane32_swap_b32 v%d, v%d' % (T + 2 * qs, T + 2 * qs + 1))
    for qs in range(5): b('v_max_f32 v%d, v%d, v%d' % (T + 2 * qs, T + 2 * qs, T + 2 * qs + 1))
    for qs in range(5):
        for i in range(4): b('v_sub_f32 v%d, 0, v%d' % (vN + 4 * qs + i, T + 2 * qs))

def poll_test(reg, mask, thr=1): return ['v_cmp_le_u32 vcc, %d, v%d' % (thr, reg), 's_and_b32 s38, vcc_lo, s%d' % mask, 's_cmp_lg_u32 s38, s%d' % mask]
def spin_block(name, addr, mask, thr=1):
    sp = Block('spin_' + name)
    if opt.poll2:
        ld = lambda r: 'buffer_load_dword v%d, v%d, s[%d:%d], 0 offen sc1' % (r, addr, S_F, S_F + 3)
        sp('L_spin_%s:\ns_mov_b32 s40, %d\ns_waitcnt vmcnt(0)\n%s\ns_sleep %d\nL_spin_%s2:\n%s\ns_waitcnt vmcnt(1)' % (name, opt.spin, ld(244), opt.poll2, name, ld(255)))
        sp.extend(poll_test(244, mask, thr))
        sp('s_cbranch_scc0 L_back_%s\ns_sleep 0\n%s\ns_waitcnt vmcnt(1)' % (name, ld(244)))
        sp.extend(poll_test(255, mask, thr))
        sp('s_cbranch_scc0 L_back_%s\ns_sub_u32 s40, s40, 1\ns_cmp_lg_u32 s40, 0\ns_cbranch_scc1 L_spin_%s2\ns_branch L_back_%s' % (name, name, name))
        return sp
    sp('L_spin_%s:\ns_mov_b32 s40, %d\nL_spin_%s2:\ns_sleep 1\nbuffer_load_dword v244, v%d, s[%d:%d], 0 offen sc1\ns_waitcnt vmcnt(0)' % (name, opt.spin, name, addr, S_F, S_F + 3))
    sp.extend(poll_test(244, mask, thr))
    sp('s_cbranch_scc0 L_back_%s\ns_sub_u32 s40, s40, 1\ns_cmp_lg_u32 s40, 0\ns_cbranch_scc1 L_spin_%s2\ns_branch L_back_%s' % (name, name, name))
    return sp

def k1_tail():
    t1 = Block('tail1'); t2 = Block('tail2'); L = vLANE
    t1.extend([x for x, _, _ in sm_chain(1)[SPLIT[0]:]])
    t1.extend(ones_mfmas(1))
    G = Gaps(pv_mfmas(1), 8)
    for f in range(11, 16): G.put(5 * (f - 11) + 4, *vread(f, 3))
    R = vN + 9
    rc = ['v_accvgpr_read_b32 v%d, a%d' % (R + qs, aL + 4 * qs) for qs in range(5)]
    rc += ['v_add_f32 v%d, v%d, v%d' % (R + 5, R, R + 1), 'v_add_f32 v%d, v%d, v%d' % (R + 6, R + 2, R + 3), 'v_add_f32 v%d, v%d, v%d' % (R + 5, R + 5, R + 4), 'v_add_f32 v%d, v%d, v%d' % (R + 5, R + 5, R + 6)]
    if opt.fallback:
        rc += ['v_cmp_ngt_f32 vcc, s%d, v%d' % (sTH, R + 5), 's_lshl_b32 s39, s%d, 2' % sW, 's_add_u32 s39, s39, %d' % BADB, 'v_mov_b32 v%d, s39' % (R + 6),
               's_cmp_lg_u64 vcc, 0', 's_cselect_b32 s38, 1, 0', 'v_mov_b32 v%d, s38' % (R + 5), I('ds_write_b32 v%d, v%d' % (R + 6, R + 5), 'bad'), 'v_mov_b32 v%d, %d' % (R + 6, BADB)]
    rc += ['v_rcp_f32 v%d, v%d' % (vN + 2 * i, R + i) for i in range(5)]
    G.spread2(rc, 2, 11)
    if opt.fallback:
        G.put(12, I('@waitlgkm bad'), I('@waitvm wo0,wo1'), I('s_barrier'), I('ds_read_b128 %s, v%d' % (vr(R + 7, 4), R + 6)))
        G.put(16, I('v_or_b32 v%d, v%d, v%d' % (R + 5, R + 7, R + 8)), I('v_or3_b32 v%d, v%d, v%d, v%d' % (R + 5, R + 5, R + 9, R + 10)))
        G.put(17, I('v_readfirstlane_b32 s38, v%d' % (R + 5)))
        G.put(18, I('s_cmp_lg_u32 s%d, 0' % sEX), I('s_cselect_b32 s38, 0, s38'), I('s_cmp_lg_u32 s38, 0'), I('s_cbranch_scc1 L_fallback'))
    def out(kl):
        Lst = []
        for qs in range(5):
            idx = 5 * kl + qs
            d = BS[0][idx] if kl < 2 else BS[1][idx - 10] if opt.own else hole(idx % 10); e = hole(10 + idx % 5)
            src = [aO(2 * kl, qs) + i for i in range(4)] + [aO(2 * kl + 1, qs) + i for i in range(4)]
            tmp = [d + i for i in range(4)] + [e + i for i in range(4)]
            Lst += ['v_accvgpr_read_b32 v%d, a%d' % (tmp[i], src[i]) for i in range(8)]
            if kl and opt.pk2: Lst += ['v_pk_mul_f32 %s, %s, %s op_sel_hi:[1,0]' % (vr(tmp[i], 2), vr(tmp[i], 2), vr(vN + 2 * qs, 2)) for i in range(0, 8, 2)]
            else: Lst += ['v_mul_f32 v%d, v%d, v%d' % (tmp[i], vN + 2 * qs, tmp[i]) for i in range(8)]
            Lst += ['v_cvt_pk_bf16_f32 v%d, v%d, v%d' % (d + i, tmp[2 * i], tmp[2 * i + 1]) for i in range(4)]
            if opt.stcap: Lst += [I('@raw s_waitcnt vmcnt(%d)' % opt.stcap)]
            Lst += [I('buffer_store_dwordx4 %s, v%d, s[%d:%d], s%d offen offset:%d%s' % (vr(d, 4), vOL + qs // 4, S_O, S_O + 3, sOK + kl, 1024 * (qs % 4), opt.o_st_pol), 'Oa' if kl < 2 else 'O')]
            if kl >= 2 and not opt.own: Lst += [I('ds_write_b128 v%d, %s offset:%d' % (vXW, vr(d, 4), 1024 * (idx - 10)))]
        return Lst
    sDL = [30, 33, 28, 36, 37, 34, 29]
    b0 = [WOB[c % 5] for c in range(8)]; b1 = [WOB[(c ^ 1) % 5] if c < 2 or opt.early else WOB[c % 5] for c in range(8)]
    if opt.own:
        b0[1] = b0[0] + 16384; b1[0] -= 16384; b1[1] = b1[0] + 16384
    sc = ['s_lshr_b32 s41, s%d, 1' % sW]
    for c in range(7):
        d0, d1 = b0[c + 1] - b0[c], b1[c + 1] - b1[c]
        sc += ['s_mul_i32 s%d, s41, 0x%x' % (sDL[c], (d1 - d0) & 0xffffffff), 's_add_u32 s%d, s%d, 0x%x' % (sDL[c], sDL[c], d0 & 0xffffffff)] if d0 != d1 else ['s_mov_b32 s%d, 0x%x' % (sDL[c], d0 & 0xffffffff)]
    if opt.early: sc += ['s_lshl_b32 s26, 0x1111, s%d' % sW, 's_and_b32 s26, s26, s%d' % MK1[1], 's_xor_b32 s27, s26, s%d' % MK1[1]]
    G.spread2(out(0) + sc, 19, 39)
    t1.extend(G.emit(-1, 18)); t2.extend(G.emit(19, 39))
    for kl in (2, 3, 1) if not (opt.early or opt.own) else (1, 2, 3):
        mark = len(t2.ins) + 40; t2.extend(out(kl))
    t2('v_mov_b32 v245, 1\nv_mov_b32 v254, 2')
    if opt.early: t2('@waitvm Oa\nbuffer_store_dword v245, v%d, s[%d:%d], 0 offen sc1' % (vFA, S_F, S_F + 3))
    stamp(t2)
    bb = []; frs = []; first = []; last = []
    AR = [32, 36, 40, 44, 8, 12, 16, 20] if opt.joint else [32, 36, 40, 44, 8, 12] if opt.t2ch else [32, 36, 40, 44]; NA = len(AR)
    done = {}
    def mf(c, kp, n, f, fi):
        a = 4 * (5 * n + f)
        bb.append(I('%s %s, %s, %s, %s' % (MF, ar(a, 4), vr(AR[fi % NA], 4), vr(BS[c % 3][5 * kp + f], 4), '0' if (c, kp) == (0, 0) else ar(a, 4))))
    for c in range(8):
        if opt.joint and c >= 6:
            for n in (4, 5, 6, 7, 1, 2, 3, 0) if c == 6 else ():
                fi = len(frs); frs += [(6, 0, n), (6, 1, n), (7, 0, n), (7, 1, n)]; first += [len(bb) + k for k in range(4)]
                for f in range(5):
                    for k in range(4): mf(6 + k // 2, k % 2, n, f, fi + k)
                    done[5 * n + f] = len(bb) - 1
                last += [len(bb) - 4 + k for k in range(4)]
            continue
        if opt.t2ch:
            for n in range(8) if c < 7 else (4, 5, 6, 7, 1, 2, 3, 0):
                fi = len(frs); frs += [(c, 0, n), (c, 1, n)]; first += [len(bb), len(bb) + 1]
                for f in range(5): mf(c, 0, n, f, fi); mf(c, 1, n, f, fi + 1)
                last += [len(bb) - 2, len(bb) - 1]
            continue
        seq = [(kp, n) for kp in range(2) for n in range(8)]
        if c == 7: seq = [(kp, n) for kp in range(2) for n in (4, 5, 6, 7)] + [(kp, n) for kp in range(2) for n in (1, 2, 3, 0)]
        for kp, n in seq:
            fi = len(frs); frs.append((c, kp, n)); first.append(len(bb))
            for f in range(5): mf(c, kp, n, f, fi)
            last.append(len(bb) - 1)
    G = Gaps(bb, 8)
    bars = {0: 'wo0,wo1,wo2', 2: '', 3: 'wo3,wo4', 5: 'wo5,wo6', 7: 'wo7'}
    if opt.early: bars = {0: 'wo0,wo1,wo2', 2: 'wo3', 4: 'wo4,wo5', 6: 'wo6,wo7'}
    if opt.joint: bars = {0: 'wo0,wo1,wo2', 2: 'wo3,wo4', 4: 'wo5', 6: 'wo6,wo7'}
    if opt.fallback: bars[0] = 'wo2'
    for c, tg in bars.items():
        G.put(80 * c - 14 if c or not opt.fallback else opt.z0pos, *([I('@waitlgkm *')] + ([I('@waitvm ' + tg)] if tg else []) + [I('s_barrier')]))
    for fi, (c, kp, n) in enumerate(frs):
        g = max(last[fi - NA] if fi >= NA else -1, first[fi] - (18 if opt.t2ch else 16), -1)
        if c in bars and c: g = max(g, 80 * c - 13 + (fi % 2 if opt.t2ch else 0))
        if opt.joint and c >= 6: g = max(last[fi - NA], first[fi] - 22 + 3 * (fi % 4), 467 + fi % 4)
        xo = 32768 if opt.joint and c == 7 else 0
        r = AR[fi % NA]
        G.put(g, I('ds_read_b64_tr_b16 %s, v%d offset:%d' % (vr(r, 2), vRA[n], kp * 8192 + xo), 'wx'), I('ds_read_b64_tr_b16 %s, v%d offset:%d' % (vr(r + 2, 2), vRA[n], kp * 8192 + 4096 + xo), 'w%d' % fi))
        if kp == 1 and c < (6 if opt.joint else 7):
            G.put(g + 1, I('v_add_u32 v%d, s%d, v%d' % (vRA[n], sDL[c], vRA[n])))
        if opt.joint and c >= 6:
            if fi % 4 == 0: G.put(first[fi] - 1, I('@waitlgkm w%d' % (fi + 3)))
        elif fi % 2 == 0 and fi: G.put(first[fi] - 1, I('@waitlgkm w%d' % (fi + 1)))
    z0 = opt.z0pos + 1 if opt.fallback else 0
    for i in range(0 if opt.own else 10): G.put(z0 + i // 2 + (i >= 8), I('ds_read_b128 %s, v%d offset:%d' % (vr(BS[1][i], 4), vXR, 1024 * i), 'xr'))
    G.put(opt.flagpos, I('@waitvm O,Oa'), I('buffer_store_dword v254, v%d, s[%d:%d], 0 offen sc1' % (vFA, S_F, S_F + 3)))
    if not opt.own: G.put(z0 + 13, I('@waitlgkm xr'), I('s_barrier'))
    flat = lambda d: [x for g in d for x in g]
    def oload(c):
        return [I('buffer_load_dwordx4 %s, v%d, s[%d:%d], s%d offen offset:%d%s' % (vr(BS[c % 3][5 * kp + f], 4), vOL + 2 * kp + f // 4, S_OR, S_OR + 3, sORO + c, 1024 * (f % 4), opt.o_ld_pol)) for kp in range(2) for f in range(5)]
    G.spread2(flat(dma_wo(3) + dma_wo(4)), z0 + 15, z0 + 62)
    ck = opt.chkpos
    checks = [('o1', opt.pollpos, ck, 26 if opt.early else MK1[1], 1 if opt.early else 2)]
    if opt.early: checks.append(('ob', opt.chkb - opt.pleadb, opt.chkb, 27, 2))
    checks += [('o2', opt.chk2 - opt.plead, opt.chk2, MK1[2], 2), ('o3', opt.chk3 - opt.plead, opt.chk3, MK1[3], 2)]
    for name, pp, cp, mk, thr in checks:
        G.put(pp, I('buffer_load_dword v244, v%d, s[%d:%d], 0 offen sc1' % (vPA, S_F, S_F + 3)))
        G.put(cp, *[I(x) for x in poll_test(244, mk, thr) + ['s_cbranch_scc1 L_spin_' + name]])
    def even(lst, lo, hi):
        mem = [x for x in lst if x.cls in ('dma', 'vld')]; k = 0; pend = []
        for x in lst:
            if x.cls in ('dma', 'vld'):
                g = lo + (k * (hi - lo)) // max(len(mem) - 1, 1); k += 1
                for j, y in enumerate(pend): G.put(g - len(pend) + j, y)
                G.put(g, x); pend = []
            else: pend.append(x)
    c2, c3 = opt.chk2, opt.chk3
    G.spread2(oload(2), ck + 1, ck + 8)
    if opt.early:
        even(oload(3), opt.chkb + 1, opt.chkb + 24); even(flat(dma_wo(5)), opt.chkb + 29, c2 - 3)
        even(oload(4), c2 + 1, c2 + 36); even(flat(dma_wo(6)), c2 + 41, c2 + 66)
        even(oload(5), c2 + 70, c3 - 3); even(flat(dma_wo(7)), c3 + 3, c3 + 32); even(oload(6), c3 + 36, c3 + 70)
        even(oload(7), max(c3 + 74, 401), c3 + 115)
    elif opt.joint:
        even(oload(3), ck + 14, c2 - 42); even(flat(dma_wo(5)), max(c2 - 38, 150), c2 - 3)
        even(oload(4), c2 + 1, c2 + 34); even(flat(dma_wo(6) + dma_wo(7)), max(c2 + 38, 309), c3 - 34)
        even(oload(5), c3 - 31, c3 - 3); even(oload(6), c3 + 1, c3 + 24); even(oload(7), max(c3 + 27, 401), max(c3 + 50, 424))
    else:
        even(oload(3), ck + 14, c2 - 42); even(flat(dma_wo(5)), max(c2 - 38, 150), c2 - 3)
        even(oload(4), c2 + 1, c2 + 40); even(flat(dma_wo(6)), c2 + 45, c3 - 48)
        even(oload(5), c3 - 44, c3 - 3); even(oload(6), c3 + 1, c3 + 42)
        even(flat(dma_wo(7)), c3 + 47, c3 + 80); even(oload(7), max(c3 + 84, 401), c3 + 125)
    if opt.sent:
        G.put(opt.flagpos + 1, I('@waitvm pf'), I('buffer_store_dword v245, v%d, s[%d:%d], 0 offen sc1' % (vFA + 1, S_F, S_F + 3)))
        G.put(575, I('buffer_load_dword v244, v%d, s[%d:%d], 0 offen sc1' % (vPA + 1, S_F, S_F + 3)))
    RG = BS[2] + [hole(i) for i in range(10, 20)] if opt.joint else BS[0] + BS[2]
    order = [5 * nl + f for nl in (1, 2, 3, 0) for f in range(5)]
    TM = [vN, vN + 4, vN + 8, vN + 12] if opt.joint else BS[1]
    def finish(k, i):
        tm = TM[k % len(TM)]; nl, f = divmod(i, 5)
        L = ['v_accvgpr_read_b32 v%d, a%d' % (tm + e, 4 * i + e) for e in range(4)] + ['v_add_f32 v%d, v%d, v%d' % (RG[i] + e, RG[i] + e, tm + e) for e in range(4)]
        if nl and not opt.pbf: L.append(I('buffer_store_dwordx4 %s, v%d, s[%d:%d], s%d offen offset:%d%s' % (vr(RG[i], 4), vOL + f // 4, S_P, S_P + 3, sPW + nl - 1, 1024 * (f % 4), opt.p_st_pol), 'P'))
        if nl and opt.pbf:
            d = RG[5 * nl + f // 2 * 2] + 2 * (f % 2); x2 = f == 4 and opt.sent
            L += ['v_cvt_pk_bf16_f32 v%d, v%d, v%d' % (d, RG[i], RG[i] + 1), 'v_cvt_pk_bf16_f32 v%d, v%d, v%d' % (d + 1, RG[i] + 2, RG[i] + 3)]
            if f % 2 or f == 4: L.append(I('buffer_store_dwordx%d %s, v%d, s[%d:%d], s%d offen offset:%d%s' % (2 if x2 else 4, vr(RG[5 * nl + f // 2 * 2], 2 if x2 else 4), vOL, S_P, S_P + 3, sPW + nl - 1, 1024 * (f // 2), opt.p_st_pol), 'P'))
        return L
    nfin = 0
    if opt.joint:
        for i in range(20): G.put(done[20 + i] + 4, I('ds_write_b128 v%d, %s offset:%d' % (vYW, ar(80 + 4 * i, 4), 1024 * i), 'yw'))
        G.put(570, I('@waitlgkm yw'), I('s_barrier'))
        for k, i in enumerate(order): G.put(571 + k, I('ds_read_b128 %s, v%d offset:%d' % (vr(RG[i], 4), vYR, 1024 * i)))
        nfin = 15; ch = []; lo = []
        for k, i in enumerate(order[:nfin]):
            L = finish(k, i); ch += L; lo += [max(done[i] + 4, 580 + k) - 580] * len(L)
        ch, pos = G.dp(ch, list(range(580, 640)), lo)
        for x, p in zip(ch, pos): G.put(580 + p, x)
    else:
        for i in range(20): G.put(574 + 2 * i if opt.t2ch else 585 + (3 * i) // 2, I('ds_write_b128 v%d, %s offset:%d' % (vYW, ar(80 + 4 * i, 4), 1024 * i), 'yw'))
        G.put(619, I('@waitlgkm yw'), I('s_barrier'))
        for k, i in enumerate(order): G.put(620 + k, I('ds_read_b128 %s, v%d offset:%d' % (vr(RG[i], 4), vYR, 1024 * i)))
    if opt.tstamps:
        for g in (opt.flagpos + 1, 79, opt.chkpos - 1, opt.chkpos + 1, 159, 164, opt.chk2 - 1, opt.chk2 + 1, 239, opt.chk3 - 1, opt.chk3 + 1, 399, 479, 559): G.put(g, *stamp_ins())
    print('oproj est cycles', G.est_cycles(16), file=sys.stderr)
    if opt.fallback: t2.ins[mark:mark] = G.g[-1]; G.g[-1] = []
    blks = [t2]; lo = -1
    for name, pp, cp, mk, thr in checks:
        blks[-1].extend(G.emit(lo, cp)); lo = cp + 1
        blks.append(Block('t_' + name)); blks[-1]('L_back_%s:' % name)
    t3 = blks[-1]
    t3.extend(G.emit(lo, 639))
    stamp(t3)
    for k, i in enumerate(order):
        if k >= nfin: t3.extend(finish(k, i))
    if not opt.sent:
        t3('@waitvm P\nbuffer_store_dword v245, v%d, s[%d:%d], 0 offen sc1' % (vFA + 1, S_F, S_F + 3))
        stamp(t3)
        t3('buffer_load_dword v244, v%d, s[%d:%d], 0 offen sc1' % (vPA + 1, S_F, S_F + 3))
    else: stamp(t3)
    t3.extend(poll_test(244, sMK2) + ['s_cbranch_scc1 L_spin_p'])
    t4 = Block('tail4'); t4('L_back_p:')
    spins = [spin_block(name, vPA, mk, thr) for name, pp, cp, mk, thr in checks] + [spin_block('p', vPA + 1, sMK2)]
    LD = [BS[1][3 * (f // 2) + j] for j in (1, 2, 3) for f in (0, 2, 4)] if opt.sent else None
    def preg(j, f): return LD[3 * (j - 1) + f // 2] if opt.sent else RG[5 * j + f]
    if opt.sent:
        blks.append(t4); t4('s_mov_b32 s41, %d' % opt.spin)
        t4 = Block('try'); t4('L_try:')
    else: stamp(t4)
    for f in range(0, 5, 2 if opt.pbf else 1):
        for j in (1, 2, 3):
            if opt.pbf: t4('buffer_load_dwordx%d %s, v%d, s[%d:%d], s%d offen offset:%d%s' % (2 if f == 4 and opt.sent else 4, vr(preg(j, f), 2 if f == 4 and opt.sent else 4), vOL, S_P, S_P + 3, sPR + j - 1, 1024 * (f // 2), opt.p_ld_pol))
            else: t4('buffer_load_dwordx4 %s, v%d, s[%d:%d], s%d offen offset:%d%s' % (vr(RG[5 * j + f], 4), vOL + f // 4, S_P, S_P + 3, sPR + j - 1, 1024 * (f % 4), opt.p_ld_pol))
    if opt.sent:
        regs = [preg(j, f) + e for f in (0, 2, 4) for j in (1, 2, 3) for e in range(2 if f == 4 else 4)]
        t4('v_max_u32 v244, v%d, v%d' % (regs[0], regs[1]))
        for k in range(2, len(regs), 2): t4('v_max3_u32 v244, v244, v%d, v%d' % (regs[k], regs[k + 1]))
        t4('v_cmp_eq_u32 vcc, -1, v244\ns_cbranch_vccnz L_spin_s')
        blks.append(t4); t4 = Block('fin'); t4('L_fin:'); stamp(t4)
        sp = Block('spin_s')
        sp('L_spin_s:\ns_sub_u32 s41, s41, 1\ns_cmp_eq_u32 s41, 0\ns_cbranch_scc1 L_fin\ns_sleep 1\nbuffer_load_dword v244, v27, s[%d:%d], 0 offen sc1\ns_waitcnt vmcnt(0)' % (S_P, S_P + 3))
        sp('v_cmp_eq_u32 vcc, -1, v244\ns_cbranch_vccnz L_spin_s\ns_branch L_try')
        spins.append(sp)
    blks.append(t4)
    if opt.pbf: t4('s_mov_b32 s39, 0xffff0000')
    for f in range(5):
        a, b1, b2, b3 = RG[f], RG[5 + f], RG[10 + f], RG[15 + f]
        if opt.pbf:
            for j in (1, 2, 3):
                src = preg(j, f // 2 * 2) + 2 * (f % 2); tm = RG[5 * j + 1]
                t4('v_lshlrev_b32 v%d, 16, v%d\nv_and_b32 v%d, s39, v%d\nv_lshlrev_b32 v%d, 16, v%d\nv_and_b32 v%d, s39, v%d' % (tm, src, tm + 1, src, tm + 2, src + 1, tm + 3, src + 1))
            b1, b2, b3 = RG[6], RG[11], RG[16]
        for e in range(4): t4('v_add_f32 v%d, v%d, v%d\nv_add_f32 v%d, v%d, v%d' % (a + e, a + e, b1 + e, b2 + e, b2 + e, b3 + e))
        for e in range(4): t4('v_add_f32 v%d, v%d, v%d' % (a + e, a + e, b2 + e))
        t4('v_cvt_pk_bf16_f32 v%d, v%d, v%d\nv_cvt_pk_bf16_f32 v%d, v%d, v%d\ns_mov_b32 s38, %d' % (a, a, a + 1, a + 1, a + 2, a + 3, 32768 * f))
        t4('buffer_store_dwordx2 %s, v%d, s[%d:%d], s38 offen%s' % (vr(a, 2), vST, S_OUT, S_OUT + 3, opt.out_pol))
    if opt.stamps: t4('s_waitcnt vmcnt(0)')
    stamp(t4)
    if opt.twice: t4('s_add_u32 s63, s3, 0\ns_cmp_lt_u32 s%d, 100\ns_cbranch_scc1 L_again' % sTSN)
    t4('s_endpgm')
    for b in blks:
        if 'c' in opt.t2x: b.ins = [x for x in b.ins if not (x.op == 's_cbranch_scc1' and 'spin_o' in x.text)]
        if 'p' in opt.t2x: b.ins = [x for x in b.ins if not (x.op == 's_cbranch_scc1' and 'spin_p' in x.text)]
        if 'o' in opt.t2x: b.ins = [x for x in b.ins if not (x.cls == 'vld' and 's[16:19]' in x.text)]
        if 'w' in opt.t2x: b.ins = [x for x in b.ins if x.cls != 'dma']
        if 's' in opt.t2x: b.ins = [x for x in b.ins if x.tag not in ('O', 'Oa')]
    return t1, blks, spins

def k1_fallback():
    b = Block('fb'); T = vT
    b('L_fallback:')
    b('s_waitcnt vmcnt(0) lgkmcnt(0)\ns_nop 15\ns_barrier')
    b('v_and_b32 v1, 15, v%d\nv_lshrrev_b32 v2, 4, v%d\nv_lshlrev_b32 v2, 4, v2\nv_lshl_add_u32 v%d, v1, 8, v2' % (vLANE, vLANE, T + 10))
    for qs in range(5): b('v_mov_b32 v%d, 0xff800000' % (T + 2 * qs))
    b('s_mov_b32 s39, 0')
    lp = Block('fbl'); lp('L_fb_loop:')
    for k in range(4): lp('buffer_load_dwordx4 %s, v%d, s[%d:%d], s39 offen offset:%d' % (vr(vF + 4 * k, 4), T + 10, S_K, S_K + 3, 64 * k))
    lp('s_waitcnt vmcnt(0)')
    lp.extend(qk_mfmas(True)[:20])
    lp('s_nop 15')
    for qs in range(5):
        s = rS(0, qs); t = T + 2 * qs
        lp('v_max3_f32 v%d, v%d, v%d, v%d\nv_max3_f32 v%d, v%d, v%d, v%d' % (t, t, s, s + 1, t, t, s + 2, s + 3))
    lp('s_add_u32 s39, s39, 4096\ns_cmp_lt_u32 s39, 262144\ns_cbranch_scc1 L_fb_loop')
    e = Block('fbe')
    if opt.twice: e('L_again:\ns_waitcnt vmcnt(0) lgkmcnt(0)\ns_barrier\ns_mov_b32 s34, 0x7f800000\ns_mov_b32 s36, 0x3e000000')
    max_finish(e, T)
    e.extend(zero_acc())
    e('s_and_b32 s40, s%d, 1\ns_lshl_b32 s%d, s40, 12\ns_mov_b32 s%d, s%d' % (sW, sKO, sVO, sKO))
    for g in dma_kv('K', 0) + dma_kv('K', 1) + dma_kv('K', 2) + dma_kv('K', 3) + dma_kv('V', 0) + dma_kv('V', 1) + dma_kv('V', 2): e.extend(g)
    e('s_mov_b32 s%d, 1\ns_waitcnt vmcnt(0)\ns_barrier' % sEX)
    G = Gaps(qk0_mfmas(), 8)
    for f in range(8): G.put(max(5 * (f - 3) - 1, -1), *kread0(f))
    e.extend(G.emit())
    e('s_nop 7\ns_branch L_start')
    return b, lp, e

def kernel_text(kname, blocks, traces, vgpr, accum, sgpr=102):
    d = {b.name: b for b in blocks}
    assert len(d) == len(blocks)
    place_waits(d, traces)
    n = place_nops(d, traces)
    print(kname[:12], 'nop states inserted', n, 'instructions', {b.name: len(b.ins) for b in blocks}, file=sys.stderr)
    t = '.text\n.globl %s\n.p2align 8\n.type %s,@function\n%s:\n' % (kname, kname, kname) + render(blocks)
    t += '.section .rodata,"a"\n.p2align 6\n.amdhsa_kernel %s\n' % kname
    t += '  .amdhsa_next_free_vgpr %d\n  .amdhsa_next_free_sgpr %d\n  .amdhsa_accum_offset %d\n' % (vgpr, sgpr, accum)
    t += '  .amdhsa_group_segment_fixed_size 0\n  .amdhsa_kernarg_size 104\n  .amdhsa_user_sgpr_count 2\n'
    t += '  .amdhsa_user_sgpr_kernarg_segment_ptr 1\n  .amdhsa_system_sgpr_workgroup_id_x 1\n.end_amdhsa_kernel\n'
    return t

def gen_k1(kname):
    setup = k1_setup(); qp = k1_qproj()
    pro, mx, p2, lp, pe = k1_attention(); t1, tb, spins = k1_tail()
    end = Block('end'); end('L_k1_end:\ns_endpgm')
    blocks = [setup, qp, pro, mx, p2] + lp + pe[:3] + [t1] + tb + spins + [pe[3]]
    loop = (['per0', 'per1', 'per2', 'per3'] * 3)[1 if opt.peel0 else 0:] + ['pe0', 'pe1', 'pe2', 'tail1']
    head = ['setup', 'qproj', 'pro', 'pro_max', 'pro2']
    rest = [b.name for b in tb]
    slow = []
    for b in tb:
        if b.name.startswith('t_'): slow += ['spin_' + b.name[2:]] * 2
        if b.name == 'tail4': slow += ['spin_p'] * 2
        if b.name == 'fin': slow += ['spin_s', 'spin_s', 'try', 'spin_s']
        slow.append(b.name)
    traces = [head + loop + rest, head + loop[:-2] + ['spin_d', 'spin_d', 'pe2', 'tail1'] + slow]
    if opt.fallback:
        fb, fbl, fbe = k1_fallback(); blocks += [fb, fbl, fbe]
        traces.append(head + loop + ['fb', 'fbl', 'fbl', 'fbe', 'pro', 'pro2'] + loop + rest)
    blocks.append(end)
    return kernel_text(kname, blocks, traces, 512, 256)

def gen_diag(kname):
    a, b_, gain = [int(x, 0) for x in opt.diag.split()]
    b = Block('dg')
    b('''s_cmp_ge_u32 s2, 1
         s_cbranch_scc1 L_dg_end
         s_load_dwordx2 s[4:5], s[0:1], 96
         s_waitcnt lgkmcnt(0)
         s_add_u32 s4, s4, 0x3000000
         s_addc_u32 s5, s5, 0
         s_load_dword s6, s[4:5], %d
         s_load_dword s7, s[4:5], %d
         s_memrealtime s[8:9]
         s_waitcnt lgkmcnt(0)
         s_sub_u32 s6, s7, s6
         s_min_u32 s6, s6, 20000
         s_mul_i32 s6, s6, %d
         L_dg:
         s_memrealtime s[10:11]
         s_waitcnt lgkmcnt(0)
         s_sub_u32 s10, s10, s8
         s_cmp_lt_u32 s10, s6
         s_cbranch_scc1 L_dg
         L_dg_end:
         s_endpgm''' % (a, b_, gain))
    return kernel_text(kname, [b], [['dg']], 8, 8, 16)

def main(out, only=None):
    t = open('cdna_kernels/%s.s.ref' % NAME).read().split('; Override launch')[0]
    k1 = NAME + '_kernel'
    if opt.diag.strip():
        t += '; @launch kernel=%s grid=(256,1,1) block=(256,1,1) lds=163840\n; @launch kernel=diag_kernel grid=(1,1,1) block=(64,1,1) lds=0\n' % k1
    else: t += '; @launch grid=(256,1,1) block=(256,1,1) lds=163840\n'
    t += '''; Generated by a script (software-pipelined instruction placement, s_waitcnt counts and wait states are computed).
;     reaches 2^30 (or is not finite) the workgroup computes the true maximum over all keys and redoes both heads.
'''
    t += '.amdgcn_target "amdgcn-amd-amdhsa--gfx950"\n'
    t += gen_k1(k1)
    if opt.diag.strip(): t += gen_diag('diag_kernel')
    open(out, 'w').write(t)

if __name__ == '__main__':
    out = sys.argv[1]; only = None
    for a in sys.argv[2:]:
        k, v = a.split('=')
        if k == 'only': only = int(v)
        elif isinstance(getattr(opt, k), bool): setattr(opt, k, v == '1')
        elif isinstance(getattr(opt, k), int): setattr(opt, k, int(v))
        else: setattr(opt, k, (' ' + v.replace('+', ' ')) if v else '')
    main(out, only)
```
